```python
import torch

def _softmax(x, axis=-1):
    return torch.softmax(x, dim=axis)
def _gelu(x):
    return torch.nn.functional.gelu(x, approximate="tanh")
def _silu(x):
    return torch.nn.functional.silu(x)
def _sigmoid(x):
    return torch.sigmoid(x)
def _layernorm(x, axis=-1, eps=1e-5):
    m = x.mean(dim=axis, keepdim=True)
    v = x.var(dim=axis, keepdim=True, unbiased=False)
    return (x - m) / torch.sqrt(v + eps)
def _scatter_add(tgt, idx, src, axis=0):
    return tgt.clone().index_add_(axis, idx, src)
def _segment_sum(src, seg, n):
    out = torch.zeros((n,) + src.shape[1:], dtype=src.dtype)
    return out.index_add_(0, seg, src)
def _pad(x, pw):
    flat = tuple(v for pair in reversed(pw) for v in pair)
    return torch.nn.functional.pad(x, flat)

kernel_name = 'parallel_sum__ssm_conv_s4__glu_gated_bilinear__prompt'

def setup_inputs():

    _w = (lambda a: (lambda t: t.to(torch.bfloat16) if t.is_floating_point() else t)(torch.as_tensor(a)))
    def _A_setup():
        B, L, D, N = 1, 2048, 512, 128
        A_re = -(lambda _x: torch.exp(torch.as_tensor(_x)))((lambda *s: torch.randn(*s, dtype=torch.bfloat16) * 6.4)(D, N))
        A_im = torch.pi * (lambda *s: torch.randn(*s, dtype=torch.bfloat16) * 0.05)(D, N)
        B_re = (lambda *s: torch.randn(*s, dtype=torch.bfloat16) * 0.1)(D, N)
        B_im = (lambda *s: torch.randn(*s, dtype=torch.bfloat16) * 0.1)(D, N)
        C_re = (lambda *s: torch.randn(*s, dtype=torch.bfloat16) * 0.1)(D, N)
        C_im = (lambda *s: torch.randn(*s, dtype=torch.bfloat16) * 0.1)(D, N)
        log_dt = (lambda *s: torch.randn(*s, dtype=torch.bfloat16) * 0.05)(D) * 0.5 - 4.0
        Dskip = (lambda *s: torch.randn(*s, dtype=torch.bfloat16) * 0.05)(D)
        return {
            "u": _w((lambda *s: torch.randn(*s, dtype=torch.bfloat16) * 0.05)(B, L, D)),
            "A_re": _w(A_re),
            "A_im": _w(A_im),
            "B_re": _w(B_re),
            "B_im": _w(B_im),
            "C_re": _w(C_re),
            "C_im": _w(C_im),
            "log_dt": _w(log_dt),
            "Dskip": _w(Dskip),
        }
    _A_in = _A_setup()

    def _B_setup():
        B, S, D, F = 1, 2048, 512, 1376
        return {
            "x": _w((lambda *s: torch.randn(*s, dtype=torch.bfloat16) * 0.05)(B, S, D)),
            "w_gate": _w((lambda *s: torch.randn(*s, dtype=torch.bfloat16) * 0.4)(D, F) * (D ** -0.5)),
            "w_up": _w((lambda *s: torch.randn(*s, dtype=torch.bfloat16) * 0.4)(D, F) * (D ** -0.5)),
            "w_down": _w((lambda *s: torch.randn(*s, dtype=torch.bfloat16) * 0.4)(F, D) * (F ** -0.5)),
        }
    _B_in = _B_setup()

    return {
        "A_u": _A_in["u"],
        "A_A_re": _A_in["A_re"],
        "A_A_im": _A_in["A_im"],
        "A_B_re": _A_in["B_re"],
        "A_B_im": _A_in["B_im"],
        "A_C_re": _A_in["C_re"],
        "A_C_im": _A_in["C_im"],
        "A_log_dt": _A_in["log_dt"],
        "A_Dskip": _A_in["Dskip"],
        "B_x": _B_in["x"],
        "B_w_gate": _B_in["w_gate"],
        "B_w_up": _B_in["w_up"],
        "B_w_down": _B_in["w_down"],
    }

def reference(A_u, A_A_re, A_A_im, A_B_re, A_B_im, A_C_re, A_C_im, A_log_dt, A_Dskip, B_x, B_w_gate, B_w_up, B_w_down):
    def _A_ref(u, A_re, A_im, B_re, B_im, C_re, C_im, log_dt, Dskip):
        Bsz, L, D = u.shape
        dt = torch.exp(log_dt)[:, None]
        A = A_re + 1j * A_im
        Bc = B_re + 1j * B_im
        Cc = C_re + 1j * C_im
        logdA = dt * A
        dB = dt * Bc
        l = (lambda x, dt: x.to(dt))(torch.arange(L), A_re.dtype)
        P = torch.exp(logdA[:, :, None] * l[None, None, :])
        K = torch.einsum("dn,dnl,dn->dl", Cc, P, dB).real
        L2 = 2 * L
        Kp = _pad(K, ((0, 0), (0, L)))
        up = (lambda x, *d: x.permute(*d))(u, 0, 2, 1)
        up = _pad(up, ((0, 0), (0, 0), (0, L)))
        Kf = (lambda x, axes=(-2,-1): torch.fft.rfft2(x.float(), dim=axes))(Kp[:, None, :], axes=(-2, -1))
        Uf = (lambda x, axes=(-2,-1): torch.fft.rfft2(x.float(), dim=axes))(up[:, :, None, :], axes=(-2, -1))
        Yf = Uf * Kf[None, :, :, :]
        y = (lambda x, s, axes=(-2,-1): torch.fft.irfft2(x, s=s, dim=axes).to(torch.bfloat16))(Yf, (1, L2), axes=(-2, -1))[:, :, 0, :L]
        y = (lambda x, *d: x.permute(*d))(y, 0, 2, 1) + u * Dskip[None, None, :]
        return y

    def _B_ref(x, w_gate, w_up, w_down):
        g = torch.einsum("bsd,df->bsf", x, w_gate)
        u = torch.einsum("bsd,df->bsf", x, w_up)
        h = g * u
        return torch.einsum("bsf,fd->bsd", h, w_down)

    x = A_u
    xn = _layernorm(x, axis=-1)
    return x + _A_ref(xn, A_A_re, A_A_im, A_B_re, A_B_im, A_C_re, A_C_im, A_log_dt, A_Dskip) + _B_ref(xn, B_w_gate, B_w_up, B_w_down)
```

```python
class K:
    _g = 0
    def __init__(self, name, vgpr=256, agpr=0, sgpr=102, extra=()):
        self.name = name; self.L = []; self.vgpr = vgpr; self.agpr = agpr; self.sgpr = sgpr
        self.extra = list(extra); self._lab = 0
    def __call__(self, s=""):
        for ln in s.split("\n"):
            t = ln.strip()
            if not t: continue
            if t.endswith(":") and not t.startswith(";"): self.L.append(t)
            else: self.L.append("    " + t)
    def lab(self, base="L"):
        K._g += 1
        return f"{base}_{K._g}"
    def srd(self, d, lo, nbytes, hi=None):
        hi = hi if hi is not None else None
        self(f"s_mov_b32 s{d}, s{lo}")
        self(f"s_mov_b32 s{d+1}, s{lo+1}")
        self(f"s_mov_b32 s{d+2}, {hex(nbytes)}")
        self(f"s_mov_b32 s{d+3}, 0x00020000")
    def text(self):
        return "\n".join([f".globl {self.name}", ".p2align 8", f".type {self.name},@function", f"{self.name}:"] + self.L + ["    s_endpgm"])
    def desc(self):
        acc = (self.vgpr + 3) // 4 * 4
        tot = acc + self.agpr if self.agpr else self.vgpr
        o = [".p2align 6", f".amdhsa_kernel {self.name}",
             f"  .amdhsa_next_free_vgpr {tot}", f"  .amdhsa_next_free_sgpr {self.sgpr}",
             f"  .amdhsa_accum_offset {acc}", "  .amdhsa_group_segment_fixed_size 0",
             "  .amdhsa_kernarg_size 128", "  .amdhsa_user_sgpr_count 2",
             "  .amdhsa_user_sgpr_kernarg_segment_ptr 1", "  .amdhsa_system_sgpr_workgroup_id_x 1"]
        o += ["  " + e for e in self.extra]
        o.append(".end_amdhsa_kernel")
        return "\n".join(o)

def module(kernels, launches, header=""):
    o = []
    if header: o.append(header.rstrip("\n"))
    if len(launches) == 1 and launches[0][0] is None:
        _, g, b, l = launches[0]
        o.append(f"; @launch grid=({g},1,1) block=({b},1,1) lds={l}")
    else:
        for (k, g, b, l) in launches:
            o.append(f"; @launch kernel={k} grid=({g},1,1) block=({b},1,1) lds={l}")
    o.append('.amdgcn_target "amdgcn-amd-amdhsa--gfx950"')
    o.append(".text")
    for k in kernels: o.append(k.text())
    o.append('.section .rodata,"a"')
    for k in kernels: o.append(k.desc())
    return "\n".join(o) + "\n"
```

```python
import re, sys
TRANS=("v_exp_","v_log_","v_rcp_","v_rsq_","v_sqrt_","v_sin_","v_cos_")
def regs(op):
    op=op.strip().lstrip('-').replace('|','')
    m=re.fullmatch(r'([vas])\[(\d+):(\d+)\]',op)
    if m: return {(m.group(1),i) for i in range(int(m.group(2)),int(m.group(3))+1)}
    m=re.fullmatch(r'([vas])(\d+)',op)
    if m: return {(m.group(1),int(m.group(2)))}
    if op=='vcc': return {('s','vcc')}
    if op in('vcc_lo','vcc_hi'): return {('s','vcc')}
    if op=='m0': return {('s','m0')}
    if op in('exec','exec_lo','exec_hi'): return {('s','exec')}
    return set()
def split_ops(s):
    out=[];d=0;cur=''
    for ch in s:
        if ch=='[':d+=1
        if ch==']':d-=1
        if ch==',' and d==0: out.append(cur.strip());cur=''
        else: cur+=ch
    if cur.strip(): out.append(cur.strip())
    return out
def parse(line):
    t=line.split(';')[0].strip()
    if not t or t.endswith(':') or t.startswith('.'): return None
    p=t.split(None,1); mn=p[0]; rest=p[1] if len(p)>1 else ''
    ops=split_ops(rest)
    ops2=[]
    mods=''
    for o in ops:
        q=o.split(None,1); ops2.append(q[0]); mods+=' '+(q[1] if len(q)>1 else '')
    I=dict(mn=mn,txt=t,rd=set(),wr=set(),cls='other',ws=1,mods=mods)
    R=lambda i: regs(ops2[i]) if i<len(ops2) else set()
    if mn=='s_nop': I['ws']=int(ops2[0],0)+1; I['cls']='nop'
    elif mn.startswith('v_mfma'):
        I['cls']='mfma'; I['passes']=8 if '32x32x' in mn else 4
        I['wr']=R(0); I['A']=R(1)|R(2); I['C']=R(3); I['rd']=I['A']|I['C']
    elif mn.startswith('v_'):
        I['cls']='valu'; I['trans']=mn.startswith(TRANS)
        I['dpp']=('row_' in mods or 'quad_perm' in mods or mn.endswith('_dpp'))
        I['perm']=mn.startswith('v_permlane'); I['rl']=mn.startswith(('v_readlane','v_readfirstlane'))
        I['wr']=R(0)
        for i in range(1,len(ops2)): I['rd']|=R(i)
        if I['perm']: I['wr']|=R(1); I['rd']|=R(0)
        if mn.startswith(('v_fmac','v_dot2c','v_mac','v_writelane')) or I['dpp']: I['rd']|=R(0)
        if mn.startswith('v_cndmask') and len(ops2)==3: I['rd']|={('s','vcc')}
        if '_co_' in mn: I['wr']|=R(1); I['rd']-=R(1)
    elif mn.startswith('ds_'):
        I['cls']='ds'
        if mn.startswith('ds_read'): I['wr']=R(0); I['rd']=R(1)
        else:
            for i in range(len(ops2)): I['rd']|=R(i)
    elif mn.startswith(('buffer_','global_')):
        I['cls']='vmem'; lds=(' lds' in mods+' ') or 'load_lds' in mn
        I['lds']=lds
        if 'load' in mn and not lds:
            I['wr']=R(0)
            for i in range(1,len(ops2)): I['rd']|=R(i)
            if 'd16' in mn: I['rd']|=R(0)
        else:
            for i in range(len(ops2)): I['rd']|=R(i)
            if 'store' in mn and ('x4' in mn or 'x3' in mn):
                I['wdata']=R(0) if mn.startswith('buffer_') else R(1)
    elif mn.startswith('s_'):
        I['cls']='salu'
        if mn.startswith(('s_cmp','s_cbranch','s_branch','s_waitcnt','s_barrier','s_endpgm','s_setprio','s_sleep','s_bitcmp')):
            for i in range(len(ops2)): I['rd']|=R(i)
        else:
            I['wr']=R(0)
            for i in range(1,len(ops2)): I['rd']|=R(i)
    return I
def check(lines, verbose=True):
    ins=[(n,parse(l)) for n,l in enumerate(lines)]
    ins=[(n,i) for n,i in ins if i]
    bad=0
    for k,(n,c) in enumerate(ins):
        d=0
        j=k-1
        while j>=0 and d<20:
            p=ins[j][1]; need=0; why=''
            vs=lambda S:{r for r in S if r[0] in 'va'}
            ss=lambda S:{r for r in S if r[0]=='s'}
            if p['cls']=='valu':
                w=p['wr']
                if c['cls']=='mfma' and vs(w)&c['rd']: need,why=2,'valu->mfma'
                if c['cls']=='valu':
                    if p.get('trans') and not c.get('trans') and vs(w)&c['rd']: need,why=max(need,1),'trans->use'
                    if p.get('trans') and c.get('trans') and vs(w)&c['rd']: need,why=max(need,1),'trans->trans'
                    if (c['dpp'] or c['perm']) and vs(w)&c['rd']: need,why=max(need,2),'valu->dpp/perm'
                    if c['rl'] and vs(w)&c['rd']: need,why=max(need,1),'valu->readlane'
                    if ss(w)&c['rd']: need,why=max(need,2),'valu sgpr->valu'
                if c['cls']=='vmem' and ss(w)&c['rd']: need,why=5,'valu sgpr->vmem'
                if ('s','exec') in w and c['cls']=='mfma': need,why=4,'valu exec->mfma'
            if p['cls']=='mfma':
                P=p['passes']; big=12 if P==8 else 8
                if c['cls']=='mfma':
                    if p['wr']&c['A']: need,why=big,'mfma D->mfma AB'
                    elif p['wr']&c['C'] and not(p['wr']==c['C'] and P==c['passes']): need,why=big-2,'mfma D->mfma C partial'
                elif c['cls'] in('valu','ds','vmem'):
                    nb=sum(1 for q in range(j+1,k) if ins[q][1]['cls']=='mfma' and ins[q][1]['passes']>=P)
                    if p['wr']&(c['rd']|c['wr']) and nb<(2 if P==8 else 3): need,why=big,'mfma D->use'
                    if c['cls']=='valu' and p['C']&c['wr']: need,why=max(need,7 if P==8 else 3),'mfma C WAR'
            if p['cls']=='salu' and ('s','m0') in p['wr'] and c['cls']=='vmem' and c.get('lds'): need,why=1,'m0->dma'
            if p['cls']=='vmem' and p.get('wdata') and p['wdata']&c['wr']:
                need,why=(2 if c['cls']=='valu' else 1),'store data WAR'
            if need>d:
                bad+=1
                if verbose: print(f"HAZ {why}: need {need} have {d}: line {ins[j][0]+1} '{p['txt']}' -> line {n+1} '{c['txt']}'")
            d+=p['ws']; j-=1
    return bad
if __name__=='__main__':
    print("hazards:",check(open(sys.argv[1]).read().split('\n')))
```

```python
import sys
sys.path.insert(0,'w')
from gl import *
import haz
NAME="parallel_sum__ssm_conv_s4__glu_gated_bilinear__prompt_kernel"
XNB=0; STATS=0x200000; FH=0x210000; FY=0x218000; PROF=0x220000; HB=0x400000; YB=0xA00000; CS=0xC00000; WSEND=CS+86*128
SS=41216; WG_O=16384; WU_D=12320
TAB=82432; TABW=16416; KC=123648; KCS=4160; PT=156928; PTS=3088
UO=82432; US=4608; CW=91648; CWS=6144; AWS=10240; BW=41216
OOB=0x80000000
PX=95744; PO=(0,13,77,239)
class G(K):
    def __init__(s,*a,**kw):
        super().__init__(*a,**kw); s.vq=[]; s.dq=[]; s.tail=[]; s.nst=0; s.names=['start']
    def vm(s,t,tag=None):
        if t.endswith(' lds') and ' m0,' in s.L[-1]: s("s_nop 0")
        s(t); s.vq.append(tag)
    def ds(s,t,tag=None): s(t); s.dq.append(tag)
    def nv(s,tag):
        i=max(j for j,x in enumerate(s.vq) if x==tag); return min(len(s.vq)-1-i,63)
    def nd(s,tag):
        i=max(j for j,x in enumerate(s.dq) if x==tag); return min(len(s.dq)-1-i,15)
    def w(s,v=None,d=None):
        o=[]
        if v is not None: o.append(f"vmcnt({s.nv(v) if isinstance(v,str) else v})")
        if d is not None: o.append(f"lgkmcnt({s.nd(d) if isinstance(d,str) else d})")
        s("s_waitcnt "+" ".join(o))
    def stamp(s,name=''):
        if s.prof:
            n=s.nst; R=(90,92,98,100); a=R[n&3]
            s(f"s_memtime s[{a}:{a+1}]")
            if n>=2: s(f"v_writelane_b32 v199, s{R[(n-2)&3]}, {n-1}")
            elif n==0: s("v_writelane_b32 v199, s34, 0")
            s.names.append(name); s.nst+=1
def vr(a,n): return f"v[{a}:{a+n-1}]" if n>1 else f"v{a}"
def ar(a,n): return f"a[{a}:{a+n-1}]" if n>1 else f"a{a}"
def weave(k,mf,fl,per,start=0):
    fl=list(fl)
    for i,m in enumerate(mf):
        k(m)
        if i>=start:
            n=per[i] if isinstance(per,(list,tuple)) else per
            for _ in range(n):
                if fl:
                    f=fl.pop(0); f() if callable(f) else k(f)
    for f in fl: f() if callable(f) else k(f)

SX,SG,SU,SD,SW,SO,SB=36,40,44,48,52,56,60
sXCD,sI,sWV,sP,sFT,sMT,sRB,sLD,sDK=64,65,66,67,68,69,70,71,72
sKS,sOX,sOW,sMX,sMG,sRING,sDL,sCNT,sC1,sC2=73,74,75,76,77,78,79,80,81,82
sH0,sH1,sMSK,sONE,sAW,sCWB,sT0,sT1,sT2,sT3=83,84,85,86,87,88,26,27,28,29
sUQ=30; sYQ=31; sTB=32; sDB=33
def srd(d): return f"s[{d}:{d+3}]"
XD=200; WD=204; XR=207; WR=211; KCW=212; EX=213
CA=224; CB=225; WDV=226; TA=228; TC=230; HL=232; HS=234; UL=237; UW=238; UZ=239; ST=240; CSA=241
XO=242; RS=243; YL=244; YW=245; YR=246; YS=247; EXW=248; FHP=249; FYP=250; FHS=251; FYS=252; LNP=253; LNF=254; ONEB=255

def gen(prof=False, ROT1=True, ROT2=True, DEPTH=5):
    k=G(NAME,vgpr=256,agpr=256,sgpr=102); k.prof=prof; k.pst=90
    END=k.lab("END")
    if prof: k("s_memtime s[34:35]\ns_memrealtime s[96:97]")
    k(f"s_cmp_ge_u32 s2, 0x100\ns_cbranch_scc1 {END}")
    k("s_load_dwordx16 s[4:19], s[0:1], 0\ns_load_dwordx2 s[20:21], s[0:1], 64")
    for d,o in((SX,0),(SG,80),(SU,88),(SD,96),(SO,104),(SB,112),(SW,120)): k(f"s_load_dwordx2 s[{d}:{d+1}], s[0:1], {o}")
    for d,n in((SX,0x200000),(SG,512*2752),(SU,512*2752),(SD,1376*1024),(SO,0x200000),(SB,256),(SW,WSEND)):
        k(f"s_mov_b32 s{d+2}, {hex(n)}\ns_mov_b32 s{d+3}, 0x00020000")
    k(f"""v_lshrrev_b32 v2, 6, v0
    v_and_b32 v1, 63, v0
    v_readfirstlane_b32 s{sWV}, v2
    s_and_b32 s{sXCD}, s2, 7
    s_lshr_b32 s{sI}, s2, 3
    s_lshl_b32 s{sP}, s{sXCD}, 5
    s_add_u32 s{sP}, s{sP}, s{sI}
    s_and_b32 s{sT0}, s{sXCD}, 1
    s_lshr_b32 s{sT1}, s{sXCD}, 1
    s_lshl_b32 s{sRB}, s{sT0}, 7
    s_lshl_b32 s{sT2}, s{sT1}, 5
    s_add_u32 s{sRB}, s{sRB}, s{sT2}
    s_add_u32 s{sRB}, s{sRB}, s{sI}
    s_mul_i32 s{sT2}, s{sT1}, 30
    s_add_u32 s{sT2}, s{sT2}, s{sI}
    s_lshr_b32 s{sFT}, s{sT2}, 3
    s_and_b32 s{sT2}, s{sT2}, 7
    s_lshl_b32 s{sMT}, s{sT0}, 3
    s_add_u32 s{sMT}, s{sMT}, s{sT2}
    s_lshl_b32 s{sT1}, s{sT1}, 2
    s_lshl_b32 s{sT0}, s{sT0}, 1
    s_add_u32 s{sT1}, s{sT1}, s{sT0}
    s_add_u32 s{sT1}, s{sT1}, s{sI}
    s_sub_u32 s{sT1}, s{sT1}, 30
    s_cmp_ge_u32 s{sI}, 30
    s_cselect_b32 s{sFT}, s{sT1}, s{sFT}
    s_mov_b32 s{sMSK}, 0xffff0000""")
    k(f"""s_lshl_b32 s{sT0}, s{sRB}, 13
    s_lshl_b32 s{sT1}, s{sWV}, 11
    s_add_u32 s{sT0}, s{sT0}, s{sT1}
    v_lshl_add_u32 v3, v1, 4, s{sT0}
    s_lshl_b32 s{sT0}, s{sP}, 9
    v_lshl_add_u32 v4, v0, 1, s{sT0}""")
    for j in range(6): k(f"v_mov_b32 v{60+j}, 0")
    k(f"""s_lshl_b32 s{sT0}, s{sMT}, 17
    s_lshl_b32 s{sT1}, s{sWV}, 15
    s_add_u32 s{sT0}, s{sT0}, s{sT1}
    v_lshrrev_b32 v5, 3, v1
    v_lshl_add_u32 v5, v5, 10, s{sT0}
    v_lshrrev_b32 v6, 4, v1
    v_xor_b32 v7, v1, v6
    v_and_b32 v7, 7, v7
    v_lshl_add_u32 v{XD}, v7, 4, v5
    v_xor_b32 v5, 64, v{XD}
    v_add_u32 v{XD+1}, 7168, v5
    v_add_u32 v{XD+2}, 14336, v{XD}
    v_add_u32 v{XD+3}, 21504, v5
    s_mul_i32 s{sT0}, s{sFT}, 192
    s_mul_i32 s{sT1}, s{sWV}, {16*2752}""")
    for q in range(3):
        k(f"""v_add_u32 v5, {64*q}, v1
        v_mul_u32_u24 v7, 5462, v5
        v_lshrrev_b32 v7, 16, v7
        v_mul_u32_u24 v8, 12, v7
        v_sub_u32 v8, v5, v8
        v_lshl_add_u32 v8, v8, 4, s{sT0}
        v_min_u32 v8, 2736, v8
        v_mul_u32_u24 v7, 2752, v7
        v_add3_u32 v{WD+q}, v7, v8, s{sT1}""")
        if q: k(f"v_subrev_u32 v{WD+q}, {1024*q}, v{WD+q}")
    if ROT1: k(f"s_add_u32 s{sKS}, s{sMT}, s{sFT}\ns_and_b32 s{sKS}, s{sKS}, 3\ns_lshl_b32 s{sKS}, s{sKS}, 1")
    else: k(f"s_mov_b32 s{sKS}, 0")
    k(f"""s_lshl_b32 s{sMX}, s{sWV}, 12
    s_mul_i32 s{sMG}, s{sWV}, 3072
    s_add_u32 s{sMG}, s{sMG}, {WG_O}
    s_lshl_b32 s{sOX}, s{sKS}, 7
    s_mul_i32 s{sOW}, s{sKS}, {64*2752}
    s_lshl_b32 s{sT0}, s{sP}, 2
    s_waitcnt lgkmcnt(0)""")
    k(f"s_load_dword s{sLD}, s[18:19], s{sT0}\ns_load_dword s{sDK}, s[20:21], s{sT0}")
    k.vm(f"buffer_load_dwordx4 v[10:13], v3, {srd(SX)}, 0 offen","row")
    k.vm(f"buffer_load_dwordx4 v[14:17], v3, {srd(SX)}, 0 offen offset:1024","row")
    for j in range(6): k.vm(f"global_load_short_d16_hi v{60+j}, v4, s[{6+2*j}:{7+2*j}]","par")
    def dma_list(ring,tag):
        L=[]
        if isinstance(ring,int):
            a=lambda s: f"s_add_u32 m0, s{s}, {ring}" if ring else f"s_mov_b32 m0, s{s}"
        else: a=lambda s: f"s_add_u32 m0, s{s}, {ring}"
        L.append(a(sMX))
        for q in range(4): L.append(lambda q=q: k.vm(f"buffer_load_dwordx4 v{XD+q}, {srd(SX)}, s{sOX} offen offset:{1024*q} lds",tag))
        L.append(a(sMG))
        for q in range(3): L.append(lambda q=q: k.vm(f"buffer_load_dwordx4 v{WD+q}, {srd(SG)}, s{sOW} offen offset:{1024*q} lds",tag))
        L.append(f"s_add_u32 m0, m0, {WU_D}")
        for q in range(3): L.append(lambda q=q: k.vm(f"buffer_load_dwordx4 v{WD+q}, {srd(SU)}, s{sOW} offen offset:{1024*q} lds",tag))
        return L
    nextk=[f"s_add_u32 s{sKS}, s{sKS}, 1",f"s_and_b32 s{sKS}, s{sKS}, 7",f"s_lshl_b32 s{sOX}, s{sKS}, 7",f"s_mul_i32 s{sOW}, s{sKS}, {64*2752}"]
    for f in dma_list(0,"d0"):
        if callable(f): f()
        else: k(f); k("s_nop 0")
    for f in nextk: k(f)
    k(f"""v_lshrrev_b32 v2, 4, v1
    v_bfe_u32 v3, v1, 2, 2
    v_and_b32 v4, 3, v1
    v_and_b32 v5, 31, v1
    v_lshrrev_b32 v6, 5, v1
    v_and_b32 v7, 15, v1
    s_and_b32 s{sT0}, s{sWV}, 1
    s_lshr_b32 s{sT1}, s{sWV}, 1""")
    k(f"""v_bfe_u32 v8, v1, 1, 3
    v_xor_b32 v8, v8, v6
    v_lshlrev_b32 v8, 4, v8
    v_lshl_add_u32 v8, v5, 7, v8
    s_lshl_b32 s{sT2}, s{sT0}, 13
    v_add_u32 v{XR}, s{sT2}, v8
    v_xor_b32 v{XR+1}, 32, v{XR}
    v_xor_b32 v{XR+2}, 64, v{XR}
    v_xor_b32 v{XR+3}, 0x60, v{XR}""")
    k(f"""v_and_b32 v8, 1, v2
    v_mul_u32_u24 v9, {WU_D}, v8
    v_lshl_add_u32 v18, v6, 3, v3
    v_mul_u32_u24 v18, 192, v18
    v_add_u32 v9, v9, v18
    v_lshl_add_u32 v9, v4, 3, v9
    s_mul_i32 s{sT2}, s{sT1}, 96
    s_add_u32 s{sT2}, s{sT2}, {WG_O}
    v_add_u32 v{WR}, s{sT2}, v9""")
    k(f"v_lshlrev_b32 v9, 4, v0\nv_add_u32 v{KCW}, {KC}, v9")
    k(f"""v_lshlrev_b32 v9, 3, v0
    v_sub_u32 v18, 2047, v9
    v_cvt_f32_i32 v18, v18
    v_sub_u32 v19, {2047+0x4280}, v9
    s_mov_b32 s{sT2}, {768+0x4280}
    s_mov_b32 s{sT3}, {PX-4*0x4280}""")
    for i in range(0,11,2):
        k(f"v_subrev_f32 v24, {float(i)}, v18" if i in(0,2,4) else f"v_subrev_f32 v24, {hex(f2b(float(i)))}, v18")
        k(f"v_subrev_f32 v25, 1.0, v24\nv_cvt_pk_bf16_f32 v24, v24, v25")
        for h in range(2):
            if i+h>10: break
            k(f"v_and_b32 v25, 0xffff, v24" if h==0 else "v_lshrrev_b32 v25, 16, v24")
            k(f"""v_subrev_u32 v26, {i+h}, v19
            v_min_i32 v26, {128+0x4280}, v26
            v_med3_i32 v25, v25, v26, s{sT2}
            v_lshl_add_u32 v{EX+i+h}, v25, 2, s{sT3}""")
    k(f"""s_mul_i32 s{sT2}, s{sT1}, {4*KCS}
    s_lshl_b32 s{sT3}, s{sT0}, 8
    s_sub_u32 s{sT2}, s{sT2}, s{sT3}
    s_add_u32 s{sT2}, s{sT2}, {KC+4056-3776}
    v_mul_u32_u24 v9, {KCS}, v4
    v_lshl_add_u32 v9, v2, 4, v9
    v_lshlrev_b32 v18, 3, v3
    v_sub_u32 v9, v9, v18
    v_add_u32 v{CA}, s{sT2}, v9
    s_mul_i32 s{sT2}, s{sT1}, {US}
    s_sub_u32 s{sT2}, s{sT2}, s{sT3}
    s_add_u32 s{sT2}, s{sT2}, {UO+256}
    v_lshlrev_b32 v9, 4, v2
    v_lshl_add_u32 v9, v7, 5, v9
    v_add_u32 v{CB}, s{sT2}, v9""")
    k(f"""s_lshl_b32 s{sT2}, s{sP}, 1
    s_add_u32 s{sT2}, s{sT2}, s{sT1}
    s_lshl_b32 s{sT2}, s{sT2}, 12
    s_lshl_b32 s{sT3}, s{sT0}, 11
    s_add_u32 s{sT2}, s{sT2}, s{sT3}
    s_add_u32 s{sT2}, s{sT2}, {YB}
    v_lshlrev_b32 v9, 9, v8
    v_lshl_add_u32 v9, v7, 5, v9
    v_lshl_add_u32 v9, v6, 4, v9
    v_add_u32 v{YS}, s{sT2}, v9""")
    k(f"""s_lshr_b32 s{sT2}, s{sI}, 3
    s_lshl_b32 s{sTB}, s{sXCD}, 2
    s_add_u32 s{sTB}, s{sTB}, s{sT2}
    s_and_b32 s{sDB}, s{sI}, 7""")
    k(f"""v_lshlrev_b32 v9, 2, v8
    v_xor_b32 v9, v9, v1
    v_and_b32 v9, 7, v9
    v_lshlrev_b32 v9, 4, v9
    v_lshrrev_b32 v18, 3, v1
    v_lshl_add_u32 v9, v18, 10, v9
    s_lshl_b32 s{sT2}, s{sDB}, 7
    v_add_u32 v{WDV}, s{sT2}, v9
    v_add_u32 v{WDV+1}, 7168, v{WDV}""")
    k(f"""v_lshl_add_u32 v9, v6, 2, v3
    v_lshlrev_b32 v9, 7, v9
    v_lshrrev_b32 v18, 1, v3
    v_xor_b32 v18, s{sT1}, v18
    v_lshl_add_u32 v9, v18, 6, v9
    v_lshl_add_u32 v9, v8, 5, v9
    v_lshl_add_u32 v9, v4, 3, v9
    s_mul_i32 s{sAW}, s{sWV}, {AWS}
    s_mul_i32 s{sCWB}, s{sWV}, {CWS}
    s_add_u32 s{sCWB}, s{sCWB}, {CW}
    v_add_u32 v{TA}, s{sAW}, v9
    v_xor_b32 v{TA+1}, 64, v{TA}
    v_add_u32 v{TC}, s{sCWB}, v9
    v_xor_b32 v{TC+1}, 64, v{TC}""")
    k(f"""s_lshl_b32 s{sT2}, s{sTB}, 1
    s_add_u32 s{sT2}, s{sT2}, s{sT0}
    s_mul_i32 s{sT3}, s{sT2}, 88064
    s_add_u32 s{sT3}, s{sT3}, {HB}
    v_lshl_add_u32 v{HL}, v1, 4, s{sT3}
    s_xor_b32 s{sT3}, s{sT2}, 1
    s_mul_i32 s{sT3}, s{sT3}, 88064
    s_add_u32 s{sT3}, s{sT3}, {HB}
    v_lshl_add_u32 v{HL+1}, v1, 4, s{sT3}""")
    k(f"""s_lshl_b32 s{sT3}, s{sT2}, 5
    v_add_u32 v9, s{sT3}, v5
    v_lshlrev_b32 v18, 3, v9
    v_add_u32 v{RS}, {STATS+4}, v18
    s_lshl_b32 s{sT3}, s{sDB}, 1
    s_add_u32 s{sT3}, s{sT3}, s{sT1}
    s_lshl_b32 s{sYQ}, s{sT3}, 6
    v_lshlrev_b32 v9, 10, v9
    v_lshl_add_u32 v9, v6, 4, v9
    v_add_u32 v{XO}, s{sYQ}, v9
    s_lshl_b32 s{sYQ}, s{sT3}, 17
    s_lshl_b32 s{sT2}, s{sT2}, 6
    s_add_u32 s{sT2}, s{sT2}, s{sYQ}
    s_add_u32 s{sT2}, s{sT2}, {YB}
    v_lshrrev_b32 v9, 2, v1
    v_lshlrev_b32 v9, 12, v9
    v_lshl_add_u32 v9, v4, 4, v9
    v_add_u32 v{YL}, s{sT2}, v9
    s_mov_b32 s{sYQ}, 0x10000
    s_lshl_b32 s{sT2}, s{sWV}, 11
    s_add_u32 s{sT2}, s{sT2}, {KC}
    v_lshl_add_u32 v{YW}, v1, 4, s{sT2}
    v_lshl_add_u32 v9, v6, 2, v3
    v_lshlrev_b32 v9, 6, v9
    v_lshl_add_u32 v9, v8, 5, v9
    v_lshl_add_u32 v9, v4, 3, v9
    v_add_u32 v{YR}, s{sT2}, v9
    s_lshl_b32 s{sT3}, s{sT3}, 11
    s_add_u32 s{sT3}, s{sT3}, {FY}
    v_lshl_add_u32 v{FYP}, v7, 7, s{sT3}
    s_lshr_b32 s{sT2}, s{sTB}, 1
    s_lshl_b32 s{sT2}, s{sT2}, 11
    s_add_u32 s{sT2}, s{sT2}, {FH}
    v_min_u32 v9, 14, v7
    v_lshl_add_u32 v{FHP}, v9, 7, s{sT2}
    v_lshlrev_b32 v{EXW}, 4, v1
    v_lshlrev_b32 v{LNP}, 2, v1""")
    k(f"""s_mul_i32 s{sT2}, s{sFT}, 6
    s_mul_i32 s{sT3}, s{sT1}, 3
    s_add_u32 s{sT2}, s{sT2}, s{sT3}
    s_lshl_b32 s{sT3}, s{sT2}, 7
    s_add_u32 s{sT3}, s{sT3}, {CS}
    v_lshl_add_u32 v9, v1, 2, s{sT3}
    v_lshl_or_b32 v{CSA}, v6, 31, v9""")
    for j in range(3):
        k(f"""s_add_u32 s{sT3}, s{sT2}, {j}
        s_cmp_lt_u32 s{sT3}, 86
        s_cselect_b32 s{sH0}, 0, {hex(OOB)}
        s_lshl_b32 s{sT3}, s{sT3}, 10
        s_or_b32 s{sT3}, s{sT3}, s{sH0}
        v_lshl_add_u32 v{HS+j}, v1, 4, s{sT3}""")
    k(f"""s_lshl_b32 s{sT2}, s{sMT}, 1
    s_add_u32 s{sT2}, s{sT2}, s{sT0}
    s_lshl_b32 s{sT3}, s{sT2}, 9
    s_add_u32 s{sT3}, s{sT3}, {STATS}
    v_lshl_add_u32 v{ST}, v5, 3, s{sT3}
    s_mul_i32 s{sH0}, s{sT2}, {2*88064}
    s_add_u32 s{sH0}, s{sH0}, {HB}
    s_add_u32 s{sH1}, s{sH0}, 88064""")
    k(f"""v_lshrrev_b32 v9, 1, v0
    v_and_b32 v18, 1, v0
    s_lshl_b32 s{sT2}, s{sP}, 5
    v_lshl_add_u32 v19, v18, 4, s{sT2}
    v_lshl_add_u32 v{UL}, v9, 13, v19
    v_mul_u32_u24 v18, {US}, v18
    v_lshl_add_u32 v18, v9, 4, v18
    v_add_u32 v{UW}, {UO+480}, v18
    v_min_u32 v9, 29, v5
    v_mul_u32_u24 v18, {US}, v6
    v_lshl_add_u32 v18, v9, 4, v18
    v_add_u32 v{UZ}, {UO}, v18
    s_mov_b32 s{sUQ}, 0x100000""")
    k(f"""v_cmp_eq_u32 vcc, 0, v1
    v_mov_b32 v9, {hex(OOB)}
    s_lshl_b32 s{sT2}, s{sMT}, 4
    s_add_u32 s{sT2}, s{sT2}, s{sFT}
    s_lshl_b32 s{sT2}, s{sT2}, 7
    s_add_u32 s{sT2}, s{sT2}, {FH}
    s_cmp_ge_u32 s{sI}, 30
    s_cselect_b32 s{sT2}, {hex(OOB)}, s{sT2}
    s_lshl_b32 s{sT3}, s{sP}, 7
    s_add_u32 s{sT3}, s{sT3}, {FY}
    v_mov_b32 v18, s{sT2}
    v_mov_b32 v19, s{sT3}
    v_cndmask_b32 v24, v19, v18, vcc
    v_add_u32 v18, s{sWV}, v18
    v_add_u32 v19, s{sWV}, v19
    v_cndmask_b32 v{FHS}, v9, v18, vcc
    v_cndmask_b32 v{FYS}, v9, v19, vcc
    v_cmp_gt_u32 vcc, 2, v0
    v_mov_b32 v18, s2
    v_mov_b32 v{ONEB}, 1
    v_cndmask_b32 v58, v9, v24, vcc
    v_cmp_eq_u32 vcc, 0, v0
    s_mov_b32 s{sONE}, 0x01010101
    s_mov_b32 s{sC1}, {SS}
    v_cndmask_b32 v{LNF}, v9, v18, vcc
    s_mov_b32 s{sC2}, {-2*SS}""")
    k(f"""s_mul_i32 s{sT2}, s{sWV}, 22
    s_cmp_eq_u32 s{sWV}, 3
    s_cselect_b32 s{sT2}, 65, s{sT2}
    s_sub_u32 s{sT3}, 22, s{sT1}""")
    if ROT2:
        k(f"""s_mul_i32 s{sCNT}, s{sDB}, 3
        s_lshr_b32 s{sDL}, s{sI}, 3
        s_mul_i32 s{sDL}, s{sDL}, 5
        s_add_u32 s{sCNT}, s{sCNT}, s{sDL}
        v_add_u32 v9, s{sCNT}, v1""")
    else: k("v_mov_b32 v9, v1")
    for _ in range(3):
        k(f"v_subrev_u32 v18, s{sT3}, v9\nv_min_u32 v9, v9, v18")
    k(f"v_add_u32 v9, s{sT2}, v9\nv_lshlrev_b32 v59, 14, v9")
    k(f"""s_mul_i32 s{sT2}, s{sWV}, {TABW}
    s_add_u32 s{sT2}, s{sT2}, {TAB}
    v_lshl_add_u32 v56, v1, 2, s{sT2}
    v_mul_u32_u24 v9, 288, v7
    v_lshl_add_u32 v9, v2, 4, v9
    v_add_u32 v57, s{sT2}, v9
    v_mul_u32_u24 v9, 320, v3
    v_lshl_add_u32 v9, v2, 5, v9
    v_lshl_add_u32 v9, v4, 3, v9
    v_add_u32 v54, s{sT2}, v9
    s_mul_i32 s{sT2}, s{sWV}, 640
    s_add_u32 s{sT2}, s{sT2}, {TAB}
    v_mul_u32_u24 v9, {TABW}, v2
    v_lshl_add_u32 v9, v7, 4, v9
    v_add_u32 v55, s{sT2}, v9
    s_lshl_b32 s{sT2}, s{sRB}, 6
    s_lshl_b32 s{sT3}, s{sWV}, 4
    s_add_u32 s{sT2}, s{sT2}, s{sT3}
    s_add_u32 s{sT2}, s{sT2}, {STATS}
    v_lshl_add_u32 v9, v6, 3, s{sT2}
    v_cmp_eq_u32 vcc, 0, v5
    v_mov_b32 v18, {hex(OOB)}
    s_lshl_b32 s{sT2}, s{sRB}, 13
    s_lshl_b32 s{sT3}, s{sWV}, 11
    v_cndmask_b32 v53, v18, v9, vcc
    s_add_u32 s{sT2}, s{sT2}, s{sT3}
    v_lshl_add_u32 v52, v1, 4, s{sT2}""")
    k(f"""s_lshl_b32 s{sT3}, s{sWV}, 3
    s_lshr_b32 s{sT2}, {hex(sum(o<<(8*j) for j,o in enumerate(PO)))}, s{sT3}
    s_and_b32 s{sT2}, s{sT2}, 0xff
    s_lshl_b32 s{sT2}, s{sT2}, 8
    s_add_u32 s{sT2}, s{sT2}, {PX}
    v_mov_b32 v180, s{sT2}
    v_lshlrev_b32 v9, 5, v7
    v_lshl_add_u32 v9, v8, 4, v9
    v_lshl_add_u32 v9, v6, 9, v9
    v_add_u32 v176, s{sT2}, v9
    v_sub_u32 v9, 4, v6
    v_lshlrev_b32 v9, v9, v7
    v_lshl_add_u32 v9, v2, 8, v9
    s_add_u32 s{sT3}, s{sT2}, 1024
    v_add_u32 v177, s{sT3}, v9
    v_mul_u32_u24 v9, 120, v6
    v_add3_u32 v178, v177, v9, 8
    v_lshlrev_b32 v9, 2, v7
    v_lshl_add_u32 v9, v2, 8, v9
    s_add_u32 s{sT3}, s{sT2}, 2048
    v_add_u32 v179, s{sT3}, v9
    s_waitcnt lgkmcnt(0)
    s_lshl_b32 s{sT1}, s{sT1}, 4
    s_lshr_b32 s{sLD}, s{sLD}, s{sT1}
    s_lshl_b32 s{sLD}, s{sLD}, 16
    s_lshr_b32 s{sDK}, s{sDK}, s{sT1}
    s_lshl_b32 s{sDK}, s{sDK}, 16
    s_cmp_eq_u32 s{sT0}, 0
    s_cselect_b32 s{sDK}, s{sDK}, 0
    v_cmp_eq_u32 vcc, 0, v1
    v_mov_b32 v9, s{sDK}
    v_mov_b32 v165, 0
    v_cndmask_b32 v164, 0, v9, vcc
    v_mov_b32 v166, 0
    v_mov_b32 v167, 0""")
    k.dq=[]
    for j in range(22): k(f"v_readlane_b32 s{4+j}, v59, {j}")
    k.stamp('addr')
    k.w(v="row")
    k.stamp('row')
    for j in range(8):
        k(f"v_lshlrev_b32 v{20+2*j}, 16, v{10+j}\nv_and_b32 v{21+2*j}, s{sMSK}, v{10+j}")
    def red2():
        k("""s_nop 1
        v_permlane32_swap_b32 v40, v41
        v_add_f32 v40, v40, v41
        v_mov_b32 v41, v40
        s_nop 1
        v_permlane16_swap_b32 v40, v41
        v_add_f32 v40, v40, v41""")
        for r in(8,4,2,1): k(f"s_nop 1\nv_add_f32_dpp v40, v40, v40 row_ror:{r} row_mask:0xf bank_mask:0xf")
        k("v_mul_f32 v40, 0x3b000000, v40")
    for b,d in((20,40),(28,41)):
        k(f"""v_pk_add_f32 v[36:37], v[{b}:{b+1}], v[{b+2}:{b+3}]
        v_pk_add_f32 v[38:39], v[{b+4}:{b+5}], v[{b+6}:{b+7}]
        v_pk_add_f32 v[36:37], v[36:37], v[38:39]
        v_add_f32 v{d}, v36, v37""")
    red2()
    k("""v_mov_b32 v42, v40
    v_mov_b32 v43, v40
    v_cvt_pk_bf16_f32 v50, -v40, -v40
    s_nop 0
    v_permlane32_swap_b32 v42, v43""")
    for h,(b,d) in enumerate(((20,40),(28,41))):
        for j in range(4):
            k(f"v_pk_add_f32 v[38:39], v[{b+2*j}:{b+2*j+1}], v[42:43] op_sel:[0,{h}] op_sel_hi:[1,{h}] neg_lo:[0,1] neg_hi:[0,1]")
            k("v_pk_mul_f32 v[36:37], v[38:39], v[38:39]" if j==0 else "v_pk_fma_f32 v[36:37], v[38:39], v[38:39], v[36:37]")
        k(f"v_add_f32 v{d}, v36, v37")
    red2()
    k(f"""v_cvt_pk_bf16_f32 v40, v40, v40
    v_and_b32 v40, s{sMSK}, v40
    v_add_f32 v40, 0x3727c5ac, v40
    v_cvt_pk_bf16_f32 v40, v40, v40
    v_and_b32 v40, s{sMSK}, v40
    v_sqrt_f32 v40, v40
    v_and_b32 v41, s{sMSK}, v50
    v_cvt_pk_bf16_f32 v40, v40, v40
    v_and_b32 v40, s{sMSK}, v40
    v_rcp_f32 v46, v40
    s_nop 0
    v_mul_f32 v47, v41, v46
    v_mul_f32 v51, v46, v46
    v_mov_b32 v48, v46
    v_mov_b32 v49, v47
    s_nop 0
    v_permlane32_swap_b32 v46, v48
    v_permlane32_swap_b32 v47, v49""")
    k.vm(f"buffer_store_dwordx2 v[50:51], v53, {srd(SW)}, 0 offen sc1","lnst")
    for h,b in enumerate((20,28)):
        P=f"v[{46+2*h}:{47+2*h}]"
        for j in range(4):
            k(f"v_pk_fma_f32 v[{b+2*j}:{b+2*j+1}], v[{b+2*j}:{b+2*j+1}], {P}, {P} op_sel:[0,0,1] op_sel_hi:[1,0,1]")
            k(f"v_cvt_pk_bf16_f32 v{10+4*h+j}, v{b+2*j}, v{b+2*j+1}")
        k.ds(f"ds_write_b128 v55, v[{10+4*h}:{13+4*h}] offset:{320*h}")
    k.w(d=0); k("s_barrier")
    for q in range(2):
        for h in range(2): k.ds(f"ds_read_b64_tr_b16 v[{10+4*q+2*h}:{11+4*q+2*h}], v54 offset:{128*q+1280*h}",f"lt{q}")
    k(f"""v_mov_b32 v66, s{sLD}
    v_mul_f32 v66, 0x3fb8aa3b, v66
    v_exp_f32 v66, v66
    v_mov_b32 v18, 0
    v_cvt_pk_bf16_f32 v66, v66, v66
    v_and_b32 v66, s{sMSK}, v66""")
    for q in range(2):
        k.w(d=f"lt{q}")
        k.vm(f"buffer_store_dwordx4 v[{10+4*q}:{13+4*q}], v52, {srd(SW)}, 0 offen offset:{1024*q} sc1","lnst")
    k.vm(f"buffer_store_dword v18, v58, {srd(SW)}, 0 offen sc1","lnst")
    L=k.lab()
    k(f"""s_cmp_lt_u32 s{sI}, 30
    s_cbranch_scc1 {L}
    s_mul_i32 s{sT2}, s{sFT}, 768
    s_add_u32 s{sT2}, s{sT2}, {CS}
    s_cmp_eq_u32 s{sWV}, 3
    s_cselect_b32 s{sT2}, {hex(OOB)}, s{sT2}
    v_lshl_add_u32 v{CSA}, v0, 2, s{sT2}
    v_mov_b32 v19, -1
    buffer_store_dword v19, v{CSA}, {srd(SW)}, 0 offen sc1
    {L}:""")
    k.stamp('ln')
    k.w(v="par")
    k("""v_pk_mul_f32 v[60:61], v[60:61], v[66:67] op_sel_hi:[1,0]
    v_pk_mul_f32 v[62:63], v[62:63], v[66:67] op_sel_hi:[1,0]
    v_mul_f32 v60, 0x3fb8aa3b, v60
    v_mul_f32 v61, 0.15915494, v61""")
    Q={1:68,8:70,128:72}
    for e,d in Q.items():
        if e==1: k(f"v_exp_f32 v66, v60\nv_fract_f32 v67, v61")
        else: k(f"v_mul_f32 v66, {hex(f2b(float(e)))}, v60\nv_mul_f32 v67, {hex(f2b(float(e)))}, v61\nv_exp_f32 v66, v66\nv_fract_f32 v67, v67")
        k(f"v_cos_f32 v{d}, v67\nv_sin_f32 v{d+1}, v67\ns_nop 0\nv_pk_mul_f32 v[{d}:{d+1}], v[{d}:{d+1}], v[66:67] op_sel_hi:[1,0]")
    pr=lambda a:f"v[{a}:{a+1}]"
    side=dma_list(SS,"d1")+nextk
    cnt=[0]
    def tick():
        cnt[0]+=1
        if cnt[0]%3==0 and side:
            f=side.pop(0); f() if callable(f) else k(f)
    def cmul(d,a,b):
        k(f"v_pk_mul_f32 v[66:67], {pr(a)}, {pr(b)} op_sel:[0,0] op_sel_hi:[0,1]")
        k(f"v_pk_fma_f32 {pr(d)}, {pr(a)}, {pr(b)}, v[66:67] op_sel:[1,1,0] op_sel_hi:[1,0,1] neg_lo:[1,0,0]")
    tp=[0]
    def put(e,a,conj=False):
        t=96+(tp[0]&3); tp[0]+=1
        k(f"v_cvt_pk_bf16_f32 v{t}, v{a}, {'-' if conj else ''}v{a+1}")
        k.ds(f"ds_write_b32 v56, v{t} offset:{288*e}"); tick()
    cmul(74,64,62); put(0,74,True)
    for b in range(1,16): cmul(74,74,70); put(b,74,True)
    k(f"v_mov_b32 v95, 0x3f80"); k.ds(f"ds_write_b32 v56, v95 offset:{288*16}")
    qp={1:68}
    put(17,68)
    for a in range(2,8):
        qp[a]=76+2*(a-2); cmul(qp[a],qp[a-1],68); put(16+a,qp[a])
    put(24,72)
    for a in range(1,8): cmul(88,72,qp[a]); put(24+a,88)
    cur=90
    for a in range(2,17):
        cmul(cur,72 if a==2 else cur,72)
        if a in(2,3):
            e=32+4*(a-2); put(e,cur)
            for j,x in enumerate((2,4,6)): cmul(88,cur,qp[x]); put(e+1+j,88)
        elif a<8:
            e=40+2*(a-4); put(e,cur); cmul(88,cur,qp[4]); put(e+1,88)
        else: put(48+a-8,cur)
    while side:
        f=side.pop(0); f() if callable(f) else (k(f),k("s_nop 0"))
    for st in range(4):
        for T in range(4):
            k.ds(f"ds_read_b128 {vr(100+16*st+4*T,4)}, v57 offset:{T*16*288+64*st}",f"kf{st}")
    for st in range(4):
        k.w(d=f"kf{st}")
        for T in range(3):
            c=vr(164+4*T,4) if (st or T==0) else "0"
            k(f"v_mfma_f32_16x16x32_bf16 {vr(164+4*T,4)}, {vr(100+16*st+4+4*T,4)}, {vr(100+16*st,4)}, {c}")
    k("s_nop 5")
    k.ds("ds_write_b32 v180, v18 offset:3072")
    k.ds("ds_write_b128 v176, v[164:167]")
    k.ds("ds_write_b64 v177, v[168:169]"); k.ds("ds_write_b64 v178, v[170:171]")
    k.ds("ds_write2_b32 v179, v172, v173 offset0:0 offset1:16"); k.ds("ds_write2_b32 v179, v174, v175 offset0:32 offset1:48")
    k(f"""v_and_b32 v9, 7, v1
    v_mul_u32_u24 v9, {KCS}, v9
    v_and_b32 v8, 8, v1
    v_lshl_add_u32 v9, v8, 1, v9
    v_add_u32 v9, {KC+4096}, v9""")
    k.w(d=0); k("s_barrier")
    k.stamp('kgen')
    for c in range(2):
        for i in range(11): k.ds(f"ds_read2st64_b32 {vr(100+24*c+2*i,2)}, v{EX+i} offset0:{PO[2*c]} offset1:{PO[2*c+1]}",f"ex{c}_{i}")
    k("v_mov_b32 v20, 0\nv_mov_b32 v21, 0\nv_mov_b32 v22, 0\nv_mov_b32 v23, 0")
    k.ds("ds_write_b128 v9, v[20:23]")
    for c in range(2):
        for i in range(11):
            if i in(0,4,8): k.w(d=f"ex{c}_{min(i+3,10)}")
            k(f"v_add_f32 v{100+24*c+2*i}, v{100+24*c+2*i}, v{101+24*c+2*i}")
        for s in range(4):
            t=24+16*c+4*s
            for j in range(4):
                i=100+24*c+2*(3-s+2*j)
                k(f"v_cvt_pk_bf16_f32 v{t+j}, v{i}, v{i+2}")
            k.ds(f"ds_write_b128 v{KCW}, {vr(t,4)} offset:{(4*c+s)*KCS}")
    k.stamp('exp')
    k.w(v="lnst",d=0); k("s_barrier")
    k.vm(f"buffer_store_byte v{ONEB}, v{LNF}, {srd(SB)}, 0 offen sc1","lnf")
    k.stamp('barB')
    CSL=k.lab("CS"); MRG=k.lab("MRG")
    k(f"s_cmp_ge_u32 s{sI}, 30\ns_cbranch_scc1 {CSL}")
    ACC=16; FA=(112,132); FB=(124,144); EA=152; EB=164; UR=172; PL=180
    def reads(st,f):
        L=[]
        for e in range(2): L.append(lambda e=e: k.ds(f"ds_read_b128 {vr(FB[f]+4*e,4)}, v{XR+st} offset:{4096*e}","fr"))
        for u in range(3):
            for h in range(2): L.append(lambda u=u,h=h: k.ds(f"ds_read_b64_tr_b16 {vr(FA[f]+4*u+2*h,2)}, v{WR} offset:{3072*st+768*h+32*u}","fr"))
        return [L[0],L[2],L[3],L[1]]+L[4:]
    def mf(f,zero=False):
        return [f"v_mfma_f32_32x32x16_bf16 {vr(ACC+16*(2*u+e),16)}, {vr(FA[f]+4*u,4)}, {vr(FB[f]+4*e,4)}, {'0' if zero else vr(ACC+16*(2*u+e),16)}" for u in range(3) for e in range(2)]
    def mix(a,b):
        o=[];a=list(a);b=list(b)
        while a or b:
            if a:o.append(a.pop(0))
            if a:o.append(a.pop(0))
            if b:o.append(b.pop(0))
        return o
    def adv(delta):
        return [f"v_add_u32 v{r}, {delta}, v{r}" for r in(XR,WR,XR+1,XR+2,XR+3)]
    for f in reads(0,0): f()
    k(f"s_mov_b32 s{sRING}, {2*SS}\ns_mov_b32 s{sCNT}, 0")
    LOOP=k.lab("G1L"); MID=k.lab("G1M")
    D=dma_list(f"s{sRING}","dl")
    k.w(d=0); weave(k,mf(0,True),mix(reads(1,1),D[0:5]),3)
    k(f"s_branch {MID}\n{LOOP}:")
    D=dma_list(f"s{sRING}","dl")
    k.w(d=0); weave(k,mf(0),mix(reads(1,1),D[0:5]),3)
    k(f"{MID}:")
    k.w(d=0); weave(k,mf(1),mix(reads(2,0),D[5:9]),3)
    k.w(d=0); weave(k,mf(0),mix(reads(3,1),D[9:13])+[f"s_cmp_eq_u32 s{sRING}, s{sC1}",f"s_cselect_b32 s{sDL}, s{sC2}, s{sC1}"],3)
    L=k.lab()
    def bar0():
        k(f"s_cmp_eq_u32 s{sCNT}, 0\ns_cbranch_scc1 {L}\ns_waitcnt vmcnt(10)\n{L}:\ns_waitcnt vmcnt(11)\ns_barrier")
    A=adv(f"s{sDL}")
    tailf=nextk+[f"s_add_u32 s{sRING}, s{sRING}, s{sC1}",f"s_cmp_eq_u32 s{sRING}, {3*SS}",f"s_cselect_b32 s{sRING}, 0, s{sRING}",f"s_add_u32 s{sCNT}, s{sCNT}, 1",f"s_cmp_lt_u32 s{sCNT}, 5"]
    k.w(d=0); weave(k,mf(1),[bar0]+A[:2]+reads(0,0)+A[2:]+tailf,[1,5,5,5,5,5])
    k(f"s_cbranch_scc1 {LOOP}")
    k.vq=["dl"]*10
    k.stamp('g1loop')
    def poll(tag,reg,addr,sr,exp,extra=""):
        ok=k.lab("OK"); rt=k.lab("RT")
        k.w(v=tag)
        k(f"v_cmp_ne_u32 vcc, {exp}, v{reg}\ns_cbranch_vccnz {rt}\n{ok}:")
        lp=k.lab("RL")
        k.tail.append(f"""{rt}:
        s_movk_i32 s{sT3}, 4000
        {lp}:
        buffer_load_dword v{reg}, v{addr}, {srd(sr)}, 0 offen sc1
        s_waitcnt vmcnt(0)
        v_cmp_ne_u32 vcc, {exp}, v{reg}
        s_cbranch_vccz {ok}
        s_sub_u32 s{sT3}, s{sT3}, 1
        s_cmp_lg_u32 s{sT3}, 0
        s_cbranch_scc1 {lp}
        s_branch {ok}""")
    lnpoll=lambda: k.vm(f"buffer_load_dword v{PL}, v{LNP}, {srd(SB)}, 0 offen sc1","lnp")
    def uloads():
        return [lambda q=q: k.vm(f"buffer_load_dwordx4 {vr(UR+4*q,4)}, v{UL}, {srd(SW)}, {'s%d'%sUQ if q else 0} offen sc1","u") for q in range(2)]
    def wd_loc(j):
        if j<3: return ('C',2048*j)
        if j<8: return ('A',2048*(j-3))
        if j<13: return ('A',BW+2048*(j-8))
        if j<16: return ('C',2048*(j-13))
        if j<21: return ('A',2048*(j-16))
        return ('A',BW)
    def wd_dma(j):
        r,o=wd_loc(j); b=sCWB if r=='C' else sAW
        return [f"s_add_u32 m0, s{b}, {o}" if o else f"s_mov_b32 m0, s{b}"]+[lambda h=h: k.vm(f"buffer_load_dwordx4 v{WDV+h}, {srd(SD)}, s{4+j} offen offset:{1024*h} lds",f"wd{j}") for h in range(2)]
    def wd_tr(j):
        r,o=wd_loc(j); b=TC if r=='C' else TA
        return [lambda e=e,h=h: k.ds(f"ds_read_b64_tr_b16 {ar(8*j+4*e+2*h,2)}, v{b+e} offset:{o+1024*h}",f"wt{j}") for e in range(2) for h in range(2)]
    def uwrite():
        L=[lambda: k.w(v="u")]
        L+=[lambda q=q: k.ds(f"ds_write_b128 v{UW}, {vr(UR+4*q,4)} offset:{2048*q}","uw") for q in range(2)]
        return L
    D=dma_list(SS,"d7")
    k.w(d=0); weave(k,mf(0),[lnpoll]+mix(reads(1,1),D[0:5]),3)
    k.w(d=0); weave(k,mf(1),mix(reads(2,0),D[5:9]),3)
    k.w(d=0); weave(k,mf(0),mix(reads(3,1),D[9:13]),3)
    A=adv(-2*SS)
    k.w(d=0); weave(k,mf(1),[lambda:(k.w(v="dl"),k("s_barrier"))]+A[:2]+reads(0,0)+A[2:]+[lambda: poll("lnp",PL,LNP,SB,f"s{sONE}")]+uloads(),[1,5,5,3,1,5])
    zer=[f"v_mov_b32 v{r}, 0" for r in list(range(EA,EA+12))+list(range(EB,EB+8)) if (r-EA)%4]
    k.w(d=0); weave(k,mf(0),reads(1,1)+zer,4)
    sl=[lambda e=e: k.vm(f"buffer_load_dword v{EB+4*e}, v{ST}, {srd(SW)}, 0 offen offset:{256*e} sc1","st") for e in range(2)]
    cl=[lambda j=j: k.vm(f"buffer_load_dword v{EA+4*j}, v{CSA}, {srd(SW)}, 0 offen offset:{128*j} sc1","cs") for j in range(3)]
    k.w(d=0); weave(k,mf(1),reads(2,0)+sl+cl,3)
    zpad=[lambda: k.ds(f"ds_write_b128 v{UZ}, v[184:187]","uw")]
    k("v_mov_b32 v184, 0\nv_mov_b32 v185, 0\nv_mov_b32 v186, 0\nv_mov_b32 v187, 0")
    k.w(d=0); weave(k,mf(0),mix(reads(3,1),wd_dma(0)+wd_dma(1))+zpad,3)
    A=adv(SS)
    k.w(d=0); weave(k,mf(1),[lambda:(k.w(v="d7"),k("s_barrier"))]+A[:2]+reads(0,0)+A[2:]+wd_dma(2),[1,5,5,5,5,5])
    k.w(d=0); weave(k,mf(0),mix(reads(1,1),wd_dma(3)+wd_dma(4)),3)
    k.w(d=0); weave(k,mf(1),mix(reads(2,0),wd_dma(5)+wd_dma(6)),3)
    k.w(d=0); weave(k,mf(0),mix(reads(3,1),wd_dma(7))+uwrite(),3)
    CS0A,CS0B=('a',176),('a',208); CS1A,CS1B=('v',16),('v',48); CACC=112
    def rg(t,o,n): return (ar if t[0]=='a' else vr)(t[1]+o,n)
    def conv_reads(rho):
        SA,SBb=((CS0A,CS0B),(CS1A,CS1B))[rho&1]
        L=[]
        for i in range(8):
            L.append(lambda i=i: k.ds(f"ds_read_b128 {rg(SBb,4*i,4)}, v{CB} offset:{192-64*rho+512*i}",f"cv{rho}"))
            for h in range(2): L.append(lambda i=i,h=h: k.ds(f"ds_read_b64 {rg(SA,4*i+2*h,2)}, v{CA} offset:{3776-512*i-64*rho+8*h}",f"cv{rho}"))
        return L
    def cscheck():
        k.w(v="cs")
        ok=k.lab("OK"); rt=k.lab("RT"); lp=k.lab("RL")
        k(f"v_max3_u32 v{PL}, v{EA}, v{EA+4}, v{EA+8}\nv_cmp_eq_u32 vcc, -1, v{PL}\ns_cbranch_vccnz {rt}\n{ok}:")
        k.tail.append(f"""{rt}:
        s_movk_i32 s{sT3}, 4000
        {lp}:
        buffer_load_dword v{EA}, v{CSA}, {srd(SW)}, 0 offen sc1
        buffer_load_dword v{EA+4}, v{CSA}, {srd(SW)}, 0 offen offset:128 sc1
        buffer_load_dword v{EA+8}, v{CSA}, {srd(SW)}, 0 offen offset:256 sc1
        s_waitcnt vmcnt(0)
        v_max3_u32 v{PL}, v{EA}, v{EA+4}, v{EA+8}
        v_cmp_eq_u32 vcc, -1, v{PL}
        s_cbranch_vccz {ok}
        s_sub_u32 s{sT3}, s{sT3}, 1
        s_cmp_lg_u32 s{sT3}, 0
        s_cbranch_scc1 {lp}
        s_branch {ok}""")
    CR0=conv_reads(0)
    k.w(d=0); weave(k,mf(1),["s_barrier"]+CR0[:16]+[cscheck],[1,4,4,4,4,1])
    k.stamp('g1s7')
    mx=[f"v_mfma_f32_32x32x16_bf16 {vr(ACC+16*(2*u+e),16)}, {vr(EA+4*u,4)}, {vr(EB+4*e,4)}, {vr(ACC+16*(2*u+e),16)}" for u in range(3) for e in range(2)]
    def hepi(b):
        a=ACC+16*b; u,e=b>>1,b&1
        L=[f"v_mul_f32 v{a+r}, v{a+r}, v{a+8+r}" for r in range(8)]
        L+=[f"v_cvt_pk_bf16_f32 v{a+8+j}, v{a+2*j}, v{a+2*j+1}" for j in range(4)]
        L.append(lambda: k.vm(f"buffer_store_dwordx4 {vr(a+8,4)}, v{HS+u}, {srd(SW)}, s{sH0+e} offen sc1","h"))
        return L
    weave(k,mx,CR0[16:]+["s_nop 1"]+hepi(0)+hepi(1),[4,4,1,6,6,6])
    for b in range(2,6):
        for f in hepi(b): f() if callable(f) else k(f)
    vq_main=list(k.vq); dq_main=list(k.dq)
    k(f"{MRG}:")
    k.stamp('hepi')
    def conv_mf(rho):
        SA,SBb=((CS0A,CS0B),(CS1A,CS1B))[rho&1]
        L=[]
        for s in range(8):
            for i in range(s+1):
                I=s
                c="0" if (rho==0 and i==0) else vr(CACC+4*I,4)
                L.append(f"v_mfma_f32_16x16x32_bf16 {vr(CACC+4*I,4)}, {rg(SA,4*i,4)}, {rg(SBb,4*(I-i),4)}, {c}")
        return L
    def trs(js):
        L=[]
        for j in js: L+=[lambda j=j: k.w(v=f"wd{j}")]+wd_tr(j)
        return L
    def redma(jn,jold):
        D=wd_dma(jn); return [D[0],lambda: k.w(d=f"wt{jold}")]+D[1:]
    hflag=[lambda: k.w(v="h"), lambda: k.vm(f"buffer_store_byte v{ONEB}, v{FHS}, {srd(SW)}, 0 offen sc1","hf")]
    k.w(d="cv0"); weave(k,conv_mf(0),mix(conv_reads(1),wd_dma(8)+wd_dma(9)+wd_dma(10)+wd_dma(11))+wd_dma(12)+trs([0,1,2])+redma(13,0)+redma(14,1)+redma(15,2),2)
    k.w(d="cv1"); weave(k,conv_mf(1),conv_reads(2)+hflag+trs([3,4,5,6,7])+redma(16,3)+redma(17,4)+redma(18,5)+redma(19,6),2)
    k.w(d="cv2"); weave(k,conv_mf(2),conv_reads(3)+redma(20,7)+trs([8,9,10])+redma(21,8)+[lambda: k.vm(f"buffer_load_dword v{PL-80}, v{FHP}, {srd(SW)}, 0 offen sc1","hp")],2)
    HR=144
    def hload(j):
        r=HR+8*(j%(DEPTH+1))
        return [f"s_lshr_b32 s{sT0}, s{4+j}, 4"]+[lambda e=e: k.vm(f"buffer_load_dwordx4 {vr(r+4*e,4)}, v{HL+e}, {srd(SW)}, s{sT0} offen sc1",f"h{j}") for e in range(2)]
    pre=[lambda: poll("hp",PL-80,FHP,SW,f"s{sONE}")]
    for j in range(DEPTH): pre+=hload(j)
    k.w(d="cv3"); weave(k,conv_mf(3),pre,2,start=20)
    k.stamp('conv')
    H1=k.lab("H1"); HE=k.lab("HE")
    k(f"""s_add_u32 s{sT1}, s{sAW}, {BW+2048}
    v_add_u32 v96, s{sT1}, v{EXW}
    s_xor_b32 s{sT2}, s{sWV}, 1
    s_mul_i32 s{sT2}, s{sT2}, {AWS}
    s_add_u32 s{sT2}, s{sT2}, {BW+2048}
    v_add_u32 v97, s{sT2}, v{EXW}
    s_bitcmp1_b32 s{sWV}, 0
    s_cbranch_scc1 {H1}""")
    for hh in range(2):
        snd=CACC+16*(1-hh); own=CACC+16*hh
        if hh==0: k("s_nop 1")
        for j in range(4): k(f"ds_write_b128 v96, {vr(snd+4*j,4)} offset:{1024*j}")
        k("s_waitcnt lgkmcnt(0)\ns_barrier")
        for j in range(4): k(f"ds_read_b128 {vr(80+4*j,4)}, v97 offset:{1024*j}")
        for j in range(4):
            k(f"s_waitcnt lgkmcnt({3-j})")
            k(f"v_pk_add_f32 {vr(80+4*j,2)}, {vr(80+4*j,2)}, {vr(own+4*j,2)}\nv_pk_add_f32 {vr(82+4*j,2)}, {vr(82+4*j,2)}, {vr(own+4*j+2,2)}")
        if hh==0: k(f"s_branch {HE}\n{H1}:")
    k(f"{HE}:"); k.dq=[]
    for j in range(4): k(f"v_cvt_pk_bf16_f32 v{112+2*j}, v{80+4*j}, v{81+4*j}\nv_cvt_pk_bf16_f32 v{113+2*j}, v{82+4*j}, v{83+4*j}")
    k("s_nop 0")
    for j in range(2):
        k(f"v_permlane16_swap_b32 v{112+4*j}, v{114+4*j}\nv_permlane16_swap_b32 v{113+4*j}, v{115+4*j}")
    for j in range(2): k.vm(f"buffer_store_dwordx4 {vr(112+4*j,4)}, v{YS}, {srd(SW)}, 0 offen offset:{1024*j} sc1","y")
    k.vm(f"buffer_load_dwordx4 v[136:139], v{XO}, {srd(SX)}, 0 offen","x")
    k.vm(f"buffer_load_dwordx4 v[140:143], v{XO}, {srd(SX)}, 0 offen offset:32","x")
    k.vm(f"buffer_load_dword v135, v{RS}, {srd(SW)}, 0 offen sc1","x")
    k.w(v="wd21")
    for j in range(11,22):
        for f in wd_tr(j): f()
    k.stamp('xchg')
    A2=16
    def g2mf(j):
        r=HR+8*(j%(DEPTH+1))
        return [f"v_mfma_f32_32x32x16_bf16 {vr(A2+16*(2*d+t),16)}, {ar(8*j+4*d,4)}, {vr(r+4*t,4)}, {'0' if j==0 else vr(A2+16*(2*d+t),16)}" for d,t in((1,1),(1,0),(0,1),(0,0))]
    SK=k.lab("SK")
    waited=False
    for j in range(22):
        fl=[]
        if j+DEPTH<22: fl+=hload(j+DEPTH)
        if j==DEPTH: fl+=[lambda: k.vm(f"buffer_store_byte v{ONEB}, v{FYS}, {srd(SW)}, 0 offen sc1","yf")]
        if j==12: fl+=[lambda: k.vm(f"buffer_load_dword v134, v{FYP}, {srd(SW)}, 0 offen sc1","yp")]
        if j==17:
            fl+=[lambda: poll("yp",134,FYP,SW,f"s{sONE}")]
            fl+=[lambda q=q: k.vm(f"buffer_load_dwordx4 {vr(112+4*q,4)}, v{YL}, {srd(SW)}, {'s%d'%sYQ if q else 0} offen sc1","yl") for q in range(2)]
        if j==21: k(f"s_cmp_ge_u32 s{sWV}, 2\ns_cbranch_scc1 {SK}")
        if j>=11 and not waited: k.w(v=f"h{j}",d=0); waited=True
        else: k.w(v=f"h{j}")
        weave(k,g2mf(j),fl,3)
    k(f"{SK}:")
    k.stamp('g2')
    k(f"""v_add_u32 v96, s{sAW}, v{EXW}
    v_add_u32 v97, s{sCWB}, v{EXW}""")
    for x in (1,2,3):
        k(f"s_xor_b32 s{sT0}, s{sWV}, {x}")
        if x<3: k(f"s_mul_i32 s{sT0}, s{sT0}, {AWS}\ns_add_u32 s{sT0}, s{sT0}, {4096*(x-1)}")
        else: k(f"s_mul_i32 s{sT0}, s{sT0}, {CWS}\ns_add_u32 s{sT0}, s{sT0}, {CW}")
        k(f"v_add_u32 v{97+x}, s{sT0}, v{EXW}")
    for x in (3,2,1):
        for a in range(4):
            k.ds(f"ds_write_b128 v{97 if x==3 else 96}, {vr(A2+16*x+4*a,4)} offset:{1024*a+(4096 if x==2 else 0)}")
    k.w(v="yl")
    for q in range(2): k.ds(f"ds_write_b128 v{YW}, {vr(112+4*q,4)} offset:{1024*q}")
    for a in range(4): k.ds(f"ds_read_b64_tr_b16 {vr(120+2*a,2)}, v{YR} offset:{512*a}","yt")
    k.w(d=0); k("s_barrier")
    for x in (1,2,3):
        for a in range(4): k.ds(f"ds_read_b128 {vr(144+16*(x-1)+4*a,4)}, v{97+x} offset:{1024*a}",f"rd{x}")
    for j in range(8): k(f"v_lshlrev_b32 v{80+2*j}, 16, v{120+j}\nv_and_b32 v{81+2*j}, s{sMSK}, v{120+j}")
    for x in (1,2,3):
        k.w(d=f"rd{x}")
        for j in range(8): k(f"v_pk_add_f32 {vr(A2+2*j,2)}, {vr(A2+2*j,2)}, {vr(144+16*(x-1)+2*j,2)}")
    for j in range(8): k(f"v_pk_fma_f32 {vr(A2+2*j,2)}, {vr(A2+2*j,2)}, v[134:135], {vr(80+2*j,2)} op_sel:[0,1,0] op_sel_hi:[1,1,1]")
    for j in range(8): k(f"v_lshlrev_b32 v{80+2*j}, 16, v{136+j}\nv_and_b32 v{81+2*j}, s{sMSK}, v{136+j}")
    for a in(0,2):
        for r in range(4): k(f"v_permlane32_swap_b32 v{A2+4*a+r}, v{A2+4*a+4+r}")
    for j in range(8):
        k(f"v_pk_add_f32 {vr(A2+2*j,2)}, {vr(A2+2*j,2)}, {vr(80+2*j,2)}\nv_cvt_pk_bf16_f32 v{100+j}, v{A2+2*j}, v{A2+2*j+1}")
        if j%4==3: k.vm(f"buffer_store_dwordx4 {vr(100+j-3,4)}, v{XO}, {srd(SO)}, 0 offen offset:{32*(j//4)}","o")
    if prof:
        k.stamp('epi'); k("s_waitcnt vmcnt(0) lgkmcnt(0)"); k.stamp('drain'); k("s_waitcnt lgkmcnt(0)"); k.stamp(); k.stamp()
        k("; STAMPS "+" ".join(k.names[:-2]))
        k("s_memrealtime s[94:95]\ns_waitcnt lgkmcnt(0)\nv_writelane_b32 v199, s94, 62\nv_writelane_b32 v199, s96, 63")
        k(f"s_lshl_b32 s{sT0}, s2, 2\ns_add_u32 s{sT0}, s{sT0}, s{sWV}\ns_lshl_b32 s{sT0}, s{sT0}, 8\ns_add_u32 s{sT0}, s{sT0}, {PROF}\nv_lshl_add_u32 v2, v1, 2, s{sT0}")
        k(f"buffer_store_dword v199, v2, {srd(SW)}, 0 offen")
    k("s_endpgm")
    k(f"{CSL}:")
    k(f"""s_mul_i32 s{sT0}, s{sWV}, 3072
    s_lshr_b32 s{sT1}, s{sWV}, 1
    s_mul_i32 s{sT1}, s{sT1}, 96
    s_sub_u32 s{sT0}, s{sT0}, s{sT1}
    v_add_u32 v{WR}, s{sT0}, v{WR}
    v_mov_b32 v112, 0x3f803f80
    v_mov_b32 v113, v112
    v_mov_b32 v114, v112
    v_mov_b32 v115, v112
    s_mov_b32 s{sRING}, {2*SS}
    s_mov_b32 s{sCNT}, 0""")
    for r in range(16,112): k(f"v_mov_b32 v{r}, 0")
    def csdma():
        D=dma_list(f"s{sRING}","c")[5:]
        for f in D: f() if callable(f) else (k(f),k("s_nop 0"))
        for f in nextk: k(f)
    csdma()
    CL=k.lab("CL"); CN=k.lab("CN")
    k(f"{CL}:\ns_waitcnt vmcnt(12)\ns_cmp_lt_u32 s{sCNT}, 6\ns_cbranch_scc1 {CN}\ns_waitcnt vmcnt(0)\n{CN}:")
    for u in range(6):
        for h in range(2): k(f"ds_read_b64_tr_b16 {vr(116+4*u+2*h,2)}, v{WR} offset:{768*h+32*u}")
    CN2=k.lab("CN")
    k(f"""s_add_u32 s{sRING}, s{sRING}, s{sC1}
    s_cmp_eq_u32 s{sRING}, {3*SS}
    s_cselect_b32 s{sRING}, 0, s{sRING}
    s_cmp_eq_u32 s{sRING}, {2*SS}
    s_cselect_b32 s{sDL}, s{sC2}, s{sC1}
    v_add_u32 v{WR}, s{sDL}, v{WR}
    s_waitcnt lgkmcnt(0)
    s_cmp_ge_u32 s{sCNT}, 5
    s_cbranch_scc1 {CN2}""")
    csdma()
    k(f"{CN2}:")
    for u in range(6): k(f"v_mfma_f32_32x32x16_bf16 {vr(16+16*u,16)}, v[112:115], {vr(116+4*u,4)}, {vr(16+16*u,16)}")
    k(f"s_add_u32 s{sCNT}, s{sCNT}, 1\ns_cmp_lt_u32 s{sCNT}, 8\ns_cbranch_scc1 {CL}")
    k(f"""s_mul_i32 s{sT0}, s{sWV}, 768
    s_add_u32 s{sT0}, s{sT0}, {PT}
    v_and_b32 v2, 31, v1
    v_lshl_add_u32 v2, v2, 2, s{sT0}
    v_min_u32 v3, 191, v0
    v_lshlrev_b32 v3, 2, v3
    v_add_u32 v3, {PT}, v3
    s_nop 7""")
    for u in range(6): k(f"ds_write_b32 v2, v{16+16*u} offset:{128*u}")
    k("s_waitcnt lgkmcnt(0)\ns_barrier")
    for j in range(4): k(f"ds_read_b32 v{4+j}, v3 offset:{768*j}")
    k(f"""s_waitcnt lgkmcnt(0)
    v_add_f32 v4, v4, v5
    v_add_f32 v6, v6, v7
    v_add_f32 v4, v4, v6
    v_cvt_pk_bf16_f32 v5, v4, v4
    v_and_b32 v5, s{sMSK}, v5
    v_sub_f32 v6, v4, v5
    v_cvt_pk_bf16_f32 v5, v5, v6
    buffer_store_dword v5, v{CSA}, {srd(SW)}, 0 offen sc1""")
    k.vq=[]; k.dq=[]
    lnpoll(); poll("lnp",PL,LNP,SB,f"s{sONE}")
    for f in uloads(): f()
    k("v_mov_b32 v184, 0\nv_mov_b32 v185, 0\nv_mov_b32 v186, 0\nv_mov_b32 v187, 0")
    for j in range(8):
        for f in wd_dma(j): f() if callable(f) else (k(f),k("s_nop 0"))
    zpad[0]()
    for f in uwrite(): f()
    k("s_waitcnt lgkmcnt(0)\ns_barrier")
    for f in conv_reads(0): f()
    k(f"s_waitcnt vmcnt(0) lgkmcnt(0)\ns_branch {MRG}")
    for t in k.tail: k(t)
    k(f"{END}:")
    return k
import struct
def f2b(x): return struct.unpack('<I',struct.pack('<f',x))[0]
if __name__=='__main__':
    out=sys.argv[1]; opts=dict(a.split('=') for a in sys.argv[2:])
    opts={a:int(b) for a,b in opts.items()}
    k=gen(**opts)
    hdr="".join(l for l in open('cdna_kernels/'+NAME[:-7]+'.s.ref') if l.startswith(';') and '@launch' not in l)
    txt=module([k],[(None,256,256,163840)],hdr)
    open(out,'w').write(txt)
    print("hazards:",haz.check(txt.split('\n')))
```

```python
import sys
sys.path.insert(0,'w')
from gl import *
import haz
NAME="parallel_sum__ssm_conv_s4__glu_gated_bilinear__prompt_kernel"
XNB=0; STATS=0x200000; FH=0x210000; FY=0x218000; PROF=0x220000; HB=0x400000; YB=0xA00000; CS=0xC00000; WSEND=CS+86*128
SS=41216; WG_O=16384; WU_D=12320
TAB=82432; TABW=16416; KC=123648; KCS=4160; PT=156928; PTS=3088
UO=82432; US=4608; CW=91648; CWS=6144; AWS=10240; BW=41216
OOB=0x80000000
PX=95744; PO=(0,13,77,239)
class G(K):
    def __init__(s,*a,**kw):
        super().__init__(*a,**kw); s.vq=[]; s.dq=[]; s.tail=[]; s.nst=0; s.names=['start']
    def vm(s,t,tag=None):
        if t.endswith(' lds') and ' m0,' in s.L[-1]: s("s_nop 0")
        s(t); s.vq.append(tag)
    def ds(s,t,tag=None): s(t); s.dq.append(tag)
    def nv(s,tag):
        i=max(j for j,x in enumerate(s.vq) if x==tag); return min(len(s.vq)-1-i,63)
    def nd(s,tag):
        i=max(j for j,x in enumerate(s.dq) if x==tag); return min(len(s.dq)-1-i,15)
    def w(s,v=None,d=None):
        o=[]
        if v is not None: o.append(f"vmcnt({s.nv(v) if isinstance(v,str) else v})")
        if d is not None: o.append(f"lgkmcnt({s.nd(d) if isinstance(d,str) else d})")
        s("s_waitcnt "+" ".join(o))
    def stamp(s,name=''):
        if s.prof:
            n=s.nst; R=(90,92,98,100); a=R[n&3]
            s(f"s_memtime s[{a}:{a+1}]")
            if n>=2: s(f"v_writelane_b32 v199, s{R[(n-2)&3]}, {n-1}")
            elif n==0: s("v_writelane_b32 v199, s34, 0")
            s.names.append(name); s.nst+=1
def vr(a,n): return f"v[{a}:{a+n-1}]" if n>1 else f"v{a}"
def ar(a,n): return f"a[{a}:{a+n-1}]" if n>1 else f"a{a}"
def weave(k,mf,fl,per,start=0):
    fl=list(fl)
    for i,m in enumerate(mf):
        k(m)
        if i>=start:
            n=per[i] if isinstance(per,(list,tuple)) else per
            for _ in range(n):
                if fl:
                    f=fl.pop(0); f() if callable(f) else k(f)
    for f in fl: f() if callable(f) else k(f)

SX,SG,SU,SD,SW,SO,SB=36,40,44,48,52,56,60
sXCD,sI,sWV,sP,sFT,sMT,sRB,sLD,sDK=64,65,66,67,68,69,70,71,72
sKS,sOX,sOW,sMX,sMG,sRING,sDL,sCNT,sC1,sC2=73,74,75,76,77,78,79,80,81,82
sH0,sH1,sMSK,sONE,sAW,sCWB,sT0,sT1,sT2,sT3=83,84,85,86,87,88,26,27,28,29
sUQ=30; sYQ=31; sTB=32; sDB=33
def srd(d): return f"s[{d}:{d+3}]"
XD=200; WD=204; XR=207; WR=211; KCW=212; EX=213
CA=224; CB=225; WDV=226; TA=228; TC=230; HL=232; HS=234; UL=237; UW=238; UZ=239; ST=240; CSA=241
XO=242; RS=243; YL=244; YW=245; YR=246; YS=247; EXW=248; FHP=249; FYP=250; FHS=251; FYS=252; LNP=253; LNF=254; ONEB=255

def gen(prof=False, ROT1=True, ROT2=True, DEPTH=5, dbg=0):
    k=G(NAME,vgpr=256,agpr=256,sgpr=102); k.prof=prof; k.pst=90
    END=k.lab("END")
    if prof: k("s_memtime s[34:35]\ns_memrealtime s[96:97]")
    k(f"s_cmp_ge_u32 s2, 0x100\ns_cbranch_scc1 {END}")
    k("s_load_dwordx16 s[4:19], s[0:1], 0\ns_load_dwordx2 s[20:21], s[0:1], 64")
    for d,o in((SX,0),(SG,80),(SU,88),(SD,96),(SO,104),(SB,112),(SW,120)): k(f"s_load_dwordx2 s[{d}:{d+1}], s[0:1], {o}")
    for d,n in((SX,0x200000),(SG,512*2752),(SU,512*2752),(SD,1376*1024),(SO,0x200000),(SB,256),(SW,WSEND)):
        k(f"s_mov_b32 s{d+2}, {hex(n)}\ns_mov_b32 s{d+3}, 0x00020000")
    k(f"""v_lshrrev_b32 v2, 6, v0
    v_and_b32 v1, 63, v0
    v_readfirstlane_b32 s{sWV}, v2
    s_and_b32 s{sXCD}, s2, 7
    s_lshr_b32 s{sI}, s2, 3
    s_lshl_b32 s{sP}, s{sXCD}, 5
    s_add_u32 s{sP}, s{sP}, s{sI}
    s_and_b32 s{sT0}, s{sXCD}, 1
    s_lshr_b32 s{sT1}, s{sXCD}, 1
    s_lshl_b32 s{sRB}, s{sT0}, 7
    s_lshl_b32 s{sT2}, s{sT1}, 5
    s_add_u32 s{sRB}, s{sRB}, s{sT2}
    s_add_u32 s{sRB}, s{sRB}, s{sI}
    s_mul_i32 s{sT2}, s{sT1}, 30
    s_add_u32 s{sT2}, s{sT2}, s{sI}
    s_lshr_b32 s{sFT}, s{sT2}, 3
    s_and_b32 s{sT2}, s{sT2}, 7
    s_lshl_b32 s{sMT}, s{sT0}, 3
    s_add_u32 s{sMT}, s{sMT}, s{sT2}
    s_lshl_b32 s{sT1}, s{sT1}, 2
    s_lshl_b32 s{sT0}, s{sT0}, 1
    s_add_u32 s{sT1}, s{sT1}, s{sT0}
    s_add_u32 s{sT1}, s{sT1}, s{sI}
    s_sub_u32 s{sT1}, s{sT1}, 30
    s_cmp_ge_u32 s{sI}, 30
    s_cselect_b32 s{sFT}, s{sT1}, s{sFT}
    s_mov_b32 s{sMSK}, 0xffff0000""")
    k(f"""s_lshl_b32 s{sT0}, s{sRB}, 13
    s_lshl_b32 s{sT1}, s{sWV}, 11
    s_add_u32 s{sT0}, s{sT0}, s{sT1}
    v_lshl_add_u32 v3, v1, 4, s{sT0}
    s_lshl_b32 s{sT0}, s{sP}, 9
    v_lshl_add_u32 v4, v0, 1, s{sT0}""")
    for j in range(6): k(f"v_mov_b32 v{60+j}, 0")
    k(f"""s_lshl_b32 s{sT0}, s{sMT}, 17
    s_lshl_b32 s{sT1}, s{sWV}, 15
    s_add_u32 s{sT0}, s{sT0}, s{sT1}
    v_lshrrev_b32 v5, 3, v1
    v_lshl_add_u32 v5, v5, 10, s{sT0}
    v_lshrrev_b32 v6, 4, v1
    v_xor_b32 v7, v1, v6
    v_and_b32 v7, 7, v7
    v_lshl_add_u32 v{XD}, v7, 4, v5
    v_xor_b32 v5, 64, v{XD}
    v_add_u32 v{XD+1}, 7168, v5
    v_add_u32 v{XD+2}, 14336, v{XD}
    v_add_u32 v{XD+3}, 21504, v5
    s_mul_i32 s{sT0}, s{sFT}, 192
    s_mul_i32 s{sT1}, s{sWV}, {16*2752}""")
    for q in range(3):
        k(f"""v_add_u32 v5, {64*q}, v1
        v_mul_u32_u24 v7, 5462, v5
        v_lshrrev_b32 v7, 16, v7
        v_mul_u32_u24 v8, 12, v7
        v_sub_u32 v8, v5, v8
        v_lshl_add_u32 v8, v8, 4, s{sT0}
        v_min_u32 v8, 2736, v8
        v_mul_u32_u24 v7, 2752, v7
        v_add3_u32 v{WD+q}, v7, v8, s{sT1}""")
        if q: k(f"v_subrev_u32 v{WD+q}, {1024*q}, v{WD+q}")
    if ROT1: k(f"s_add_u32 s{sKS}, s{sMT}, s{sFT}\ns_and_b32 s{sKS}, s{sKS}, 3\ns_lshl_b32 s{sKS}, s{sKS}, 1")
    else: k(f"s_mov_b32 s{sKS}, 0")
    k(f"""s_lshl_b32 s{sMX}, s{sWV}, 12
    s_mul_i32 s{sMG}, s{sWV}, 3072
    s_add_u32 s{sMG}, s{sMG}, {WG_O}
    s_lshl_b32 s{sOX}, s{sKS}, 7
    s_mul_i32 s{sOW}, s{sKS}, {64*2752}
    s_lshl_b32 s{sT0}, s{sP}, 2
    s_waitcnt lgkmcnt(0)""")
    k(f"s_load_dword s{sLD}, s[18:19], s{sT0}\ns_load_dword s{sDK}, s[20:21], s{sT0}")
    k.vm(f"buffer_load_dwordx4 v[10:13], v3, {srd(SX)}, 0 offen","row")
    k.vm(f"buffer_load_dwordx4 v[14:17], v3, {srd(SX)}, 0 offen offset:1024","row")
    for j in range(6): k.vm(f"global_load_short_d16_hi v{60+j}, v4, s[{6+2*j}:{7+2*j}]","par")
    def dma_list(ring,tag):
        L=[]
        if isinstance(ring,int):
            a=lambda s: f"s_add_u32 m0, s{s}, {ring}" if ring else f"s_mov_b32 m0, s{s}"
        else: a=lambda s: f"s_add_u32 m0, s{s}, {ring}"
        L.append(a(sMX))
        for q in range(4): L.append(lambda q=q: k.vm(f"buffer_load_dwordx4 v{XD+q}, {srd(SX)}, s{sOX} offen offset:{1024*q} lds",tag))
        L.append(a(sMG))
        for q in range(3): L.append(lambda q=q: k.vm(f"buffer_load_dwordx4 v{WD+q}, {srd(SG)}, s{sOW} offen offset:{1024*q} lds",tag))
        L.append(f"s_add_u32 m0, m0, {WU_D}")
        for q in range(3): L.append(lambda q=q: k.vm(f"buffer_load_dwordx4 v{WD+q}, {srd(SU)}, s{sOW} offen offset:{1024*q} lds",tag))
        return L
    nextk=[f"s_add_u32 s{sKS}, s{sKS}, 1",f"s_and_b32 s{sKS}, s{sKS}, 7",f"s_lshl_b32 s{sOX}, s{sKS}, 7",f"s_mul_i32 s{sOW}, s{sKS}, {64*2752}"]
    for f in dma_list(0,"d0"):
        if callable(f): f()
        else: k(f); k("s_nop 0")
    for f in nextk: k(f)
    k(f"""v_lshrrev_b32 v2, 4, v1
    v_bfe_u32 v3, v1, 2, 2
    v_and_b32 v4, 3, v1
    v_and_b32 v5, 31, v1
    v_lshrrev_b32 v6, 5, v1
    v_and_b32 v7, 15, v1
    s_and_b32 s{sT0}, s{sWV}, 1
    s_lshr_b32 s{sT1}, s{sWV}, 1""")
    k(f"""v_bfe_u32 v8, v1, 1, 3
    v_xor_b32 v8, v8, v6
    v_lshlrev_b32 v8, 4, v8
    v_lshl_add_u32 v8, v5, 7, v8
    s_lshl_b32 s{sT2}, s{sT0}, 13
    v_add_u32 v{XR}, s{sT2}, v8
    v_xor_b32 v{XR+1}, 32, v{XR}
    v_xor_b32 v{XR+2}, 64, v{XR}
    v_xor_b32 v{XR+3}, 0x60, v{XR}""")
    k(f"""v_and_b32 v8, 1, v2
    v_mul_u32_u24 v9, {WU_D}, v8
    v_lshl_add_u32 v18, v6, 3, v3
    v_mul_u32_u24 v18, 192, v18
    v_add_u32 v9, v9, v18
    v_lshl_add_u32 v9, v4, 3, v9
    s_mul_i32 s{sT2}, s{sT1}, 96
    s_add_u32 s{sT2}, s{sT2}, {WG_O}
    v_add_u32 v{WR}, s{sT2}, v9""")
    k(f"v_lshlrev_b32 v9, 4, v0\nv_add_u32 v{KCW}, {KC}, v9")
    k(f"""v_lshlrev_b32 v9, 3, v0
    v_sub_u32 v18, 2047, v9
    v_cvt_f32_i32 v18, v18
    v_sub_u32 v19, {2047+0x4280}, v9
    s_mov_b32 s{sT2}, {768+0x4280}
    s_mov_b32 s{sT3}, {PX-4*0x4280}""")
    for i in range(0,11,2):
        k(f"v_subrev_f32 v24, {float(i)}, v18" if i in(0,2,4) else f"v_subrev_f32 v24, {hex(f2b(float(i)))}, v18")
        k(f"v_subrev_f32 v25, 1.0, v24\nv_cvt_pk_bf16_f32 v24, v24, v25")
        for h in range(2):
            if i+h>10: break
            k(f"v_and_b32 v25, 0xffff, v24" if h==0 else "v_lshrrev_b32 v25, 16, v24")
            k(f"""v_subrev_u32 v26, {i+h}, v19
            v_min_i32 v26, {128+0x4280}, v26
            v_med3_i32 v25, v25, v26, s{sT2}
            v_lshl_add_u32 v{EX+i+h}, v25, 2, s{sT3}""")
    k(f"""s_mul_i32 s{sT2}, s{sT1}, {4*KCS}
    s_lshl_b32 s{sT3}, s{sT0}, 8
    s_sub_u32 s{sT2}, s{sT2}, s{sT3}
    s_add_u32 s{sT2}, s{sT2}, {KC+4056-3776}
    v_mul_u32_u24 v9, {KCS}, v4
    v_lshl_add_u32 v9, v2, 4, v9
    v_lshlrev_b32 v18, 3, v3
    v_sub_u32 v9, v9, v18
    v_add_u32 v{CA}, s{sT2}, v9
    s_mul_i32 s{sT2}, s{sT1}, {US}
    s_sub_u32 s{sT2}, s{sT2}, s{sT3}
    s_add_u32 s{sT2}, s{sT2}, {UO+256}
    v_lshlrev_b32 v9, 4, v2
    v_lshl_add_u32 v9, v7, 5, v9
    v_add_u32 v{CB}, s{sT2}, v9""")
    k(f"""s_lshl_b32 s{sT2}, s{sP}, 1
    s_add_u32 s{sT2}, s{sT2}, s{sT1}
    s_lshl_b32 s{sT2}, s{sT2}, 12
    s_lshl_b32 s{sT3}, s{sT0}, 11
    s_add_u32 s{sT2}, s{sT2}, s{sT3}
    s_add_u32 s{sT2}, s{sT2}, {YB}
    v_lshlrev_b32 v9, 9, v8
    v_lshl_add_u32 v9, v7, 5, v9
    v_lshl_add_u32 v9, v6, 4, v9
    v_add_u32 v{YS}, s{sT2}, v9""")
    k(f"""s_lshr_b32 s{sT2}, s{sI}, 3
    s_lshl_b32 s{sTB}, s{sXCD}, 2
    s_add_u32 s{sTB}, s{sTB}, s{sT2}
    s_and_b32 s{sDB}, s{sI}, 7""")
    k(f"""v_lshlrev_b32 v9, 2, v8
    v_xor_b32 v9, v9, v1
    v_and_b32 v9, 7, v9
    v_lshlrev_b32 v9, 4, v9
    v_lshrrev_b32 v18, 3, v1
    v_lshl_add_u32 v9, v18, 10, v9
    s_lshl_b32 s{sT2}, s{sDB}, 7
    v_add_u32 v{WDV}, s{sT2}, v9
    v_add_u32 v{WDV+1}, 7168, v{WDV}""")
    k(f"""v_lshl_add_u32 v9, v6, 2, v3
    v_lshlrev_b32 v9, 7, v9
    v_lshrrev_b32 v18, 1, v3
    v_xor_b32 v18, s{sT1}, v18
    v_lshl_add_u32 v9, v18, 6, v9
    v_lshl_add_u32 v9, v8, 5, v9
    v_lshl_add_u32 v9, v4, 3, v9
    s_mul_i32 s{sAW}, s{sWV}, {AWS}
    s_mul_i32 s{sCWB}, s{sWV}, {CWS}
    s_add_u32 s{sCWB}, s{sCWB}, {CW}
    v_add_u32 v{TA}, s{sAW}, v9
    v_xor_b32 v{TA+1}, 64, v{TA}
    v_add_u32 v{TC}, s{sCWB}, v9
    v_xor_b32 v{TC+1}, 64, v{TC}""")
    k(f"""s_lshl_b32 s{sT2}, s{sTB}, 1
    s_add_u32 s{sT2}, s{sT2}, s{sT0}
    s_mul_i32 s{sT3}, s{sT2}, 88064
    s_add_u32 s{sT3}, s{sT3}, {HB}
    v_lshl_add_u32 v{HL}, v1, 4, s{sT3}
    s_xor_b32 s{sT3}, s{sT2}, 1
    s_mul_i32 s{sT3}, s{sT3}, 88064
    s_add_u32 s{sT3}, s{sT3}, {HB}
    v_lshl_add_u32 v{HL+1}, v1, 4, s{sT3}""")
    k(f"""s_lshl_b32 s{sT3}, s{sT2}, 5
    v_add_u32 v9, s{sT3}, v5
    v_lshlrev_b32 v18, 3, v9
    v_add_u32 v{RS}, {STATS+4}, v18
    s_lshl_b32 s{sT3}, s{sDB}, 1
    s_add_u32 s{sT3}, s{sT3}, s{sT1}
    s_lshl_b32 s{sYQ}, s{sT3}, 6
    v_lshlrev_b32 v9, 10, v9
    v_lshl_add_u32 v9, v6, 4, v9
    v_add_u32 v{XO}, s{sYQ}, v9
    s_lshl_b32 s{sYQ}, s{sT3}, 17
    s_lshl_b32 s{sT2}, s{sT2}, 6
    s_add_u32 s{sT2}, s{sT2}, s{sYQ}
    s_add_u32 s{sT2}, s{sT2}, {YB}
    v_lshrrev_b32 v9, 2, v1
    v_lshlrev_b32 v9, 12, v9
    v_lshl_add_u32 v9, v4, 4, v9
    v_add_u32 v{YL}, s{sT2}, v9
    s_mov_b32 s{sYQ}, 0x10000
    s_lshl_b32 s{sT2}, s{sWV}, 11
    s_add_u32 s{sT2}, s{sT2}, {KC}
    v_lshl_add_u32 v{YW}, v1, 4, s{sT2}
    v_lshl_add_u32 v9, v6, 2, v3
    v_lshlrev_b32 v9, 6, v9
    v_lshl_add_u32 v9, v8, 5, v9
    v_lshl_add_u32 v9, v4, 3, v9
    v_add_u32 v{YR}, s{sT2}, v9
    s_lshl_b32 s{sT3}, s{sT3}, 11
    s_add_u32 s{sT3}, s{sT3}, {FY}
    v_lshl_add_u32 v{FYP}, v7, 7, s{sT3}
    s_lshr_b32 s{sT2}, s{sTB}, 1
    s_lshl_b32 s{sT2}, s{sT2}, 11
    s_add_u32 s{sT2}, s{sT2}, {FH}
    v_min_u32 v9, 14, v7
    v_lshl_add_u32 v{FHP}, v9, 7, s{sT2}
    v_lshlrev_b32 v{EXW}, 4, v1
    v_lshlrev_b32 v{LNP}, 2, v1""")
    k(f"""s_mul_i32 s{sT2}, s{sFT}, 6
    s_mul_i32 s{sT3}, s{sT1}, 3
    s_add_u32 s{sT2}, s{sT2}, s{sT3}
    s_lshl_b32 s{sT3}, s{sT2}, 7
    s_add_u32 s{sT3}, s{sT3}, {CS}
    v_lshl_add_u32 v9, v1, 2, s{sT3}
    v_lshl_or_b32 v{CSA}, v6, 31, v9""")
    for j in range(3):
        k(f"""s_add_u32 s{sT3}, s{sT2}, {j}
        s_cmp_lt_u32 s{sT3}, 86
        s_cselect_b32 s{sH0}, 0, {hex(OOB)}
        s_lshl_b32 s{sT3}, s{sT3}, 10
        s_or_b32 s{sT3}, s{sT3}, s{sH0}
        v_lshl_add_u32 v{HS+j}, v1, 4, s{sT3}""")
    k(f"""s_lshl_b32 s{sT2}, s{sMT}, 1
    s_add_u32 s{sT2}, s{sT2}, s{sT0}
    s_lshl_b32 s{sT3}, s{sT2}, 9
    s_add_u32 s{sT3}, s{sT3}, {STATS}
    v_lshl_add_u32 v{ST}, v5, 3, s{sT3}
    s_mul_i32 s{sH0}, s{sT2}, {2*88064}
    s_add_u32 s{sH0}, s{sH0}, {HB}
    s_add_u32 s{sH1}, s{sH0}, 88064""")
    k(f"""v_lshrrev_b32 v9, 1, v0
    v_and_b32 v18, 1, v0
    s_lshl_b32 s{sT2}, s{sP}, 5
    v_lshl_add_u32 v19, v18, 4, s{sT2}
    v_lshl_add_u32 v{UL}, v9, 13, v19
    v_mul_u32_u24 v18, {US}, v18
    v_lshl_add_u32 v18, v9, 4, v18
    v_add_u32 v{UW}, {UO+480}, v18
    v_min_u32 v9, 29, v5
    v_mul_u32_u24 v18, {US}, v6
    v_lshl_add_u32 v18, v9, 4, v18
    v_add_u32 v{UZ}, {UO}, v18
    s_mov_b32 s{sUQ}, 0x100000""")
    k(f"""v_cmp_eq_u32 vcc, 0, v1
    v_mov_b32 v9, {hex(OOB)}
    s_lshl_b32 s{sT2}, s{sMT}, 4
    s_add_u32 s{sT2}, s{sT2}, s{sFT}
    s_lshl_b32 s{sT2}, s{sT2}, 7
    s_add_u32 s{sT2}, s{sT2}, {FH}
    s_cmp_ge_u32 s{sI}, 30
    s_cselect_b32 s{sT2}, {hex(OOB)}, s{sT2}
    s_lshl_b32 s{sT3}, s{sP}, 7
    s_add_u32 s{sT3}, s{sT3}, {FY}
    v_mov_b32 v18, s{sT2}
    v_mov_b32 v19, s{sT3}
    v_cndmask_b32 v24, v19, v18, vcc
    v_add_u32 v18, s{sWV}, v18
    v_add_u32 v19, s{sWV}, v19
    v_cndmask_b32 v{FHS}, v9, v18, vcc
    v_cndmask_b32 v{FYS}, v9, v19, vcc
    v_cmp_gt_u32 vcc, 2, v0
    v_mov_b32 v18, s2
    v_mov_b32 v{ONEB}, 1
    v_cndmask_b32 v58, v9, v24, vcc
    v_cmp_eq_u32 vcc, 0, v0
    s_mov_b32 s{sONE}, 0x01010101
    s_mov_b32 s{sC1}, {SS}
    v_cndmask_b32 v{LNF}, v9, v18, vcc
    s_mov_b32 s{sC2}, {-2*SS}""")
    k(f"""s_mul_i32 s{sT2}, s{sWV}, 22
    s_cmp_eq_u32 s{sWV}, 3
    s_cselect_b32 s{sT2}, 65, s{sT2}
    s_sub_u32 s{sT3}, 22, s{sT1}""")
    if ROT2:
        k(f"""s_mul_i32 s{sCNT}, s{sDB}, 3
        s_lshr_b32 s{sDL}, s{sI}, 3
        s_mul_i32 s{sDL}, s{sDL}, 5
        s_add_u32 s{sCNT}, s{sCNT}, s{sDL}
        v_add_u32 v9, s{sCNT}, v1""")
    else: k("v_mov_b32 v9, v1")
    for _ in range(3):
        k(f"v_subrev_u32 v18, s{sT3}, v9\nv_min_u32 v9, v9, v18")
    k(f"v_add_u32 v9, s{sT2}, v9\nv_lshlrev_b32 v59, 14, v9")
    k(f"""s_mul_i32 s{sT2}, s{sWV}, {TABW}
    s_add_u32 s{sT2}, s{sT2}, {TAB}
    v_lshl_add_u32 v56, v1, 2, s{sT2}
    v_mul_u32_u24 v9, 288, v7
    v_lshl_add_u32 v9, v2, 4, v9
    v_add_u32 v57, s{sT2}, v9
    v_mul_u32_u24 v9, 320, v3
    v_lshl_add_u32 v9, v2, 5, v9
    v_lshl_add_u32 v9, v4, 3, v9
    v_add_u32 v54, s{sT2}, v9
    s_mul_i32 s{sT2}, s{sWV}, 640
    s_add_u32 s{sT2}, s{sT2}, {TAB}
    v_mul_u32_u24 v9, {TABW}, v2
    v_lshl_add_u32 v9, v7, 4, v9
    v_add_u32 v55, s{sT2}, v9
    s_lshl_b32 s{sT2}, s{sRB}, 6
    s_lshl_b32 s{sT3}, s{sWV}, 4
    s_add_u32 s{sT2}, s{sT2}, s{sT3}
    s_add_u32 s{sT2}, s{sT2}, {STATS}
    v_lshl_add_u32 v9, v6, 3, s{sT2}
    v_cmp_eq_u32 vcc, 0, v5
    v_mov_b32 v18, {hex(OOB)}
    s_lshl_b32 s{sT2}, s{sRB}, 13
    s_lshl_b32 s{sT3}, s{sWV}, 11
    v_cndmask_b32 v53, v18, v9, vcc
    s_add_u32 s{sT2}, s{sT2}, s{sT3}
    v_lshl_add_u32 v52, v1, 4, s{sT2}""")
    k(f"""s_lshl_b32 s{sT3}, s{sWV}, 3
    s_lshr_b32 s{sT2}, {hex(sum(o<<(8*j) for j,o in enumerate(PO)))}, s{sT3}
    s_and_b32 s{sT2}, s{sT2}, 0xff
    s_lshl_b32 s{sT2}, s{sT2}, 8
    s_add_u32 s{sT2}, s{sT2}, {PX}
    v_mov_b32 v180, s{sT2}
    v_lshlrev_b32 v9, 5, v7
    v_lshl_add_u32 v9, v8, 4, v9
    v_lshl_add_u32 v9, v6, 9, v9
    v_add_u32 v176, s{sT2}, v9
    v_sub_u32 v9, 4, v6
    v_lshlrev_b32 v9, v9, v7
    v_lshl_add_u32 v9, v2, 8, v9
    s_add_u32 s{sT3}, s{sT2}, 1024
    v_add_u32 v177, s{sT3}, v9
    v_mul_u32_u24 v9, 120, v6
    v_add3_u32 v178, v177, v9, 8
    v_lshlrev_b32 v9, 2, v7
    v_lshl_add_u32 v9, v2, 8, v9
    s_add_u32 s{sT3}, s{sT2}, 2048
    v_add_u32 v179, s{sT3}, v9
    s_waitcnt lgkmcnt(0)
    s_lshl_b32 s{sT1}, s{sT1}, 4
    s_lshr_b32 s{sLD}, s{sLD}, s{sT1}
    s_lshl_b32 s{sLD}, s{sLD}, 16
    s_lshr_b32 s{sDK}, s{sDK}, s{sT1}
    s_lshl_b32 s{sDK}, s{sDK}, 16
    s_cmp_eq_u32 s{sT0}, 0
    s_cselect_b32 s{sDK}, s{sDK}, 0
    v_cmp_eq_u32 vcc, 0, v1
    v_mov_b32 v9, s{sDK}
    v_mov_b32 v165, 0
    v_cndmask_b32 v164, 0, v9, vcc
    v_mov_b32 v166, 0
    v_mov_b32 v167, 0""")
    k.dq=[]
    for j in range(22): k(f"v_readlane_b32 s{4+j}, v59, {j}")
    k.stamp('addr')
    k.w(v="row")
    k.stamp('row')
    for j in range(8):
        k(f"v_lshlrev_b32 v{20+2*j}, 16, v{10+j}\nv_and_b32 v{21+2*j}, s{sMSK}, v{10+j}")
    def red2():
        k("""s_nop 1
        v_permlane32_swap_b32 v40, v41
        v_add_f32 v40, v40, v41
        v_mov_b32 v41, v40
        s_nop 1
        v_permlane16_swap_b32 v40, v41
        v_add_f32 v40, v40, v41""")
        for r in(8,4,2,1): k(f"s_nop 1\nv_add_f32_dpp v40, v40, v40 row_ror:{r} row_mask:0xf bank_mask:0xf")
        k("v_mul_f32 v40, 0x3b000000, v40")
    for b,d in((20,40),(28,41)):
        k(f"""v_pk_add_f32 v[36:37], v[{b}:{b+1}], v[{b+2}:{b+3}]
        v_pk_add_f32 v[38:39], v[{b+4}:{b+5}], v[{b+6}:{b+7}]
        v_pk_add_f32 v[36:37], v[36:37], v[38:39]
        v_add_f32 v{d}, v36, v37""")
    red2()
    k("""v_mov_b32 v42, v40
    v_mov_b32 v43, v40
    v_cvt_pk_bf16_f32 v50, -v40, -v40
    s_nop 0
    v_permlane32_swap_b32 v42, v43""")
    for h,(b,d) in enumerate(((20,40),(28,41))):
        for j in range(4):
            k(f"v_pk_add_f32 v[38:39], v[{b+2*j}:{b+2*j+1}], v[42:43] op_sel:[0,{h}] op_sel_hi:[1,{h}] neg_lo:[0,1] neg_hi:[0,1]")
            k("v_pk_mul_f32 v[36:37], v[38:39], v[38:39]" if j==0 else "v_pk_fma_f32 v[36:37], v[38:39], v[38:39], v[36:37]")
        k(f"v_add_f32 v{d}, v36, v37")
    red2()
    k(f"""v_cvt_pk_bf16_f32 v40, v40, v40
    v_and_b32 v40, s{sMSK}, v40
    v_add_f32 v40, 0x3727c5ac, v40
    v_cvt_pk_bf16_f32 v40, v40, v40
    v_and_b32 v40, s{sMSK}, v40
    v_sqrt_f32 v40, v40
    v_and_b32 v41, s{sMSK}, v50
    v_cvt_pk_bf16_f32 v40, v40, v40
    v_and_b32 v40, s{sMSK}, v40
    v_rcp_f32 v46, v40
    s_nop 0
    v_mul_f32 v47, v41, v46
    v_mul_f32 v51, v46, v46
    v_mov_b32 v48, v46
    v_mov_b32 v49, v47
    s_nop 0
    v_permlane32_swap_b32 v46, v48
    v_permlane32_swap_b32 v47, v49""")
    k.vm(f"buffer_store_dwordx2 v[50:51], v53, {srd(SW)}, 0 offen sc1","lnst")
    for h,b in enumerate((20,28)):
        P=f"v[{46+2*h}:{47+2*h}]"
        for j in range(4):
            k(f"v_pk_fma_f32 v[{b+2*j}:{b+2*j+1}], v[{b+2*j}:{b+2*j+1}], {P}, {P} op_sel:[0,0,1] op_sel_hi:[1,0,1]")
            k(f"v_cvt_pk_bf16_f32 v{10+4*h+j}, v{b+2*j}, v{b+2*j+1}")
        k.ds(f"ds_write_b128 v55, v[{10+4*h}:{13+4*h}] offset:{320*h}")
    k.w(d=0); k("s_barrier")
    for q in range(2):
        for h in range(2): k.ds(f"ds_read_b64_tr_b16 v[{10+4*q+2*h}:{11+4*q+2*h}], v54 offset:{128*q+1280*h}",f"lt{q}")
    k(f"""v_mov_b32 v66, s{sLD}
    v_mul_f32 v66, 0x3fb8aa3b, v66
    v_exp_f32 v66, v66
    v_mov_b32 v18, 0
    v_cvt_pk_bf16_f32 v66, v66, v66
    v_and_b32 v66, s{sMSK}, v66""")
    for q in range(2):
        k.w(d=f"lt{q}")
        k.vm(f"buffer_store_dwordx4 v[{10+4*q}:{13+4*q}], v52, {srd(SW)}, 0 offen offset:{1024*q} sc1","lnst")
    k.vm(f"buffer_store_dword v18, v58, {srd(SW)}, 0 offen sc1","lnst")
    L=k.lab()
    k(f"""s_cmp_lt_u32 s{sI}, 30
    s_cbranch_scc1 {L}
    s_mul_i32 s{sT2}, s{sFT}, 768
    s_add_u32 s{sT2}, s{sT2}, {CS}
    s_cmp_eq_u32 s{sWV}, 3
    s_cselect_b32 s{sT2}, {hex(OOB)}, s{sT2}
    v_lshl_add_u32 v{CSA}, v0, 2, s{sT2}
    v_mov_b32 v19, -1
    buffer_store_dword v19, v{CSA}, {srd(SW)}, 0 offen sc1
    {L}:""")
    k.stamp('ln')
    k.w(v="par")
    k("""v_pk_mul_f32 v[60:61], v[60:61], v[66:67] op_sel_hi:[1,0]
    v_pk_mul_f32 v[62:63], v[62:63], v[66:67] op_sel_hi:[1,0]
    v_mul_f32 v60, 0x3fb8aa3b, v60
    v_mul_f32 v61, 0.15915494, v61""")
    Q={1:68,8:70,128:72}
    for e,d in Q.items():
        if e==1: k(f"v_exp_f32 v66, v60\nv_fract_f32 v67, v61")
        else: k(f"v_mul_f32 v66, {hex(f2b(float(e)))}, v60\nv_mul_f32 v67, {hex(f2b(float(e)))}, v61\nv_exp_f32 v66, v66\nv_fract_f32 v67, v67")
        k(f"v_cos_f32 v{d}, v67\nv_sin_f32 v{d+1}, v67\ns_nop 0\nv_pk_mul_f32 v[{d}:{d+1}], v[{d}:{d+1}], v[66:67] op_sel_hi:[1,0]")
    pr=lambda a:f"v[{a}:{a+1}]"
    side=dma_list(SS,"d1")+nextk
    cnt=[0]
    def tick():
        cnt[0]+=1
        if cnt[0]%3==0 and side:
            f=side.pop(0); f() if callable(f) else k(f)
    def cmul(d,a,b):
        k(f"v_pk_mul_f32 v[66:67], {pr(a)}, {pr(b)} op_sel:[0,0] op_sel_hi:[0,1]")
        k(f"v_pk_fma_f32 {pr(d)}, {pr(a)}, {pr(b)}, v[66:67] op_sel:[1,1,0] op_sel_hi:[1,0,1] neg_lo:[1,0,0]")
    tp=[0]
    def put(e,a,conj=False):
        t=96+(tp[0]&3); tp[0]+=1
        k(f"v_cvt_pk_bf16_f32 v{t}, v{a}, {'-' if conj else ''}v{a+1}")
        k.ds(f"ds_write_b32 v56, v{t} offset:{288*e}"); tick()
    cmul(74,64,62); put(0,74,True)
    for b in range(1,16): cmul(74,74,70); put(b,74,True)
    k(f"v_mov_b32 v95, 0x3f80"); k.ds(f"ds_write_b32 v56, v95 offset:{288*16}")
    qp={1:68}
    put(17,68)
    for a in range(2,8):
        qp[a]=76+2*(a-2); cmul(qp[a],qp[a-1],68); put(16+a,qp[a])
    put(24,72)
    for a in range(1,8): cmul(88,72,qp[a]); put(24+a,88)
    cur=90
    for a in range(2,17):
        cmul(cur,72 if a==2 else cur,72)
        if a in(2,3):
            e=32+4*(a-2); put(e,cur)
            for j,x in enumerate((2,4,6)): cmul(88,cur,qp[x]); put(e+1+j,88)
        elif a<8:
            e=40+2*(a-4); put(e,cur); cmul(88,cur,qp[4]); put(e+1,88)
        else: put(48+a-8,cur)
    while side:
        f=side.pop(0); f() if callable(f) else (k(f),k("s_nop 0"))
    for st in range(4):
        for T in range(4):
            k.ds(f"ds_read_b128 {vr(100+16*st+4*T,4)}, v57 offset:{T*16*288+64*st}",f"kf{st}")
    for st in range(4):
        k.w(d=f"kf{st}")
        for T in range(3):
            c=vr(164+4*T,4) if (st or T==0) else "0"
            k(f"v_mfma_f32_16x16x32_bf16 {vr(164+4*T,4)}, {vr(100+16*st+4+4*T,4)}, {vr(100+16*st,4)}, {c}")
    k("s_nop 5")
    k.ds("ds_write_b32 v180, v18 offset:3072")
    k.ds("ds_write_b128 v176, v[164:167]")
    k.ds("ds_write_b64 v177, v[168:169]"); k.ds("ds_write_b64 v178, v[170:171]")
    k.ds("ds_write2_b32 v179, v172, v173 offset0:0 offset1:16"); k.ds("ds_write2_b32 v179, v174, v175 offset0:32 offset1:48")
    k(f"""v_and_b32 v9, 7, v1
    v_mul_u32_u24 v9, {KCS}, v9
    v_and_b32 v8, 8, v1
    v_lshl_add_u32 v9, v8, 1, v9
    v_add_u32 v9, {KC+4096}, v9""")
    k.w(d=0); k("s_barrier")
    k.stamp('kgen')
    for c in range(2):
        for i in range(11): k.ds(f"ds_read2st64_b32 {vr(100+24*c+2*i,2)}, v{EX+i} offset0:{PO[2*c]} offset1:{PO[2*c+1]}",f"ex{c}_{i}")
    k("v_mov_b32 v20, 0\nv_mov_b32 v21, 0\nv_mov_b32 v22, 0\nv_mov_b32 v23, 0")
    k.ds("ds_write_b128 v9, v[20:23]")
    for c in range(2):
        for i in range(11):
            if i in(0,4,8): k.w(d=f"ex{c}_{min(i+3,10)}")
            k(f"v_add_f32 v{100+24*c+2*i}, v{100+24*c+2*i}, v{101+24*c+2*i}")
        for s in range(4):
            t=24+16*c+4*s
            for j in range(4):
                i=100+24*c+2*(3-s+2*j)
                k(f"v_cvt_pk_bf16_f32 v{t+j}, v{i}, v{i+2}")
            k.ds(f"ds_write_b128 v{KCW}, {vr(t,4)} offset:{(4*c+s)*KCS}")
    k.stamp('exp')
    k.w(v="lnst",d=0); k("s_barrier")
    k.vm(f"buffer_store_byte v{ONEB}, v{LNF}, {srd(SB)}, 0 offen sc1","lnf")
    k.stamp('barB')
    CSL=k.lab("CS"); MRG=k.lab("MRG")
    k(f"s_cmp_ge_u32 s{sI}, 30\ns_cbranch_scc1 {CSL}")
    ACC=16; FA=(112,132); FB=(124,144); EA=152; EB=164; UR=172; PL=180
    def reads(st,f):
        L=[]
        for e in range(2): L.append(lambda e=e: k.ds(f"ds_read_b128 {vr(FB[f]+4*e,4)}, v{XR+st} offset:{4096*e}","fr"))
        for u in range(3):
            for h in range(2): L.append(lambda u=u,h=h: k.ds(f"ds_read_b64_tr_b16 {vr(FA[f]+4*u+2*h,2)}, v{WR} offset:{3072*st+768*h+32*u}","fr"))
        return [L[0],L[2],L[3],L[1]]+L[4:]
    def mf(f,zero=False):
        return [f"v_mfma_f32_32x32x16_bf16 {vr(ACC+16*(2*u+e),16)}, {vr(FA[f]+4*u,4)}, {vr(FB[f]+4*e,4)}, {'0' if zero else vr(ACC+16*(2*u+e),16)}" for u in range(3) for e in range(2)]
    def mix(a,b):
        o=[];a=list(a);b=list(b)
        while a or b:
            if a:o.append(a.pop(0))
            if a:o.append(a.pop(0))
            if b:o.append(b.pop(0))
        return o
    def adv(delta):
        return [f"v_add_u32 v{r}, {delta}, v{r}" for r in(XR,WR,XR+1,XR+2,XR+3)]
    for f in reads(0,0): f()
    k(f"s_mov_b32 s{sRING}, {2*SS}\ns_mov_b32 s{sCNT}, 0")
    LOOP=k.lab("G1L"); MID=k.lab("G1M")
    D=dma_list(f"s{sRING}","dl")
    k.w(d=0); weave(k,mf(0,True),mix(reads(1,1),D[0:5]),3)
    k(f"s_branch {MID}\n{LOOP}:")
    D=dma_list(f"s{sRING}","dl")
    k.w(d=0); weave(k,mf(0),mix(reads(1,1),D[0:5]),3)
    k(f"{MID}:")
    k.w(d=0); weave(k,mf(1),mix(reads(2,0),D[5:9]),3)
    k.w(d=0); weave(k,mf(0),mix(reads(3,1),D[9:13])+[f"s_cmp_eq_u32 s{sRING}, s{sC1}",f"s_cselect_b32 s{sDL}, s{sC2}, s{sC1}"],3)
    L=k.lab()
    def bar0():
        k(f"s_cmp_eq_u32 s{sCNT}, 0\ns_cbranch_scc1 {L}\ns_waitcnt vmcnt(10)\n{L}:\ns_waitcnt vmcnt(11)\ns_barrier")
    A=adv(f"s{sDL}")
    tailf=nextk+[f"s_add_u32 s{sRING}, s{sRING}, s{sC1}",f"s_cmp_eq_u32 s{sRING}, {3*SS}",f"s_cselect_b32 s{sRING}, 0, s{sRING}",f"s_add_u32 s{sCNT}, s{sCNT}, 1",f"s_cmp_lt_u32 s{sCNT}, 5"]
    k.w(d=0); weave(k,mf(1),[bar0]+A[:2]+reads(0,0)+A[2:]+tailf,[1,5,5,5,5,5])
    k(f"s_cbranch_scc1 {LOOP}")
    k.vq=["dl"]*10
    k.stamp('g1loop')
    def poll(tag,reg,addr,sr,exp,extra=""):
        ok=k.lab("OK"); rt=k.lab("RT")
        k.w(v=tag)
        k(f"v_cmp_ne_u32 vcc, {exp}, v{reg}\ns_cbranch_vccnz {rt}\n{ok}:")
        lp=k.lab("RL")
        k.tail.append(f"""{rt}:
        s_movk_i32 s{sT3}, 4000
        {lp}:
        buffer_load_dword v{reg}, v{addr}, {srd(sr)}, 0 offen sc1
        s_waitcnt vmcnt(0)
        v_cmp_ne_u32 vcc, {exp}, v{reg}
        s_cbranch_vccz {ok}
        s_sub_u32 s{sT3}, s{sT3}, 1
        s_cmp_lg_u32 s{sT3}, 0
        s_cbranch_scc1 {lp}
        s_branch {ok}""")
    lnpoll=lambda: k.vm(f"buffer_load_dword v{PL}, v{LNP}, {srd(SB)}, 0 offen sc1","lnp")
    def uloads():
        return [lambda q=q: k.vm(f"buffer_load_dwordx4 {vr(UR+4*q,4)}, v{UL}, {srd(SW)}, {'s%d'%sUQ if q else 0} offen sc1","u") for q in range(2)]
    def wd_loc(j):
        if j<3: return ('C',2048*j)
        if j<8: return ('A',2048*(j-3))
        if j<13: return ('A',BW+2048*(j-8))
        if j<16: return ('C',2048*(j-13))
        if j<21: return ('A',2048*(j-16))
        return ('A',BW)
    def wd_dma(j):
        r,o=wd_loc(j); b=sCWB if r=='C' else sAW
        return [f"s_add_u32 m0, s{b}, {o}" if o else f"s_mov_b32 m0, s{b}"]+[lambda h=h: k.vm(f"buffer_load_dwordx4 v{WDV+h}, {srd(SD)}, s{4+j} offen offset:{1024*h} lds",f"wd{j}") for h in range(2)]
    def wd_tr(j):
        r,o=wd_loc(j); b=TC if r=='C' else TA
        return [lambda e=e,h=h: k.ds(f"ds_read_b64_tr_b16 {ar(8*j+4*e+2*h,2)}, v{b+e} offset:{o+1024*h}",f"wt{j}") for e in range(2) for h in range(2)]
    def uwrite():
        L=[lambda: k.w(v="u")]
        L+=[lambda q=q: k.ds(f"ds_write_b128 v{UW}, {vr(UR+4*q,4)} offset:{2048*q}","uw") for q in range(2)]
        return L
    D=dma_list(SS,"d7")
    k.w(d=0); weave(k,mf(0),[lnpoll]+mix(reads(1,1),D[0:5]),3)
    k.w(d=0); weave(k,mf(1),mix(reads(2,0),D[5:9]),3)
    k.w(d=0); weave(k,mf(0),mix(reads(3,1),D[9:13]),3)
    A=adv(-2*SS)
    k.w(d=0); weave(k,mf(1),[lambda:(k.w(v="dl"),k("s_barrier"))]+A[:2]+reads(0,0)+A[2:]+[lambda: poll("lnp",PL,LNP,SB,f"s{sONE}")]+uloads(),[1,5,5,3,1,5])
    zer=[f"v_mov_b32 v{r}, 0" for r in list(range(EA,EA+12))+list(range(EB,EB+8)) if (r-EA)%4]
    k.w(d=0); weave(k,mf(0),reads(1,1)+zer,4)
    sl=[lambda e=e: k.vm(f"buffer_load_dword v{EB+4*e}, v{ST}, {srd(SW)}, 0 offen offset:{256*e} sc1","st") for e in range(2)]
    cl=[lambda j=j: k.vm(f"buffer_load_dword v{EA+4*j}, v{CSA}, {srd(SW)}, 0 offen offset:{128*j} sc1","cs") for j in range(3)]
    k.w(d=0); weave(k,mf(1),reads(2,0)+sl+cl,3)
    zpad=[lambda: k.ds(f"ds_write_b128 v{UZ}, v[184:187]","uw")]
    k("v_mov_b32 v184, 0\nv_mov_b32 v185, 0\nv_mov_b32 v186, 0\nv_mov_b32 v187, 0")
    k.w(d=0); weave(k,mf(0),mix(reads(3,1),wd_dma(0)+wd_dma(1))+zpad,3)
    A=adv(SS)
    k.w(d=0); weave(k,mf(1),[lambda:(k.w(v="d7"),k("s_barrier"))]+A[:2]+reads(0,0)+A[2:]+wd_dma(2),[1,5,5,5,5,5])
    k.w(d=0); weave(k,mf(0),mix(reads(1,1),wd_dma(3)+wd_dma(4)),3)
    k.w(d=0); weave(k,mf(1),mix(reads(2,0),wd_dma(5)+wd_dma(6)),3)
    k.w(d=0); weave(k,mf(0),mix(reads(3,1),wd_dma(7))+uwrite(),3)
    CS0A,CS0B=('a',176),('a',208); CS1A,CS1B=('v',16),('v',48); CACC=112
    def rg(t,o,n): return (ar if t[0]=='a' else vr)(t[1]+o,n)
    def conv_reads(rho):
        SA,SBb=((CS0A,CS0B),(CS1A,CS1B))[rho&1]
        L=[]
        for i in range(8):
            L.append(lambda i=i: k.ds(f"ds_read_b128 {rg(SBb,4*i,4)}, v{CB} offset:{192-64*rho+512*i}",f"cv{rho}"))
            for h in range(2): L.append(lambda i=i,h=h: k.ds(f"ds_read_b64 {rg(SA,4*i+2*h,2)}, v{CA} offset:{3776-512*i-64*rho+8*h}",f"cv{rho}"))
        return L
    def cscheck():
        k.w(v="cs")
        ok=k.lab("OK"); rt=k.lab("RT"); lp=k.lab("RL")
        k(f"v_max3_u32 v{PL}, v{EA}, v{EA+4}, v{EA+8}\nv_cmp_eq_u32 vcc, -1, v{PL}\ns_cbranch_vccnz {rt}\n{ok}:")
        k.tail.append(f"""{rt}:
        s_movk_i32 s{sT3}, 4000
        {lp}:
        buffer_load_dword v{EA}, v{CSA}, {srd(SW)}, 0 offen sc1
        buffer_load_dword v{EA+4}, v{CSA}, {srd(SW)}, 0 offen offset:128 sc1
        buffer_load_dword v{EA+8}, v{CSA}, {srd(SW)}, 0 offen offset:256 sc1
        s_waitcnt vmcnt(0)
        v_max3_u32 v{PL}, v{EA}, v{EA+4}, v{EA+8}
        v_cmp_eq_u32 vcc, -1, v{PL}
        s_cbranch_vccz {ok}
        s_sub_u32 s{sT3}, s{sT3}, 1
        s_cmp_lg_u32 s{sT3}, 0
        s_cbranch_scc1 {lp}
        s_branch {ok}""")
    CR0=conv_reads(0)
    k.w(d=0); weave(k,mf(1),["s_barrier"]+CR0[:16]+[cscheck],[1,4,4,4,4,1])
    k.stamp('g1s7')
    mx=[f"v_mfma_f32_32x32x16_bf16 {vr(ACC+16*(2*u+e),16)}, {vr(EA+4*u,4)}, {vr(EB+4*e,4)}, {vr(ACC+16*(2*u+e),16)}" for u in range(3) for e in range(2)]
    def hepi(b):
        a=ACC+16*b; u,e=b>>1,b&1
        L=[f"v_mul_f32 v{a+r}, v{a+r}, v{a+8+r}" for r in range(8)]
        L+=[f"v_cvt_pk_bf16_f32 v{a+8+j}, v{a+2*j}, v{a+2*j+1}" for j in range(4)]
        L.append(lambda: k.vm(f"buffer_store_dwordx4 {vr(a+8,4)}, v{HS+u}, {srd(SW)}, s{sH0+e} offen sc1","h"))
        return L
    weave(k,mx,CR0[16:]+["s_nop 1"]+hepi(0)+hepi(1),[4,4,1,6,6,6])
    for b in range(2,6):
        for f in hepi(b): f() if callable(f) else k(f)
    vq_main=list(k.vq); dq_main=list(k.dq)
    k(f"{MRG}:")
    k.stamp('hepi')
    def conv_mf(rho):
        SA,SBb=((CS0A,CS0B),(CS1A,CS1B))[rho&1]
        L=[]
        for s in range(8):
            for i in range(s+1):
                I=s
                c="0" if (rho==0 and i==0) else vr(CACC+4*I,4)
                L.append(f"v_mfma_f32_16x16x32_bf16 {vr(CACC+4*I,4)}, {rg(SA,4*i,4)}, {rg(SBb,4*(I-i),4)}, {c}")
        return L
    def trs(js):
        L=[]
        for j in js: L+=[lambda j=j: k.w(v=f"wd{j}")]+wd_tr(j)
        return L
    def redma(jn,jold):
        D=wd_dma(jn); return [D[0],lambda: k.w(d=f"wt{jold}")]+D[1:]
    hflag=[lambda: k.w(v="h"), lambda: k.vm(f"buffer_store_byte v{ONEB}, v{FHS}, {srd(SW)}, 0 offen sc1","hf")]
    k.w(d="cv0"); weave(k,conv_mf(0),mix(conv_reads(1),wd_dma(8)+wd_dma(9)+wd_dma(10)+wd_dma(11))+wd_dma(12)+trs([0,1,2])+redma(13,0)+redma(14,1)+redma(15,2),2)
    k.w(d="cv1"); weave(k,conv_mf(1),conv_reads(2)+hflag+trs([3,4,5,6,7])+redma(16,3)+redma(17,4)+redma(18,5)+redma(19,6),2)
    k.w(d="cv2"); weave(k,conv_mf(2),conv_reads(3)+redma(20,7)+trs([8,9,10])+redma(21,8)+[lambda: k.vm(f"buffer_load_dword v{PL-80}, v{FHP}, {srd(SW)}, 0 offen sc1","hp")],2)
    HR=144
    def hload(j):
        r=HR+8*(j%(DEPTH+1))
        return [f"s_lshr_b32 s{sT0}, s{4+j}, 4"]+[lambda e=e: k.vm(f"buffer_load_dwordx4 {vr(r+4*e,4)}, v{HL+e}, {srd(SW)}, s{sT0} offen sc1",f"h{j}") for e in range(2)]
    pre=[lambda: poll("hp",PL-80,FHP,SW,f"s{sONE}")]
    for j in range(DEPTH): pre+=hload(j)
    k.w(d="cv3"); weave(k,conv_mf(3),pre,2,start=20)
    k.stamp('conv')
    H1=k.lab("H1"); HE=k.lab("HE")
    k(f"""s_add_u32 s{sT1}, s{sAW}, {BW+2048}
    v_add_u32 v96, s{sT1}, v{EXW}
    s_xor_b32 s{sT2}, s{sWV}, 1
    s_mul_i32 s{sT2}, s{sT2}, {AWS}
    s_add_u32 s{sT2}, s{sT2}, {BW+2048}
    v_add_u32 v97, s{sT2}, v{EXW}
    s_bitcmp1_b32 s{sWV}, 0
    s_cbranch_scc1 {H1}""")
    for hh in range(2):
        snd=CACC+16*(1-hh); own=CACC+16*hh
        if hh==0: k("s_nop 1")
        for j in range(4): k(f"ds_write_b128 v96, {vr(snd+4*j,4)} offset:{1024*j}")
        k("s_waitcnt lgkmcnt(0)\ns_barrier")
        for j in range(4): k(f"ds_read_b128 {vr(80+4*j,4)}, v97 offset:{1024*j}")
        for j in range(4):
            k(f"s_waitcnt lgkmcnt({3-j})")
            k(f"v_pk_add_f32 {vr(80+4*j,2)}, {vr(80+4*j,2)}, {vr(own+4*j,2)}\nv_pk_add_f32 {vr(82+4*j,2)}, {vr(82+4*j,2)}, {vr(own+4*j+2,2)}")
        if hh==0: k(f"s_branch {HE}\n{H1}:")
    k(f"{HE}:"); k.dq=[]
    for j in range(4): k(f"v_cvt_pk_bf16_f32 v{112+2*j}, v{80+4*j}, v{81+4*j}\nv_cvt_pk_bf16_f32 v{113+2*j}, v{82+4*j}, v{83+4*j}")
    k("s_nop 0")
    for j in range(2):
        k(f"v_permlane16_swap_b32 v{112+4*j}, v{114+4*j}\nv_permlane16_swap_b32 v{113+4*j}, v{115+4*j}")
    for j in range(2): k.vm(f"buffer_store_dwordx4 {vr(112+4*j,4)}, v{YS}, {srd(SW)}, 0 offen offset:{1024*j} sc1","y")
    k.vm(f"buffer_load_dwordx4 v[136:139], v{XO}, {srd(SX)}, 0 offen","x")
    k.vm(f"buffer_load_dwordx4 v[140:143], v{XO}, {srd(SX)}, 0 offen offset:32","x")
    k.vm(f"buffer_load_dword v135, v{RS}, {srd(SW)}, 0 offen sc1","x")
    k.w(v="wd21")
    for j in range(11,22):
        for f in wd_tr(j): f()
    k.stamp('xchg')
    A2=16
    def g2mf(j):
        r=HR+8*(j%(DEPTH+1))
        return [f"v_mfma_f32_32x32x16_bf16 {vr(A2+16*(2*d+t),16)}, {ar(8*j+4*d,4)}, {vr(r+4*t,4)}, {'0' if j==0 else vr(A2+16*(2*d+t),16)}" for d,t in((1,1),(1,0),(0,1),(0,0))]
    SK=k.lab("SK")
    waited=False
    for j in range(22):
        fl=[]
        if j+DEPTH<22: fl+=hload(j+DEPTH)
        if j==DEPTH: fl+=[lambda: k.vm(f"buffer_store_byte v{ONEB}, v{FYS}, {srd(SW)}, 0 offen sc1","yf")]
        if j==12: fl+=[lambda: k.vm(f"buffer_load_dword v134, v{FYP}, {srd(SW)}, 0 offen sc1","yp")]
        if j==17:
            fl+=[lambda: poll("yp",134,FYP,SW,f"s{sONE}")]
            fl+=[lambda q=q: k.vm(f"buffer_load_dwordx4 {vr(112+4*q,4)}, v{YL}, {srd(SW)}, {'s%d'%sYQ if q else 0} offen sc1","yl") for q in range(2)]
        if j==21: k(f"s_cmp_ge_u32 s{sWV}, 2\ns_cbranch_scc1 {SK}")
        if j>=11 and not waited: k.w(v=f"h{j}",d=0); waited=True
        else: k.w(v=f"h{j}")
        weave(k,g2mf(j),fl,3)
    k(f"{SK}:")
    k.stamp('g2')
    k(f"""v_add_u32 v96, s{sAW}, v{EXW}
    v_add_u32 v97, s{sCWB}, v{EXW}""")
    for x in (1,2,3):
        k(f"s_xor_b32 s{sT0}, s{sWV}, {x}")
        if x<3: k(f"s_mul_i32 s{sT0}, s{sT0}, {AWS}\ns_add_u32 s{sT0}, s{sT0}, {4096*(x-1)}")
        else: k(f"s_mul_i32 s{sT0}, s{sT0}, {CWS}\ns_add_u32 s{sT0}, s{sT0}, {CW}")
        k(f"v_add_u32 v{97+x}, s{sT0}, v{EXW}")
    for x in (3,2,1):
        for a in range(4):
            k.ds(f"ds_write_b128 v{97 if x==3 else 96}, {vr(A2+16*x+4*a,4)} offset:{1024*a+(4096 if x==2 else 0)}")
    k.w(v="yl")
    for q in range(2): k.ds(f"ds_write_b128 v{YW}, {vr(112+4*q,4)} offset:{1024*q}")
    for a in range(4): k.ds(f"ds_read_b64_tr_b16 {vr(120+2*a,2)}, v{YR} offset:{512*a}","yt")
    k.w(d=0); k("s_barrier")
    for x in (1,2,3):
        for a in range(4): k.ds(f"ds_read_b128 {vr(144+16*(x-1)+4*a,4)}, v{97+x} offset:{1024*a}",f"rd{x}")
    for j in range(8): k(f"v_lshlrev_b32 v{80+2*j}, 16, v{120+j}\nv_and_b32 v{81+2*j}, s{sMSK}, v{120+j}")
    for x in (1,2,3):
        k.w(d=f"rd{x}")
        for j in range(8): k(f"v_pk_add_f32 {vr(A2+2*j,2)}, {vr(A2+2*j,2)}, {vr(144+16*(x-1)+2*j,2)}")
    for j in range(8): k(f"v_pk_fma_f32 {vr(A2+2*j,2)}, {vr(A2+2*j,2)}, v[134:135], {vr(80+2*j,2)} op_sel:[0,1,0] op_sel_hi:[1,1,1]")
    for j in range(8): k(f"v_lshlrev_b32 v{80+2*j}, 16, v{136+j}\nv_and_b32 v{81+2*j}, s{sMSK}, v{136+j}")
    for a in(0,2):
        for r in range(4): k(f"v_permlane32_swap_b32 v{A2+4*a+r}, v{A2+4*a+4+r}")
    for j in range(8):
        k(f"v_pk_add_f32 {vr(A2+2*j,2)}, {vr(A2+2*j,2)}, {vr(80+2*j,2)}\nv_cvt_pk_bf16_f32 v{100+j}, v{A2+2*j}, v{A2+2*j+1}")
        if j%4==3: k.vm(f"buffer_store_dwordx4 {vr(100+j-3,4)}, v{XO}, {srd(SO)}, 0 offen offset:{32*(j//4)}","o")
    if prof:
        k.stamp('epi'); k("s_waitcnt vmcnt(0) lgkmcnt(0)"); k.stamp('drain'); k("s_waitcnt lgkmcnt(0)"); k.stamp(); k.stamp()
        k("; STAMPS "+" ".join(k.names[:-2]))
        k("s_memrealtime s[94:95]\ns_waitcnt lgkmcnt(0)\nv_writelane_b32 v199, s94, 62\nv_writelane_b32 v199, s96, 63")
        k(f"s_lshl_b32 s{sT0}, s2, 2\ns_add_u32 s{sT0}, s{sT0}, s{sWV}\ns_lshl_b32 s{sT0}, s{sT0}, 8\ns_add_u32 s{sT0}, s{sT0}, {PROF}\nv_lshl_add_u32 v2, v1, 2, s{sT0}")
        k(f"buffer_store_dword v199, v2, {srd(SW)}, 0 offen")
        if dbg:
            L=k.lab()
            k(f'''s_or_b32 s94, s94, 0x80000000
            s_not_b32 s96, s96
            s_or_b32 s96, s96, 0x80000000
            v_mov_b32 v4, s94
            v_mov_b32 v5, s96
            v_cmp_eq_u32 vcc, 0, v1
            v_mov_b32 v6, 56
            v_mov_b32 v7, {hex(OOB)}
            v_cndmask_b32 v6, v7, v6, vcc
            buffer_atomic_umax v4, v6, {srd(SB)}, 0 offen sc1
            buffer_atomic_umax v5, v6, {srd(SB)}, 0 offen offset:4 sc1
            s_cmp_lg_u32 s2, {dbg-1}
            s_cbranch_scc1 {L}
            s_cmp_lg_u32 s{sWV}, 0
            s_cbranch_scc1 {L}
            v_subrev_u32 v4, s34, v199
            v_cmp_gt_u32 vcc, 15, v1
            v_lshlrev_b32 v6, 2, v1
            v_add_u32 v6, -4, v6
            v_cndmask_b32 v6, v7, v6, vcc
            buffer_store_dword v4, v6, {srd(SB)}, 0 offen sc1
            {L}:''')
    k("s_endpgm")
    k(f"{CSL}:")
    k(f"""s_mul_i32 s{sT0}, s{sWV}, 3072
    s_lshr_b32 s{sT1}, s{sWV}, 1
    s_mul_i32 s{sT1}, s{sT1}, 96
    s_sub_u32 s{sT0}, s{sT0}, s{sT1}
    v_add_u32 v{WR}, s{sT0}, v{WR}
    v_mov_b32 v112, 0x3f803f80
    v_mov_b32 v113, v112
    v_mov_b32 v114, v112
    v_mov_b32 v115, v112
    s_mov_b32 s{sRING}, {2*SS}
    s_mov_b32 s{sCNT}, 0""")
    for r in range(16,112): k(f"v_mov_b32 v{r}, 0")
    def csdma():
        D=dma_list(f"s{sRING}","c")[5:]
        for f in D: f() if callable(f) else (k(f),k("s_nop 0"))
        for f in nextk: k(f)
    csdma()
    CL=k.lab("CL"); CN=k.lab("CN")
    k(f"{CL}:\ns_waitcnt vmcnt(12)\ns_cmp_lt_u32 s{sCNT}, 6\ns_cbranch_scc1 {CN}\ns_waitcnt vmcnt(0)\n{CN}:")
    for u in range(6):
        for h in range(2): k(f"ds_read_b64_tr_b16 {vr(116+4*u+2*h,2)}, v{WR} offset:{768*h+32*u}")
    CN2=k.lab("CN")
    k(f"""s_add_u32 s{sRING}, s{sRING}, s{sC1}
    s_cmp_eq_u32 s{sRING}, {3*SS}
    s_cselect_b32 s{sRING}, 0, s{sRING}
    s_cmp_eq_u32 s{sRING}, {2*SS}
    s_cselect_b32 s{sDL}, s{sC2}, s{sC1}
    v_add_u32 v{WR}, s{sDL}, v{WR}
    s_waitcnt lgkmcnt(0)
    s_cmp_ge_u32 s{sCNT}, 5
    s_cbranch_scc1 {CN2}""")
    csdma()
    k(f"{CN2}:")
    for u in range(6): k(f"v_mfma_f32_32x32x16_bf16 {vr(16+16*u,16)}, v[112:115], {vr(116+4*u,4)}, {vr(16+16*u,16)}")
    k(f"s_add_u32 s{sCNT}, s{sCNT}, 1\ns_cmp_lt_u32 s{sCNT}, 8\ns_cbranch_scc1 {CL}")
    k(f"""s_mul_i32 s{sT0}, s{sWV}, 768
    s_add_u32 s{sT0}, s{sT0}, {PT}
    v_and_b32 v2, 31, v1
    v_lshl_add_u32 v2, v2, 2, s{sT0}
    v_min_u32 v3, 191, v0
    v_lshlrev_b32 v3, 2, v3
    v_add_u32 v3, {PT}, v3
    s_nop 7""")
    for u in range(6): k(f"ds_write_b32 v2, v{16+16*u} offset:{128*u}")
    k("s_waitcnt lgkmcnt(0)\ns_barrier")
    for j in range(4): k(f"ds_read_b32 v{4+j}, v3 offset:{768*j}")
    k(f"""s_waitcnt lgkmcnt(0)
    v_add_f32 v4, v4, v5
    v_add_f32 v6, v6, v7
    v_add_f32 v4, v4, v6
    v_cvt_pk_bf16_f32 v5, v4, v4
    v_and_b32 v5, s{sMSK}, v5
    v_sub_f32 v6, v4, v5
    v_cvt_pk_bf16_f32 v5, v5, v6
    buffer_store_dword v5, v{CSA}, {srd(SW)}, 0 offen sc1""")
    k.vq=[]; k.dq=[]
    lnpoll(); poll("lnp",PL,LNP,SB,f"s{sONE}")
    for f in uloads(): f()
    k("v_mov_b32 v184, 0\nv_mov_b32 v185, 0\nv_mov_b32 v186, 0\nv_mov_b32 v187, 0")
    for j in range(8):
        for f in wd_dma(j): f() if callable(f) else (k(f),k("s_nop 0"))
    zpad[0]()
    for f in uwrite(): f()
    k("s_waitcnt lgkmcnt(0)\ns_barrier")
    for f in conv_reads(0): f()
    k(f"s_waitcnt vmcnt(0) lgkmcnt(0)\ns_branch {MRG}")
    for t in k.tail: k(t)
    k(f"{END}:")
    return k
import struct
def f2b(x): return struct.unpack('<I',struct.pack('<f',x))[0]
if __name__=='__main__':
    out=sys.argv[1]; opts=dict(a.split('=') for a in sys.argv[2:])
    opts={a:int(b) for a,b in opts.items()}
    k=gen(**opts)
    hdr="".join(l for l in open('cdna_kernels/'+NAME[:-7]+'.s.ref') if l.startswith(';') and '@launch' not in l)
    txt=module([k],[(None,256,256,163840)],hdr)
    open(out,'w').write(txt)
    print("hazards:",haz.check(txt.split('\n')))
```

```python
import sys
sys.path.insert(0,'w')
from gl import *
import haz
NAME="parallel_sum__ssm_conv_s4__glu_gated_bilinear__prompt_kernel"
XNB=0; STATS=0x200000; FH=0x210000; FY=0x218000; PROF=0x220000; HB=0x400000; YB=0xA00000; CS=0xC00000; WSEND=CS+86*128
SS=41216; WG_O=16384; WU_D=12320
TAB=82432; TABW=16416; KC=123648; KCS=4160; PT=156928; PTS=3088
UO=82432; US=4608; CW=91648; CWS=6144; AWS=10240; BW=41216
OOB=0x80000000
PX=95744; PO=(0,13,77,239)
class G(K):
    def __init__(s,*a,**kw):
        super().__init__(*a,**kw); s.vq=[]; s.dq=[]; s.tail=[]; s.nst=0; s.names=['start']
    def vm(s,t,tag=None):
        if t.endswith(' lds') and ' m0,' in s.L[-1]: s("s_nop 0")
        s(t); s.vq.append(tag)
    def ds(s,t,tag=None): s(t); s.dq.append(tag)
    def nv(s,tag):
        i=max(j for j,x in enumerate(s.vq) if x==tag); return min(len(s.vq)-1-i,63)
    def nd(s,tag):
        i=max(j for j,x in enumerate(s.dq) if x==tag); return min(len(s.dq)-1-i,15)
    def w(s,v=None,d=None):
        o=[]
        if v is not None: o.append(f"vmcnt({s.nv(v) if isinstance(v,str) else v})")
        if d is not None: o.append(f"lgkmcnt({s.nd(d) if isinstance(d,str) else d})")
        s("s_waitcnt "+" ".join(o))
    def stamp(s,name=''):
        if s.prof:
            n=s.nst; R=(90,92,98,100); a=R[n&3]
            s(f"s_memtime s[{a}:{a+1}]")
            if n>=2: s(f"v_writelane_b32 v199, s{R[(n-2)&3]}, {n-1}")
            elif n==0: s("v_writelane_b32 v199, s34, 0")
            s.names.append(name); s.nst+=1
def vr(a,n): return f"v[{a}:{a+n-1}]" if n>1 else f"v{a}"
def ar(a,n): return f"a[{a}:{a+n-1}]" if n>1 else f"a{a}"
def weave(k,mf,fl,per,start=0):
    fl=list(fl)
    for i,m in enumerate(mf):
        k(m)
        if i>=start:
            n=per[i] if isinstance(per,(list,tuple)) else per
            for _ in range(n):
                if fl:
                    f=fl.pop(0); f() if callable(f) else k(f)
    for f in fl: f() if callable(f) else k(f)

SX,SG,SU,SD,SW,SO,SB=36,40,44,48,52,56,60
sXCD,sI,sWV,sP,sFT,sMT,sRB,sLD,sDK=64,65,66,67,68,69,70,71,72
sKS,sOX,sOW,sMX,sMG,sRING,sDL,sCNT,sC1,sC2=73,74,75,76,77,78,79,80,81,82
sH0,sH1,sMSK,sONE,sAW,sCWB,sT0,sT1,sT2,sT3=83,84,85,86,87,88,26,27,28,29
sUQ=30; sYQ=31; sTB=32; sDB=33
def srd(d): return f"s[{d}:{d+3}]"
XD=200; WD=204; XR=207; WR=211; KCW=212; EX=213
CA=224; CB=225; WDV=226; TA=228; TC=230; HL=232; HS=234; UL=237; UW=238; UZ=239; ST=240; CSA=241
XO=242; RS=243; YL=244; YW=245; YR=246; YS=247; EXW=248; FHP=249; FYP=250; FHS=251; FYS=252; LNP=253; LNF=254; ONEB=255

def gen(prof=False, ROT1=True, ROT2=True, DEPTH=5, dbg=0):
    k=G(NAME,vgpr=256,agpr=256,sgpr=102); k.prof=prof; k.pst=90
    END=k.lab("END")
    if prof: k("s_memtime s[34:35]\ns_memrealtime s[96:97]")
    k(f"s_cmp_ge_u32 s2, 0x100\ns_cbranch_scc1 {END}")
    k("s_load_dwordx16 s[4:19], s[0:1], 0\ns_load_dwordx2 s[20:21], s[0:1], 64")
    for d,o in((SX,0),(SG,80),(SU,88),(SD,96),(SO,104),(SB,112),(SW,120)): k(f"s_load_dwordx2 s[{d}:{d+1}], s[0:1], {o}")
    for d,n in((SX,0x200000),(SG,512*2752),(SU,512*2752),(SD,1376*1024),(SO,0x200000),(SB,256),(SW,WSEND)):
        k(f"s_mov_b32 s{d+2}, {hex(n)}\ns_mov_b32 s{d+3}, 0x00020000")
    k(f"""v_lshrrev_b32 v2, 6, v0
    v_and_b32 v1, 63, v0
    v_readfirstlane_b32 s{sWV}, v2
    s_and_b32 s{sXCD}, s2, 7
    s_lshr_b32 s{sI}, s2, 3
    s_lshl_b32 s{sP}, s{sXCD}, 5
    s_add_u32 s{sP}, s{sP}, s{sI}
    s_and_b32 s{sT0}, s{sXCD}, 1
    s_lshr_b32 s{sT1}, s{sXCD}, 1
    s_lshl_b32 s{sRB}, s{sT0}, 7
    s_lshl_b32 s{sT2}, s{sT1}, 5
    s_add_u32 s{sRB}, s{sRB}, s{sT2}
    s_add_u32 s{sRB}, s{sRB}, s{sI}
    s_mul_i32 s{sT2}, s{sT1}, 30
    s_add_u32 s{sT2}, s{sT2}, s{sI}
    s_lshr_b32 s{sFT}, s{sT2}, 3
    s_and_b32 s{sT2}, s{sT2}, 7
    s_lshl_b32 s{sMT}, s{sT0}, 3
    s_add_u32 s{sMT}, s{sMT}, s{sT2}
    s_lshl_b32 s{sT1}, s{sT1}, 2
    s_lshl_b32 s{sT0}, s{sT0}, 1
    s_add_u32 s{sT1}, s{sT1}, s{sT0}
    s_add_u32 s{sT1}, s{sT1}, s{sI}
    s_sub_u32 s{sT1}, s{sT1}, 30
    s_cmp_ge_u32 s{sI}, 30
    s_cselect_b32 s{sFT}, s{sT1}, s{sFT}
    s_mov_b32 s{sMSK}, 0xffff0000""")
    k(f"""s_lshl_b32 s{sT0}, s{sRB}, 13
    s_lshl_b32 s{sT1}, s{sWV}, 11
    s_add_u32 s{sT0}, s{sT0}, s{sT1}
    v_lshl_add_u32 v3, v1, 4, s{sT0}
    s_lshl_b32 s{sT0}, s{sP}, 9
    v_lshl_add_u32 v4, v0, 1, s{sT0}""")
    for j in range(6): k(f"v_mov_b32 v{60+j}, 0")
    k(f"""s_lshl_b32 s{sT0}, s{sMT}, 17
    s_lshl_b32 s{sT1}, s{sWV}, 15
    s_add_u32 s{sT0}, s{sT0}, s{sT1}
    v_lshrrev_b32 v5, 3, v1
    v_lshl_add_u32 v5, v5, 10, s{sT0}
    v_lshrrev_b32 v6, 4, v1
    v_xor_b32 v7, v1, v6
    v_and_b32 v7, 7, v7
    v_lshl_add_u32 v{XD}, v7, 4, v5
    v_xor_b32 v5, 64, v{XD}
    v_add_u32 v{XD+1}, 7168, v5
    v_add_u32 v{XD+2}, 14336, v{XD}
    v_add_u32 v{XD+3}, 21504, v5
    s_mul_i32 s{sT0}, s{sFT}, 192
    s_mul_i32 s{sT1}, s{sWV}, {16*2752}""")
    for q in range(3):
        k(f"""v_add_u32 v5, {64*q}, v1
        v_mul_u32_u24 v7, 5462, v5
        v_lshrrev_b32 v7, 16, v7
        v_mul_u32_u24 v8, 12, v7
        v_sub_u32 v8, v5, v8
        v_lshl_add_u32 v8, v8, 4, s{sT0}
        v_min_u32 v8, 2736, v8
        v_mul_u32_u24 v7, 2752, v7
        v_add3_u32 v{WD+q}, v7, v8, s{sT1}""")
        if q: k(f"v_subrev_u32 v{WD+q}, {1024*q}, v{WD+q}")
    if ROT1: k(f"s_add_u32 s{sKS}, s{sMT}, s{sFT}\ns_and_b32 s{sKS}, s{sKS}, 3\ns_lshl_b32 s{sKS}, s{sKS}, 1")
    else: k(f"s_mov_b32 s{sKS}, 0")
    k(f"""s_lshl_b32 s{sMX}, s{sWV}, 12
    s_mul_i32 s{sMG}, s{sWV}, 3072
    s_add_u32 s{sMG}, s{sMG}, {WG_O}
    s_lshl_b32 s{sOX}, s{sKS}, 7
    s_mul_i32 s{sOW}, s{sKS}, {64*2752}
    s_lshl_b32 s{sT0}, s{sP}, 2
    s_waitcnt lgkmcnt(0)""")
    k(f"s_load_dword s{sLD}, s[18:19], s{sT0}\ns_load_dword s{sDK}, s[20:21], s{sT0}")
    k.vm(f"buffer_load_dwordx4 v[10:13], v3, {srd(SX)}, 0 offen","row")
    k.vm(f"buffer_load_dwordx4 v[14:17], v3, {srd(SX)}, 0 offen offset:1024","row")
    for j in range(6): k.vm(f"global_load_short_d16_hi v{60+j}, v4, s[{6+2*j}:{7+2*j}]","par")
    def dma_list(ring,tag):
        L=[]
        if isinstance(ring,int):
            a=lambda s: f"s_add_u32 m0, s{s}, {ring}" if ring else f"s_mov_b32 m0, s{s}"
        else: a=lambda s: f"s_add_u32 m0, s{s}, {ring}"
        L.append(a(sMX))
        for q in range(4): L.append(lambda q=q: k.vm(f"buffer_load_dwordx4 v{XD+q}, {srd(SX)}, s{sOX} offen offset:{1024*q} lds",tag))
        L.append(a(sMG))
        for q in range(3): L.append(lambda q=q: k.vm(f"buffer_load_dwordx4 v{WD+q}, {srd(SG)}, s{sOW} offen offset:{1024*q} lds",tag))
        L.append(f"s_add_u32 m0, m0, {WU_D}")
        for q in range(3): L.append(lambda q=q: k.vm(f"buffer_load_dwordx4 v{WD+q}, {srd(SU)}, s{sOW} offen offset:{1024*q} lds",tag))
        return L
    nextk=[f"s_add_u32 s{sKS}, s{sKS}, 1",f"s_and_b32 s{sKS}, s{sKS}, 7",f"s_lshl_b32 s{sOX}, s{sKS}, 7",f"s_mul_i32 s{sOW}, s{sKS}, {64*2752}"]
    for f in dma_list(0,"d0"):
        if callable(f): f()
        else: k(f); k("s_nop 0")
    for f in nextk: k(f)
    k(f"""v_lshrrev_b32 v2, 4, v1
    v_bfe_u32 v3, v1, 2, 2
    v_and_b32 v4, 3, v1
    v_and_b32 v5, 31, v1
    v_lshrrev_b32 v6, 5, v1
    v_and_b32 v7, 15, v1
    s_and_b32 s{sT0}, s{sWV}, 1
    s_lshr_b32 s{sT1}, s{sWV}, 1""")
    k(f"""v_bfe_u32 v8, v1, 1, 3
    v_xor_b32 v8, v8, v6
    v_lshlrev_b32 v8, 4, v8
    v_lshl_add_u32 v8, v5, 7, v8
    s_lshl_b32 s{sT2}, s{sT0}, 13
    v_add_u32 v{XR}, s{sT2}, v8
    v_xor_b32 v{XR+1}, 32, v{XR}
    v_xor_b32 v{XR+2}, 64, v{XR}
    v_xor_b32 v{XR+3}, 0x60, v{XR}""")
    k(f"""v_and_b32 v8, 1, v2
    v_mul_u32_u24 v9, {WU_D}, v8
    v_lshl_add_u32 v18, v6, 3, v3
    v_mul_u32_u24 v18, 192, v18
    v_add_u32 v9, v9, v18
    v_lshl_add_u32 v9, v4, 3, v9
    s_mul_i32 s{sT2}, s{sT1}, 96
    s_add_u32 s{sT2}, s{sT2}, {WG_O}
    v_add_u32 v{WR}, s{sT2}, v9""")
    k(f"v_lshlrev_b32 v9, 4, v0\nv_add_u32 v{KCW}, {KC}, v9")
    k(f"""v_lshlrev_b32 v9, 3, v0
    v_sub_u32 v18, 2047, v9
    v_cvt_f32_i32 v18, v18
    v_sub_u32 v19, {2047+0x4280}, v9
    s_mov_b32 s{sT2}, {768+0x4280}
    s_mov_b32 s{sT3}, {PX-4*0x4280}""")
    for i in range(0,11,2):
        k(f"v_subrev_f32 v24, {float(i)}, v18" if i in(0,2,4) else f"v_subrev_f32 v24, {hex(f2b(float(i)))}, v18")
        k(f"v_subrev_f32 v25, 1.0, v24\nv_cvt_pk_bf16_f32 v24, v24, v25")
        for h in range(2):
            if i+h>10: break
            k(f"v_and_b32 v25, 0xffff, v24" if h==0 else "v_lshrrev_b32 v25, 16, v24")
            k(f"""v_subrev_u32 v26, {i+h}, v19
            v_min_i32 v26, {128+0x4280}, v26
            v_med3_i32 v25, v25, v26, s{sT2}
            v_lshl_add_u32 v{EX+i+h}, v25, 2, s{sT3}""")
    k(f"""s_mul_i32 s{sT2}, s{sT1}, {4*KCS}
    s_lshl_b32 s{sT3}, s{sT0}, 8
    s_sub_u32 s{sT2}, s{sT2}, s{sT3}
    s_add_u32 s{sT2}, s{sT2}, {KC+4056-3776}
    v_mul_u32_u24 v9, {KCS}, v4
    v_lshl_add_u32 v9, v2, 4, v9
    v_lshlrev_b32 v18, 3, v3
    v_sub_u32 v9, v9, v18
    v_add_u32 v{CA}, s{sT2}, v9
    s_mul_i32 s{sT2}, s{sT1}, {US}
    s_sub_u32 s{sT2}, s{sT2}, s{sT3}
    s_add_u32 s{sT2}, s{sT2}, {UO+256}
    v_lshlrev_b32 v9, 4, v2
    v_lshl_add_u32 v9, v7, 5, v9
    v_add_u32 v{CB}, s{sT2}, v9""")
    k(f"""s_lshl_b32 s{sT2}, s{sP}, 1
    s_add_u32 s{sT2}, s{sT2}, s{sT1}
    s_lshl_b32 s{sT2}, s{sT2}, 12
    s_lshl_b32 s{sT3}, s{sT0}, 11
    s_add_u32 s{sT2}, s{sT2}, s{sT3}
    s_add_u32 s{sT2}, s{sT2}, {YB}
    v_lshlrev_b32 v9, 9, v8
    v_lshl_add_u32 v9, v7, 5, v9
    v_lshl_add_u32 v9, v6, 4, v9
    v_add_u32 v{YS}, s{sT2}, v9""")
    k(f"""s_lshr_b32 s{sT2}, s{sI}, 3
    s_lshl_b32 s{sTB}, s{sXCD}, 2
    s_add_u32 s{sTB}, s{sTB}, s{sT2}
    s_and_b32 s{sDB}, s{sI}, 7""")
    k(f"""v_lshlrev_b32 v9, 2, v8
    v_xor_b32 v9, v9, v1
    v_and_b32 v9, 7, v9
    v_lshlrev_b32 v9, 4, v9
    v_lshrrev_b32 v18, 3, v1
    v_lshl_add_u32 v9, v18, 10, v9
    s_lshl_b32 s{sT2}, s{sDB}, 7
    v_add_u32 v{WDV}, s{sT2}, v9
    v_add_u32 v{WDV+1}, 7168, v{WDV}""")
    k(f"""v_lshl_add_u32 v9, v6, 2, v3
    v_lshlrev_b32 v9, 7, v9
    v_lshrrev_b32 v18, 1, v3
    v_xor_b32 v18, s{sT1}, v18
    v_lshl_add_u32 v9, v18, 6, v9
    v_lshl_add_u32 v9, v8, 5, v9
    v_lshl_add_u32 v9, v4, 3, v9
    s_mul_i32 s{sAW}, s{sWV}, {AWS}
    s_mul_i32 s{sCWB}, s{sWV}, {CWS}
    s_add_u32 s{sCWB}, s{sCWB}, {CW}
    v_add_u32 v{TA}, s{sAW}, v9
    v_xor_b32 v{TA+1}, 64, v{TA}
    v_add_u32 v{TC}, s{sCWB}, v9
    v_xor_b32 v{TC+1}, 64, v{TC}""")
    k(f"""s_lshl_b32 s{sT2}, s{sTB}, 1
    s_add_u32 s{sT2}, s{sT2}, s{sT0}
    s_mul_i32 s{sT3}, s{sT2}, 88064
    s_add_u32 s{sT3}, s{sT3}, {HB}
    v_lshl_add_u32 v{HL}, v1, 4, s{sT3}
    s_xor_b32 s{sT3}, s{sT2}, 1
    s_mul_i32 s{sT3}, s{sT3}, 88064
    s_add_u32 s{sT3}, s{sT3}, {HB}
    v_lshl_add_u32 v{HL+1}, v1, 4, s{sT3}""")
    k(f"""s_lshl_b32 s{sT3}, s{sT2}, 5
    v_add_u32 v9, s{sT3}, v5
    v_lshlrev_b32 v18, 3, v9
    v_add_u32 v{RS}, {STATS+4}, v18
    s_lshl_b32 s{sT3}, s{sDB}, 1
    s_add_u32 s{sT3}, s{sT3}, s{sT1}
    s_lshl_b32 s{sYQ}, s{sT3}, 6
    v_lshlrev_b32 v9, 10, v9
    v_lshl_add_u32 v9, v6, 4, v9
    v_add_u32 v{XO}, s{sYQ}, v9
    s_lshl_b32 s{sYQ}, s{sT3}, 17
    s_lshl_b32 s{sT2}, s{sT2}, 6
    s_add_u32 s{sT2}, s{sT2}, s{sYQ}
    s_add_u32 s{sT2}, s{sT2}, {YB}
    v_lshrrev_b32 v9, 2, v1
    v_lshlrev_b32 v9, 12, v9
    v_lshl_add_u32 v9, v4, 4, v9
    v_add_u32 v{YL}, s{sT2}, v9
    s_mov_b32 s{sYQ}, 0x10000
    s_lshl_b32 s{sT2}, s{sWV}, 11
    s_add_u32 s{sT2}, s{sT2}, {KC}
    v_lshl_add_u32 v{YW}, v1, 4, s{sT2}
    v_lshl_add_u32 v9, v6, 2, v3
    v_lshlrev_b32 v9, 6, v9
    v_lshl_add_u32 v9, v8, 5, v9
    v_lshl_add_u32 v9, v4, 3, v9
    v_add_u32 v{YR}, s{sT2}, v9
    s_lshl_b32 s{sT3}, s{sT3}, 11
    s_add_u32 s{sT3}, s{sT3}, {FY}
    v_lshl_add_u32 v{FYP}, v7, 7, s{sT3}
    s_lshr_b32 s{sT2}, s{sTB}, 1
    s_lshl_b32 s{sT2}, s{sT2}, 11
    s_add_u32 s{sT2}, s{sT2}, {FH}
    v_min_u32 v9, 14, v7
    v_lshl_add_u32 v{FHP}, v9, 7, s{sT2}
    v_lshlrev_b32 v{EXW}, 4, v1
    v_lshlrev_b32 v{LNP}, 2, v1""")
    k(f"""s_mul_i32 s{sT2}, s{sFT}, 6
    s_mul_i32 s{sT3}, s{sT1}, 3
    s_add_u32 s{sT2}, s{sT2}, s{sT3}
    s_lshl_b32 s{sT3}, s{sT2}, 7
    s_add_u32 s{sT3}, s{sT3}, {CS}
    v_lshl_add_u32 v9, v1, 2, s{sT3}
    v_lshl_or_b32 v{CSA}, v6, 31, v9""")
    for j in range(3):
        k(f"""s_add_u32 s{sT3}, s{sT2}, {j}
        s_cmp_lt_u32 s{sT3}, 86
        s_cselect_b32 s{sH0}, 0, {hex(OOB)}
        s_lshl_b32 s{sT3}, s{sT3}, 10
        s_or_b32 s{sT3}, s{sT3}, s{sH0}
        v_lshl_add_u32 v{HS+j}, v1, 4, s{sT3}""")
    k(f"""s_lshl_b32 s{sT2}, s{sMT}, 1
    s_add_u32 s{sT2}, s{sT2}, s{sT0}
    s_lshl_b32 s{sT3}, s{sT2}, 9
    s_add_u32 s{sT3}, s{sT3}, {STATS}
    v_lshl_add_u32 v{ST}, v5, 3, s{sT3}
    s_mul_i32 s{sH0}, s{sT2}, {2*88064}
    s_add_u32 s{sH0}, s{sH0}, {HB}
    s_add_u32 s{sH1}, s{sH0}, 88064""")
    k(f"""v_lshrrev_b32 v9, 1, v0
    v_and_b32 v18, 1, v0
    s_lshl_b32 s{sT2}, s{sP}, 5
    v_lshl_add_u32 v19, v18, 4, s{sT2}
    v_lshl_add_u32 v{UL}, v9, 13, v19
    v_mul_u32_u24 v18, {US}, v18
    v_lshl_add_u32 v18, v9, 4, v18
    v_add_u32 v{UW}, {UO+480}, v18
    v_min_u32 v9, 29, v5
    v_mul_u32_u24 v18, {US}, v6
    v_lshl_add_u32 v18, v9, 4, v18
    v_add_u32 v{UZ}, {UO}, v18
    s_mov_b32 s{sUQ}, 0x100000""")
    k(f"""v_cmp_eq_u32 vcc, 0, v1
    v_mov_b32 v9, {hex(OOB)}
    s_lshl_b32 s{sT2}, s{sMT}, 4
    s_add_u32 s{sT2}, s{sT2}, s{sFT}
    s_lshl_b32 s{sT2}, s{sT2}, 7
    s_add_u32 s{sT2}, s{sT2}, {FH}
    s_cmp_ge_u32 s{sI}, 30
    s_cselect_b32 s{sT2}, {hex(OOB)}, s{sT2}
    s_lshl_b32 s{sT3}, s{sP}, 7
    s_add_u32 s{sT3}, s{sT3}, {FY}
    v_mov_b32 v18, s{sT2}
    v_mov_b32 v19, s{sT3}
    v_cndmask_b32 v24, v19, v18, vcc
    v_add_u32 v18, s{sWV}, v18
    v_add_u32 v19, s{sWV}, v19
    v_cndmask_b32 v{FHS}, v9, v18, vcc
    v_cndmask_b32 v{FYS}, v9, v19, vcc
    v_cmp_gt_u32 vcc, 2, v0
    v_mov_b32 v18, s2
    v_mov_b32 v{ONEB}, 1
    v_cndmask_b32 v58, v9, v24, vcc
    v_cmp_eq_u32 vcc, 0, v0
    s_mov_b32 s{sONE}, 0x01010101
    s_mov_b32 s{sC1}, {SS}
    v_cndmask_b32 v{LNF}, v9, v18, vcc
    s_mov_b32 s{sC2}, {-2*SS}""")
    k(f"""s_mul_i32 s{sT2}, s{sWV}, 22
    s_cmp_eq_u32 s{sWV}, 3
    s_cselect_b32 s{sT2}, 65, s{sT2}
    s_sub_u32 s{sT3}, 22, s{sT1}""")
    if ROT2:
        k(f"""s_mul_i32 s{sCNT}, s{sDB}, 3
        s_lshr_b32 s{sDL}, s{sI}, 3
        s_mul_i32 s{sDL}, s{sDL}, 5
        s_add_u32 s{sCNT}, s{sCNT}, s{sDL}
        v_add_u32 v9, s{sCNT}, v1""")
    else: k("v_mov_b32 v9, v1")
    for _ in range(3):
        k(f"v_subrev_u32 v18, s{sT3}, v9\nv_min_u32 v9, v9, v18")
    k(f"v_add_u32 v9, s{sT2}, v9\nv_lshlrev_b32 v59, 14, v9")
    k(f"""s_mul_i32 s{sT2}, s{sWV}, {TABW}
    s_add_u32 s{sT2}, s{sT2}, {TAB}
    v_lshl_add_u32 v56, v1, 2, s{sT2}
    v_mul_u32_u24 v9, 288, v7
    v_lshl_add_u32 v9, v2, 4, v9
    v_add_u32 v57, s{sT2}, v9
    v_mul_u32_u24 v9, 320, v3
    v_lshl_add_u32 v9, v2, 5, v9
    v_lshl_add_u32 v9, v4, 3, v9
    v_add_u32 v54, s{sT2}, v9
    s_mul_i32 s{sT2}, s{sWV}, 640
    s_add_u32 s{sT2}, s{sT2}, {TAB}
    v_mul_u32_u24 v9, {TABW}, v2
    v_lshl_add_u32 v9, v7, 4, v9
    v_add_u32 v55, s{sT2}, v9
    s_lshl_b32 s{sT2}, s{sRB}, 6
    s_lshl_b32 s{sT3}, s{sWV}, 4
    s_add_u32 s{sT2}, s{sT2}, s{sT3}
    s_add_u32 s{sT2}, s{sT2}, {STATS}
    v_lshl_add_u32 v9, v6, 3, s{sT2}
    v_cmp_eq_u32 vcc, 0, v5
    v_mov_b32 v18, {hex(OOB)}
    s_lshl_b32 s{sT2}, s{sRB}, 13
    s_lshl_b32 s{sT3}, s{sWV}, 11
    v_cndmask_b32 v53, v18, v9, vcc
    s_add_u32 s{sT2}, s{sT2}, s{sT3}
    v_lshl_add_u32 v52, v1, 4, s{sT2}""")
    k(f"""s_lshl_b32 s{sT3}, s{sWV}, 3
    s_lshr_b32 s{sT2}, {hex(sum(o<<(8*j) for j,o in enumerate(PO)))}, s{sT3}
    s_and_b32 s{sT2}, s{sT2}, 0xff
    s_lshl_b32 s{sT2}, s{sT2}, 8
    s_add_u32 s{sT2}, s{sT2}, {PX}
    v_mov_b32 v180, s{sT2}
    v_lshlrev_b32 v9, 5, v7
    v_lshl_add_u32 v9, v8, 4, v9
    v_lshl_add_u32 v9, v6, 9, v9
    v_add_u32 v176, s{sT2}, v9
    v_sub_u32 v9, 4, v6
    v_lshlrev_b32 v9, v9, v7
    v_lshl_add_u32 v9, v2, 8, v9
    s_add_u32 s{sT3}, s{sT2}, 1024
    v_add_u32 v177, s{sT3}, v9
    v_mul_u32_u24 v9, 120, v6
    v_add3_u32 v178, v177, v9, 8
    v_lshlrev_b32 v9, 2, v7
    v_lshl_add_u32 v9, v2, 8, v9
    s_add_u32 s{sT3}, s{sT2}, 2048
    v_add_u32 v179, s{sT3}, v9
    s_waitcnt lgkmcnt(0)
    s_lshl_b32 s{sT1}, s{sT1}, 4
    s_lshr_b32 s{sLD}, s{sLD}, s{sT1}
    s_lshl_b32 s{sLD}, s{sLD}, 16
    s_lshr_b32 s{sDK}, s{sDK}, s{sT1}
    s_lshl_b32 s{sDK}, s{sDK}, 16
    s_cmp_eq_u32 s{sT0}, 0
    s_cselect_b32 s{sDK}, s{sDK}, 0
    v_cmp_eq_u32 vcc, 0, v1
    v_mov_b32 v9, s{sDK}
    v_mov_b32 v165, 0
    v_cndmask_b32 v164, 0, v9, vcc
    v_mov_b32 v166, 0
    v_mov_b32 v167, 0""")
    k.dq=[]
    for j in range(22): k(f"v_readlane_b32 s{4+j}, v59, {j}")
    k.stamp('addr')
    k.w(v="row")
    k.stamp('row')
    for j in range(8):
        k(f"v_lshlrev_b32 v{20+2*j}, 16, v{10+j}\nv_and_b32 v{21+2*j}, s{sMSK}, v{10+j}")
    def red2():
        k("""s_nop 1
        v_permlane32_swap_b32 v40, v41
        v_add_f32 v40, v40, v41
        v_mov_b32 v41, v40
        s_nop 1
        v_permlane16_swap_b32 v40, v41
        v_add_f32 v40, v40, v41""")
        for r in(8,4,2,1): k(f"s_nop 1\nv_add_f32_dpp v40, v40, v40 row_ror:{r} row_mask:0xf bank_mask:0xf")
        k("v_mul_f32 v40, 0x3b000000, v40")
    for b,d in((20,40),(28,41)):
        k(f"""v_pk_add_f32 v[36:37], v[{b}:{b+1}], v[{b+2}:{b+3}]
        v_pk_add_f32 v[38:39], v[{b+4}:{b+5}], v[{b+6}:{b+7}]
        v_pk_add_f32 v[36:37], v[36:37], v[38:39]
        v_add_f32 v{d}, v36, v37""")
    red2()
    k("""v_mov_b32 v42, v40
    v_mov_b32 v43, v40
    v_cvt_pk_bf16_f32 v50, -v40, -v40
    s_nop 0
    v_permlane32_swap_b32 v42, v43""")
    for h,(b,d) in enumerate(((20,40),(28,41))):
        for j in range(4):
            k(f"v_pk_add_f32 v[38:39], v[{b+2*j}:{b+2*j+1}], v[42:43] op_sel:[0,{h}] op_sel_hi:[1,{h}] neg_lo:[0,1] neg_hi:[0,1]")
            k("v_pk_mul_f32 v[36:37], v[38:39], v[38:39]" if j==0 else "v_pk_fma_f32 v[36:37], v[38:39], v[38:39], v[36:37]")
        k(f"v_add_f32 v{d}, v36, v37")
    red2()
    k(f"""v_cvt_pk_bf16_f32 v40, v40, v40
    v_and_b32 v40, s{sMSK}, v40
    v_add_f32 v40, 0x3727c5ac, v40
    v_cvt_pk_bf16_f32 v40, v40, v40
    v_and_b32 v40, s{sMSK}, v40
    v_sqrt_f32 v40, v40
    v_and_b32 v41, s{sMSK}, v50
    v_cvt_pk_bf16_f32 v40, v40, v40
    v_and_b32 v40, s{sMSK}, v40
    v_rcp_f32 v46, v40
    s_nop 0
    v_mul_f32 v47, v41, v46
    v_mul_f32 v51, v46, v46
    v_mov_b32 v48, v46
    v_mov_b32 v49, v47
    s_nop 0
    v_permlane32_swap_b32 v46, v48
    v_permlane32_swap_b32 v47, v49""")
    k.vm(f"buffer_store_dwordx2 v[50:51], v53, {srd(SW)}, 0 offen sc1","lnst")
    for h,b in enumerate((20,28)):
        P=f"v[{46+2*h}:{47+2*h}]"
        for j in range(4):
            k(f"v_pk_fma_f32 v[{b+2*j}:{b+2*j+1}], v[{b+2*j}:{b+2*j+1}], {P}, {P} op_sel:[0,0,1] op_sel_hi:[1,0,1]")
            k(f"v_cvt_pk_bf16_f32 v{10+4*h+j}, v{b+2*j}, v{b+2*j+1}")
        k.ds(f"ds_write_b128 v55, v[{10+4*h}:{13+4*h}] offset:{320*h}")
    k.w(d=0); k("s_barrier")
    for q in range(2):
        for h in range(2): k.ds(f"ds_read_b64_tr_b16 v[{10+4*q+2*h}:{11+4*q+2*h}], v54 offset:{128*q+1280*h}",f"lt{q}")
    k(f"""v_mov_b32 v66, s{sLD}
    v_mul_f32 v66, 0x3fb8aa3b, v66
    v_exp_f32 v66, v66
    v_mov_b32 v18, 0
    v_cvt_pk_bf16_f32 v66, v66, v66
    v_and_b32 v66, s{sMSK}, v66""")
    for q in range(2):
        k.w(d=f"lt{q}")
        k.vm(f"buffer_store_dwordx4 v[{10+4*q}:{13+4*q}], v52, {srd(SW)}, 0 offen offset:{1024*q} sc1","lnst")
    k.vm(f"buffer_store_dword v18, v58, {srd(SW)}, 0 offen sc1","lnst")
    L=k.lab()
    k(f"""s_cmp_lt_u32 s{sI}, 30
    s_cbranch_scc1 {L}
    s_mul_i32 s{sT2}, s{sFT}, 768
    s_add_u32 s{sT2}, s{sT2}, {CS}
    s_cmp_eq_u32 s{sWV}, 3
    s_cselect_b32 s{sT2}, {hex(OOB)}, s{sT2}
    v_lshl_add_u32 v{CSA}, v0, 2, s{sT2}
    v_mov_b32 v19, -1
    buffer_store_dword v19, v{CSA}, {srd(SW)}, 0 offen sc1
    {L}:""")
    k.stamp('ln')
    k.w(v="par")
    k("""v_pk_mul_f32 v[60:61], v[60:61], v[66:67] op_sel_hi:[1,0]
    v_pk_mul_f32 v[62:63], v[62:63], v[66:67] op_sel_hi:[1,0]
    v_mul_f32 v60, 0x3fb8aa3b, v60
    v_mul_f32 v61, 0.15915494, v61""")
    Q={1:68,8:70,128:72}
    for e,d in Q.items():
        if e==1: k(f"v_exp_f32 v66, v60\nv_fract_f32 v67, v61")
        else: k(f"v_mul_f32 v66, {hex(f2b(float(e)))}, v60\nv_mul_f32 v67, {hex(f2b(float(e)))}, v61\nv_exp_f32 v66, v66\nv_fract_f32 v67, v67")
        k(f"v_cos_f32 v{d}, v67\nv_sin_f32 v{d+1}, v67\ns_nop 0\nv_pk_mul_f32 v[{d}:{d+1}], v[{d}:{d+1}], v[66:67] op_sel_hi:[1,0]")
    pr=lambda a:f"v[{a}:{a+1}]"
    side=dma_list(SS,"d1")+nextk
    cnt=[0]
    def tick():
        cnt[0]+=1
        if cnt[0]%3==0 and side:
            f=side.pop(0); f() if callable(f) else k(f)
    def cmul(d,a,b):
        k(f"v_pk_mul_f32 v[66:67], {pr(a)}, {pr(b)} op_sel:[0,0] op_sel_hi:[0,1]")
        k(f"v_pk_fma_f32 {pr(d)}, {pr(a)}, {pr(b)}, v[66:67] op_sel:[1,1,0] op_sel_hi:[1,0,1] neg_lo:[1,0,0]")
    tp=[0]
    def put(e,a,conj=False):
        t=96+(tp[0]&3); tp[0]+=1
        k(f"v_cvt_pk_bf16_f32 v{t}, v{a}, {'-' if conj else ''}v{a+1}")
        k.ds(f"ds_write_b32 v56, v{t} offset:{288*e}"); tick()
    cmul(74,64,62); put(0,74,True)
    for b in range(1,16): cmul(74,74,70); put(b,74,True)
    k(f"v_mov_b32 v95, 0x3f80"); k.ds(f"ds_write_b32 v56, v95 offset:{288*16}")
    qp={1:68}
    put(17,68)
    for a in range(2,8):
        qp[a]=76+2*(a-2); cmul(qp[a],qp[a-1],68); put(16+a,qp[a])
    put(24,72)
    for a in range(1,8): cmul(88,72,qp[a]); put(24+a,88)
    cur=90
    for a in range(2,17):
        cmul(cur,72 if a==2 else cur,72)
        if a in(2,3):
            e=32+4*(a-2); put(e,cur)
            for j,x in enumerate((2,4,6)): cmul(88,cur,qp[x]); put(e+1+j,88)
        elif a<8:
            e=40+2*(a-4); put(e,cur); cmul(88,cur,qp[4]); put(e+1,88)
        else: put(48+a-8,cur)
    while side:
        f=side.pop(0); f() if callable(f) else (k(f),k("s_nop 0"))
    for st in range(4):
        for T in range(4):
            k.ds(f"ds_read_b128 {vr(100+16*st+4*T,4)}, v57 offset:{T*16*288+64*st}",f"kf{st}")
    for st in range(4):
        k.w(d=f"kf{st}")
        for T in range(3):
            c=vr(164+4*T,4) if (st or T==0) else "0"
            k(f"v_mfma_f32_16x16x32_bf16 {vr(164+4*T,4)}, {vr(100+16*st+4+4*T,4)}, {vr(100+16*st,4)}, {c}")
    k("s_nop 5")
    k.ds("ds_write_b32 v180, v18 offset:3072")
    k.ds("ds_write_b128 v176, v[164:167]")
    k.ds("ds_write_b64 v177, v[168:169]"); k.ds("ds_write_b64 v178, v[170:171]")
    k.ds("ds_write2_b32 v179, v172, v173 offset0:0 offset1:16"); k.ds("ds_write2_b32 v179, v174, v175 offset0:32 offset1:48")
    k(f"""v_and_b32 v9, 7, v1
    v_mul_u32_u24 v9, {KCS}, v9
    v_and_b32 v8, 8, v1
    v_lshl_add_u32 v9, v8, 1, v9
    v_add_u32 v9, {KC+4096}, v9""")
    k.w(d=0); k("s_barrier")
    k.stamp('kgen')
    for c in range(2):
        for i in range(11): k.ds(f"ds_read2st64_b32 {vr(100+24*c+2*i,2)}, v{EX+i} offset0:{PO[2*c]} offset1:{PO[2*c+1]}",f"ex{c}_{i}")
    k("v_mov_b32 v20, 0\nv_mov_b32 v21, 0\nv_mov_b32 v22, 0\nv_mov_b32 v23, 0")
    k.ds("ds_write_b128 v9, v[20:23]")
    for c in range(2):
        for i in range(11):
            if i in(0,4,8): k.w(d=f"ex{c}_{min(i+3,10)}")
            k(f"v_add_f32 v{100+24*c+2*i}, v{100+24*c+2*i}, v{101+24*c+2*i}")
        for s in range(4):
            t=24+16*c+4*s
            for j in range(4):
                i=100+24*c+2*(3-s+2*j)
                k(f"v_cvt_pk_bf16_f32 v{t+j}, v{i}, v{i+2}")
            k.ds(f"ds_write_b128 v{KCW}, {vr(t,4)} offset:{(4*c+s)*KCS}")
    k.stamp('exp')
    k.w(v="lnst",d=0); k("s_barrier")
    k.vm(f"buffer_store_byte v{ONEB}, v{LNF}, {srd(SB)}, 0 offen sc1","lnf")
    k.stamp('barB')
    CSL=k.lab("CS"); MRG=k.lab("MRG")
    k(f"s_cmp_ge_u32 s{sI}, 30\ns_cbranch_scc1 {CSL}")
    ACC=16; FA=(112,132); FB=(124,144); EA=152; EB=164; UR=172; PL=180
    def reads(st,f):
        L=[]
        for e in range(2): L.append(lambda e=e: k.ds(f"ds_read_b128 {vr(FB[f]+4*e,4)}, v{XR+st} offset:{4096*e}","fr"))
        for u in range(3):
            for h in range(2): L.append(lambda u=u,h=h: k.ds(f"ds_read_b64_tr_b16 {vr(FA[f]+4*u+2*h,2)}, v{WR} offset:{3072*st+768*h+32*u}","fr"))
        return [L[0],L[2],L[3],L[1]]+L[4:]
    def mf(f,zero=False):
        return [f"v_mfma_f32_32x32x16_bf16 {vr(ACC+16*(2*u+e),16)}, {vr(FA[f]+4*u,4)}, {vr(FB[f]+4*e,4)}, {'0' if zero else vr(ACC+16*(2*u+e),16)}" for u in range(3) for e in range(2)]
    def mix(a,b):
        o=[];a=list(a);b=list(b)
        while a or b:
            if a:o.append(a.pop(0))
            if a:o.append(a.pop(0))
            if b:o.append(b.pop(0))
        return o
    def adv(delta):
        return [f"v_add_u32 v{r}, {delta}, v{r}" for r in(XR,WR,XR+1,XR+2,XR+3)]
    for f in reads(0,0): f()
    k(f"s_mov_b32 s{sRING}, {2*SS}\ns_mov_b32 s{sCNT}, 0")
    LOOP=k.lab("G1L"); MID=k.lab("G1M")
    D=dma_list(f"s{sRING}","dl")
    k.w(d=0); weave(k,mf(0,True),mix(reads(1,1),D[0:5]),3)
    k(f"s_branch {MID}\n{LOOP}:")
    D=dma_list(f"s{sRING}","dl")
    k.w(d=0); weave(k,mf(0),mix(reads(1,1),D[0:5]),3)
    k(f"{MID}:")
    k.w(d=0); weave(k,mf(1),mix(reads(2,0),D[5:9]),3)
    k.w(d=0); weave(k,mf(0),mix(reads(3,1),D[9:13])+[f"s_cmp_eq_u32 s{sRING}, s{sC1}",f"s_cselect_b32 s{sDL}, s{sC2}, s{sC1}"],3)
    L=k.lab()
    def bar0():
        k(f"s_cmp_eq_u32 s{sCNT}, 0\ns_cbranch_scc1 {L}\ns_waitcnt vmcnt(10)\n{L}:\ns_waitcnt vmcnt(11)\ns_barrier")
    A=adv(f"s{sDL}")
    tailf=nextk+[f"s_add_u32 s{sRING}, s{sRING}, s{sC1}",f"s_cmp_eq_u32 s{sRING}, {3*SS}",f"s_cselect_b32 s{sRING}, 0, s{sRING}",f"s_add_u32 s{sCNT}, s{sCNT}, 1",f"s_cmp_lt_u32 s{sCNT}, 5"]
    k.w(d=0); weave(k,mf(1),[bar0]+A[:2]+reads(0,0)+A[2:]+tailf,[1,5,5,5,5,5])
    k(f"s_cbranch_scc1 {LOOP}")
    k.vq=["dl"]*10
    k.stamp('g1loop')
    def poll(tag,reg,addr,sr,exp,extra=""):
        ok=k.lab("OK"); rt=k.lab("RT")
        k.w(v=tag)
        k(f"v_cmp_ne_u32 vcc, {exp}, v{reg}\ns_cbranch_vccnz {rt}\n{ok}:")
        lp=k.lab("RL")
        k.tail.append(f"""{rt}:
        s_movk_i32 s{sT3}, 4000
        {lp}:
        buffer_load_dword v{reg}, v{addr}, {srd(sr)}, 0 offen sc1
        s_waitcnt vmcnt(0)
        v_cmp_ne_u32 vcc, {exp}, v{reg}
        s_cbranch_vccz {ok}
        s_sub_u32 s{sT3}, s{sT3}, 1
        s_cmp_lg_u32 s{sT3}, 0
        s_cbranch_scc1 {lp}
        s_branch {ok}""")
    lnpoll=lambda: k.vm(f"buffer_load_dword v{PL}, v{LNP}, {srd(SB)}, 0 offen sc1","lnp")
    def uloads():
        return [lambda q=q: k.vm(f"buffer_load_dwordx4 {vr(UR+4*q,4)}, v{UL}, {srd(SW)}, {'s%d'%sUQ if q else 0} offen sc1","u") for q in range(2)]
    def wd_loc(j):
        if j<3: return ('C',2048*j)
        if j<8: return ('A',2048*(j-3))
        if j<13: return ('A',BW+2048*(j-8))
        if j<16: return ('C',2048*(j-13))
        if j<21: return ('A',2048*(j-16))
        return ('A',BW)
    def wd_dma(j):
        r,o=wd_loc(j); b=sCWB if r=='C' else sAW
        return [f"s_add_u32 m0, s{b}, {o}" if o else f"s_mov_b32 m0, s{b}"]+[lambda h=h: k.vm(f"buffer_load_dwordx4 v{WDV+h}, {srd(SD)}, s{4+j} offen offset:{1024*h} lds",f"wd{j}") for h in range(2)]
    def wd_tr(j):
        r,o=wd_loc(j); b=TC if r=='C' else TA
        return [lambda e=e,h=h: k.ds(f"ds_read_b64_tr_b16 {ar(8*j+4*e+2*h,2)}, v{b+e} offset:{o+1024*h}",f"wt{j}") for e in range(2) for h in range(2)]
    def uwrite():
        L=[lambda: k.w(v="u")]
        L+=[lambda q=q: k.ds(f"ds_write_b128 v{UW}, {vr(UR+4*q,4)} offset:{2048*q}","uw") for q in range(2)]
        return L
    D=dma_list(SS,"d7")
    k.w(d=0); weave(k,mf(0),[lnpoll]+mix(reads(1,1),D[0:5]),3)
    k.w(d=0); weave(k,mf(1),mix(reads(2,0),D[5:9]),3)
    k.w(d=0); weave(k,mf(0),mix(reads(3,1),D[9:13]),3)
    A=adv(-2*SS)
    k.w(d=0); weave(k,mf(1),[lambda:(k.w(v="dl"),k("s_barrier"))]+A[:2]+reads(0,0)+A[2:]+[lambda: poll("lnp",PL,LNP,SB,f"s{sONE}")]+uloads(),[1,5,5,3,1,5])
    zer=[f"v_mov_b32 v{r}, 0" for r in list(range(EA,EA+12))+list(range(EB,EB+8)) if (r-EA)%4]
    k.w(d=0); weave(k,mf(0),reads(1,1)+zer,4)
    sl=[lambda e=e: k.vm(f"buffer_load_dword v{EB+4*e}, v{ST}, {srd(SW)}, 0 offen offset:{256*e} sc1","st") for e in range(2)]
    cl=[lambda j=j: k.vm(f"buffer_load_dword v{EA+4*j}, v{CSA}, {srd(SW)}, 0 offen offset:{128*j} sc1","cs") for j in range(3)]
    k.w(d=0); weave(k,mf(1),reads(2,0)+sl+cl,3)
    zpad=[lambda: k.ds(f"ds_write_b128 v{UZ}, v[184:187]","uw")]
    k("v_mov_b32 v184, 0\nv_mov_b32 v185, 0\nv_mov_b32 v186, 0\nv_mov_b32 v187, 0")
    k.w(d=0); weave(k,mf(0),mix(reads(3,1),wd_dma(0)+wd_dma(1))+zpad,3)
    A=adv(SS)
    k.w(d=0); weave(k,mf(1),[lambda:(k.w(v="d7"),k("s_barrier"))]+A[:2]+reads(0,0)+A[2:]+wd_dma(2),[1,5,5,5,5,5])
    k.w(d=0); weave(k,mf(0),mix(reads(1,1),wd_dma(3)+wd_dma(4)),3)
    k.w(d=0); weave(k,mf(1),mix(reads(2,0),wd_dma(5)+wd_dma(6)),3)
    k.w(d=0); weave(k,mf(0),mix(reads(3,1),wd_dma(7))+uwrite(),3)
    CS0A,CS0B=('a',176),('a',208); CS1A,CS1B=('v',16),('v',48); CACC=112
    def rg(t,o,n): return (ar if t[0]=='a' else vr)(t[1]+o,n)
    def conv_reads(rho):
        SA,SBb=((CS0A,CS0B),(CS1A,CS1B))[rho&1]
        L=[]
        for i in range(8):
            L.append(lambda i=i: k.ds(f"ds_read_b128 {rg(SBb,4*i,4)}, v{CB} offset:{192-64*rho+512*i}",f"cv{rho}"))
            for h in range(2): L.append(lambda i=i,h=h: k.ds(f"ds_read_b64 {rg(SA,4*i+2*h,2)}, v{CA} offset:{3776-512*i-64*rho+8*h}",f"cv{rho}"))
        return L
    def cscheck():
        k.w(v="cs")
        ok=k.lab("OK"); rt=k.lab("RT"); lp=k.lab("RL")
        k(f"v_max3_u32 v{PL}, v{EA}, v{EA+4}, v{EA+8}\nv_cmp_eq_u32 vcc, -1, v{PL}\ns_cbranch_vccnz {rt}\n{ok}:")
        k.tail.append(f"""{rt}:
        s_movk_i32 s{sT3}, 4000
        {lp}:
        buffer_load_dword v{EA}, v{CSA}, {srd(SW)}, 0 offen sc1
        buffer_load_dword v{EA+4}, v{CSA}, {srd(SW)}, 0 offen offset:128 sc1
        buffer_load_dword v{EA+8}, v{CSA}, {srd(SW)}, 0 offen offset:256 sc1
        s_waitcnt vmcnt(0)
        v_max3_u32 v{PL}, v{EA}, v{EA+4}, v{EA+8}
        v_cmp_eq_u32 vcc, -1, v{PL}
        s_cbranch_vccz {ok}
        s_sub_u32 s{sT3}, s{sT3}, 1
        s_cmp_lg_u32 s{sT3}, 0
        s_cbranch_scc1 {lp}
        s_branch {ok}""")
    CR0=conv_reads(0)
    k.w(d=0); weave(k,mf(1),["s_barrier"]+CR0[:16]+[cscheck],[1,4,4,4,4,1])
    k.stamp('g1s7')
    mx=[f"v_mfma_f32_32x32x16_bf16 {vr(ACC+16*(2*u+e),16)}, {vr(EA+4*u,4)}, {vr(EB+4*e,4)}, {vr(ACC+16*(2*u+e),16)}" for u in range(3) for e in range(2)]
    def hepi(b):
        a=ACC+16*b; u,e=b>>1,b&1
        L=[f"v_mul_f32 v{a+r}, v{a+r}, v{a+8+r}" for r in range(8)]
        L+=[f"v_cvt_pk_bf16_f32 v{a+8+j}, v{a+2*j}, v{a+2*j+1}" for j in range(4)]
        L.append(lambda: k.vm(f"buffer_store_dwordx4 {vr(a+8,4)}, v{HS+u}, {srd(SW)}, s{sH0+e} offen sc1","h"))
        return L
    weave(k,mx,CR0[16:]+["s_nop 1"]+hepi(0)+hepi(1),[4,4,1,6,6,6])
    for b in range(2,6):
        for f in hepi(b): f() if callable(f) else k(f)
    vq_main=list(k.vq); dq_main=list(k.dq)
    k(f"{MRG}:")
    k.stamp('hepi')
    def conv_mf(rho):
        SA,SBb=((CS0A,CS0B),(CS1A,CS1B))[rho&1]
        L=[]
        for s in range(8):
            for i in range(s+1):
                I=s
                c="0" if (rho==0 and i==0) else vr(CACC+4*I,4)
                L.append(f"v_mfma_f32_16x16x32_bf16 {vr(CACC+4*I,4)}, {rg(SA,4*i,4)}, {rg(SBb,4*(I-i),4)}, {c}")
        return L
    def trs(js):
        L=[]
        for j in js: L+=[lambda j=j: k.w(v=f"wd{j}")]+wd_tr(j)
        return L
    def redma(jn,jold):
        D=wd_dma(jn); return [D[0],lambda: k.w(d=f"wt{jold}")]+D[1:]
    hflag=[lambda: k.w(v="h"), lambda: k.vm(f"buffer_store_byte v{ONEB}, v{FHS}, {srd(SW)}, 0 offen sc1","hf")]
    k.w(d="cv0"); weave(k,conv_mf(0),mix(conv_reads(1),wd_dma(8)+wd_dma(9)+wd_dma(10)+wd_dma(11))+wd_dma(12)+trs([0,1,2])+redma(13,0)+redma(14,1)+redma(15,2),2)
    k.w(d="cv1"); weave(k,conv_mf(1),conv_reads(2)+hflag+trs([3,4,5,6,7])+redma(16,3)+redma(17,4)+redma(18,5)+redma(19,6),2)
    k.w(d="cv2"); weave(k,conv_mf(2),conv_reads(3)+redma(20,7)+trs([8,9,10])+redma(21,8)+[lambda: k.vm(f"buffer_load_dword v{PL-80}, v{FHP}, {srd(SW)}, 0 offen sc1","hp")],2)
    HR=144
    def hload(j):
        r=HR+8*(j%(DEPTH+1))
        return [f"s_lshr_b32 s{sT0}, s{4+j}, 4"]+[lambda e=e: k.vm(f"buffer_load_dwordx4 {vr(r+4*e,4)}, v{HL+e}, {srd(SW)}, s{sT0} offen sc1",f"h{j}") for e in range(2)]
    pre=[lambda: poll("hp",PL-80,FHP,SW,f"s{sONE}")]
    for j in range(DEPTH): pre+=hload(j)
    k.w(d="cv3"); weave(k,conv_mf(3),pre,2,start=20)
    k.stamp('conv')
    H1=k.lab("H1"); HE=k.lab("HE")
    k(f"""s_add_u32 s{sT1}, s{sAW}, {BW+2048}
    v_add_u32 v96, s{sT1}, v{EXW}
    s_xor_b32 s{sT2}, s{sWV}, 1
    s_mul_i32 s{sT2}, s{sT2}, {AWS}
    s_add_u32 s{sT2}, s{sT2}, {BW+2048}
    v_add_u32 v97, s{sT2}, v{EXW}
    s_bitcmp1_b32 s{sWV}, 0
    s_cbranch_scc1 {H1}""")
    for hh in range(2):
        snd=CACC+16*(1-hh); own=CACC+16*hh
        if hh==0: k("s_nop 1")
        for j in range(4): k(f"ds_write_b128 v96, {vr(snd+4*j,4)} offset:{1024*j}")
        k("s_waitcnt lgkmcnt(0)\ns_barrier")
        for j in range(4): k(f"ds_read_b128 {vr(80+4*j,4)}, v97 offset:{1024*j}")
        for j in range(4):
            k(f"s_waitcnt lgkmcnt({3-j})")
            k(f"v_pk_add_f32 {vr(80+4*j,2)}, {vr(80+4*j,2)}, {vr(own+4*j,2)}\nv_pk_add_f32 {vr(82+4*j,2)}, {vr(82+4*j,2)}, {vr(own+4*j+2,2)}")
        if hh==0: k(f"s_branch {HE}\n{H1}:")
    k(f"{HE}:"); k.dq=[]
    for j in range(4): k(f"v_cvt_pk_bf16_f32 v{112+2*j}, v{80+4*j}, v{81+4*j}\nv_cvt_pk_bf16_f32 v{113+2*j}, v{82+4*j}, v{83+4*j}")
    k("s_nop 0")
    for j in range(2):
        k(f"v_permlane16_swap_b32 v{112+4*j}, v{114+4*j}\nv_permlane16_swap_b32 v{113+4*j}, v{115+4*j}")
    for j in range(2): k.vm(f"buffer_store_dwordx4 {vr(112+4*j,4)}, v{YS}, {srd(SW)}, 0 offen offset:{1024*j} sc1","y")
    k.vm(f"buffer_load_dwordx4 v[136:139], v{XO}, {srd(SX)}, 0 offen","x")
    k.vm(f"buffer_load_dwordx4 v[140:143], v{XO}, {srd(SX)}, 0 offen offset:32","x")
    k.vm(f"buffer_load_dword v135, v{RS}, {srd(SW)}, 0 offen sc1","x")
    k.w(v="wd21")
    for j in range(11,22):
        for f in wd_tr(j): f()
    k.stamp('xchg')
    A2=16
    def g2mf(j):
        r=HR+8*(j%(DEPTH+1))
        return [f"v_mfma_f32_32x32x16_bf16 {vr(A2+16*(2*d+t),16)}, {ar(8*j+4*d,4)}, {vr(r+4*t,4)}, {'0' if j==0 else vr(A2+16*(2*d+t),16)}" for d,t in((1,1),(1,0),(0,1),(0,0))]
    SK=k.lab("SK")
    waited=False
    for j in range(22):
        fl=[]
        if j+DEPTH<22: fl+=hload(j+DEPTH)
        if j==DEPTH: fl+=[lambda: k.vm(f"buffer_store_byte v{ONEB}, v{FYS}, {srd(SW)}, 0 offen sc1","yf")]
        if j==12: fl+=[lambda: k.vm(f"buffer_load_dword v134, v{FYP}, {srd(SW)}, 0 offen sc1","yp")]
        if j==17:
            fl+=[lambda: poll("yp",134,FYP,SW,f"s{sONE}")]
            fl+=[lambda q=q: k.vm(f"buffer_load_dwordx4 {vr(112+4*q,4)}, v{YL}, {srd(SW)}, {'s%d'%sYQ if q else 0} offen sc1","yl") for q in range(2)]
        if j==21: k(f"s_cmp_ge_u32 s{sWV}, 2\ns_cbranch_scc1 {SK}")
        if j>=11 and not waited: k.w(v=f"h{j}",d=0); waited=True
        else: k.w(v=f"h{j}")
        weave(k,g2mf(j),fl,3)
    k(f"{SK}:")
    k.stamp('g2')
    k(f"""v_add_u32 v96, s{sAW}, v{EXW}
    v_add_u32 v97, s{sCWB}, v{EXW}""")
    for x in (1,2,3):
        k(f"s_xor_b32 s{sT0}, s{sWV}, {x}")
        if x<3: k(f"s_mul_i32 s{sT0}, s{sT0}, {AWS}\ns_add_u32 s{sT0}, s{sT0}, {4096*(x-1)}")
        else: k(f"s_mul_i32 s{sT0}, s{sT0}, {CWS}\ns_add_u32 s{sT0}, s{sT0}, {CW}")
        k(f"v_add_u32 v{97+x}, s{sT0}, v{EXW}")
    for x in (3,2,1):
        for a in range(4):
            k.ds(f"ds_write_b128 v{97 if x==3 else 96}, {vr(A2+16*x+4*a,4)} offset:{1024*a+(4096 if x==2 else 0)}")
    k.w(v="yl")
    for q in range(2): k.ds(f"ds_write_b128 v{YW}, {vr(112+4*q,4)} offset:{1024*q}")
    for a in range(4): k.ds(f"ds_read_b64_tr_b16 {vr(120+2*a,2)}, v{YR} offset:{512*a}","yt")
    k.w(d=0); k("s_barrier")
    for x in (1,2,3):
        for a in range(4): k.ds(f"ds_read_b128 {vr(144+16*(x-1)+4*a,4)}, v{97+x} offset:{1024*a}",f"rd{x}")
    for j in range(8): k(f"v_lshlrev_b32 v{80+2*j}, 16, v{120+j}\nv_and_b32 v{81+2*j}, s{sMSK}, v{120+j}")
    for x in (1,2,3):
        k.w(d=f"rd{x}")
        for j in range(8): k(f"v_pk_add_f32 {vr(A2+2*j,2)}, {vr(A2+2*j,2)}, {vr(144+16*(x-1)+2*j,2)}")
    for j in range(8): k(f"v_pk_fma_f32 {vr(A2+2*j,2)}, {vr(A2+2*j,2)}, v[134:135], {vr(80+2*j,2)} op_sel:[0,1,0] op_sel_hi:[1,1,1]")
    for j in range(8): k(f"v_lshlrev_b32 v{80+2*j}, 16, v{136+j}\nv_and_b32 v{81+2*j}, s{sMSK}, v{136+j}")
    for a in(0,2):
        for r in range(4): k(f"v_permlane32_swap_b32 v{A2+4*a+r}, v{A2+4*a+4+r}")
    for j in range(8):
        k(f"v_pk_add_f32 {vr(A2+2*j,2)}, {vr(A2+2*j,2)}, {vr(80+2*j,2)}\nv_cvt_pk_bf16_f32 v{100+j}, v{A2+2*j}, v{A2+2*j+1}")
        if j%4==3: k.vm(f"buffer_store_dwordx4 {vr(100+j-3,4)}, v{XO}, {srd(SO)}, 0 offen offset:{32*(j//4)}","o")
    if prof:
        k.stamp('epi'); k("s_waitcnt vmcnt(0) lgkmcnt(0)"); k.stamp('drain'); k("s_waitcnt lgkmcnt(0)"); k.stamp(); k.stamp()
        k("; STAMPS "+" ".join(k.names[:-2]))
        k("s_memrealtime s[94:95]\ns_waitcnt lgkmcnt(0)\nv_writelane_b32 v199, s94, 62\nv_writelane_b32 v199, s96, 63")
        k(f"s_lshl_b32 s{sT0}, s2, 2\ns_add_u32 s{sT0}, s{sT0}, s{sWV}\ns_lshl_b32 s{sT0}, s{sT0}, 8\ns_add_u32 s{sT0}, s{sT0}, {PROF}\nv_lshl_add_u32 v2, v1, 2, s{sT0}")
        k(f"buffer_store_dword v199, v2, {srd(SW)}, 0 offen")
        if dbg:
            L=k.lab()
            k(f"""s_cmp_lg_u32 s{sWV}, 0
            s_cbranch_scc1 {L}
            s_and_b32 s{sT0}, s2, 0x18
            s_cmp_lg_u32 s{sT0}, 0
            s_cbranch_scc1 {L}
            s_sub_u32 s{sT0}, s94, s96
            v_writelane_b32 v199, s{sT0}, 2
            s_or_b32 s{sT0}, s94, 0x80000000
            s_not_b32 s{sT1}, s96
            s_or_b32 s{sT1}, s{sT1}, 0x80000000
            s_or_b32 s{sT2}, s96, 0x80000000
            v_mov_b32 v4, s{sT0}
            v_writelane_b32 v4, s{sT1}, 1
            v_writelane_b32 v4, s{sT2}, 2
            v_cmp_gt_u32 vcc, 3, v1
            v_lshlrev_b32 v6, 2, v1
            v_add_u32 v6, 52, v6
            v_mov_b32 v7, {hex(OOB)}
            v_cndmask_b32 v6, v7, v6, vcc
            buffer_atomic_umax v4, v6, {srd(SB)}, 0 offen sc1
            s_cmp_lg_u32 s2, {dbg-1}
            s_cbranch_scc1 {L}
            v_readlane_b32 s{sT0}, v199, 2
            v_readlane_b32 s{sT1}, v199, 14
            v_subrev_u32 v4, s34, v199
            s_sub_u32 s{sT1}, s{sT1}, s34
            v_writelane_b32 v4, s{sT0}, 2
            v_writelane_b32 v4, s{sT1}, 13
            v_cmp_gt_u32 vcc, 14, v1
            v_lshlrev_b32 v6, 2, v1
            v_add_u32 v6, -4, v6
            v_cndmask_b32 v6, v7, v6, vcc
            buffer_store_dword v4, v6, {srd(SB)}, 0 offen sc1
            {L}:""")
    k("s_endpgm")
    k(f"{CSL}:")
    k(f"""s_mul_i32 s{sT0}, s{sWV}, 3072
    s_lshr_b32 s{sT1}, s{sWV}, 1
    s_mul_i32 s{sT1}, s{sT1}, 96
    s_sub_u32 s{sT0}, s{sT0}, s{sT1}
    v_add_u32 v{WR}, s{sT0}, v{WR}
    v_mov_b32 v112, 0x3f803f80
    v_mov_b32 v113, v112
    v_mov_b32 v114, v112
    v_mov_b32 v115, v112
    s_mov_b32 s{sRING}, {2*SS}
    s_mov_b32 s{sCNT}, 0""")
    for r in range(16,112): k(f"v_mov_b32 v{r}, 0")
    def csdma():
        D=dma_list(f"s{sRING}","c")[5:]
        for f in D: f() if callable(f) else (k(f),k("s_nop 0"))
        for f in nextk: k(f)
    csdma()
    CL=k.lab("CL"); CN=k.lab("CN")
    k(f"{CL}:\ns_waitcnt vmcnt(12)\ns_cmp_lt_u32 s{sCNT}, 6\ns_cbranch_scc1 {CN}\ns_waitcnt vmcnt(0)\n{CN}:")
    for u in range(6):
        for h in range(2): k(f"ds_read_b64_tr_b16 {vr(116+4*u+2*h,2)}, v{WR} offset:{768*h+32*u}")
    CN2=k.lab("CN")
    k(f"""s_add_u32 s{sRING}, s{sRING}, s{sC1}
    s_cmp_eq_u32 s{sRING}, {3*SS}
    s_cselect_b32 s{sRING}, 0, s{sRING}
    s_cmp_eq_u32 s{sRING}, {2*SS}
    s_cselect_b32 s{sDL}, s{sC2}, s{sC1}
    v_add_u32 v{WR}, s{sDL}, v{WR}
    s_waitcnt lgkmcnt(0)
    s_cmp_ge_u32 s{sCNT}, 5
    s_cbranch_scc1 {CN2}""")
    csdma()
    k(f"{CN2}:")
    for u in range(6): k(f"v_mfma_f32_32x32x16_bf16 {vr(16+16*u,16)}, v[112:115], {vr(116+4*u,4)}, {vr(16+16*u,16)}")
    k(f"s_add_u32 s{sCNT}, s{sCNT}, 1\ns_cmp_lt_u32 s{sCNT}, 8\ns_cbranch_scc1 {CL}")
    k(f"""s_mul_i32 s{sT0}, s{sWV}, 768
    s_add_u32 s{sT0}, s{sT0}, {PT}
    v_and_b32 v2, 31, v1
    v_lshl_add_u32 v2, v2, 2, s{sT0}
    v_min_u32 v3, 191, v0
    v_lshlrev_b32 v3, 2, v3
    v_add_u32 v3, {PT}, v3
    s_nop 7""")
    for u in range(6): k(f"ds_write_b32 v2, v{16+16*u} offset:{128*u}")
    k("s_waitcnt lgkmcnt(0)\ns_barrier")
    for j in range(4): k(f"ds_read_b32 v{4+j}, v3 offset:{768*j}")
    k(f"""s_waitcnt lgkmcnt(0)
    v_add_f32 v4, v4, v5
    v_add_f32 v6, v6, v7
    v_add_f32 v4, v4, v6
    v_cvt_pk_bf16_f32 v5, v4, v4
    v_and_b32 v5, s{sMSK}, v5
    v_sub_f32 v6, v4, v5
    v_cvt_pk_bf16_f32 v5, v5, v6
    buffer_store_dword v5, v{CSA}, {srd(SW)}, 0 offen sc1""")
    k.vq=[]; k.dq=[]
    lnpoll(); poll("lnp",PL,LNP,SB,f"s{sONE}")
    for f in uloads(): f()
    k("v_mov_b32 v184, 0\nv_mov_b32 v185, 0\nv_mov_b32 v186, 0\nv_mov_b32 v187, 0")
    for j in range(8):
        for f in wd_dma(j): f() if callable(f) else (k(f),k("s_nop 0"))
    zpad[0]()
    for f in uwrite(): f()
    k("s_waitcnt lgkmcnt(0)\ns_barrier")
    for f in conv_reads(0): f()
    k(f"s_waitcnt vmcnt(0) lgkmcnt(0)\ns_branch {MRG}")
    for t in k.tail: k(t)
    k(f"{END}:")
    return k
import struct
def f2b(x): return struct.unpack('<I',struct.pack('<f',x))[0]
if __name__=='__main__':
    out=sys.argv[1]; opts=dict(a.split('=') for a in sys.argv[2:])
    opts={a:int(b) for a,b in opts.items()}
    k=gen(**opts)
    hdr="".join(l for l in open('cdna_kernels/'+NAME[:-7]+'.s.ref') if l.startswith(';') and '@launch' not in l)
    txt=module([k],[(None,256,256,163840)],hdr)
    open(out,'w').write(txt)
    print("hazards:",haz.check(txt.split('\n')))
```

```python
import sys
sys.path.insert(0,'w')
from gl import *
import haz
NAME="parallel_sum__ssm_conv_s4__glu_gated_bilinear__prompt_kernel"
XNB=0; STATS=0x200000; FH=0x210000; FY=0x218000; PROF=0x220000; HB=0x400000; YB=0xA00000; CS=0xC00000; WSEND=CS+86*128
SS=41216; WG_O=16384; WU_D=12320
TAB=82432; TABW=16416; KC=123648; KCS=4160; PT=156928; PTS=3088
UO=82432; US=4608; CW=91648; CWS=6144; AWS=10240; BW=41216
OOB=0x80000000
PX=95744; PO=(0,13,77,239)
class G(K):
    def __init__(s,*a,**kw):
        super().__init__(*a,**kw); s.vq=[]; s.dq=[]; s.tail=[]; s.nst=0; s.names=['start']
    def vm(s,t,tag=None):
        if t.endswith(' lds') and ' m0,' in s.L[-1]: s("s_nop 0")
        s(t); s.vq.append(tag)
    def ds(s,t,tag=None): s(t); s.dq.append(tag)
    def nv(s,tag):
        i=max(j for j,x in enumerate(s.vq) if x==tag); return min(len(s.vq)-1-i,63)
    def nd(s,tag):
        i=max(j for j,x in enumerate(s.dq) if x==tag); return min(len(s.dq)-1-i,15)
    def w(s,v=None,d=None):
        o=[]
        if v is not None: o.append(f"vmcnt({s.nv(v) if isinstance(v,str) else v})")
        if d is not None: o.append(f"lgkmcnt({s.nd(d) if isinstance(d,str) else d})")
        s("s_waitcnt "+" ".join(o))
    def stamp(s,name=''):
        if s.prof:
            n=s.nst; R=(90,92,98,100); a=R[n&3]
            s(f"s_memtime s[{a}:{a+1}]")
            if n>=2: s(f"v_writelane_b32 v199, s{R[(n-2)&3]}, {n-1}")
            elif n==0: s("v_writelane_b32 v199, s34, 0")
            s.names.append(name); s.nst+=1
def vr(a,n): return f"v[{a}:{a+n-1}]" if n>1 else f"v{a}"
def ar(a,n): return f"a[{a}:{a+n-1}]" if n>1 else f"a{a}"
def weave(k,mf,fl,per,start=0):
    fl=list(fl)
    for i,m in enumerate(mf):
        k(m)
        if i>=start:
            n=per[i] if isinstance(per,(list,tuple)) else per
            for _ in range(n):
                if fl:
                    f=fl.pop(0); f() if callable(f) else k(f)
    for f in fl: f() if callable(f) else k(f)

SX,SG,SU,SD,SW,SO,SB=36,40,44,48,52,56,60
sXCD,sI,sWV,sP,sFT,sMT,sRB,sLD,sDK=64,65,66,67,68,69,70,71,72
sKS,sOX,sOW,sMX,sMG,sRING,sDL,sCNT,sC1,sC2=73,74,75,76,77,78,79,80,81,82
sH0,sH1,sMSK,sONE,sAW,sCWB,sT0,sT1,sT2,sT3=83,84,85,86,87,88,26,27,28,29
sUQ=30; sYQ=31; sTB=32; sDB=33
def srd(d): return f"s[{d}:{d+3}]"
XD=200; WD=204; XR=207; WR=211; KCW=212; EX=213
CA=224; CB=225; WDV=226; TA=228; TC=230; HL=232; HS=234; UL=237; UW=238; UZ=239; ST=240; CSA=241
XO=242; RS=243; YL=244; YW=245; YR=246; YS=247; EXW=248; FHP=249; FYP=250; FHS=251; FYS=252; LNP=253; LNF=254; ONEB=255

def gen(prof=False, ROT1=True, ROT2=True, DEPTH=5, dbg=0, pace=0, pidx=14, psh=3, pwg=0):
    k=G(NAME,vgpr=256,agpr=256,sgpr=102); k.prof=prof; k.pst=90
    END=k.lab("END")
    if prof: k("s_memtime s[34:35]\ns_memrealtime s[96:97]")
    k(f"s_cmp_ge_u32 s2, 0x100\ns_cbranch_scc1 {END}")
    k("s_load_dwordx16 s[4:19], s[0:1], 0\ns_load_dwordx2 s[20:21], s[0:1], 64")
    for d,o in((SX,0),(SG,80),(SU,88),(SD,96),(SO,104),(SB,112),(SW,120)): k(f"s_load_dwordx2 s[{d}:{d+1}], s[0:1], {o}")
    for d,n in((SX,0x200000),(SG,512*2752),(SU,512*2752),(SD,1376*1024),(SO,0x200000),(SB,256),(SW,WSEND)):
        k(f"s_mov_b32 s{d+2}, {hex(n)}\ns_mov_b32 s{d+3}, 0x00020000")
    k(f"""v_lshrrev_b32 v2, 6, v0
    v_and_b32 v1, 63, v0
    v_readfirstlane_b32 s{sWV}, v2
    s_and_b32 s{sXCD}, s2, 7
    s_lshr_b32 s{sI}, s2, 3
    s_lshl_b32 s{sP}, s{sXCD}, 5
    s_add_u32 s{sP}, s{sP}, s{sI}
    s_and_b32 s{sT0}, s{sXCD}, 1
    s_lshr_b32 s{sT1}, s{sXCD}, 1
    s_lshl_b32 s{sRB}, s{sT0}, 7
    s_lshl_b32 s{sT2}, s{sT1}, 5
    s_add_u32 s{sRB}, s{sRB}, s{sT2}
    s_add_u32 s{sRB}, s{sRB}, s{sI}
    s_mul_i32 s{sT2}, s{sT1}, 30
    s_add_u32 s{sT2}, s{sT2}, s{sI}
    s_lshr_b32 s{sFT}, s{sT2}, 3
    s_and_b32 s{sT2}, s{sT2}, 7
    s_lshl_b32 s{sMT}, s{sT0}, 3
    s_add_u32 s{sMT}, s{sMT}, s{sT2}
    s_lshl_b32 s{sT1}, s{sT1}, 2
    s_lshl_b32 s{sT0}, s{sT0}, 1
    s_add_u32 s{sT1}, s{sT1}, s{sT0}
    s_add_u32 s{sT1}, s{sT1}, s{sI}
    s_sub_u32 s{sT1}, s{sT1}, 30
    s_cmp_ge_u32 s{sI}, 30
    s_cselect_b32 s{sFT}, s{sT1}, s{sFT}
    s_mov_b32 s{sMSK}, 0xffff0000""")
    k(f"""s_lshl_b32 s{sT0}, s{sRB}, 13
    s_lshl_b32 s{sT1}, s{sWV}, 11
    s_add_u32 s{sT0}, s{sT0}, s{sT1}
    v_lshl_add_u32 v3, v1, 4, s{sT0}
    s_lshl_b32 s{sT0}, s{sP}, 9
    v_lshl_add_u32 v4, v0, 1, s{sT0}""")
    for j in range(6): k(f"v_mov_b32 v{60+j}, 0")
    k(f"""s_lshl_b32 s{sT0}, s{sMT}, 17
    s_lshl_b32 s{sT1}, s{sWV}, 15
    s_add_u32 s{sT0}, s{sT0}, s{sT1}
    v_lshrrev_b32 v5, 3, v1
    v_lshl_add_u32 v5, v5, 10, s{sT0}
    v_lshrrev_b32 v6, 4, v1
    v_xor_b32 v7, v1, v6
    v_and_b32 v7, 7, v7
    v_lshl_add_u32 v{XD}, v7, 4, v5
    v_xor_b32 v5, 64, v{XD}
    v_add_u32 v{XD+1}, 7168, v5
    v_add_u32 v{XD+2}, 14336, v{XD}
    v_add_u32 v{XD+3}, 21504, v5
    s_mul_i32 s{sT0}, s{sFT}, 192
    s_mul_i32 s{sT1}, s{sWV}, {16*2752}""")
    for q in range(3):
        k(f"""v_add_u32 v5, {64*q}, v1
        v_mul_u32_u24 v7, 5462, v5
        v_lshrrev_b32 v7, 16, v7
        v_mul_u32_u24 v8, 12, v7
        v_sub_u32 v8, v5, v8
        v_lshl_add_u32 v8, v8, 4, s{sT0}
        v_min_u32 v8, 2736, v8
        v_mul_u32_u24 v7, 2752, v7
        v_add3_u32 v{WD+q}, v7, v8, s{sT1}""")
        if q: k(f"v_subrev_u32 v{WD+q}, {1024*q}, v{WD+q}")
    if ROT1: k(f"s_add_u32 s{sKS}, s{sMT}, s{sFT}\ns_and_b32 s{sKS}, s{sKS}, 3\ns_lshl_b32 s{sKS}, s{sKS}, 1")
    else: k(f"s_mov_b32 s{sKS}, 0")
    k(f"""s_lshl_b32 s{sMX}, s{sWV}, 12
    s_mul_i32 s{sMG}, s{sWV}, 3072
    s_add_u32 s{sMG}, s{sMG}, {WG_O}
    s_lshl_b32 s{sOX}, s{sKS}, 7
    s_mul_i32 s{sOW}, s{sKS}, {64*2752}
    s_lshl_b32 s{sT0}, s{sP}, 2
    s_waitcnt lgkmcnt(0)""")
    k(f"s_load_dword s{sLD}, s[18:19], s{sT0}\ns_load_dword s{sDK}, s[20:21], s{sT0}")
    k.vm(f"buffer_load_dwordx4 v[10:13], v3, {srd(SX)}, 0 offen","row")
    k.vm(f"buffer_load_dwordx4 v[14:17], v3, {srd(SX)}, 0 offen offset:1024","row")
    for j in range(6): k.vm(f"global_load_short_d16_hi v{60+j}, v4, s[{6+2*j}:{7+2*j}]","par")
    def dma_list(ring,tag):
        L=[]
        if isinstance(ring,int):
            a=lambda s: f"s_add_u32 m0, s{s}, {ring}" if ring else f"s_mov_b32 m0, s{s}"
        else: a=lambda s: f"s_add_u32 m0, s{s}, {ring}"
        L.append(a(sMX))
        for q in range(4): L.append(lambda q=q: k.vm(f"buffer_load_dwordx4 v{XD+q}, {srd(SX)}, s{sOX} offen offset:{1024*q} lds",tag))
        L.append(a(sMG))
        for q in range(3): L.append(lambda q=q: k.vm(f"buffer_load_dwordx4 v{WD+q}, {srd(SG)}, s{sOW} offen offset:{1024*q} lds",tag))
        L.append(f"s_add_u32 m0, m0, {WU_D}")
        for q in range(3): L.append(lambda q=q: k.vm(f"buffer_load_dwordx4 v{WD+q}, {srd(SU)}, s{sOW} offen offset:{1024*q} lds",tag))
        return L
    nextk=[f"s_add_u32 s{sKS}, s{sKS}, 1",f"s_and_b32 s{sKS}, s{sKS}, 7",f"s_lshl_b32 s{sOX}, s{sKS}, 7",f"s_mul_i32 s{sOW}, s{sKS}, {64*2752}"]
    for f in dma_list(0,"d0"):
        if callable(f): f()
        else: k(f); k("s_nop 0")
    for f in nextk: k(f)
    k(f"""v_lshrrev_b32 v2, 4, v1
    v_bfe_u32 v3, v1, 2, 2
    v_and_b32 v4, 3, v1
    v_and_b32 v5, 31, v1
    v_lshrrev_b32 v6, 5, v1
    v_and_b32 v7, 15, v1
    s_and_b32 s{sT0}, s{sWV}, 1
    s_lshr_b32 s{sT1}, s{sWV}, 1""")
    k(f"""v_bfe_u32 v8, v1, 1, 3
    v_xor_b32 v8, v8, v6
    v_lshlrev_b32 v8, 4, v8
    v_lshl_add_u32 v8, v5, 7, v8
    s_lshl_b32 s{sT2}, s{sT0}, 13
    v_add_u32 v{XR}, s{sT2}, v8
    v_xor_b32 v{XR+1}, 32, v{XR}
    v_xor_b32 v{XR+2}, 64, v{XR}
    v_xor_b32 v{XR+3}, 0x60, v{XR}""")
    k(f"""v_and_b32 v8, 1, v2
    v_mul_u32_u24 v9, {WU_D}, v8
    v_lshl_add_u32 v18, v6, 3, v3
    v_mul_u32_u24 v18, 192, v18
    v_add_u32 v9, v9, v18
    v_lshl_add_u32 v9, v4, 3, v9
    s_mul_i32 s{sT2}, s{sT1}, 96
    s_add_u32 s{sT2}, s{sT2}, {WG_O}
    v_add_u32 v{WR}, s{sT2}, v9""")
    k(f"v_lshlrev_b32 v9, 4, v0\nv_add_u32 v{KCW}, {KC}, v9")
    k(f"""v_lshlrev_b32 v9, 3, v0
    v_sub_u32 v18, 2047, v9
    v_cvt_f32_i32 v18, v18
    v_sub_u32 v19, {2047+0x4280}, v9
    s_mov_b32 s{sT2}, {768+0x4280}
    s_mov_b32 s{sT3}, {PX-4*0x4280}""")
    for i in range(0,11,2):
        k(f"v_subrev_f32 v24, {float(i)}, v18" if i in(0,2,4) else f"v_subrev_f32 v24, {hex(f2b(float(i)))}, v18")
        k(f"v_subrev_f32 v25, 1.0, v24\nv_cvt_pk_bf16_f32 v24, v24, v25")
        for h in range(2):
            if i+h>10: break
            k(f"v_and_b32 v25, 0xffff, v24" if h==0 else "v_lshrrev_b32 v25, 16, v24")
            k(f"""v_subrev_u32 v26, {i+h}, v19
            v_min_i32 v26, {128+0x4280}, v26
            v_med3_i32 v25, v25, v26, s{sT2}
            v_lshl_add_u32 v{EX+i+h}, v25, 2, s{sT3}""")
    k(f"""s_mul_i32 s{sT2}, s{sT1}, {4*KCS}
    s_lshl_b32 s{sT3}, s{sT0}, 8
    s_sub_u32 s{sT2}, s{sT2}, s{sT3}
    s_add_u32 s{sT2}, s{sT2}, {KC+4056-3776}
    v_mul_u32_u24 v9, {KCS}, v4
    v_lshl_add_u32 v9, v2, 4, v9
    v_lshlrev_b32 v18, 3, v3
    v_sub_u32 v9, v9, v18
    v_add_u32 v{CA}, s{sT2}, v9
    s_mul_i32 s{sT2}, s{sT1}, {US}
    s_sub_u32 s{sT2}, s{sT2}, s{sT3}
    s_add_u32 s{sT2}, s{sT2}, {UO+256}
    v_lshlrev_b32 v9, 4, v2
    v_lshl_add_u32 v9, v7, 5, v9
    v_add_u32 v{CB}, s{sT2}, v9""")
    k(f"""s_lshl_b32 s{sT2}, s{sP}, 1
    s_add_u32 s{sT2}, s{sT2}, s{sT1}
    s_lshl_b32 s{sT2}, s{sT2}, 12
    s_lshl_b32 s{sT3}, s{sT0}, 11
    s_add_u32 s{sT2}, s{sT2}, s{sT3}
    s_add_u32 s{sT2}, s{sT2}, {YB}
    v_lshlrev_b32 v9, 9, v8
    v_lshl_add_u32 v9, v7, 5, v9
    v_lshl_add_u32 v9, v6, 4, v9
    v_add_u32 v{YS}, s{sT2}, v9""")
    k(f"""s_lshr_b32 s{sT2}, s{sI}, 3
    s_lshl_b32 s{sTB}, s{sXCD}, 2
    s_add_u32 s{sTB}, s{sTB}, s{sT2}
    s_and_b32 s{sDB}, s{sI}, 7""")
    k(f"""v_lshlrev_b32 v9, 2, v8
    v_xor_b32 v9, v9, v1
    v_and_b32 v9, 7, v9
    v_lshlrev_b32 v9, 4, v9
    v_lshrrev_b32 v18, 3, v1
    v_lshl_add_u32 v9, v18, 10, v9
    s_lshl_b32 s{sT2}, s{sDB}, 7
    v_add_u32 v{WDV}, s{sT2}, v9
    v_add_u32 v{WDV+1}, 7168, v{WDV}""")
    k(f"""v_lshl_add_u32 v9, v6, 2, v3
    v_lshlrev_b32 v9, 7, v9
    v_lshrrev_b32 v18, 1, v3
    v_xor_b32 v18, s{sT1}, v18
    v_lshl_add_u32 v9, v18, 6, v9
    v_lshl_add_u32 v9, v8, 5, v9
    v_lshl_add_u32 v9, v4, 3, v9
    s_mul_i32 s{sAW}, s{sWV}, {AWS}
    s_mul_i32 s{sCWB}, s{sWV}, {CWS}
    s_add_u32 s{sCWB}, s{sCWB}, {CW}
    v_add_u32 v{TA}, s{sAW}, v9
    v_xor_b32 v{TA+1}, 64, v{TA}
    v_add_u32 v{TC}, s{sCWB}, v9
    v_xor_b32 v{TC+1}, 64, v{TC}""")
    k(f"""s_lshl_b32 s{sT2}, s{sTB}, 1
    s_add_u32 s{sT2}, s{sT2}, s{sT0}
    s_mul_i32 s{sT3}, s{sT2}, 88064
    s_add_u32 s{sT3}, s{sT3}, {HB}
    v_lshl_add_u32 v{HL}, v1, 4, s{sT3}
    s_xor_b32 s{sT3}, s{sT2}, 1
    s_mul_i32 s{sT3}, s{sT3}, 88064
    s_add_u32 s{sT3}, s{sT3}, {HB}
    v_lshl_add_u32 v{HL+1}, v1, 4, s{sT3}""")
    k(f"""s_lshl_b32 s{sT3}, s{sT2}, 5
    v_add_u32 v9, s{sT3}, v5
    v_lshlrev_b32 v18, 3, v9
    v_add_u32 v{RS}, {STATS+4}, v18
    s_lshl_b32 s{sT3}, s{sDB}, 1
    s_add_u32 s{sT3}, s{sT3}, s{sT1}
    s_lshl_b32 s{sYQ}, s{sT3}, 6
    v_lshlrev_b32 v9, 10, v9
    v_lshl_add_u32 v9, v6, 4, v9
    v_add_u32 v{XO}, s{sYQ}, v9
    s_lshl_b32 s{sYQ}, s{sT3}, 17
    s_lshl_b32 s{sT2}, s{sT2}, 6
    s_add_u32 s{sT2}, s{sT2}, s{sYQ}
    s_add_u32 s{sT2}, s{sT2}, {YB}
    v_lshrrev_b32 v9, 2, v1
    v_lshlrev_b32 v9, 12, v9
    v_lshl_add_u32 v9, v4, 4, v9
    v_add_u32 v{YL}, s{sT2}, v9
    s_mov_b32 s{sYQ}, 0x10000
    s_lshl_b32 s{sT2}, s{sWV}, 11
    s_add_u32 s{sT2}, s{sT2}, {KC}
    v_lshl_add_u32 v{YW}, v1, 4, s{sT2}
    v_lshl_add_u32 v9, v6, 2, v3
    v_lshlrev_b32 v9, 6, v9
    v_lshl_add_u32 v9, v8, 5, v9
    v_lshl_add_u32 v9, v4, 3, v9
    v_add_u32 v{YR}, s{sT2}, v9
    s_lshl_b32 s{sT3}, s{sT3}, 11
    s_add_u32 s{sT3}, s{sT3}, {FY}
    v_lshl_add_u32 v{FYP}, v7, 7, s{sT3}
    s_lshr_b32 s{sT2}, s{sTB}, 1
    s_lshl_b32 s{sT2}, s{sT2}, 11
    s_add_u32 s{sT2}, s{sT2}, {FH}
    v_min_u32 v9, 14, v7
    v_lshl_add_u32 v{FHP}, v9, 7, s{sT2}
    v_lshlrev_b32 v{EXW}, 4, v1
    v_lshlrev_b32 v{LNP}, 2, v1""")
    k(f"""s_mul_i32 s{sT2}, s{sFT}, 6
    s_mul_i32 s{sT3}, s{sT1}, 3
    s_add_u32 s{sT2}, s{sT2}, s{sT3}
    s_lshl_b32 s{sT3}, s{sT2}, 7
    s_add_u32 s{sT3}, s{sT3}, {CS}
    v_lshl_add_u32 v9, v1, 2, s{sT3}
    v_lshl_or_b32 v{CSA}, v6, 31, v9""")
    for j in range(3):
        k(f"""s_add_u32 s{sT3}, s{sT2}, {j}
        s_cmp_lt_u32 s{sT3}, 86
        s_cselect_b32 s{sH0}, 0, {hex(OOB)}
        s_lshl_b32 s{sT3}, s{sT3}, 10
        s_or_b32 s{sT3}, s{sT3}, s{sH0}
        v_lshl_add_u32 v{HS+j}, v1, 4, s{sT3}""")
    k(f"""s_lshl_b32 s{sT2}, s{sMT}, 1
    s_add_u32 s{sT2}, s{sT2}, s{sT0}
    s_lshl_b32 s{sT3}, s{sT2}, 9
    s_add_u32 s{sT3}, s{sT3}, {STATS}
    v_lshl_add_u32 v{ST}, v5, 3, s{sT3}
    s_mul_i32 s{sH0}, s{sT2}, {2*88064}
    s_add_u32 s{sH0}, s{sH0}, {HB}
    s_add_u32 s{sH1}, s{sH0}, 88064""")
    k(f"""v_lshrrev_b32 v9, 1, v0
    v_and_b32 v18, 1, v0
    s_lshl_b32 s{sT2}, s{sP}, 5
    v_lshl_add_u32 v19, v18, 4, s{sT2}
    v_lshl_add_u32 v{UL}, v9, 13, v19
    v_mul_u32_u24 v18, {US}, v18
    v_lshl_add_u32 v18, v9, 4, v18
    v_add_u32 v{UW}, {UO+480}, v18
    v_min_u32 v9, 29, v5
    v_mul_u32_u24 v18, {US}, v6
    v_lshl_add_u32 v18, v9, 4, v18
    v_add_u32 v{UZ}, {UO}, v18
    s_mov_b32 s{sUQ}, 0x100000""")
    k(f"""v_cmp_eq_u32 vcc, 0, v1
    v_mov_b32 v9, {hex(OOB)}
    s_lshl_b32 s{sT2}, s{sMT}, 4
    s_add_u32 s{sT2}, s{sT2}, s{sFT}
    s_lshl_b32 s{sT2}, s{sT2}, 7
    s_add_u32 s{sT2}, s{sT2}, {FH}
    s_cmp_ge_u32 s{sI}, 30
    s_cselect_b32 s{sT2}, {hex(OOB)}, s{sT2}
    s_lshl_b32 s{sT3}, s{sP}, 7
    s_add_u32 s{sT3}, s{sT3}, {FY}
    v_mov_b32 v18, s{sT2}
    v_mov_b32 v19, s{sT3}
    v_cndmask_b32 v24, v19, v18, vcc
    v_add_u32 v18, s{sWV}, v18
    v_add_u32 v19, s{sWV}, v19
    v_cndmask_b32 v{FHS}, v9, v18, vcc
    v_cndmask_b32 v{FYS}, v9, v19, vcc
    v_cmp_gt_u32 vcc, 2, v0
    v_mov_b32 v18, s2
    v_mov_b32 v{ONEB}, 1
    v_cndmask_b32 v58, v9, v24, vcc
    v_cmp_eq_u32 vcc, 0, v0
    s_mov_b32 s{sONE}, 0x01010101
    s_mov_b32 s{sC1}, {SS}
    v_cndmask_b32 v{LNF}, v9, v18, vcc
    s_mov_b32 s{sC2}, {-2*SS}""")
    k(f"""s_mul_i32 s{sT2}, s{sWV}, 22
    s_cmp_eq_u32 s{sWV}, 3
    s_cselect_b32 s{sT2}, 65, s{sT2}
    s_sub_u32 s{sT3}, 22, s{sT1}""")
    if ROT2:
        k(f"""s_mul_i32 s{sCNT}, s{sDB}, 3
        s_lshr_b32 s{sDL}, s{sI}, 3
        s_mul_i32 s{sDL}, s{sDL}, 5
        s_add_u32 s{sCNT}, s{sCNT}, s{sDL}
        v_add_u32 v9, s{sCNT}, v1""")
    else: k("v_mov_b32 v9, v1")
    for _ in range(3):
        k(f"v_subrev_u32 v18, s{sT3}, v9\nv_min_u32 v9, v9, v18")
    k(f"v_add_u32 v9, s{sT2}, v9\nv_lshlrev_b32 v59, 14, v9")
    k(f"""s_mul_i32 s{sT2}, s{sWV}, {TABW}
    s_add_u32 s{sT2}, s{sT2}, {TAB}
    v_lshl_add_u32 v56, v1, 2, s{sT2}
    v_mul_u32_u24 v9, 288, v7
    v_lshl_add_u32 v9, v2, 4, v9
    v_add_u32 v57, s{sT2}, v9
    v_mul_u32_u24 v9, 320, v3
    v_lshl_add_u32 v9, v2, 5, v9
    v_lshl_add_u32 v9, v4, 3, v9
    v_add_u32 v54, s{sT2}, v9
    s_mul_i32 s{sT2}, s{sWV}, 640
    s_add_u32 s{sT2}, s{sT2}, {TAB}
    v_mul_u32_u24 v9, {TABW}, v2
    v_lshl_add_u32 v9, v7, 4, v9
    v_add_u32 v55, s{sT2}, v9
    s_lshl_b32 s{sT2}, s{sRB}, 6
    s_lshl_b32 s{sT3}, s{sWV}, 4
    s_add_u32 s{sT2}, s{sT2}, s{sT3}
    s_add_u32 s{sT2}, s{sT2}, {STATS}
    v_lshl_add_u32 v9, v6, 3, s{sT2}
    v_cmp_eq_u32 vcc, 0, v5
    v_mov_b32 v18, {hex(OOB)}
    s_lshl_b32 s{sT2}, s{sRB}, 13
    s_lshl_b32 s{sT3}, s{sWV}, 11
    v_cndmask_b32 v53, v18, v9, vcc
    s_add_u32 s{sT2}, s{sT2}, s{sT3}
    v_lshl_add_u32 v52, v1, 4, s{sT2}""")
    k(f"""s_lshl_b32 s{sT3}, s{sWV}, 3
    s_lshr_b32 s{sT2}, {hex(sum(o<<(8*j) for j,o in enumerate(PO)))}, s{sT3}
    s_and_b32 s{sT2}, s{sT2}, 0xff
    s_lshl_b32 s{sT2}, s{sT2}, 8
    s_add_u32 s{sT2}, s{sT2}, {PX}
    v_mov_b32 v180, s{sT2}
    v_lshlrev_b32 v9, 5, v7
    v_lshl_add_u32 v9, v8, 4, v9
    v_lshl_add_u32 v9, v6, 9, v9
    v_add_u32 v176, s{sT2}, v9
    v_sub_u32 v9, 4, v6
    v_lshlrev_b32 v9, v9, v7
    v_lshl_add_u32 v9, v2, 8, v9
    s_add_u32 s{sT3}, s{sT2}, 1024
    v_add_u32 v177, s{sT3}, v9
    v_mul_u32_u24 v9, 120, v6
    v_add3_u32 v178, v177, v9, 8
    v_lshlrev_b32 v9, 2, v7
    v_lshl_add_u32 v9, v2, 8, v9
    s_add_u32 s{sT3}, s{sT2}, 2048
    v_add_u32 v179, s{sT3}, v9
    s_waitcnt lgkmcnt(0)
    s_lshl_b32 s{sT1}, s{sT1}, 4
    s_lshr_b32 s{sLD}, s{sLD}, s{sT1}
    s_lshl_b32 s{sLD}, s{sLD}, 16
    s_lshr_b32 s{sDK}, s{sDK}, s{sT1}
    s_lshl_b32 s{sDK}, s{sDK}, 16
    s_cmp_eq_u32 s{sT0}, 0
    s_cselect_b32 s{sDK}, s{sDK}, 0
    v_cmp_eq_u32 vcc, 0, v1
    v_mov_b32 v9, s{sDK}
    v_mov_b32 v165, 0
    v_cndmask_b32 v164, 0, v9, vcc
    v_mov_b32 v166, 0
    v_mov_b32 v167, 0""")
    k.dq=[]
    for j in range(22): k(f"v_readlane_b32 s{4+j}, v59, {j}")
    k.stamp('addr')
    k.w(v="row")
    k.stamp('row')
    for j in range(8):
        k(f"v_lshlrev_b32 v{20+2*j}, 16, v{10+j}\nv_and_b32 v{21+2*j}, s{sMSK}, v{10+j}")
    def red2():
        k("""s_nop 1
        v_permlane32_swap_b32 v40, v41
        v_add_f32 v40, v40, v41
        v_mov_b32 v41, v40
        s_nop 1
        v_permlane16_swap_b32 v40, v41
        v_add_f32 v40, v40, v41""")
        for r in(8,4,2,1): k(f"s_nop 1\nv_add_f32_dpp v40, v40, v40 row_ror:{r} row_mask:0xf bank_mask:0xf")
        k("v_mul_f32 v40, 0x3b000000, v40")
    for b,d in((20,40),(28,41)):
        k(f"""v_pk_add_f32 v[36:37], v[{b}:{b+1}], v[{b+2}:{b+3}]
        v_pk_add_f32 v[38:39], v[{b+4}:{b+5}], v[{b+6}:{b+7}]
        v_pk_add_f32 v[36:37], v[36:37], v[38:39]
        v_add_f32 v{d}, v36, v37""")
    red2()
    k("""v_mov_b32 v42, v40
    v_mov_b32 v43, v40
    v_cvt_pk_bf16_f32 v50, -v40, -v40
    s_nop 0
    v_permlane32_swap_b32 v42, v43""")
    for h,(b,d) in enumerate(((20,40),(28,41))):
        for j in range(4):
            k(f"v_pk_add_f32 v[38:39], v[{b+2*j}:{b+2*j+1}], v[42:43] op_sel:[0,{h}] op_sel_hi:[1,{h}] neg_lo:[0,1] neg_hi:[0,1]")
            k("v_pk_mul_f32 v[36:37], v[38:39], v[38:39]" if j==0 else "v_pk_fma_f32 v[36:37], v[38:39], v[38:39], v[36:37]")
        k(f"v_add_f32 v{d}, v36, v37")
    red2()
    k(f"""v_cvt_pk_bf16_f32 v40, v40, v40
    v_and_b32 v40, s{sMSK}, v40
    v_add_f32 v40, 0x3727c5ac, v40
    v_cvt_pk_bf16_f32 v40, v40, v40
    v_and_b32 v40, s{sMSK}, v40
    v_sqrt_f32 v40, v40
    v_and_b32 v41, s{sMSK}, v50
    v_cvt_pk_bf16_f32 v40, v40, v40
    v_and_b32 v40, s{sMSK}, v40
    v_rcp_f32 v46, v40
    s_nop 0
    v_mul_f32 v47, v41, v46
    v_mul_f32 v51, v46, v46
    v_mov_b32 v48, v46
    v_mov_b32 v49, v47
    s_nop 0
    v_permlane32_swap_b32 v46, v48
    v_permlane32_swap_b32 v47, v49""")
    k.vm(f"buffer_store_dwordx2 v[50:51], v53, {srd(SW)}, 0 offen sc1","lnst")
    for h,b in enumerate((20,28)):
        P=f"v[{46+2*h}:{47+2*h}]"
        for j in range(4):
            k(f"v_pk_fma_f32 v[{b+2*j}:{b+2*j+1}], v[{b+2*j}:{b+2*j+1}], {P}, {P} op_sel:[0,0,1] op_sel_hi:[1,0,1]")
            k(f"v_cvt_pk_bf16_f32 v{10+4*h+j}, v{b+2*j}, v{b+2*j+1}")
        k.ds(f"ds_write_b128 v55, v[{10+4*h}:{13+4*h}] offset:{320*h}")
    k.w(d=0); k("s_barrier")
    for q in range(2):
        for h in range(2): k.ds(f"ds_read_b64_tr_b16 v[{10+4*q+2*h}:{11+4*q+2*h}], v54 offset:{128*q+1280*h}",f"lt{q}")
    k(f"""v_mov_b32 v66, s{sLD}
    v_mul_f32 v66, 0x3fb8aa3b, v66
    v_exp_f32 v66, v66
    v_mov_b32 v18, 0
    v_cvt_pk_bf16_f32 v66, v66, v66
    v_and_b32 v66, s{sMSK}, v66""")
    for q in range(2):
        k.w(d=f"lt{q}")
        k.vm(f"buffer_store_dwordx4 v[{10+4*q}:{13+4*q}], v52, {srd(SW)}, 0 offen offset:{1024*q} sc1","lnst")
    k.vm(f"buffer_store_dword v18, v58, {srd(SW)}, 0 offen sc1","lnst")
    L=k.lab()
    k(f"""s_cmp_lt_u32 s{sI}, 30
    s_cbranch_scc1 {L}
    s_mul_i32 s{sT2}, s{sFT}, 768
    s_add_u32 s{sT2}, s{sT2}, {CS}
    s_cmp_eq_u32 s{sWV}, 3
    s_cselect_b32 s{sT2}, {hex(OOB)}, s{sT2}
    v_lshl_add_u32 v{CSA}, v0, 2, s{sT2}
    v_mov_b32 v19, -1
    buffer_store_dword v19, v{CSA}, {srd(SW)}, 0 offen sc1
    {L}:""")
    k.stamp('ln')
    k.w(v="par")
    k("""v_pk_mul_f32 v[60:61], v[60:61], v[66:67] op_sel_hi:[1,0]
    v_pk_mul_f32 v[62:63], v[62:63], v[66:67] op_sel_hi:[1,0]
    v_mul_f32 v60, 0x3fb8aa3b, v60
    v_mul_f32 v61, 0.15915494, v61""")
    Q={1:68,8:70,128:72}
    for e,d in Q.items():
        if e==1: k(f"v_exp_f32 v66, v60\nv_fract_f32 v67, v61")
        else: k(f"v_mul_f32 v66, {hex(f2b(float(e)))}, v60\nv_mul_f32 v67, {hex(f2b(float(e)))}, v61\nv_exp_f32 v66, v66\nv_fract_f32 v67, v67")
        k(f"v_cos_f32 v{d}, v67\nv_sin_f32 v{d+1}, v67\ns_nop 0\nv_pk_mul_f32 v[{d}:{d+1}], v[{d}:{d+1}], v[66:67] op_sel_hi:[1,0]")
    pr=lambda a:f"v[{a}:{a+1}]"
    side=dma_list(SS,"d1")+nextk
    cnt=[0]
    def tick():
        cnt[0]+=1
        if cnt[0]%3==0 and side:
            f=side.pop(0); f() if callable(f) else k(f)
    def cmul(d,a,b):
        k(f"v_pk_mul_f32 v[66:67], {pr(a)}, {pr(b)} op_sel:[0,0] op_sel_hi:[0,1]")
        k(f"v_pk_fma_f32 {pr(d)}, {pr(a)}, {pr(b)}, v[66:67] op_sel:[1,1,0] op_sel_hi:[1,0,1] neg_lo:[1,0,0]")
    tp=[0]
    def put(e,a,conj=False):
        t=96+(tp[0]&3); tp[0]+=1
        k(f"v_cvt_pk_bf16_f32 v{t}, v{a}, {'-' if conj else ''}v{a+1}")
        k.ds(f"ds_write_b32 v56, v{t} offset:{288*e}"); tick()
    cmul(74,64,62); put(0,74,True)
    for b in range(1,16): cmul(74,74,70); put(b,74,True)
    k(f"v_mov_b32 v95, 0x3f80"); k.ds(f"ds_write_b32 v56, v95 offset:{288*16}")
    qp={1:68}
    put(17,68)
    for a in range(2,8):
        qp[a]=76+2*(a-2); cmul(qp[a],qp[a-1],68); put(16+a,qp[a])
    put(24,72)
    for a in range(1,8): cmul(88,72,qp[a]); put(24+a,88)
    cur=90
    for a in range(2,17):
        cmul(cur,72 if a==2 else cur,72)
        if a in(2,3):
            e=32+4*(a-2); put(e,cur)
            for j,x in enumerate((2,4,6)): cmul(88,cur,qp[x]); put(e+1+j,88)
        elif a<8:
            e=40+2*(a-4); put(e,cur); cmul(88,cur,qp[4]); put(e+1,88)
        else: put(48+a-8,cur)
    while side:
        f=side.pop(0); f() if callable(f) else (k(f),k("s_nop 0"))
    for st in range(4):
        for T in range(4):
            k.ds(f"ds_read_b128 {vr(100+16*st+4*T,4)}, v57 offset:{T*16*288+64*st}",f"kf{st}")
    for st in range(4):
        k.w(d=f"kf{st}")
        for T in range(3):
            c=vr(164+4*T,4) if (st or T==0) else "0"
            k(f"v_mfma_f32_16x16x32_bf16 {vr(164+4*T,4)}, {vr(100+16*st+4+4*T,4)}, {vr(100+16*st,4)}, {c}")
    k("s_nop 5")
    k.ds("ds_write_b32 v180, v18 offset:3072")
    k.ds("ds_write_b128 v176, v[164:167]")
    k.ds("ds_write_b64 v177, v[168:169]"); k.ds("ds_write_b64 v178, v[170:171]")
    k.ds("ds_write2_b32 v179, v172, v173 offset0:0 offset1:16"); k.ds("ds_write2_b32 v179, v174, v175 offset0:32 offset1:48")
    k(f"""v_and_b32 v9, 7, v1
    v_mul_u32_u24 v9, {KCS}, v9
    v_and_b32 v8, 8, v1
    v_lshl_add_u32 v9, v8, 1, v9
    v_add_u32 v9, {KC+4096}, v9""")
    k.w(d=0); k("s_barrier")
    k.stamp('kgen')
    for c in range(2):
        for i in range(11): k.ds(f"ds_read2st64_b32 {vr(100+24*c+2*i,2)}, v{EX+i} offset0:{PO[2*c]} offset1:{PO[2*c+1]}",f"ex{c}_{i}")
    k("v_mov_b32 v20, 0\nv_mov_b32 v21, 0\nv_mov_b32 v22, 0\nv_mov_b32 v23, 0")
    k.ds("ds_write_b128 v9, v[20:23]")
    for c in range(2):
        for i in range(11):
            if i in(0,4,8): k.w(d=f"ex{c}_{min(i+3,10)}")
            k(f"v_add_f32 v{100+24*c+2*i}, v{100+24*c+2*i}, v{101+24*c+2*i}")
        for s in range(4):
            t=24+16*c+4*s
            for j in range(4):
                i=100+24*c+2*(3-s+2*j)
                k(f"v_cvt_pk_bf16_f32 v{t+j}, v{i}, v{i+2}")
            k.ds(f"ds_write_b128 v{KCW}, {vr(t,4)} offset:{(4*c+s)*KCS}")
    k.stamp('exp')
    k.w(v="lnst",d=0); k("s_barrier")
    k.vm(f"buffer_store_byte v{ONEB}, v{LNF}, {srd(SB)}, 0 offen sc1","lnf")
    k.stamp('barB')
    CSL=k.lab("CS"); MRG=k.lab("MRG")
    k(f"s_cmp_ge_u32 s{sI}, 30\ns_cbranch_scc1 {CSL}")
    ACC=16; FA=(112,132); FB=(124,144); EA=152; EB=164; UR=172; PL=180
    def reads(st,f):
        L=[]
        for e in range(2): L.append(lambda e=e: k.ds(f"ds_read_b128 {vr(FB[f]+4*e,4)}, v{XR+st} offset:{4096*e}","fr"))
        for u in range(3):
            for h in range(2): L.append(lambda u=u,h=h: k.ds(f"ds_read_b64_tr_b16 {vr(FA[f]+4*u+2*h,2)}, v{WR} offset:{3072*st+768*h+32*u}","fr"))
        return [L[0],L[2],L[3],L[1]]+L[4:]
    def mf(f,zero=False):
        return [f"v_mfma_f32_32x32x16_bf16 {vr(ACC+16*(2*u+e),16)}, {vr(FA[f]+4*u,4)}, {vr(FB[f]+4*e,4)}, {'0' if zero else vr(ACC+16*(2*u+e),16)}" for u in range(3) for e in range(2)]
    def mix(a,b):
        o=[];a=list(a);b=list(b)
        while a or b:
            if a:o.append(a.pop(0))
            if a:o.append(a.pop(0))
            if b:o.append(b.pop(0))
        return o
    def adv(delta):
        return [f"v_add_u32 v{r}, {delta}, v{r}" for r in(XR,WR,XR+1,XR+2,XR+3)]
    for f in reads(0,0): f()
    k(f"s_mov_b32 s{sRING}, {2*SS}\ns_mov_b32 s{sCNT}, 0")
    LOOP=k.lab("G1L"); MID=k.lab("G1M")
    D=dma_list(f"s{sRING}","dl")
    k.w(d=0); weave(k,mf(0,True),mix(reads(1,1),D[0:5]),3)
    k(f"s_branch {MID}\n{LOOP}:")
    D=dma_list(f"s{sRING}","dl")
    k.w(d=0); weave(k,mf(0),mix(reads(1,1),D[0:5]),3)
    k(f"{MID}:")
    k.w(d=0); weave(k,mf(1),mix(reads(2,0),D[5:9]),3)
    k.w(d=0); weave(k,mf(0),mix(reads(3,1),D[9:13])+[f"s_cmp_eq_u32 s{sRING}, s{sC1}",f"s_cselect_b32 s{sDL}, s{sC2}, s{sC1}"],3)
    L=k.lab()
    def bar0():
        k(f"s_cmp_eq_u32 s{sCNT}, 0\ns_cbranch_scc1 {L}\ns_waitcnt vmcnt(10)\n{L}:\ns_waitcnt vmcnt(11)\ns_barrier")
    A=adv(f"s{sDL}")
    tailf=nextk+[f"s_add_u32 s{sRING}, s{sRING}, s{sC1}",f"s_cmp_eq_u32 s{sRING}, {3*SS}",f"s_cselect_b32 s{sRING}, 0, s{sRING}",f"s_add_u32 s{sCNT}, s{sCNT}, 1",f"s_cmp_lt_u32 s{sCNT}, 5"]
    k.w(d=0); weave(k,mf(1),[bar0]+A[:2]+reads(0,0)+A[2:]+tailf,[1,5,5,5,5,5])
    k(f"s_cbranch_scc1 {LOOP}")
    k.vq=["dl"]*10
    k.stamp('g1loop')
    def poll(tag,reg,addr,sr,exp,extra=""):
        ok=k.lab("OK"); rt=k.lab("RT")
        k.w(v=tag)
        k(f"v_cmp_ne_u32 vcc, {exp}, v{reg}\ns_cbranch_vccnz {rt}\n{ok}:")
        lp=k.lab("RL")
        k.tail.append(f"""{rt}:
        s_movk_i32 s{sT3}, 4000
        {lp}:
        buffer_load_dword v{reg}, v{addr}, {srd(sr)}, 0 offen sc1
        s_waitcnt vmcnt(0)
        v_cmp_ne_u32 vcc, {exp}, v{reg}
        s_cbranch_vccz {ok}
        s_sub_u32 s{sT3}, s{sT3}, 1
        s_cmp_lg_u32 s{sT3}, 0
        s_cbranch_scc1 {lp}
        s_branch {ok}""")
    lnpoll=lambda: k.vm(f"buffer_load_dword v{PL}, v{LNP}, {srd(SB)}, 0 offen sc1","lnp")
    def uloads():
        return [lambda q=q: k.vm(f"buffer_load_dwordx4 {vr(UR+4*q,4)}, v{UL}, {srd(SW)}, {'s%d'%sUQ if q else 0} offen sc1","u") for q in range(2)]
    def wd_loc(j):
        if j<3: return ('C',2048*j)
        if j<8: return ('A',2048*(j-3))
        if j<13: return ('A',BW+2048*(j-8))
        if j<16: return ('C',2048*(j-13))
        if j<21: return ('A',2048*(j-16))
        return ('A',BW)
    def wd_dma(j):
        r,o=wd_loc(j); b=sCWB if r=='C' else sAW
        return [f"s_add_u32 m0, s{b}, {o}" if o else f"s_mov_b32 m0, s{b}"]+[lambda h=h: k.vm(f"buffer_load_dwordx4 v{WDV+h}, {srd(SD)}, s{4+j} offen offset:{1024*h} lds",f"wd{j}") for h in range(2)]
    def wd_tr(j):
        r,o=wd_loc(j); b=TC if r=='C' else TA
        return [lambda e=e,h=h: k.ds(f"ds_read_b64_tr_b16 {ar(8*j+4*e+2*h,2)}, v{b+e} offset:{o+1024*h}",f"wt{j}") for e in range(2) for h in range(2)]
    def uwrite():
        L=[lambda: k.w(v="u")]
        L+=[lambda q=q: k.ds(f"ds_write_b128 v{UW}, {vr(UR+4*q,4)} offset:{2048*q}","uw") for q in range(2)]
        return L
    D=dma_list(SS,"d7")
    k.w(d=0); weave(k,mf(0),[lnpoll]+mix(reads(1,1),D[0:5]),3)
    k.w(d=0); weave(k,mf(1),mix(reads(2,0),D[5:9]),3)
    k.w(d=0); weave(k,mf(0),mix(reads(3,1),D[9:13]),3)
    A=adv(-2*SS)
    k.w(d=0); weave(k,mf(1),[lambda:(k.w(v="dl"),k("s_barrier"))]+A[:2]+reads(0,0)+A[2:]+[lambda: poll("lnp",PL,LNP,SB,f"s{sONE}")]+uloads(),[1,5,5,3,1,5])
    zer=[f"v_mov_b32 v{r}, 0" for r in list(range(EA,EA+12))+list(range(EB,EB+8)) if (r-EA)%4]
    k.w(d=0); weave(k,mf(0),reads(1,1)+zer,4)
    sl=[lambda e=e: k.vm(f"buffer_load_dword v{EB+4*e}, v{ST}, {srd(SW)}, 0 offen offset:{256*e} sc1","st") for e in range(2)]
    cl=[lambda j=j: k.vm(f"buffer_load_dword v{EA+4*j}, v{CSA}, {srd(SW)}, 0 offen offset:{128*j} sc1","cs") for j in range(3)]
    k.w(d=0); weave(k,mf(1),reads(2,0)+sl+cl,3)
    zpad=[lambda: k.ds(f"ds_write_b128 v{UZ}, v[184:187]","uw")]
    k("v_mov_b32 v184, 0\nv_mov_b32 v185, 0\nv_mov_b32 v186, 0\nv_mov_b32 v187, 0")
    k.w(d=0); weave(k,mf(0),mix(reads(3,1),wd_dma(0)+wd_dma(1))+zpad,3)
    A=adv(SS)
    k.w(d=0); weave(k,mf(1),[lambda:(k.w(v="d7"),k("s_barrier"))]+A[:2]+reads(0,0)+A[2:]+wd_dma(2),[1,5,5,5,5,5])
    k.w(d=0); weave(k,mf(0),mix(reads(1,1),wd_dma(3)+wd_dma(4)),3)
    k.w(d=0); weave(k,mf(1),mix(reads(2,0),wd_dma(5)+wd_dma(6)),3)
    k.w(d=0); weave(k,mf(0),mix(reads(3,1),wd_dma(7))+uwrite(),3)
    CS0A,CS0B=('a',176),('a',208); CS1A,CS1B=('v',16),('v',48); CACC=112
    def rg(t,o,n): return (ar if t[0]=='a' else vr)(t[1]+o,n)
    def conv_reads(rho):
        SA,SBb=((CS0A,CS0B),(CS1A,CS1B))[rho&1]
        L=[]
        for i in range(8):
            L.append(lambda i=i: k.ds(f"ds_read_b128 {rg(SBb,4*i,4)}, v{CB} offset:{192-64*rho+512*i}",f"cv{rho}"))
            for h in range(2): L.append(lambda i=i,h=h: k.ds(f"ds_read_b64 {rg(SA,4*i+2*h,2)}, v{CA} offset:{3776-512*i-64*rho+8*h}",f"cv{rho}"))
        return L
    def cscheck():
        k.w(v="cs")
        ok=k.lab("OK"); rt=k.lab("RT"); lp=k.lab("RL")
        k(f"v_max3_u32 v{PL}, v{EA}, v{EA+4}, v{EA+8}\nv_cmp_eq_u32 vcc, -1, v{PL}\ns_cbranch_vccnz {rt}\n{ok}:")
        k.tail.append(f"""{rt}:
        s_movk_i32 s{sT3}, 4000
        {lp}:
        buffer_load_dword v{EA}, v{CSA}, {srd(SW)}, 0 offen sc1
        buffer_load_dword v{EA+4}, v{CSA}, {srd(SW)}, 0 offen offset:128 sc1
        buffer_load_dword v{EA+8}, v{CSA}, {srd(SW)}, 0 offen offset:256 sc1
        s_waitcnt vmcnt(0)
        v_max3_u32 v{PL}, v{EA}, v{EA+4}, v{EA+8}
        v_cmp_eq_u32 vcc, -1, v{PL}
        s_cbranch_vccz {ok}
        s_sub_u32 s{sT3}, s{sT3}, 1
        s_cmp_lg_u32 s{sT3}, 0
        s_cbranch_scc1 {lp}
        s_branch {ok}""")
    CR0=conv_reads(0)
    k.w(d=0); weave(k,mf(1),["s_barrier"]+CR0[:16]+[cscheck],[1,4,4,4,4,1])
    k.stamp('g1s7')
    mx=[f"v_mfma_f32_32x32x16_bf16 {vr(ACC+16*(2*u+e),16)}, {vr(EA+4*u,4)}, {vr(EB+4*e,4)}, {vr(ACC+16*(2*u+e),16)}" for u in range(3) for e in range(2)]
    def hepi(b):
        a=ACC+16*b; u,e=b>>1,b&1
        L=[f"v_mul_f32 v{a+r}, v{a+r}, v{a+8+r}" for r in range(8)]
        L+=[f"v_cvt_pk_bf16_f32 v{a+8+j}, v{a+2*j}, v{a+2*j+1}" for j in range(4)]
        L.append(lambda: k.vm(f"buffer_store_dwordx4 {vr(a+8,4)}, v{HS+u}, {srd(SW)}, s{sH0+e} offen sc1","h"))
        return L
    weave(k,mx,CR0[16:]+["s_nop 1"]+hepi(0)+hepi(1),[4,4,1,6,6,6])
    for b in range(2,6):
        for f in hepi(b): f() if callable(f) else k(f)
    vq_main=list(k.vq); dq_main=list(k.dq)
    k(f"{MRG}:")
    k.stamp('hepi')
    def conv_mf(rho):
        SA,SBb=((CS0A,CS0B),(CS1A,CS1B))[rho&1]
        L=[]
        for s in range(8):
            for i in range(s+1):
                I=s
                c="0" if (rho==0 and i==0) else vr(CACC+4*I,4)
                L.append(f"v_mfma_f32_16x16x32_bf16 {vr(CACC+4*I,4)}, {rg(SA,4*i,4)}, {rg(SBb,4*(I-i),4)}, {c}")
        return L
    def trs(js):
        L=[]
        for j in js: L+=[lambda j=j: k.w(v=f"wd{j}")]+wd_tr(j)
        return L
    def redma(jn,jold):
        D=wd_dma(jn); return [D[0],lambda: k.w(d=f"wt{jold}")]+D[1:]
    hflag=[lambda: k.w(v="h"), lambda: k.vm(f"buffer_store_byte v{ONEB}, v{FHS}, {srd(SW)}, 0 offen sc1","hf")]
    k.w(d="cv0"); weave(k,conv_mf(0),mix(conv_reads(1),wd_dma(8)+wd_dma(9)+wd_dma(10)+wd_dma(11))+wd_dma(12)+trs([0,1,2])+redma(13,0)+redma(14,1)+redma(15,2),2)
    k.w(d="cv1"); weave(k,conv_mf(1),conv_reads(2)+hflag+trs([3,4,5,6,7])+redma(16,3)+redma(17,4)+redma(18,5)+redma(19,6),2)
    k.w(d="cv2"); weave(k,conv_mf(2),conv_reads(3)+redma(20,7)+trs([8,9,10])+redma(21,8)+[lambda: k.vm(f"buffer_load_dword v{PL-80}, v{FHP}, {srd(SW)}, 0 offen sc1","hp")],2)
    HR=144
    def hload(j):
        r=HR+8*(j%(DEPTH+1))
        return [f"s_lshr_b32 s{sT0}, s{4+j}, 4"]+[lambda e=e: k.vm(f"buffer_load_dwordx4 {vr(r+4*e,4)}, v{HL+e}, {srd(SW)}, s{sT0} offen sc1",f"h{j}") for e in range(2)]
    pre=[lambda: poll("hp",PL-80,FHP,SW,f"s{sONE}")]
    for j in range(DEPTH): pre+=hload(j)
    k.w(d="cv3"); weave(k,conv_mf(3),pre,2,start=20)
    k.stamp('conv')
    H1=k.lab("H1"); HE=k.lab("HE")
    k(f"""s_add_u32 s{sT1}, s{sAW}, {BW+2048}
    v_add_u32 v96, s{sT1}, v{EXW}
    s_xor_b32 s{sT2}, s{sWV}, 1
    s_mul_i32 s{sT2}, s{sT2}, {AWS}
    s_add_u32 s{sT2}, s{sT2}, {BW+2048}
    v_add_u32 v97, s{sT2}, v{EXW}
    s_bitcmp1_b32 s{sWV}, 0
    s_cbranch_scc1 {H1}""")
    for hh in range(2):
        snd=CACC+16*(1-hh); own=CACC+16*hh
        if hh==0: k("s_nop 1")
        for j in range(4): k(f"ds_write_b128 v96, {vr(snd+4*j,4)} offset:{1024*j}")
        k("s_waitcnt lgkmcnt(0)\ns_barrier")
        for j in range(4): k(f"ds_read_b128 {vr(80+4*j,4)}, v97 offset:{1024*j}")
        for j in range(4):
            k(f"s_waitcnt lgkmcnt({3-j})")
            k(f"v_pk_add_f32 {vr(80+4*j,2)}, {vr(80+4*j,2)}, {vr(own+4*j,2)}\nv_pk_add_f32 {vr(82+4*j,2)}, {vr(82+4*j,2)}, {vr(own+4*j+2,2)}")
        if hh==0: k(f"s_branch {HE}\n{H1}:")
    k(f"{HE}:"); k.dq=[]
    for j in range(4): k(f"v_cvt_pk_bf16_f32 v{112+2*j}, v{80+4*j}, v{81+4*j}\nv_cvt_pk_bf16_f32 v{113+2*j}, v{82+4*j}, v{83+4*j}")
    k("s_nop 0")
    for j in range(2):
        k(f"v_permlane16_swap_b32 v{112+4*j}, v{114+4*j}\nv_permlane16_swap_b32 v{113+4*j}, v{115+4*j}")
    for j in range(2): k.vm(f"buffer_store_dwordx4 {vr(112+4*j,4)}, v{YS}, {srd(SW)}, 0 offen offset:{1024*j} sc1","y")
    k.vm(f"buffer_load_dwordx4 v[136:139], v{XO}, {srd(SX)}, 0 offen","x")
    k.vm(f"buffer_load_dwordx4 v[140:143], v{XO}, {srd(SX)}, 0 offen offset:32","x")
    k.vm(f"buffer_load_dword v135, v{RS}, {srd(SW)}, 0 offen sc1","x")
    k.w(v="wd21")
    for j in range(11,22):
        for f in wd_tr(j): f()
    k.stamp('xchg')
    A2=16
    def g2mf(j):
        r=HR+8*(j%(DEPTH+1))
        return [f"v_mfma_f32_32x32x16_bf16 {vr(A2+16*(2*d+t),16)}, {ar(8*j+4*d,4)}, {vr(r+4*t,4)}, {'0' if j==0 else vr(A2+16*(2*d+t),16)}" for d,t in((1,1),(1,0),(0,1),(0,0))]
    SK=k.lab("SK")
    waited=False
    for j in range(22):
        fl=[]
        if j+DEPTH<22: fl+=hload(j+DEPTH)
        if j==DEPTH: fl+=[lambda: k.vm(f"buffer_store_byte v{ONEB}, v{FYS}, {srd(SW)}, 0 offen sc1","yf")]
        if j==12: fl+=[lambda: k.vm(f"buffer_load_dword v134, v{FYP}, {srd(SW)}, 0 offen sc1","yp")]
        if j==17:
            fl+=[lambda: poll("yp",134,FYP,SW,f"s{sONE}")]
            fl+=[lambda q=q: k.vm(f"buffer_load_dwordx4 {vr(112+4*q,4)}, v{YL}, {srd(SW)}, {'s%d'%sYQ if q else 0} offen sc1","yl") for q in range(2)]
        if j==21: k(f"s_cmp_ge_u32 s{sWV}, 2\ns_cbranch_scc1 {SK}")
        if j>=11 and not waited: k.w(v=f"h{j}",d=0); waited=True
        else: k.w(v=f"h{j}")
        weave(k,g2mf(j),fl,3)
    k(f"{SK}:")
    k.stamp('g2')
    k(f"""v_add_u32 v96, s{sAW}, v{EXW}
    v_add_u32 v97, s{sCWB}, v{EXW}""")
    for x in (1,2,3):
        k(f"s_xor_b32 s{sT0}, s{sWV}, {x}")
        if x<3: k(f"s_mul_i32 s{sT0}, s{sT0}, {AWS}\ns_add_u32 s{sT0}, s{sT0}, {4096*(x-1)}")
        else: k(f"s_mul_i32 s{sT0}, s{sT0}, {CWS}\ns_add_u32 s{sT0}, s{sT0}, {CW}")
        k(f"v_add_u32 v{97+x}, s{sT0}, v{EXW}")
    for x in (3,2,1):
        for a in range(4):
            k.ds(f"ds_write_b128 v{97 if x==3 else 96}, {vr(A2+16*x+4*a,4)} offset:{1024*a+(4096 if x==2 else 0)}")
    k.w(v="yl")
    for q in range(2): k.ds(f"ds_write_b128 v{YW}, {vr(112+4*q,4)} offset:{1024*q}")
    for a in range(4): k.ds(f"ds_read_b64_tr_b16 {vr(120+2*a,2)}, v{YR} offset:{512*a}","yt")
    k.w(d=0); k("s_barrier")
    for x in (1,2,3):
        for a in range(4): k.ds(f"ds_read_b128 {vr(144+16*(x-1)+4*a,4)}, v{97+x} offset:{1024*a}",f"rd{x}")
    for j in range(8): k(f"v_lshlrev_b32 v{80+2*j}, 16, v{120+j}\nv_and_b32 v{81+2*j}, s{sMSK}, v{120+j}")
    for x in (1,2,3):
        k.w(d=f"rd{x}")
        for j in range(8): k(f"v_pk_add_f32 {vr(A2+2*j,2)}, {vr(A2+2*j,2)}, {vr(144+16*(x-1)+2*j,2)}")
    for j in range(8): k(f"v_pk_fma_f32 {vr(A2+2*j,2)}, {vr(A2+2*j,2)}, v[134:135], {vr(80+2*j,2)} op_sel:[0,1,0] op_sel_hi:[1,1,1]")
    for j in range(8): k(f"v_lshlrev_b32 v{80+2*j}, 16, v{136+j}\nv_and_b32 v{81+2*j}, s{sMSK}, v{136+j}")
    for a in(0,2):
        for r in range(4): k(f"v_permlane32_swap_b32 v{A2+4*a+r}, v{A2+4*a+4+r}")
    for j in range(8):
        k(f"v_pk_add_f32 {vr(A2+2*j,2)}, {vr(A2+2*j,2)}, {vr(80+2*j,2)}\nv_cvt_pk_bf16_f32 v{100+j}, v{A2+2*j}, v{A2+2*j+1}")
        if j%4==3: k.vm(f"buffer_store_dwordx4 {vr(100+j-3,4)}, v{XO}, {srd(SO)}, 0 offen offset:{32*(j//4)}","o")
    if prof:
        k.stamp('epi'); k("s_waitcnt vmcnt(0) lgkmcnt(0)"); k.stamp('drain'); k("s_waitcnt lgkmcnt(0)"); k.stamp(); k.stamp()
        k("; STAMPS "+" ".join(k.names[:-2]))
        k("s_memrealtime s[94:95]\ns_waitcnt lgkmcnt(0)\nv_writelane_b32 v199, s94, 62\nv_writelane_b32 v199, s96, 63")
        k(f"s_lshl_b32 s{sT0}, s2, 2\ns_add_u32 s{sT0}, s{sT0}, s{sWV}\ns_lshl_b32 s{sT0}, s{sT0}, 8\ns_add_u32 s{sT0}, s{sT0}, {PROF}\nv_lshl_add_u32 v2, v1, 2, s{sT0}")
        k(f"buffer_store_dword v199, v2, {srd(SW)}, 0 offen")
        if pace:
            L=k.lab(); LP=k.lab()
            k(f"""s_cmp_lg_u32 s{sWV}, 0
            s_cbranch_scc1 {L}
            s_cmp_lg_u32 s2, {pwg}
            s_cbranch_scc1 {L}""")
            if pace==1: k(f"s_mov_b32 s{sT0}, 6000")
            if pace==2: k(f"s_sub_u32 s{sT0}, s94, s96\ns_lshl_b32 s{sT0}, s{sT0}, 2")
            if pace==3: k(f"v_readlane_b32 s{sT0}, v199, {pidx}\ns_sub_u32 s{sT0}, s{sT0}, s34\ns_lshr_b32 s{sT0}, s{sT0}, {psh}\ns_add_u32 s{sT0}, s{sT0}, 4000")
            k(f"""s_min_u32 s{sT0}, s{sT0}, 30000
            s_mov_b32 s{sT2}, 100000
            {LP}:
            s_memrealtime s[94:95]
            s_waitcnt lgkmcnt(0)
            s_sub_u32 s{sT1}, s94, s96
            s_cmp_ge_u32 s{sT1}, s{sT0}
            s_cbranch_scc1 {L}
            s_sub_u32 s{sT2}, s{sT2}, 1
            s_cmp_lg_u32 s{sT2}, 0
            s_cbranch_scc1 {LP}
            {L}:""")
        if dbg:
            L=k.lab()
            k(f"""s_cmp_lg_u32 s{sWV}, 0
            s_cbranch_scc1 {L}
            s_and_b32 s{sT0}, s2, 0x18
            s_cmp_lg_u32 s{sT0}, 0
            s_cbranch_scc1 {L}
            s_sub_u32 s{sT0}, s94, s96
            v_writelane_b32 v199, s{sT0}, 2
            s_or_b32 s{sT0}, s94, 0x80000000
            s_not_b32 s{sT1}, s96
            s_or_b32 s{sT1}, s{sT1}, 0x80000000
            s_or_b32 s{sT2}, s96, 0x80000000
            v_mov_b32 v4, s{sT0}
            v_writelane_b32 v4, s{sT1}, 1
            v_writelane_b32 v4, s{sT2}, 2
            v_cmp_gt_u32 vcc, 3, v1
            v_lshlrev_b32 v6, 2, v1
            v_add_u32 v6, 52, v6
            v_mov_b32 v7, {hex(OOB)}
            v_cndmask_b32 v6, v7, v6, vcc
            buffer_atomic_umax v4, v6, {srd(SB)}, 0 offen sc1
            s_cmp_lg_u32 s2, {dbg-1}
            s_cbranch_scc1 {L}
            v_readlane_b32 s{sT0}, v199, 2
            v_readlane_b32 s{sT1}, v199, 14
            v_subrev_u32 v4, s34, v199
            s_sub_u32 s{sT1}, s{sT1}, s34
            v_writelane_b32 v4, s{sT0}, 2
            v_writelane_b32 v4, s{sT1}, 13
            v_cmp_gt_u32 vcc, 14, v1
            v_lshlrev_b32 v6, 2, v1
            v_add_u32 v6, -4, v6
            v_cndmask_b32 v6, v7, v6, vcc
            buffer_store_dword v4, v6, {srd(SB)}, 0 offen sc1
            {L}:""")
    k("s_endpgm")
    k(f"{CSL}:")
    k(f"""s_mul_i32 s{sT0}, s{sWV}, 3072
    s_lshr_b32 s{sT1}, s{sWV}, 1
    s_mul_i32 s{sT1}, s{sT1}, 96
    s_sub_u32 s{sT0}, s{sT0}, s{sT1}
    v_add_u32 v{WR}, s{sT0}, v{WR}
    v_mov_b32 v112, 0x3f803f80
    v_mov_b32 v113, v112
    v_mov_b32 v114, v112
    v_mov_b32 v115, v112
    s_mov_b32 s{sRING}, {2*SS}
    s_mov_b32 s{sCNT}, 0""")
    for r in range(16,112): k(f"v_mov_b32 v{r}, 0")
    def csdma():
        D=dma_list(f"s{sRING}","c")[5:]
        for f in D: f() if callable(f) else (k(f),k("s_nop 0"))
        for f in nextk: k(f)
    csdma()
    CL=k.lab("CL"); CN=k.lab("CN")
    k(f"{CL}:\ns_waitcnt vmcnt(12)\ns_cmp_lt_u32 s{sCNT}, 6\ns_cbranch_scc1 {CN}\ns_waitcnt vmcnt(0)\n{CN}:")
    for u in range(6):
        for h in range(2): k(f"ds_read_b64_tr_b16 {vr(116+4*u+2*h,2)}, v{WR} offset:{768*h+32*u}")
    CN2=k.lab("CN")
    k(f"""s_add_u32 s{sRING}, s{sRING}, s{sC1}
    s_cmp_eq_u32 s{sRING}, {3*SS}
    s_cselect_b32 s{sRING}, 0, s{sRING}
    s_cmp_eq_u32 s{sRING}, {2*SS}
    s_cselect_b32 s{sDL}, s{sC2}, s{sC1}
    v_add_u32 v{WR}, s{sDL}, v{WR}
    s_waitcnt lgkmcnt(0)
    s_cmp_ge_u32 s{sCNT}, 5
    s_cbranch_scc1 {CN2}""")
    csdma()
    k(f"{CN2}:")
    for u in range(6): k(f"v_mfma_f32_32x32x16_bf16 {vr(16+16*u,16)}, v[112:115], {vr(116+4*u,4)}, {vr(16+16*u,16)}")
    k(f"s_add_u32 s{sCNT}, s{sCNT}, 1\ns_cmp_lt_u32 s{sCNT}, 8\ns_cbranch_scc1 {CL}")
    k(f"""s_mul_i32 s{sT0}, s{sWV}, 768
    s_add_u32 s{sT0}, s{sT0}, {PT}
    v_and_b32 v2, 31, v1
    v_lshl_add_u32 v2, v2, 2, s{sT0}
    v_min_u32 v3, 191, v0
    v_lshlrev_b32 v3, 2, v3
    v_add_u32 v3, {PT}, v3
    s_nop 7""")
    for u in range(6): k(f"ds_write_b32 v2, v{16+16*u} offset:{128*u}")
    k("s_waitcnt lgkmcnt(0)\ns_barrier")
    for j in range(4): k(f"ds_read_b32 v{4+j}, v3 offset:{768*j}")
    k(f"""s_waitcnt lgkmcnt(0)
    v_add_f32 v4, v4, v5
    v_add_f32 v6, v6, v7
    v_add_f32 v4, v4, v6
    v_cvt_pk_bf16_f32 v5, v4, v4
    v_and_b32 v5, s{sMSK}, v5
    v_sub_f32 v6, v4, v5
    v_cvt_pk_bf16_f32 v5, v5, v6
    buffer_store_dword v5, v{CSA}, {srd(SW)}, 0 offen sc1""")
    k.vq=[]; k.dq=[]
    lnpoll(); poll("lnp",PL,LNP,SB,f"s{sONE}")
    for f in uloads(): f()
    k("v_mov_b32 v184, 0\nv_mov_b32 v185, 0\nv_mov_b32 v186, 0\nv_mov_b32 v187, 0")
    for j in range(8):
        for f in wd_dma(j): f() if callable(f) else (k(f),k("s_nop 0"))
    zpad[0]()
    for f in uwrite(): f()
    k("s_waitcnt lgkmcnt(0)\ns_barrier")
    for f in conv_reads(0): f()
    k(f"s_waitcnt vmcnt(0) lgkmcnt(0)\ns_branch {MRG}")
    for t in k.tail: k(t)
    k(f"{END}:")
    return k
import struct
def f2b(x): return struct.unpack('<I',struct.pack('<f',x))[0]
if __name__=='__main__':
    out=sys.argv[1]; opts=dict(a.split('=') for a in sys.argv[2:])
    opts={a:int(b) for a,b in opts.items()}
    k=gen(**opts)
    hdr="".join(l for l in open('cdna_kernels/'+NAME[:-7]+'.s.ref') if l.startswith(';') and '@launch' not in l)
    txt=module([k],[(None,256,256,163840)],hdr)
    open(out,'w').write(txt)
    print("hazards:",haz.check(txt.split('\n')))
```

```python
import sys
sys.path.insert(0,'w')
from gl import *
import haz
NAME="parallel_sum__ssm_conv_s4__glu_gated_bilinear__prompt_kernel"
XNB=0; STATS=0x200000; FH=0x210000; FY=0x218000; PROF=0x220000; HB=0x400000; YB=0xA00000; CS=0xC00000; WSEND=CS+86*128
SS=41216; WG_O=16384; WU_D=12320
TAB=82432; TABW=16416; KC=123648; KCS=4160; PT=156928; PTS=3088
UO=82432; US=4608; CW=91648; CWS=6144; AWS=10240; BW=41216
OOB=0x80000000
PX=95744; PO=(0,13,77,239)
class G(K):
    def __init__(s,*a,**kw):
        super().__init__(*a,**kw); s.vq=[]; s.dq=[]; s.tail=[]; s.nst=0; s.names=['start']
    def vm(s,t,tag=None):
        if t.endswith(' lds') and ' m0,' in s.L[-1]: s("s_nop 0")
        s(t); s.vq.append(tag)
    def ds(s,t,tag=None): s(t); s.dq.append(tag)
    def nv(s,tag):
        i=max(j for j,x in enumerate(s.vq) if x==tag); return min(len(s.vq)-1-i,63)
    def nd(s,tag):
        i=max(j for j,x in enumerate(s.dq) if x==tag); return min(len(s.dq)-1-i,15)
    def w(s,v=None,d=None):
        o=[]
        if v is not None: o.append(f"vmcnt({s.nv(v) if isinstance(v,str) else v})")
        if d is not None: o.append(f"lgkmcnt({s.nd(d) if isinstance(d,str) else d})")
        s("s_waitcnt "+" ".join(o))
    def stamp(s,name=''):
        if s.prof:
            n=s.nst; R=(90,92,98,100); a=R[n&3]
            s(f"s_memtime s[{a}:{a+1}]")
            if n>=2: s(f"v_writelane_b32 v199, s{R[(n-2)&3]}, {n-1}")
            elif n==0: s("v_writelane_b32 v199, s34, 0")
            s.names.append(name); s.nst+=1
def vr(a,n): return f"v[{a}:{a+n-1}]" if n>1 else f"v{a}"
def ar(a,n): return f"a[{a}:{a+n-1}]" if n>1 else f"a{a}"
def weave(k,mf,fl,per,start=0):
    fl=list(fl)
    for i,m in enumerate(mf):
        k(m)
        if i>=start:
            n=per[i] if isinstance(per,(list,tuple)) else per
            for _ in range(n):
                if fl:
                    f=fl.pop(0); f() if callable(f) else k(f)
    for f in fl: f() if callable(f) else k(f)

SX,SG,SU,SD,SW,SO,SB=36,40,44,48,52,56,60
sXCD,sI,sWV,sP,sFT,sMT,sRB,sLD,sDK=64,65,66,67,68,69,70,71,72
sKS,sOX,sOW,sMX,sMG,sRING,sDL,sCNT,sC1,sC2=73,74,75,76,77,78,79,80,81,82
sH0,sH1,sMSK,sONE,sAW,sCWB,sT0,sT1,sT2,sT3=83,84,85,86,87,88,26,27,28,29
sUQ=30; sYQ=31; sTB=32; sDB=33
def srd(d): return f"s[{d}:{d+3}]"
XD=200; WD=204; XR=207; WR=211; KCW=212; EX=213
CA=224; CB=225; WDV=226; TA=228; TC=230; HL=232; HS=234; UL=237; UW=238; UZ=239; ST=240; CSA=241
XO=242; RS=243; YL=244; YW=245; YR=246; YS=247; EXW=248; FHP=249; FYP=250; FHS=251; FYS=252; LNP=253; LNF=254; ONEB=255

def gen(prof=False, ROT1=True, ROT2=True, DEPTH=5, dbg=0, pace=0, pidx=14, psh=3, pwg=0, PF=1, PFS=64):
    k=G(NAME,vgpr=256,agpr=256,sgpr=102); k.prof=prof; k.pst=90
    END=k.lab("END")
    if prof: k("s_memtime s[34:35]\ns_memrealtime s[96:97]")
    k(f"s_cmp_ge_u32 s2, 0x100\ns_cbranch_scc1 {END}")
    k("s_load_dwordx16 s[4:19], s[0:1], 0\ns_load_dwordx2 s[20:21], s[0:1], 64")
    if PF:
        PC=k.lab("PC")
        k(f'''s_getpc_b64 s[22:23]
        {PC}:
        v_mul_u32_u24 v2, {PFS}, v0
        v_mov_b32 v5, s23
        v_add_u32 v3, {PFS*256}, v2
        v_min_u32 v2, {END}-{PC}, v2
        v_min_u32 v3, {END}-{PC}, v3
        v_add_co_u32 v4, vcc, s22, v2
        v_addc_co_u32 v5, vcc, 0, v5, vcc
        global_load_dword v196, v[4:5], off
        v_mov_b32 v5, s23
        v_add_co_u32 v4, vcc, s22, v3
        v_addc_co_u32 v5, vcc, 0, v5, vcc''')
        if PFS<128: k("global_load_dword v197, v[4:5], off")
    for d,o in((SX,0),(SG,80),(SU,88),(SD,96),(SO,104),(SB,112),(SW,120)): k(f"s_load_dwordx2 s[{d}:{d+1}], s[0:1], {o}")
    for d,n in((SX,0x200000),(SG,512*2752),(SU,512*2752),(SD,1376*1024),(SO,0x200000),(SB,256),(SW,WSEND)):
        k(f"s_mov_b32 s{d+2}, {hex(n)}\ns_mov_b32 s{d+3}, 0x00020000")
    k(f"""v_lshrrev_b32 v2, 6, v0
    v_and_b32 v1, 63, v0
    v_readfirstlane_b32 s{sWV}, v2
    s_and_b32 s{sXCD}, s2, 7
    s_lshr_b32 s{sI}, s2, 3
    s_lshl_b32 s{sP}, s{sXCD}, 5
    s_add_u32 s{sP}, s{sP}, s{sI}
    s_and_b32 s{sT0}, s{sXCD}, 1
    s_lshr_b32 s{sT1}, s{sXCD}, 1
    s_lshl_b32 s{sRB}, s{sT0}, 7
    s_lshl_b32 s{sT2}, s{sT1}, 5
    s_add_u32 s{sRB}, s{sRB}, s{sT2}
    s_add_u32 s{sRB}, s{sRB}, s{sI}
    s_mul_i32 s{sT2}, s{sT1}, 30
    s_add_u32 s{sT2}, s{sT2}, s{sI}
    s_lshr_b32 s{sFT}, s{sT2}, 3
    s_and_b32 s{sT2}, s{sT2}, 7
    s_lshl_b32 s{sMT}, s{sT0}, 3
    s_add_u32 s{sMT}, s{sMT}, s{sT2}
    s_lshl_b32 s{sT1}, s{sT1}, 2
    s_lshl_b32 s{sT0}, s{sT0}, 1
    s_add_u32 s{sT1}, s{sT1}, s{sT0}
    s_add_u32 s{sT1}, s{sT1}, s{sI}
    s_sub_u32 s{sT1}, s{sT1}, 30
    s_cmp_ge_u32 s{sI}, 30
    s_cselect_b32 s{sFT}, s{sT1}, s{sFT}
    s_mov_b32 s{sMSK}, 0xffff0000""")
    k(f"""s_lshl_b32 s{sT0}, s{sRB}, 13
    s_lshl_b32 s{sT1}, s{sWV}, 11
    s_add_u32 s{sT0}, s{sT0}, s{sT1}
    v_lshl_add_u32 v3, v1, 4, s{sT0}
    s_lshl_b32 s{sT0}, s{sP}, 9
    v_lshl_add_u32 v4, v0, 1, s{sT0}""")
    for j in range(6): k(f"v_mov_b32 v{60+j}, 0")
    k(f"""s_lshl_b32 s{sT0}, s{sMT}, 17
    s_lshl_b32 s{sT1}, s{sWV}, 15
    s_add_u32 s{sT0}, s{sT0}, s{sT1}
    v_lshrrev_b32 v5, 3, v1
    v_lshl_add_u32 v5, v5, 10, s{sT0}
    v_lshrrev_b32 v6, 4, v1
    v_xor_b32 v7, v1, v6
    v_and_b32 v7, 7, v7
    v_lshl_add_u32 v{XD}, v7, 4, v5
    v_xor_b32 v5, 64, v{XD}
    v_add_u32 v{XD+1}, 7168, v5
    v_add_u32 v{XD+2}, 14336, v{XD}
    v_add_u32 v{XD+3}, 21504, v5
    s_mul_i32 s{sT0}, s{sFT}, 192
    s_mul_i32 s{sT1}, s{sWV}, {16*2752}""")
    for q in range(3):
        k(f"""v_add_u32 v5, {64*q}, v1
        v_mul_u32_u24 v7, 5462, v5
        v_lshrrev_b32 v7, 16, v7
        v_mul_u32_u24 v8, 12, v7
        v_sub_u32 v8, v5, v8
        v_lshl_add_u32 v8, v8, 4, s{sT0}
        v_min_u32 v8, 2736, v8
        v_mul_u32_u24 v7, 2752, v7
        v_add3_u32 v{WD+q}, v7, v8, s{sT1}""")
        if q: k(f"v_subrev_u32 v{WD+q}, {1024*q}, v{WD+q}")
    if ROT1: k(f"s_add_u32 s{sKS}, s{sMT}, s{sFT}\ns_and_b32 s{sKS}, s{sKS}, 3\ns_lshl_b32 s{sKS}, s{sKS}, 1")
    else: k(f"s_mov_b32 s{sKS}, 0")
    k(f"""s_lshl_b32 s{sMX}, s{sWV}, 12
    s_mul_i32 s{sMG}, s{sWV}, 3072
    s_add_u32 s{sMG}, s{sMG}, {WG_O}
    s_lshl_b32 s{sOX}, s{sKS}, 7
    s_mul_i32 s{sOW}, s{sKS}, {64*2752}
    s_lshl_b32 s{sT0}, s{sP}, 2
    s_waitcnt lgkmcnt(0)""")
    k(f"s_load_dword s{sLD}, s[18:19], s{sT0}\ns_load_dword s{sDK}, s[20:21], s{sT0}")
    k.vm(f"buffer_load_dwordx4 v[10:13], v3, {srd(SX)}, 0 offen","row")
    k.vm(f"buffer_load_dwordx4 v[14:17], v3, {srd(SX)}, 0 offen offset:1024","row")
    for j in range(6): k.vm(f"global_load_short_d16_hi v{60+j}, v4, s[{6+2*j}:{7+2*j}]","par")
    def dma_list(ring,tag):
        L=[]
        if isinstance(ring,int):
            a=lambda s: f"s_add_u32 m0, s{s}, {ring}" if ring else f"s_mov_b32 m0, s{s}"
        else: a=lambda s: f"s_add_u32 m0, s{s}, {ring}"
        L.append(a(sMX))
        for q in range(4): L.append(lambda q=q: k.vm(f"buffer_load_dwordx4 v{XD+q}, {srd(SX)}, s{sOX} offen offset:{1024*q} lds",tag))
        L.append(a(sMG))
        for q in range(3): L.append(lambda q=q: k.vm(f"buffer_load_dwordx4 v{WD+q}, {srd(SG)}, s{sOW} offen offset:{1024*q} lds",tag))
        L.append(f"s_add_u32 m0, m0, {WU_D}")
        for q in range(3): L.append(lambda q=q: k.vm(f"buffer_load_dwordx4 v{WD+q}, {srd(SU)}, s{sOW} offen offset:{1024*q} lds",tag))
        return L
    nextk=[f"s_add_u32 s{sKS}, s{sKS}, 1",f"s_and_b32 s{sKS}, s{sKS}, 7",f"s_lshl_b32 s{sOX}, s{sKS}, 7",f"s_mul_i32 s{sOW}, s{sKS}, {64*2752}"]
    for f in dma_list(0,"d0"):
        if callable(f): f()
        else: k(f); k("s_nop 0")
    for f in nextk: k(f)
    k(f"""v_lshrrev_b32 v2, 4, v1
    v_bfe_u32 v3, v1, 2, 2
    v_and_b32 v4, 3, v1
    v_and_b32 v5, 31, v1
    v_lshrrev_b32 v6, 5, v1
    v_and_b32 v7, 15, v1
    s_and_b32 s{sT0}, s{sWV}, 1
    s_lshr_b32 s{sT1}, s{sWV}, 1""")
    k(f"""v_bfe_u32 v8, v1, 1, 3
    v_xor_b32 v8, v8, v6
    v_lshlrev_b32 v8, 4, v8
    v_lshl_add_u32 v8, v5, 7, v8
    s_lshl_b32 s{sT2}, s{sT0}, 13
    v_add_u32 v{XR}, s{sT2}, v8
    v_xor_b32 v{XR+1}, 32, v{XR}
    v_xor_b32 v{XR+2}, 64, v{XR}
    v_xor_b32 v{XR+3}, 0x60, v{XR}""")
    k(f"""v_and_b32 v8, 1, v2
    v_mul_u32_u24 v9, {WU_D}, v8
    v_lshl_add_u32 v18, v6, 3, v3
    v_mul_u32_u24 v18, 192, v18
    v_add_u32 v9, v9, v18
    v_lshl_add_u32 v9, v4, 3, v9
    s_mul_i32 s{sT2}, s{sT1}, 96
    s_add_u32 s{sT2}, s{sT2}, {WG_O}
    v_add_u32 v{WR}, s{sT2}, v9""")
    k(f"v_lshlrev_b32 v9, 4, v0\nv_add_u32 v{KCW}, {KC}, v9")
    k(f"""v_lshlrev_b32 v9, 3, v0
    v_sub_u32 v18, 2047, v9
    v_cvt_f32_i32 v18, v18
    v_sub_u32 v19, {2047+0x4280}, v9
    s_mov_b32 s{sT2}, {768+0x4280}
    s_mov_b32 s{sT3}, {PX-4*0x4280}""")
    for i in range(0,11,2):
        k(f"v_subrev_f32 v24, {float(i)}, v18" if i in(0,2,4) else f"v_subrev_f32 v24, {hex(f2b(float(i)))}, v18")
        k(f"v_subrev_f32 v25, 1.0, v24\nv_cvt_pk_bf16_f32 v24, v24, v25")
        for h in range(2):
            if i+h>10: break
            k(f"v_and_b32 v25, 0xffff, v24" if h==0 else "v_lshrrev_b32 v25, 16, v24")
            k(f"""v_subrev_u32 v26, {i+h}, v19
            v_min_i32 v26, {128+0x4280}, v26
            v_med3_i32 v25, v25, v26, s{sT2}
            v_lshl_add_u32 v{EX+i+h}, v25, 2, s{sT3}""")
    k(f"""s_mul_i32 s{sT2}, s{sT1}, {4*KCS}
    s_lshl_b32 s{sT3}, s{sT0}, 8
    s_sub_u32 s{sT2}, s{sT2}, s{sT3}
    s_add_u32 s{sT2}, s{sT2}, {KC+4056-3776}
    v_mul_u32_u24 v9, {KCS}, v4
    v_lshl_add_u32 v9, v2, 4, v9
    v_lshlrev_b32 v18, 3, v3
    v_sub_u32 v9, v9, v18
    v_add_u32 v{CA}, s{sT2}, v9
    s_mul_i32 s{sT2}, s{sT1}, {US}
    s_sub_u32 s{sT2}, s{sT2}, s{sT3}
    s_add_u32 s{sT2}, s{sT2}, {UO+256}
    v_lshlrev_b32 v9, 4, v2
    v_lshl_add_u32 v9, v7, 5, v9
    v_add_u32 v{CB}, s{sT2}, v9""")
    k(f"""s_lshl_b32 s{sT2}, s{sP}, 1
    s_add_u32 s{sT2}, s{sT2}, s{sT1}
    s_lshl_b32 s{sT2}, s{sT2}, 12
    s_lshl_b32 s{sT3}, s{sT0}, 11
    s_add_u32 s{sT2}, s{sT2}, s{sT3}
    s_add_u32 s{sT2}, s{sT2}, {YB}
    v_lshlrev_b32 v9, 9, v8
    v_lshl_add_u32 v9, v7, 5, v9
    v_lshl_add_u32 v9, v6, 4, v9
    v_add_u32 v{YS}, s{sT2}, v9""")
    k(f"""s_lshr_b32 s{sT2}, s{sI}, 3
    s_lshl_b32 s{sTB}, s{sXCD}, 2
    s_add_u32 s{sTB}, s{sTB}, s{sT2}
    s_and_b32 s{sDB}, s{sI}, 7""")
    k(f"""v_lshlrev_b32 v9, 2, v8
    v_xor_b32 v9, v9, v1
    v_and_b32 v9, 7, v9
    v_lshlrev_b32 v9, 4, v9
    v_lshrrev_b32 v18, 3, v1
    v_lshl_add_u32 v9, v18, 10, v9
    s_lshl_b32 s{sT2}, s{sDB}, 7
    v_add_u32 v{WDV}, s{sT2}, v9
    v_add_u32 v{WDV+1}, 7168, v{WDV}""")
    k(f"""v_lshl_add_u32 v9, v6, 2, v3
    v_lshlrev_b32 v9, 7, v9
    v_lshrrev_b32 v18, 1, v3
    v_xor_b32 v18, s{sT1}, v18
    v_lshl_add_u32 v9, v18, 6, v9
    v_lshl_add_u32 v9, v8, 5, v9
    v_lshl_add_u32 v9, v4, 3, v9
    s_mul_i32 s{sAW}, s{sWV}, {AWS}
    s_mul_i32 s{sCWB}, s{sWV}, {CWS}
    s_add_u32 s{sCWB}, s{sCWB}, {CW}
    v_add_u32 v{TA}, s{sAW}, v9
    v_xor_b32 v{TA+1}, 64, v{TA}
    v_add_u32 v{TC}, s{sCWB}, v9
    v_xor_b32 v{TC+1}, 64, v{TC}""")
    k(f"""s_lshl_b32 s{sT2}, s{sTB}, 1
    s_add_u32 s{sT2}, s{sT2}, s{sT0}
    s_mul_i32 s{sT3}, s{sT2}, 88064
    s_add_u32 s{sT3}, s{sT3}, {HB}
    v_lshl_add_u32 v{HL}, v1, 4, s{sT3}
    s_xor_b32 s{sT3}, s{sT2}, 1
    s_mul_i32 s{sT3}, s{sT3}, 88064
    s_add_u32 s{sT3}, s{sT3}, {HB}
    v_lshl_add_u32 v{HL+1}, v1, 4, s{sT3}""")
    k(f"""s_lshl_b32 s{sT3}, s{sT2}, 5
    v_add_u32 v9, s{sT3}, v5
    v_lshlrev_b32 v18, 3, v9
    v_add_u32 v{RS}, {STATS+4}, v18
    s_lshl_b32 s{sT3}, s{sDB}, 1
    s_add_u32 s{sT3}, s{sT3}, s{sT1}
    s_lshl_b32 s{sYQ}, s{sT3}, 6
    v_lshlrev_b32 v9, 10, v9
    v_lshl_add_u32 v9, v6, 4, v9
    v_add_u32 v{XO}, s{sYQ}, v9
    s_lshl_b32 s{sYQ}, s{sT3}, 17
    s_lshl_b32 s{sT2}, s{sT2}, 6
    s_add_u32 s{sT2}, s{sT2}, s{sYQ}
    s_add_u32 s{sT2}, s{sT2}, {YB}
    v_lshrrev_b32 v9, 2, v1
    v_lshlrev_b32 v9, 12, v9
    v_lshl_add_u32 v9, v4, 4, v9
    v_add_u32 v{YL}, s{sT2}, v9
    s_mov_b32 s{sYQ}, 0x10000
    s_lshl_b32 s{sT2}, s{sWV}, 11
    s_add_u32 s{sT2}, s{sT2}, {KC}
    v_lshl_add_u32 v{YW}, v1, 4, s{sT2}
    v_lshl_add_u32 v9, v6, 2, v3
    v_lshlrev_b32 v9, 6, v9
    v_lshl_add_u32 v9, v8, 5, v9
    v_lshl_add_u32 v9, v4, 3, v9
    v_add_u32 v{YR}, s{sT2}, v9
    s_lshl_b32 s{sT3}, s{sT3}, 11
    s_add_u32 s{sT3}, s{sT3}, {FY}
    v_lshl_add_u32 v{FYP}, v7, 7, s{sT3}
    s_lshr_b32 s{sT2}, s{sTB}, 1
    s_lshl_b32 s{sT2}, s{sT2}, 11
    s_add_u32 s{sT2}, s{sT2}, {FH}
    v_min_u32 v9, 14, v7
    v_lshl_add_u32 v{FHP}, v9, 7, s{sT2}
    v_lshlrev_b32 v{EXW}, 4, v1
    v_lshlrev_b32 v{LNP}, 2, v1""")
    k(f"""s_mul_i32 s{sT2}, s{sFT}, 6
    s_mul_i32 s{sT3}, s{sT1}, 3
    s_add_u32 s{sT2}, s{sT2}, s{sT3}
    s_lshl_b32 s{sT3}, s{sT2}, 7
    s_add_u32 s{sT3}, s{sT3}, {CS}
    v_lshl_add_u32 v9, v1, 2, s{sT3}
    v_lshl_or_b32 v{CSA}, v6, 31, v9""")
    for j in range(3):
        k(f"""s_add_u32 s{sT3}, s{sT2}, {j}
        s_cmp_lt_u32 s{sT3}, 86
        s_cselect_b32 s{sH0}, 0, {hex(OOB)}
        s_lshl_b32 s{sT3}, s{sT3}, 10
        s_or_b32 s{sT3}, s{sT3}, s{sH0}
        v_lshl_add_u32 v{HS+j}, v1, 4, s{sT3}""")
    k(f"""s_lshl_b32 s{sT2}, s{sMT}, 1
    s_add_u32 s{sT2}, s{sT2}, s{sT0}
    s_lshl_b32 s{sT3}, s{sT2}, 9
    s_add_u32 s{sT3}, s{sT3}, {STATS}
    v_lshl_add_u32 v{ST}, v5, 3, s{sT3}
    s_mul_i32 s{sH0}, s{sT2}, {2*88064}
    s_add_u32 s{sH0}, s{sH0}, {HB}
    s_add_u32 s{sH1}, s{sH0}, 88064""")
    k(f"""v_lshrrev_b32 v9, 1, v0
    v_and_b32 v18, 1, v0
    s_lshl_b32 s{sT2}, s{sP}, 5
    v_lshl_add_u32 v19, v18, 4, s{sT2}
    v_lshl_add_u32 v{UL}, v9, 13, v19
    v_mul_u32_u24 v18, {US}, v18
    v_lshl_add_u32 v18, v9, 4, v18
    v_add_u32 v{UW}, {UO+480}, v18
    v_min_u32 v9, 29, v5
    v_mul_u32_u24 v18, {US}, v6
    v_lshl_add_u32 v18, v9, 4, v18
    v_add_u32 v{UZ}, {UO}, v18
    s_mov_b32 s{sUQ}, 0x100000""")
    k(f"""v_cmp_eq_u32 vcc, 0, v1
    v_mov_b32 v9, {hex(OOB)}
    s_lshl_b32 s{sT2}, s{sMT}, 4
    s_add_u32 s{sT2}, s{sT2}, s{sFT}
    s_lshl_b32 s{sT2}, s{sT2}, 7
    s_add_u32 s{sT2}, s{sT2}, {FH}
    s_cmp_ge_u32 s{sI}, 30
    s_cselect_b32 s{sT2}, {hex(OOB)}, s{sT2}
    s_lshl_b32 s{sT3}, s{sP}, 7
    s_add_u32 s{sT3}, s{sT3}, {FY}
    v_mov_b32 v18, s{sT2}
    v_mov_b32 v19, s{sT3}
    v_cndmask_b32 v24, v19, v18, vcc
    v_add_u32 v18, s{sWV}, v18
    v_add_u32 v19, s{sWV}, v19
    v_cndmask_b32 v{FHS}, v9, v18, vcc
    v_cndmask_b32 v{FYS}, v9, v19, vcc
    v_cmp_gt_u32 vcc, 2, v0
    v_mov_b32 v18, s2
    v_mov_b32 v{ONEB}, 1
    v_cndmask_b32 v58, v9, v24, vcc
    v_cmp_eq_u32 vcc, 0, v0
    s_mov_b32 s{sONE}, 0x01010101
    s_mov_b32 s{sC1}, {SS}
    v_cndmask_b32 v{LNF}, v9, v18, vcc
    s_mov_b32 s{sC2}, {-2*SS}""")
    k(f"""s_mul_i32 s{sT2}, s{sWV}, 22
    s_cmp_eq_u32 s{sWV}, 3
    s_cselect_b32 s{sT2}, 65, s{sT2}
    s_sub_u32 s{sT3}, 22, s{sT1}""")
    if ROT2:
        k(f"""s_mul_i32 s{sCNT}, s{sDB}, 3
        s_lshr_b32 s{sDL}, s{sI}, 3
        s_mul_i32 s{sDL}, s{sDL}, 5
        s_add_u32 s{sCNT}, s{sCNT}, s{sDL}
        v_add_u32 v9, s{sCNT}, v1""")
    else: k("v_mov_b32 v9, v1")
    for _ in range(3):
        k(f"v_subrev_u32 v18, s{sT3}, v9\nv_min_u32 v9, v9, v18")
    k(f"v_add_u32 v9, s{sT2}, v9\nv_lshlrev_b32 v59, 14, v9")
    k(f"""s_mul_i32 s{sT2}, s{sWV}, {TABW}
    s_add_u32 s{sT2}, s{sT2}, {TAB}
    v_lshl_add_u32 v56, v1, 2, s{sT2}
    v_mul_u32_u24 v9, 288, v7
    v_lshl_add_u32 v9, v2, 4, v9
    v_add_u32 v57, s{sT2}, v9
    v_mul_u32_u24 v9, 320, v3
    v_lshl_add_u32 v9, v2, 5, v9
    v_lshl_add_u32 v9, v4, 3, v9
    v_add_u32 v54, s{sT2}, v9
    s_mul_i32 s{sT2}, s{sWV}, 640
    s_add_u32 s{sT2}, s{sT2}, {TAB}
    v_mul_u32_u24 v9, {TABW}, v2
    v_lshl_add_u32 v9, v7, 4, v9
    v_add_u32 v55, s{sT2}, v9
    s_lshl_b32 s{sT2}, s{sRB}, 6
    s_lshl_b32 s{sT3}, s{sWV}, 4
    s_add_u32 s{sT2}, s{sT2}, s{sT3}
    s_add_u32 s{sT2}, s{sT2}, {STATS}
    v_lshl_add_u32 v9, v6, 3, s{sT2}
    v_cmp_eq_u32 vcc, 0, v5
    v_mov_b32 v18, {hex(OOB)}
    s_lshl_b32 s{sT2}, s{sRB}, 13
    s_lshl_b32 s{sT3}, s{sWV}, 11
    v_cndmask_b32 v53, v18, v9, vcc
    s_add_u32 s{sT2}, s{sT2}, s{sT3}
    v_lshl_add_u32 v52, v1, 4, s{sT2}""")
    k(f"""s_lshl_b32 s{sT3}, s{sWV}, 3
    s_lshr_b32 s{sT2}, {hex(sum(o<<(8*j) for j,o in enumerate(PO)))}, s{sT3}
    s_and_b32 s{sT2}, s{sT2}, 0xff
    s_lshl_b32 s{sT2}, s{sT2}, 8
    s_add_u32 s{sT2}, s{sT2}, {PX}
    v_mov_b32 v180, s{sT2}
    v_lshlrev_b32 v9, 5, v7
    v_lshl_add_u32 v9, v8, 4, v9
    v_lshl_add_u32 v9, v6, 9, v9
    v_add_u32 v176, s{sT2}, v9
    v_sub_u32 v9, 4, v6
    v_lshlrev_b32 v9, v9, v7
    v_lshl_add_u32 v9, v2, 8, v9
    s_add_u32 s{sT3}, s{sT2}, 1024
    v_add_u32 v177, s{sT3}, v9
    v_mul_u32_u24 v9, 120, v6
    v_add3_u32 v178, v177, v9, 8
    v_lshlrev_b32 v9, 2, v7
    v_lshl_add_u32 v9, v2, 8, v9
    s_add_u32 s{sT3}, s{sT2}, 2048
    v_add_u32 v179, s{sT3}, v9
    s_waitcnt lgkmcnt(0)
    s_lshl_b32 s{sT1}, s{sT1}, 4
    s_lshr_b32 s{sLD}, s{sLD}, s{sT1}
    s_lshl_b32 s{sLD}, s{sLD}, 16
    s_lshr_b32 s{sDK}, s{sDK}, s{sT1}
    s_lshl_b32 s{sDK}, s{sDK}, 16
    s_cmp_eq_u32 s{sT0}, 0
    s_cselect_b32 s{sDK}, s{sDK}, 0
    v_cmp_eq_u32 vcc, 0, v1
    v_mov_b32 v9, s{sDK}
    v_mov_b32 v165, 0
    v_cndmask_b32 v164, 0, v9, vcc
    v_mov_b32 v166, 0
    v_mov_b32 v167, 0""")
    k.dq=[]
    for j in range(22): k(f"v_readlane_b32 s{4+j}, v59, {j}")
    k.stamp('addr')
    k.w(v="row")
    k.stamp('row')
    for j in range(8):
        k(f"v_lshlrev_b32 v{20+2*j}, 16, v{10+j}\nv_and_b32 v{21+2*j}, s{sMSK}, v{10+j}")
    def red2():
        k("""s_nop 1
        v_permlane32_swap_b32 v40, v41
        v_add_f32 v40, v40, v41
        v_mov_b32 v41, v40
        s_nop 1
        v_permlane16_swap_b32 v40, v41
        v_add_f32 v40, v40, v41""")
        for r in(8,4,2,1): k(f"s_nop 1\nv_add_f32_dpp v40, v40, v40 row_ror:{r} row_mask:0xf bank_mask:0xf")
        k("v_mul_f32 v40, 0x3b000000, v40")
    for b,d in((20,40),(28,41)):
        k(f"""v_pk_add_f32 v[36:37], v[{b}:{b+1}], v[{b+2}:{b+3}]
        v_pk_add_f32 v[38:39], v[{b+4}:{b+5}], v[{b+6}:{b+7}]
        v_pk_add_f32 v[36:37], v[36:37], v[38:39]
        v_add_f32 v{d}, v36, v37""")
    red2()
    k("""v_mov_b32 v42, v40
    v_mov_b32 v43, v40
    v_cvt_pk_bf16_f32 v50, -v40, -v40
    s_nop 0
    v_permlane32_swap_b32 v42, v43""")
    for h,(b,d) in enumerate(((20,40),(28,41))):
        for j in range(4):
            k(f"v_pk_add_f32 v[38:39], v[{b+2*j}:{b+2*j+1}], v[42:43] op_sel:[0,{h}] op_sel_hi:[1,{h}] neg_lo:[0,1] neg_hi:[0,1]")
            k("v_pk_mul_f32 v[36:37], v[38:39], v[38:39]" if j==0 else "v_pk_fma_f32 v[36:37], v[38:39], v[38:39], v[36:37]")
        k(f"v_add_f32 v{d}, v36, v37")
    red2()
    k(f"""v_cvt_pk_bf16_f32 v40, v40, v40
    v_and_b32 v40, s{sMSK}, v40
    v_add_f32 v40, 0x3727c5ac, v40
    v_cvt_pk_bf16_f32 v40, v40, v40
    v_and_b32 v40, s{sMSK}, v40
    v_sqrt_f32 v40, v40
    v_and_b32 v41, s{sMSK}, v50
    v_cvt_pk_bf16_f32 v40, v40, v40
    v_and_b32 v40, s{sMSK}, v40
    v_rcp_f32 v46, v40
    s_nop 0
    v_mul_f32 v47, v41, v46
    v_mul_f32 v51, v46, v46
    v_mov_b32 v48, v46
    v_mov_b32 v49, v47
    s_nop 0
    v_permlane32_swap_b32 v46, v48
    v_permlane32_swap_b32 v47, v49""")
    k.vm(f"buffer_store_dwordx2 v[50:51], v53, {srd(SW)}, 0 offen sc1","lnst")
    for h,b in enumerate((20,28)):
        P=f"v[{46+2*h}:{47+2*h}]"
        for j in range(4):
            k(f"v_pk_fma_f32 v[{b+2*j}:{b+2*j+1}], v[{b+2*j}:{b+2*j+1}], {P}, {P} op_sel:[0,0,1] op_sel_hi:[1,0,1]")
            k(f"v_cvt_pk_bf16_f32 v{10+4*h+j}, v{b+2*j}, v{b+2*j+1}")
        k.ds(f"ds_write_b128 v55, v[{10+4*h}:{13+4*h}] offset:{320*h}")
    k.w(d=0); k("s_barrier")
    for q in range(2):
        for h in range(2): k.ds(f"ds_read_b64_tr_b16 v[{10+4*q+2*h}:{11+4*q+2*h}], v54 offset:{128*q+1280*h}",f"lt{q}")
    k(f"""v_mov_b32 v66, s{sLD}
    v_mul_f32 v66, 0x3fb8aa3b, v66
    v_exp_f32 v66, v66
    v_mov_b32 v18, 0
    v_cvt_pk_bf16_f32 v66, v66, v66
    v_and_b32 v66, s{sMSK}, v66""")
    for q in range(2):
        k.w(d=f"lt{q}")
        k.vm(f"buffer_store_dwordx4 v[{10+4*q}:{13+4*q}], v52, {srd(SW)}, 0 offen offset:{1024*q} sc1","lnst")
    k.vm(f"buffer_store_dword v18, v58, {srd(SW)}, 0 offen sc1","lnst")
    L=k.lab()
    k(f"""s_cmp_lt_u32 s{sI}, 30
    s_cbranch_scc1 {L}
    s_mul_i32 s{sT2}, s{sFT}, 768
    s_add_u32 s{sT2}, s{sT2}, {CS}
    s_cmp_eq_u32 s{sWV}, 3
    s_cselect_b32 s{sT2}, {hex(OOB)}, s{sT2}
    v_lshl_add_u32 v{CSA}, v0, 2, s{sT2}
    v_mov_b32 v19, -1
    buffer_store_dword v19, v{CSA}, {srd(SW)}, 0 offen sc1
    {L}:""")
    k.stamp('ln')
    k.w(v="par")
    k("""v_pk_mul_f32 v[60:61], v[60:61], v[66:67] op_sel_hi:[1,0]
    v_pk_mul_f32 v[62:63], v[62:63], v[66:67] op_sel_hi:[1,0]
    v_mul_f32 v60, 0x3fb8aa3b, v60
    v_mul_f32 v61, 0.15915494, v61""")
    Q={1:68,8:70,128:72}
    for e,d in Q.items():
        if e==1: k(f"v_exp_f32 v66, v60\nv_fract_f32 v67, v61")
        else: k(f"v_mul_f32 v66, {hex(f2b(float(e)))}, v60\nv_mul_f32 v67, {hex(f2b(float(e)))}, v61\nv_exp_f32 v66, v66\nv_fract_f32 v67, v67")
        k(f"v_cos_f32 v{d}, v67\nv_sin_f32 v{d+1}, v67\ns_nop 0\nv_pk_mul_f32 v[{d}:{d+1}], v[{d}:{d+1}], v[66:67] op_sel_hi:[1,0]")
    pr=lambda a:f"v[{a}:{a+1}]"
    side=dma_list(SS,"d1")+nextk
    cnt=[0]
    def tick():
        cnt[0]+=1
        if cnt[0]%3==0 and side:
            f=side.pop(0); f() if callable(f) else k(f)
    def cmul(d,a,b):
        k(f"v_pk_mul_f32 v[66:67], {pr(a)}, {pr(b)} op_sel:[0,0] op_sel_hi:[0,1]")
        k(f"v_pk_fma_f32 {pr(d)}, {pr(a)}, {pr(b)}, v[66:67] op_sel:[1,1,0] op_sel_hi:[1,0,1] neg_lo:[1,0,0]")
    tp=[0]
    def put(e,a,conj=False):
        t=96+(tp[0]&3); tp[0]+=1
        k(f"v_cvt_pk_bf16_f32 v{t}, v{a}, {'-' if conj else ''}v{a+1}")
        k.ds(f"ds_write_b32 v56, v{t} offset:{288*e}"); tick()
    cmul(74,64,62); put(0,74,True)
    for b in range(1,16): cmul(74,74,70); put(b,74,True)
    k(f"v_mov_b32 v95, 0x3f80"); k.ds(f"ds_write_b32 v56, v95 offset:{288*16}")
    qp={1:68}
    put(17,68)
    for a in range(2,8):
        qp[a]=76+2*(a-2); cmul(qp[a],qp[a-1],68); put(16+a,qp[a])
    put(24,72)
    for a in range(1,8): cmul(88,72,qp[a]); put(24+a,88)
    cur=90
    for a in range(2,17):
        cmul(cur,72 if a==2 else cur,72)
        if a in(2,3):
            e=32+4*(a-2); put(e,cur)
            for j,x in enumerate((2,4,6)): cmul(88,cur,qp[x]); put(e+1+j,88)
        elif a<8:
            e=40+2*(a-4); put(e,cur); cmul(88,cur,qp[4]); put(e+1,88)
        else: put(48+a-8,cur)
    while side:
        f=side.pop(0); f() if callable(f) else (k(f),k("s_nop 0"))
    for st in range(4):
        for T in range(4):
            k.ds(f"ds_read_b128 {vr(100+16*st+4*T,4)}, v57 offset:{T*16*288+64*st}",f"kf{st}")
    for st in range(4):
        k.w(d=f"kf{st}")
        for T in range(3):
            c=vr(164+4*T,4) if (st or T==0) else "0"
            k(f"v_mfma_f32_16x16x32_bf16 {vr(164+4*T,4)}, {vr(100+16*st+4+4*T,4)}, {vr(100+16*st,4)}, {c}")
    k("s_nop 5")
    k.ds("ds_write_b32 v180, v18 offset:3072")
    k.ds("ds_write_b128 v176, v[164:167]")
    k.ds("ds_write_b64 v177, v[168:169]"); k.ds("ds_write_b64 v178, v[170:171]")
    k.ds("ds_write2_b32 v179, v172, v173 offset0:0 offset1:16"); k.ds("ds_write2_b32 v179, v174, v175 offset0:32 offset1:48")
    k(f"""v_and_b32 v9, 7, v1
    v_mul_u32_u24 v9, {KCS}, v9
    v_and_b32 v8, 8, v1
    v_lshl_add_u32 v9, v8, 1, v9
    v_add_u32 v9, {KC+4096}, v9""")
    k.w(d=0); k("s_barrier")
    k.stamp('kgen')
    for c in range(2):
        for i in range(11): k.ds(f"ds_read2st64_b32 {vr(100+24*c+2*i,2)}, v{EX+i} offset0:{PO[2*c]} offset1:{PO[2*c+1]}",f"ex{c}_{i}")
    k("v_mov_b32 v20, 0\nv_mov_b32 v21, 0\nv_mov_b32 v22, 0\nv_mov_b32 v23, 0")
    k.ds("ds_write_b128 v9, v[20:23]")
    for c in range(2):
        for i in range(11):
            if i in(0,4,8): k.w(d=f"ex{c}_{min(i+3,10)}")
            k(f"v_add_f32 v{100+24*c+2*i}, v{100+24*c+2*i}, v{101+24*c+2*i}")
        for s in range(4):
            t=24+16*c+4*s
            for j in range(4):
                i=100+24*c+2*(3-s+2*j)
                k(f"v_cvt_pk_bf16_f32 v{t+j}, v{i}, v{i+2}")
            k.ds(f"ds_write_b128 v{KCW}, {vr(t,4)} offset:{(4*c+s)*KCS}")
    k.stamp('exp')
    k.w(v="lnst",d=0); k("s_barrier")
    k.vm(f"buffer_store_byte v{ONEB}, v{LNF}, {srd(SB)}, 0 offen sc1","lnf")
    k.stamp('barB')
    CSL=k.lab("CS"); MRG=k.lab("MRG")
    k(f"s_cmp_ge_u32 s{sI}, 30\ns_cbranch_scc1 {CSL}")
    ACC=16; FA=(112,132); FB=(124,144); EA=152; EB=164; UR=172; PL=180
    def reads(st,f):
        L=[]
        for e in range(2): L.append(lambda e=e: k.ds(f"ds_read_b128 {vr(FB[f]+4*e,4)}, v{XR+st} offset:{4096*e}","fr"))
        for u in range(3):
            for h in range(2): L.append(lambda u=u,h=h: k.ds(f"ds_read_b64_tr_b16 {vr(FA[f]+4*u+2*h,2)}, v{WR} offset:{3072*st+768*h+32*u}","fr"))
        return [L[0],L[2],L[3],L[1]]+L[4:]
    def mf(f,zero=False):
        return [f"v_mfma_f32_32x32x16_bf16 {vr(ACC+16*(2*u+e),16)}, {vr(FA[f]+4*u,4)}, {vr(FB[f]+4*e,4)}, {'0' if zero else vr(ACC+16*(2*u+e),16)}" for u in range(3) for e in range(2)]
    def mix(a,b):
        o=[];a=list(a);b=list(b)
        while a or b:
            if a:o.append(a.pop(0))
            if a:o.append(a.pop(0))
            if b:o.append(b.pop(0))
        return o
    def adv(delta):
        return [f"v_add_u32 v{r}, {delta}, v{r}" for r in(XR,WR,XR+1,XR+2,XR+3)]
    for f in reads(0,0): f()
    k(f"s_mov_b32 s{sRING}, {2*SS}\ns_mov_b32 s{sCNT}, 0")
    LOOP=k.lab("G1L"); MID=k.lab("G1M")
    D=dma_list(f"s{sRING}","dl")
    k.w(d=0); weave(k,mf(0,True),mix(reads(1,1),D[0:5]),3)
    k(f"s_branch {MID}\n{LOOP}:")
    D=dma_list(f"s{sRING}","dl")
    k.w(d=0); weave(k,mf(0),mix(reads(1,1),D[0:5]),3)
    k(f"{MID}:")
    k.w(d=0); weave(k,mf(1),mix(reads(2,0),D[5:9]),3)
    k.w(d=0); weave(k,mf(0),mix(reads(3,1),D[9:13])+[f"s_cmp_eq_u32 s{sRING}, s{sC1}",f"s_cselect_b32 s{sDL}, s{sC2}, s{sC1}"],3)
    L=k.lab()
    def bar0():
        k(f"s_cmp_eq_u32 s{sCNT}, 0\ns_cbranch_scc1 {L}\ns_waitcnt vmcnt(10)\n{L}:\ns_waitcnt vmcnt(11)\ns_barrier")
    A=adv(f"s{sDL}")
    tailf=nextk+[f"s_add_u32 s{sRING}, s{sRING}, s{sC1}",f"s_cmp_eq_u32 s{sRING}, {3*SS}",f"s_cselect_b32 s{sRING}, 0, s{sRING}",f"s_add_u32 s{sCNT}, s{sCNT}, 1",f"s_cmp_lt_u32 s{sCNT}, 5"]
    k.w(d=0); weave(k,mf(1),[bar0]+A[:2]+reads(0,0)+A[2:]+tailf,[1,5,5,5,5,5])
    k(f"s_cbranch_scc1 {LOOP}")
    k.vq=["dl"]*10
    k.stamp('g1loop')
    def poll(tag,reg,addr,sr,exp,extra=""):
        ok=k.lab("OK"); rt=k.lab("RT")
        k.w(v=tag)
        k(f"v_cmp_ne_u32 vcc, {exp}, v{reg}\ns_cbranch_vccnz {rt}\n{ok}:")
        lp=k.lab("RL")
        k.tail.append(f"""{rt}:
        s_movk_i32 s{sT3}, 4000
        {lp}:
        buffer_load_dword v{reg}, v{addr}, {srd(sr)}, 0 offen sc1
        s_waitcnt vmcnt(0)
        v_cmp_ne_u32 vcc, {exp}, v{reg}
        s_cbranch_vccz {ok}
        s_sub_u32 s{sT3}, s{sT3}, 1
        s_cmp_lg_u32 s{sT3}, 0
        s_cbranch_scc1 {lp}
        s_branch {ok}""")
    lnpoll=lambda: k.vm(f"buffer_load_dword v{PL}, v{LNP}, {srd(SB)}, 0 offen sc1","lnp")
    def uloads():
        return [lambda q=q: k.vm(f"buffer_load_dwordx4 {vr(UR+4*q,4)}, v{UL}, {srd(SW)}, {'s%d'%sUQ if q else 0} offen sc1","u") for q in range(2)]
    def wd_loc(j):
        if j<3: return ('C',2048*j)
        if j<8: return ('A',2048*(j-3))
        if j<13: return ('A',BW+2048*(j-8))
        if j<16: return ('C',2048*(j-13))
        if j<21: return ('A',2048*(j-16))
        return ('A',BW)
    def wd_dma(j):
        r,o=wd_loc(j); b=sCWB if r=='C' else sAW
        return [f"s_add_u32 m0, s{b}, {o}" if o else f"s_mov_b32 m0, s{b}"]+[lambda h=h: k.vm(f"buffer_load_dwordx4 v{WDV+h}, {srd(SD)}, s{4+j} offen offset:{1024*h} lds",f"wd{j}") for h in range(2)]
    def wd_tr(j):
        r,o=wd_loc(j); b=TC if r=='C' else TA
        return [lambda e=e,h=h: k.ds(f"ds_read_b64_tr_b16 {ar(8*j+4*e+2*h,2)}, v{b+e} offset:{o+1024*h}",f"wt{j}") for e in range(2) for h in range(2)]
    def uwrite():
        L=[lambda: k.w(v="u")]
        L+=[lambda q=q: k.ds(f"ds_write_b128 v{UW}, {vr(UR+4*q,4)} offset:{2048*q}","uw") for q in range(2)]
        return L
    D=dma_list(SS,"d7")
    k.w(d=0); weave(k,mf(0),[lnpoll]+mix(reads(1,1),D[0:5]),3)
    k.w(d=0); weave(k,mf(1),mix(reads(2,0),D[5:9]),3)
    k.w(d=0); weave(k,mf(0),mix(reads(3,1),D[9:13]),3)
    A=adv(-2*SS)
    k.w(d=0); weave(k,mf(1),[lambda:(k.w(v="dl"),k("s_barrier"))]+A[:2]+reads(0,0)+A[2:]+[lambda: poll("lnp",PL,LNP,SB,f"s{sONE}")]+uloads(),[1,5,5,3,1,5])
    zer=[f"v_mov_b32 v{r}, 0" for r in list(range(EA,EA+12))+list(range(EB,EB+8)) if (r-EA)%4]
    k.w(d=0); weave(k,mf(0),reads(1,1)+zer,4)
    sl=[lambda e=e: k.vm(f"buffer_load_dword v{EB+4*e}, v{ST}, {srd(SW)}, 0 offen offset:{256*e} sc1","st") for e in range(2)]
    cl=[lambda j=j: k.vm(f"buffer_load_dword v{EA+4*j}, v{CSA}, {srd(SW)}, 0 offen offset:{128*j} sc1","cs") for j in range(3)]
    k.w(d=0); weave(k,mf(1),reads(2,0)+sl+cl,3)
    zpad=[lambda: k.ds(f"ds_write_b128 v{UZ}, v[184:187]","uw")]
    k("v_mov_b32 v184, 0\nv_mov_b32 v185, 0\nv_mov_b32 v186, 0\nv_mov_b32 v187, 0")
    k.w(d=0); weave(k,mf(0),mix(reads(3,1),wd_dma(0)+wd_dma(1))+zpad,3)
    A=adv(SS)
    k.w(d=0); weave(k,mf(1),[lambda:(k.w(v="d7"),k("s_barrier"))]+A[:2]+reads(0,0)+A[2:]+wd_dma(2),[1,5,5,5,5,5])
    k.w(d=0); weave(k,mf(0),mix(reads(1,1),wd_dma(3)+wd_dma(4)),3)
    k.w(d=0); weave(k,mf(1),mix(reads(2,0),wd_dma(5)+wd_dma(6)),3)
    k.w(d=0); weave(k,mf(0),mix(reads(3,1),wd_dma(7))+uwrite(),3)
    CS0A,CS0B=('a',176),('a',208); CS1A,CS1B=('v',16),('v',48); CACC=112
    def rg(t,o,n): return (ar if t[0]=='a' else vr)(t[1]+o,n)
    def conv_reads(rho):
        SA,SBb=((CS0A,CS0B),(CS1A,CS1B))[rho&1]
        L=[]
        for i in range(8):
            L.append(lambda i=i: k.ds(f"ds_read_b128 {rg(SBb,4*i,4)}, v{CB} offset:{192-64*rho+512*i}",f"cv{rho}"))
            for h in range(2): L.append(lambda i=i,h=h: k.ds(f"ds_read_b64 {rg(SA,4*i+2*h,2)}, v{CA} offset:{3776-512*i-64*rho+8*h}",f"cv{rho}"))
        return L
    def cscheck():
        k.w(v="cs")
        ok=k.lab("OK"); rt=k.lab("RT"); lp=k.lab("RL")
        k(f"v_max3_u32 v{PL}, v{EA}, v{EA+4}, v{EA+8}\nv_cmp_eq_u32 vcc, -1, v{PL}\ns_cbranch_vccnz {rt}\n{ok}:")
        k.tail.append(f"""{rt}:
        s_movk_i32 s{sT3}, 4000
        {lp}:
        buffer_load_dword v{EA}, v{CSA}, {srd(SW)}, 0 offen sc1
        buffer_load_dword v{EA+4}, v{CSA}, {srd(SW)}, 0 offen offset:128 sc1
        buffer_load_dword v{EA+8}, v{CSA}, {srd(SW)}, 0 offen offset:256 sc1
        s_waitcnt vmcnt(0)
        v_max3_u32 v{PL}, v{EA}, v{EA+4}, v{EA+8}
        v_cmp_eq_u32 vcc, -1, v{PL}
        s_cbranch_vccz {ok}
        s_sub_u32 s{sT3}, s{sT3}, 1
        s_cmp_lg_u32 s{sT3}, 0
        s_cbranch_scc1 {lp}
        s_branch {ok}""")
    CR0=conv_reads(0)
    k.w(d=0); weave(k,mf(1),["s_barrier"]+CR0[:16]+[cscheck],[1,4,4,4,4,1])
    k.stamp('g1s7')
    mx=[f"v_mfma_f32_32x32x16_bf16 {vr(ACC+16*(2*u+e),16)}, {vr(EA+4*u,4)}, {vr(EB+4*e,4)}, {vr(ACC+16*(2*u+e),16)}" for u in range(3) for e in range(2)]
    def hepi(b):
        a=ACC+16*b; u,e=b>>1,b&1
        L=[f"v_mul_f32 v{a+r}, v{a+r}, v{a+8+r}" for r in range(8)]
        L+=[f"v_cvt_pk_bf16_f32 v{a+8+j}, v{a+2*j}, v{a+2*j+1}" for j in range(4)]
        L.append(lambda: k.vm(f"buffer_store_dwordx4 {vr(a+8,4)}, v{HS+u}, {srd(SW)}, s{sH0+e} offen sc1","h"))
        return L
    weave(k,mx,CR0[16:]+["s_nop 1"]+hepi(0)+hepi(1),[4,4,1,6,6,6])
    for b in range(2,6):
        for f in hepi(b): f() if callable(f) else k(f)
    vq_main=list(k.vq); dq_main=list(k.dq)
    k(f"{MRG}:")
    k.stamp('hepi')
    def conv_mf(rho):
        SA,SBb=((CS0A,CS0B),(CS1A,CS1B))[rho&1]
        L=[]
        for s in range(8):
            for i in range(s+1):
                I=s
                c="0" if (rho==0 and i==0) else vr(CACC+4*I,4)
                L.append(f"v_mfma_f32_16x16x32_bf16 {vr(CACC+4*I,4)}, {rg(SA,4*i,4)}, {rg(SBb,4*(I-i),4)}, {c}")
        return L
    def trs(js):
        L=[]
        for j in js: L+=[lambda j=j: k.w(v=f"wd{j}")]+wd_tr(j)
        return L
    def redma(jn,jold):
        D=wd_dma(jn); return [D[0],lambda: k.w(d=f"wt{jold}")]+D[1:]
    hflag=[lambda: k.w(v="h"), lambda: k.vm(f"buffer_store_byte v{ONEB}, v{FHS}, {srd(SW)}, 0 offen sc1","hf")]
    k.w(d="cv0"); weave(k,conv_mf(0),mix(conv_reads(1),wd_dma(8)+wd_dma(9)+wd_dma(10)+wd_dma(11))+wd_dma(12)+trs([0,1,2])+redma(13,0)+redma(14,1)+redma(15,2),2)
    k.w(d="cv1"); weave(k,conv_mf(1),conv_reads(2)+hflag+trs([3,4,5,6,7])+redma(16,3)+redma(17,4)+redma(18,5)+redma(19,6),2)
    k.w(d="cv2"); weave(k,conv_mf(2),conv_reads(3)+redma(20,7)+trs([8,9,10])+redma(21,8)+[lambda: k.vm(f"buffer_load_dword v{PL-80}, v{FHP}, {srd(SW)}, 0 offen sc1","hp")],2)
    HR=144
    def hload(j):
        r=HR+8*(j%(DEPTH+1))
        return [f"s_lshr_b32 s{sT0}, s{4+j}, 4"]+[lambda e=e: k.vm(f"buffer_load_dwordx4 {vr(r+4*e,4)}, v{HL+e}, {srd(SW)}, s{sT0} offen sc1",f"h{j}") for e in range(2)]
    pre=[lambda: poll("hp",PL-80,FHP,SW,f"s{sONE}")]
    for j in range(DEPTH): pre+=hload(j)
    k.w(d="cv3"); weave(k,conv_mf(3),pre,2,start=20)
    k.stamp('conv')
    H1=k.lab("H1"); HE=k.lab("HE")
    k(f"""s_add_u32 s{sT1}, s{sAW}, {BW+2048}
    v_add_u32 v96, s{sT1}, v{EXW}
    s_xor_b32 s{sT2}, s{sWV}, 1
    s_mul_i32 s{sT2}, s{sT2}, {AWS}
    s_add_u32 s{sT2}, s{sT2}, {BW+2048}
    v_add_u32 v97, s{sT2}, v{EXW}
    s_bitcmp1_b32 s{sWV}, 0
    s_cbranch_scc1 {H1}""")
    for hh in range(2):
        snd=CACC+16*(1-hh); own=CACC+16*hh
        if hh==0: k("s_nop 1")
        for j in range(4): k(f"ds_write_b128 v96, {vr(snd+4*j,4)} offset:{1024*j}")
        k("s_waitcnt lgkmcnt(0)\ns_barrier")
        for j in range(4): k(f"ds_read_b128 {vr(80+4*j,4)}, v97 offset:{1024*j}")
        for j in range(4):
            k(f"s_waitcnt lgkmcnt({3-j})")
            k(f"v_pk_add_f32 {vr(80+4*j,2)}, {vr(80+4*j,2)}, {vr(own+4*j,2)}\nv_pk_add_f32 {vr(82+4*j,2)}, {vr(82+4*j,2)}, {vr(own+4*j+2,2)}")
        if hh==0: k(f"s_branch {HE}\n{H1}:")
    k(f"{HE}:"); k.dq=[]
    for j in range(4): k(f"v_cvt_pk_bf16_f32 v{112+2*j}, v{80+4*j}, v{81+4*j}\nv_cvt_pk_bf16_f32 v{113+2*j}, v{82+4*j}, v{83+4*j}")
    k("s_nop 0")
    for j in range(2):
        k(f"v_permlane16_swap_b32 v{112+4*j}, v{114+4*j}\nv_permlane16_swap_b32 v{113+4*j}, v{115+4*j}")
    for j in range(2): k.vm(f"buffer_store_dwordx4 {vr(112+4*j,4)}, v{YS}, {srd(SW)}, 0 offen offset:{1024*j} sc1","y")
    k.vm(f"buffer_load_dwordx4 v[136:139], v{XO}, {srd(SX)}, 0 offen","x")
    k.vm(f"buffer_load_dwordx4 v[140:143], v{XO}, {srd(SX)}, 0 offen offset:32","x")
    k.vm(f"buffer_load_dword v135, v{RS}, {srd(SW)}, 0 offen sc1","x")
    k.w(v="wd21")
    for j in range(11,22):
        for f in wd_tr(j): f()
    k.stamp('xchg')
    A2=16
    def g2mf(j):
        r=HR+8*(j%(DEPTH+1))
        return [f"v_mfma_f32_32x32x16_bf16 {vr(A2+16*(2*d+t),16)}, {ar(8*j+4*d,4)}, {vr(r+4*t,4)}, {'0' if j==0 else vr(A2+16*(2*d+t),16)}" for d,t in((1,1),(1,0),(0,1),(0,0))]
    SK=k.lab("SK")
    waited=False
    for j in range(22):
        fl=[]
        if j+DEPTH<22: fl+=hload(j+DEPTH)
        if j==DEPTH: fl+=[lambda: k.vm(f"buffer_store_byte v{ONEB}, v{FYS}, {srd(SW)}, 0 offen sc1","yf")]
        if j==12: fl+=[lambda: k.vm(f"buffer_load_dword v134, v{FYP}, {srd(SW)}, 0 offen sc1","yp")]
        if j==17:
            fl+=[lambda: poll("yp",134,FYP,SW,f"s{sONE}")]
            fl+=[lambda q=q: k.vm(f"buffer_load_dwordx4 {vr(112+4*q,4)}, v{YL}, {srd(SW)}, {'s%d'%sYQ if q else 0} offen sc1","yl") for q in range(2)]
        if j==21: k(f"s_cmp_ge_u32 s{sWV}, 2\ns_cbranch_scc1 {SK}")
        if j>=11 and not waited: k.w(v=f"h{j}",d=0); waited=True
        else: k.w(v=f"h{j}")
        weave(k,g2mf(j),fl,3)
    k(f"{SK}:")
    k.stamp('g2')
    k(f"""v_add_u32 v96, s{sAW}, v{EXW}
    v_add_u32 v97, s{sCWB}, v{EXW}""")
    for x in (1,2,3):
        k(f"s_xor_b32 s{sT0}, s{sWV}, {x}")
        if x<3: k(f"s_mul_i32 s{sT0}, s{sT0}, {AWS}\ns_add_u32 s{sT0}, s{sT0}, {4096*(x-1)}")
        else: k(f"s_mul_i32 s{sT0}, s{sT0}, {CWS}\ns_add_u32 s{sT0}, s{sT0}, {CW}")
        k(f"v_add_u32 v{97+x}, s{sT0}, v{EXW}")
    for x in (3,2,1):
        for a in range(4):
            k.ds(f"ds_write_b128 v{97 if x==3 else 96}, {vr(A2+16*x+4*a,4)} offset:{1024*a+(4096 if x==2 else 0)}")
    k.w(v="yl")
    for q in range(2): k.ds(f"ds_write_b128 v{YW}, {vr(112+4*q,4)} offset:{1024*q}")
    for a in range(4): k.ds(f"ds_read_b64_tr_b16 {vr(120+2*a,2)}, v{YR} offset:{512*a}","yt")
    k.w(d=0); k("s_barrier")
    for x in (1,2,3):
        for a in range(4): k.ds(f"ds_read_b128 {vr(144+16*(x-1)+4*a,4)}, v{97+x} offset:{1024*a}",f"rd{x}")
    for j in range(8): k(f"v_lshlrev_b32 v{80+2*j}, 16, v{120+j}\nv_and_b32 v{81+2*j}, s{sMSK}, v{120+j}")
    for x in (1,2,3):
        k.w(d=f"rd{x}")
        for j in range(8): k(f"v_pk_add_f32 {vr(A2+2*j,2)}, {vr(A2+2*j,2)}, {vr(144+16*(x-1)+2*j,2)}")
    for j in range(8): k(f"v_pk_fma_f32 {vr(A2+2*j,2)}, {vr(A2+2*j,2)}, v[134:135], {vr(80+2*j,2)} op_sel:[0,1,0] op_sel_hi:[1,1,1]")
    for j in range(8): k(f"v_lshlrev_b32 v{80+2*j}, 16, v{136+j}\nv_and_b32 v{81+2*j}, s{sMSK}, v{136+j}")
    for a in(0,2):
        for r in range(4): k(f"v_permlane32_swap_b32 v{A2+4*a+r}, v{A2+4*a+4+r}")
    for j in range(8):
        k(f"v_pk_add_f32 {vr(A2+2*j,2)}, {vr(A2+2*j,2)}, {vr(80+2*j,2)}\nv_cvt_pk_bf16_f32 v{100+j}, v{A2+2*j}, v{A2+2*j+1}")
        if j%4==3: k.vm(f"buffer_store_dwordx4 {vr(100+j-3,4)}, v{XO}, {srd(SO)}, 0 offen offset:{32*(j//4)}","o")
    if prof:
        k.stamp('epi'); k("s_waitcnt vmcnt(0) lgkmcnt(0)"); k.stamp('drain'); k("s_waitcnt lgkmcnt(0)"); k.stamp(); k.stamp()
        k("; STAMPS "+" ".join(k.names[:-2]))
        k("s_memrealtime s[94:95]\ns_waitcnt lgkmcnt(0)\nv_writelane_b32 v199, s94, 62\nv_writelane_b32 v199, s96, 63")
        k(f"s_lshl_b32 s{sT0}, s2, 2\ns_add_u32 s{sT0}, s{sT0}, s{sWV}\ns_lshl_b32 s{sT0}, s{sT0}, 8\ns_add_u32 s{sT0}, s{sT0}, {PROF}\nv_lshl_add_u32 v2, v1, 2, s{sT0}")
        k(f"buffer_store_dword v199, v2, {srd(SW)}, 0 offen")
        if pace:
            L=k.lab(); LP=k.lab()
            k(f"""s_cmp_lg_u32 s{sWV}, 0
            s_cbranch_scc1 {L}
            s_cmp_lg_u32 s2, {pwg}
            s_cbranch_scc1 {L}""")
            if pace==1: k(f"s_mov_b32 s{sT0}, 6000")
            if pace==2: k(f"s_sub_u32 s{sT0}, s94, s96\ns_lshl_b32 s{sT0}, s{sT0}, 2")
            if pace==3: k(f"v_readlane_b32 s{sT0}, v199, {pidx}\ns_sub_u32 s{sT0}, s{sT0}, s34\ns_lshr_b32 s{sT0}, s{sT0}, {psh}\ns_add_u32 s{sT0}, s{sT0}, 4000")
            k(f"""s_min_u32 s{sT0}, s{sT0}, 30000
            s_mov_b32 s{sT2}, 100000
            {LP}:
            s_memrealtime s[94:95]
            s_waitcnt lgkmcnt(0)
            s_sub_u32 s{sT1}, s94, s96
            s_cmp_ge_u32 s{sT1}, s{sT0}
            s_cbranch_scc1 {L}
            s_sub_u32 s{sT2}, s{sT2}, 1
            s_cmp_lg_u32 s{sT2}, 0
            s_cbranch_scc1 {LP}
            {L}:""")
        if dbg:
            L=k.lab()
            k(f"""s_cmp_lg_u32 s{sWV}, 0
            s_cbranch_scc1 {L}
            s_and_b32 s{sT0}, s2, 0x18
            s_cmp_lg_u32 s{sT0}, 0
            s_cbranch_scc1 {L}
            s_sub_u32 s{sT0}, s94, s96
            v_writelane_b32 v199, s{sT0}, 2
            s_or_b32 s{sT0}, s94, 0x80000000
            s_not_b32 s{sT1}, s96
            s_or_b32 s{sT1}, s{sT1}, 0x80000000
            s_or_b32 s{sT2}, s96, 0x80000000
            v_mov_b32 v4, s{sT0}
            v_writelane_b32 v4, s{sT1}, 1
            v_writelane_b32 v4, s{sT2}, 2
            v_cmp_gt_u32 vcc, 3, v1
            v_lshlrev_b32 v6, 2, v1
            v_add_u32 v6, 52, v6
            v_mov_b32 v7, {hex(OOB)}
            v_cndmask_b32 v6, v7, v6, vcc
            buffer_atomic_umax v4, v6, {srd(SB)}, 0 offen sc1
            s_cmp_lg_u32 s2, {dbg-1}
            s_cbranch_scc1 {L}
            v_readlane_b32 s{sT0}, v199, 2
            v_readlane_b32 s{sT1}, v199, 14
            v_subrev_u32 v4, s34, v199
            s_sub_u32 s{sT1}, s{sT1}, s34
            v_writelane_b32 v4, s{sT0}, 2
            v_writelane_b32 v4, s{sT1}, 13
            v_cmp_gt_u32 vcc, 14, v1
            v_lshlrev_b32 v6, 2, v1
            v_add_u32 v6, -4, v6
            v_cndmask_b32 v6, v7, v6, vcc
            buffer_store_dword v4, v6, {srd(SB)}, 0 offen sc1
            {L}:""")
    k("s_endpgm")
    k(f"{CSL}:")
    k(f"""s_mul_i32 s{sT0}, s{sWV}, 3072
    s_lshr_b32 s{sT1}, s{sWV}, 1
    s_mul_i32 s{sT1}, s{sT1}, 96
    s_sub_u32 s{sT0}, s{sT0}, s{sT1}
    v_add_u32 v{WR}, s{sT0}, v{WR}
    v_mov_b32 v112, 0x3f803f80
    v_mov_b32 v113, v112
    v_mov_b32 v114, v112
    v_mov_b32 v115, v112
    s_mov_b32 s{sRING}, {2*SS}
    s_mov_b32 s{sCNT}, 0""")
    for r in range(16,112): k(f"v_mov_b32 v{r}, 0")
    def csdma():
        D=dma_list(f"s{sRING}","c")[5:]
        for f in D: f() if callable(f) else (k(f),k("s_nop 0"))
        for f in nextk: k(f)
    csdma()
    CL=k.lab("CL"); CN=k.lab("CN")
    k(f"{CL}:\ns_waitcnt vmcnt(12)\ns_cmp_lt_u32 s{sCNT}, 6\ns_cbranch_scc1 {CN}\ns_waitcnt vmcnt(0)\n{CN}:")
    for u in range(6):
        for h in range(2): k(f"ds_read_b64_tr_b16 {vr(116+4*u+2*h,2)}, v{WR} offset:{768*h+32*u}")
    CN2=k.lab("CN")
    k(f"""s_add_u32 s{sRING}, s{sRING}, s{sC1}
    s_cmp_eq_u32 s{sRING}, {3*SS}
    s_cselect_b32 s{sRING}, 0, s{sRING}
    s_cmp_eq_u32 s{sRING}, {2*SS}
    s_cselect_b32 s{sDL}, s{sC2}, s{sC1}
    v_add_u32 v{WR}, s{sDL}, v{WR}
    s_waitcnt lgkmcnt(0)
    s_cmp_ge_u32 s{sCNT}, 5
    s_cbranch_scc1 {CN2}""")
    csdma()
    k(f"{CN2}:")
    for u in range(6): k(f"v_mfma_f32_32x32x16_bf16 {vr(16+16*u,16)}, v[112:115], {vr(116+4*u,4)}, {vr(16+16*u,16)}")
    k(f"s_add_u32 s{sCNT}, s{sCNT}, 1\ns_cmp_lt_u32 s{sCNT}, 8\ns_cbranch_scc1 {CL}")
    k(f"""s_mul_i32 s{sT0}, s{sWV}, 768
    s_add_u32 s{sT0}, s{sT0}, {PT}
    v_and_b32 v2, 31, v1
    v_lshl_add_u32 v2, v2, 2, s{sT0}
    v_min_u32 v3, 191, v0
    v_lshlrev_b32 v3, 2, v3
    v_add_u32 v3, {PT}, v3
    s_nop 7""")
    for u in range(6): k(f"ds_write_b32 v2, v{16+16*u} offset:{128*u}")
    k("s_waitcnt lgkmcnt(0)\ns_barrier")
    for j in range(4): k(f"ds_read_b32 v{4+j}, v3 offset:{768*j}")
    k(f"""s_waitcnt lgkmcnt(0)
    v_add_f32 v4, v4, v5
    v_add_f32 v6, v6, v7
    v_add_f32 v4, v4, v6
    v_cvt_pk_bf16_f32 v5, v4, v4
    v_and_b32 v5, s{sMSK}, v5
    v_sub_f32 v6, v4, v5
    v_cvt_pk_bf16_f32 v5, v5, v6
    buffer_store_dword v5, v{CSA}, {srd(SW)}, 0 offen sc1""")
    k.vq=[]; k.dq=[]
    lnpoll(); poll("lnp",PL,LNP,SB,f"s{sONE}")
    for f in uloads(): f()
    k("v_mov_b32 v184, 0\nv_mov_b32 v185, 0\nv_mov_b32 v186, 0\nv_mov_b32 v187, 0")
    for j in range(8):
        for f in wd_dma(j): f() if callable(f) else (k(f),k("s_nop 0"))
    zpad[0]()
    for f in uwrite(): f()
    k("s_waitcnt lgkmcnt(0)\ns_barrier")
    for f in conv_reads(0): f()
    k(f"s_waitcnt vmcnt(0) lgkmcnt(0)\ns_branch {MRG}")
    for t in k.tail: k(t)
    k(f"{END}:")
    return k
import struct
def f2b(x): return struct.unpack('<I',struct.pack('<f',x))[0]
if __name__=='__main__':
    out=sys.argv[1]; opts=dict(a.split('=') for a in sys.argv[2:])
    opts={a:int(b) for a,b in opts.items()}
    k=gen(**opts)
    hdr="".join(l for l in open('cdna_kernels/'+NAME[:-7]+'.s.ref') if l.startswith(';') and '@launch' not in l)
    txt=module([k],[(None,256,256,163840)],hdr)
    open(out,'w').write(txt)
    print("hazards:",haz.check(txt.split('\n')))
```

```python
import sys
sys.path.insert(0,'w')
from gl import *
import haz
NAME="parallel_sum__ssm_conv_s4__glu_gated_bilinear__prompt_kernel"
XNB=0; STATS=0x200000; FH=0x210000; FY=0x218000; PROF=0x220000; HB=0x400000; YB=0xA00000; CS=0xC00000; WSEND=CS+86*128
SS=41216; WG_O=16384; WU_D=12320
TAB=82432; TABW=16416; KC=123648; KCS=4160; PT=156928; PTS=3088
UO=82432; US=4608; CW=91648; CWS=6144; AWS=10240; BW=41216
OOB=0x80000000
PX=95744; PO=(0,13,77,239)
class G(K):
    def __init__(s,*a,**kw):
        super().__init__(*a,**kw); s.vq=[]; s.dq=[]; s.tail=[]; s.nst=0; s.names=['start']
    def vm(s,t,tag=None):
        if t.endswith(' lds') and ' m0,' in s.L[-1]: s("s_nop 0")
        s(t); s.vq.append(tag)
    def ds(s,t,tag=None): s(t); s.dq.append(tag)
    def nv(s,tag):
        i=max(j for j,x in enumerate(s.vq) if x==tag); return min(len(s.vq)-1-i,63)
    def nd(s,tag):
        i=max(j for j,x in enumerate(s.dq) if x==tag); return min(len(s.dq)-1-i,15)
    def w(s,v=None,d=None):
        o=[]
        if v is not None: o.append(f"vmcnt({s.nv(v) if isinstance(v,str) else v})")
        if d is not None: o.append(f"lgkmcnt({s.nd(d) if isinstance(d,str) else d})")
        s("s_waitcnt "+" ".join(o))
    def stamp(s,name=''):
        if s.prof:
            n=s.nst; R=(90,92,98,100); a=R[n&3]
            s(f"s_memtime s[{a}:{a+1}]")
            if n>=2: s(f"v_writelane_b32 v199, s{R[(n-2)&3]}, {n-1}")
            elif n==0: s("v_writelane_b32 v199, s34, 0")
            s.names.append(name); s.nst+=1
def vr(a,n): return f"v[{a}:{a+n-1}]" if n>1 else f"v{a}"
def ar(a,n): return f"a[{a}:{a+n-1}]" if n>1 else f"a{a}"
def weave(k,mf,fl,per,start=0):
    fl=list(fl)
    for i,m in enumerate(mf):
        k(m)
        if i>=start:
            n=per[i] if isinstance(per,(list,tuple)) else per
            for _ in range(n):
                if fl:
                    f=fl.pop(0); f() if callable(f) else k(f)
    for f in fl: f() if callable(f) else k(f)

SX,SG,SU,SD,SW,SO,SB=36,40,44,48,52,56,60
sXCD,sI,sWV,sP,sFT,sMT,sRB,sLD,sDK=64,65,66,67,68,69,70,71,72
sKS,sOX,sOW,sMX,sMG,sRING,sDL,sCNT,sC1,sC2=73,74,75,76,77,78,79,80,81,82
sH0,sH1,sMSK,sONE,sAW,sCWB,sT0,sT1,sT2,sT3=83,84,85,86,87,88,26,27,28,29
sUQ=30; sYQ=31; sTB=32; sDB=33
def srd(d): return f"s[{d}:{d+3}]"
XD=200; WD=204; XR=207; WR=211; KCW=212; EX=213
CA=224; CB=225; WDV=226; TA=228; TC=230; HL=232; HS=234; UL=237; UW=238; UZ=239; ST=240; CSA=241
XO=242; RS=243; YL=244; YW=245; YR=246; YS=247; EXW=248; FHP=249; FYP=250; FHS=251; FYS=252; LNP=253; LNF=254; ONEB=255

def gen(prof=False, ROT1=True, ROT2=True, DEPTH=5, dbg=0, pace=0, pidx=14, psh=3, pwg=0, PF=1, PFS=128, probe=0):
    k=G(NAME,vgpr=256,agpr=256,sgpr=102); k.prof=prof; k.pst=90
    END=k.lab("END")
    if prof: k("s_memtime s[34:35]\ns_memrealtime s[96:97]")
    k(f"s_cmp_ge_u32 s2, 0x100\ns_cbranch_scc1 {END}")
    k("s_load_dwordx16 s[4:19], s[0:1], 0\ns_load_dwordx2 s[20:21], s[0:1], 64")
    if PF:
        PC=k.lab("PC")
        k(f'''s_getpc_b64 s[22:23]
        {PC}:
        v_mul_u32_u24 v2, {PFS}, v0
        v_mov_b32 v5, s23
        v_add_u32 v3, {PFS*256}, v2
        v_min_u32 v2, {END}-{PC}, v2
        v_min_u32 v3, {END}-{PC}, v3
        v_add_co_u32 v4, vcc, s22, v2
        v_addc_co_u32 v5, vcc, 0, v5, vcc
        global_load_dword v196, v[4:5], off
        v_mov_b32 v5, s23
        v_add_co_u32 v4, vcc, s22, v3
        v_addc_co_u32 v5, vcc, 0, v5, vcc''')
        if PFS<128: k("global_load_dword v197, v[4:5], off")
    for d,o in((SX,0),(SG,80),(SU,88),(SD,96),(SO,104),(SB,112),(SW,120)): k(f"s_load_dwordx2 s[{d}:{d+1}], s[0:1], {o}")
    for d,n in((SX,0x200000),(SG,512*2752),(SU,512*2752),(SD,1376*1024),(SO,0x200000),(SB,256),(SW,WSEND)):
        k(f"s_mov_b32 s{d+2}, {hex(n)}\ns_mov_b32 s{d+3}, 0x00020000")
    k(f"""v_lshrrev_b32 v2, 6, v0
    v_and_b32 v1, 63, v0
    v_readfirstlane_b32 s{sWV}, v2
    s_and_b32 s{sXCD}, s2, 7
    s_lshr_b32 s{sI}, s2, 3
    s_lshl_b32 s{sP}, s{sXCD}, 5
    s_add_u32 s{sP}, s{sP}, s{sI}
    s_and_b32 s{sT0}, s{sXCD}, 1
    s_lshr_b32 s{sT1}, s{sXCD}, 1
    s_lshl_b32 s{sRB}, s{sT0}, 7
    s_lshl_b32 s{sT2}, s{sT1}, 5
    s_add_u32 s{sRB}, s{sRB}, s{sT2}
    s_add_u32 s{sRB}, s{sRB}, s{sI}
    s_mul_i32 s{sT2}, s{sT1}, 30
    s_add_u32 s{sT2}, s{sT2}, s{sI}
    s_lshr_b32 s{sFT}, s{sT2}, 3
    s_and_b32 s{sT2}, s{sT2}, 7
    s_lshl_b32 s{sMT}, s{sT0}, 3
    s_add_u32 s{sMT}, s{sMT}, s{sT2}
    s_lshl_b32 s{sT1}, s{sT1}, 2
    s_lshl_b32 s{sT0}, s{sT0}, 1
    s_add_u32 s{sT1}, s{sT1}, s{sT0}
    s_add_u32 s{sT1}, s{sT1}, s{sI}
    s_sub_u32 s{sT1}, s{sT1}, 30
    s_cmp_ge_u32 s{sI}, 30
    s_cselect_b32 s{sFT}, s{sT1}, s{sFT}
    s_mov_b32 s{sMSK}, 0xffff0000""")
    k(f"""s_lshl_b32 s{sT0}, s{sRB}, 13
    s_lshl_b32 s{sT1}, s{sWV}, 11
    s_add_u32 s{sT0}, s{sT0}, s{sT1}
    v_lshl_add_u32 v3, v1, 4, s{sT0}
    s_lshl_b32 s{sT0}, s{sP}, 9
    v_lshl_add_u32 v4, v0, 1, s{sT0}""")
    for j in range(6): k(f"v_mov_b32 v{60+j}, 0")
    k(f"""s_lshl_b32 s{sT0}, s{sMT}, 17
    s_lshl_b32 s{sT1}, s{sWV}, 15
    s_add_u32 s{sT0}, s{sT0}, s{sT1}
    v_lshrrev_b32 v5, 3, v1
    v_lshl_add_u32 v5, v5, 10, s{sT0}
    v_lshrrev_b32 v6, 4, v1
    v_xor_b32 v7, v1, v6
    v_and_b32 v7, 7, v7
    v_lshl_add_u32 v{XD}, v7, 4, v5
    v_xor_b32 v5, 64, v{XD}
    v_add_u32 v{XD+1}, 7168, v5
    v_add_u32 v{XD+2}, 14336, v{XD}
    v_add_u32 v{XD+3}, 21504, v5
    s_mul_i32 s{sT0}, s{sFT}, 192
    s_mul_i32 s{sT1}, s{sWV}, {16*2752}""")
    for q in range(3):
        k(f"""v_add_u32 v5, {64*q}, v1
        v_mul_u32_u24 v7, 5462, v5
        v_lshrrev_b32 v7, 16, v7
        v_mul_u32_u24 v8, 12, v7
        v_sub_u32 v8, v5, v8
        v_lshl_add_u32 v8, v8, 4, s{sT0}
        v_min_u32 v8, 2736, v8
        v_mul_u32_u24 v7, 2752, v7
        v_add3_u32 v{WD+q}, v7, v8, s{sT1}""")
        if q: k(f"v_subrev_u32 v{WD+q}, {1024*q}, v{WD+q}")
    if ROT1: k(f"s_add_u32 s{sKS}, s{sMT}, s{sFT}\ns_and_b32 s{sKS}, s{sKS}, 3\ns_lshl_b32 s{sKS}, s{sKS}, 1")
    else: k(f"s_mov_b32 s{sKS}, 0")
    k(f"""s_lshl_b32 s{sMX}, s{sWV}, 12
    s_mul_i32 s{sMG}, s{sWV}, 3072
    s_add_u32 s{sMG}, s{sMG}, {WG_O}
    s_lshl_b32 s{sOX}, s{sKS}, 7
    s_mul_i32 s{sOW}, s{sKS}, {64*2752}
    s_lshl_b32 s{sT0}, s{sP}, 2""")
    k.stamp('pre')
    k("s_waitcnt lgkmcnt(0)")
    k.stamp('karg')
    k(f"s_load_dword s{sLD}, s[18:19], s{sT0}\ns_load_dword s{sDK}, s[20:21], s{sT0}")
    k.vm(f"buffer_load_dwordx4 v[10:13], v3, {srd(SX)}, 0 offen","row")
    k.vm(f"buffer_load_dwordx4 v[14:17], v3, {srd(SX)}, 0 offen offset:1024","row")
    for j in range(6): k.vm(f"global_load_short_d16_hi v{60+j}, v4, s[{6+2*j}:{7+2*j}]","par")
    def dma_list(ring,tag):
        L=[]
        if isinstance(ring,int):
            a=lambda s: f"s_add_u32 m0, s{s}, {ring}" if ring else f"s_mov_b32 m0, s{s}"
        else: a=lambda s: f"s_add_u32 m0, s{s}, {ring}"
        L.append(a(sMX))
        for q in range(4): L.append(lambda q=q: k.vm(f"buffer_load_dwordx4 v{XD+q}, {srd(SX)}, s{sOX} offen offset:{1024*q} lds",tag))
        L.append(a(sMG))
        for q in range(3): L.append(lambda q=q: k.vm(f"buffer_load_dwordx4 v{WD+q}, {srd(SG)}, s{sOW} offen offset:{1024*q} lds",tag))
        L.append(f"s_add_u32 m0, m0, {WU_D}")
        for q in range(3): L.append(lambda q=q: k.vm(f"buffer_load_dwordx4 v{WD+q}, {srd(SU)}, s{sOW} offen offset:{1024*q} lds",tag))
        return L
    nextk=[f"s_add_u32 s{sKS}, s{sKS}, 1",f"s_and_b32 s{sKS}, s{sKS}, 7",f"s_lshl_b32 s{sOX}, s{sKS}, 7",f"s_mul_i32 s{sOW}, s{sKS}, {64*2752}"]
    for f in dma_list(0,"d0"):
        if callable(f): f()
        else: k(f); k("s_nop 0")
    for f in nextk: k(f)
    k.stamp('dma0')
    if probe: k("s_waitcnt vmcnt(16)"); k.stamp('rowl'); k("s_waitcnt vmcnt(0)"); k.stamp('land0'); k("s_waitcnt lgkmcnt(0)")
    k(f"""v_lshrrev_b32 v2, 4, v1
    v_bfe_u32 v3, v1, 2, 2
    v_and_b32 v4, 3, v1
    v_and_b32 v5, 31, v1
    v_lshrrev_b32 v6, 5, v1
    v_and_b32 v7, 15, v1
    s_and_b32 s{sT0}, s{sWV}, 1
    s_lshr_b32 s{sT1}, s{sWV}, 1""")
    k(f"""v_bfe_u32 v8, v1, 1, 3
    v_xor_b32 v8, v8, v6
    v_lshlrev_b32 v8, 4, v8
    v_lshl_add_u32 v8, v5, 7, v8
    s_lshl_b32 s{sT2}, s{sT0}, 13
    v_add_u32 v{XR}, s{sT2}, v8
    v_xor_b32 v{XR+1}, 32, v{XR}
    v_xor_b32 v{XR+2}, 64, v{XR}
    v_xor_b32 v{XR+3}, 0x60, v{XR}""")
    k(f"""v_and_b32 v8, 1, v2
    v_mul_u32_u24 v9, {WU_D}, v8
    v_lshl_add_u32 v18, v6, 3, v3
    v_mul_u32_u24 v18, 192, v18
    v_add_u32 v9, v9, v18
    v_lshl_add_u32 v9, v4, 3, v9
    s_mul_i32 s{sT2}, s{sT1}, 96
    s_add_u32 s{sT2}, s{sT2}, {WG_O}
    v_add_u32 v{WR}, s{sT2}, v9""")
    k(f"v_lshlrev_b32 v9, 4, v0\nv_add_u32 v{KCW}, {KC}, v9")
    k(f"""v_lshlrev_b32 v9, 3, v0
    v_sub_u32 v18, 2047, v9
    v_cvt_f32_i32 v18, v18
    v_sub_u32 v19, {2047+0x4280}, v9
    s_mov_b32 s{sT2}, {768+0x4280}
    s_mov_b32 s{sT3}, {PX-4*0x4280}""")
    for i in range(0,11,2):
        k(f"v_subrev_f32 v24, {float(i)}, v18" if i in(0,2,4) else f"v_subrev_f32 v24, {hex(f2b(float(i)))}, v18")
        k(f"v_subrev_f32 v25, 1.0, v24\nv_cvt_pk_bf16_f32 v24, v24, v25")
        for h in range(2):
            if i+h>10: break
            k(f"v_and_b32 v25, 0xffff, v24" if h==0 else "v_lshrrev_b32 v25, 16, v24")
            k(f"""v_subrev_u32 v26, {i+h}, v19
            v_min_i32 v26, {128+0x4280}, v26
            v_med3_i32 v25, v25, v26, s{sT2}
            v_lshl_add_u32 v{EX+i+h}, v25, 2, s{sT3}""")
    k(f"""s_mul_i32 s{sT2}, s{sT1}, {4*KCS}
    s_lshl_b32 s{sT3}, s{sT0}, 8
    s_sub_u32 s{sT2}, s{sT2}, s{sT3}
    s_add_u32 s{sT2}, s{sT2}, {KC+4056-3776}
    v_mul_u32_u24 v9, {KCS}, v4
    v_lshl_add_u32 v9, v2, 4, v9
    v_lshlrev_b32 v18, 3, v3
    v_sub_u32 v9, v9, v18
    v_add_u32 v{CA}, s{sT2}, v9
    s_mul_i32 s{sT2}, s{sT1}, {US}
    s_sub_u32 s{sT2}, s{sT2}, s{sT3}
    s_add_u32 s{sT2}, s{sT2}, {UO+256}
    v_lshlrev_b32 v9, 4, v2
    v_lshl_add_u32 v9, v7, 5, v9
    v_add_u32 v{CB}, s{sT2}, v9""")
    k(f"""s_lshl_b32 s{sT2}, s{sP}, 1
    s_add_u32 s{sT2}, s{sT2}, s{sT1}
    s_lshl_b32 s{sT2}, s{sT2}, 12
    s_lshl_b32 s{sT3}, s{sT0}, 11
    s_add_u32 s{sT2}, s{sT2}, s{sT3}
    s_add_u32 s{sT2}, s{sT2}, {YB}
    v_lshlrev_b32 v9, 9, v8
    v_lshl_add_u32 v9, v7, 5, v9
    v_lshl_add_u32 v9, v6, 4, v9
    v_add_u32 v{YS}, s{sT2}, v9""")
    k(f"""s_lshr_b32 s{sT2}, s{sI}, 3
    s_lshl_b32 s{sTB}, s{sXCD}, 2
    s_add_u32 s{sTB}, s{sTB}, s{sT2}
    s_and_b32 s{sDB}, s{sI}, 7""")
    k(f"""v_lshlrev_b32 v9, 2, v8
    v_xor_b32 v9, v9, v1
    v_and_b32 v9, 7, v9
    v_lshlrev_b32 v9, 4, v9
    v_lshrrev_b32 v18, 3, v1
    v_lshl_add_u32 v9, v18, 10, v9
    s_lshl_b32 s{sT2}, s{sDB}, 7
    v_add_u32 v{WDV}, s{sT2}, v9
    v_add_u32 v{WDV+1}, 7168, v{WDV}""")
    k(f"""v_lshl_add_u32 v9, v6, 2, v3
    v_lshlrev_b32 v9, 7, v9
    v_lshrrev_b32 v18, 1, v3
    v_xor_b32 v18, s{sT1}, v18
    v_lshl_add_u32 v9, v18, 6, v9
    v_lshl_add_u32 v9, v8, 5, v9
    v_lshl_add_u32 v9, v4, 3, v9
    s_mul_i32 s{sAW}, s{sWV}, {AWS}
    s_mul_i32 s{sCWB}, s{sWV}, {CWS}
    s_add_u32 s{sCWB}, s{sCWB}, {CW}
    v_add_u32 v{TA}, s{sAW}, v9
    v_xor_b32 v{TA+1}, 64, v{TA}
    v_add_u32 v{TC}, s{sCWB}, v9
    v_xor_b32 v{TC+1}, 64, v{TC}""")
    k(f"""s_lshl_b32 s{sT2}, s{sTB}, 1
    s_add_u32 s{sT2}, s{sT2}, s{sT0}
    s_mul_i32 s{sT3}, s{sT2}, 88064
    s_add_u32 s{sT3}, s{sT3}, {HB}
    v_lshl_add_u32 v{HL}, v1, 4, s{sT3}
    s_xor_b32 s{sT3}, s{sT2}, 1
    s_mul_i32 s{sT3}, s{sT3}, 88064
    s_add_u32 s{sT3}, s{sT3}, {HB}
    v_lshl_add_u32 v{HL+1}, v1, 4, s{sT3}""")
    k(f"""s_lshl_b32 s{sT3}, s{sT2}, 5
    v_add_u32 v9, s{sT3}, v5
    v_lshlrev_b32 v18, 3, v9
    v_add_u32 v{RS}, {STATS+4}, v18
    s_lshl_b32 s{sT3}, s{sDB}, 1
    s_add_u32 s{sT3}, s{sT3}, s{sT1}
    s_lshl_b32 s{sYQ}, s{sT3}, 6
    v_lshlrev_b32 v9, 10, v9
    v_lshl_add_u32 v9, v6, 4, v9
    v_add_u32 v{XO}, s{sYQ}, v9
    s_lshl_b32 s{sYQ}, s{sT3}, 17
    s_lshl_b32 s{sT2}, s{sT2}, 6
    s_add_u32 s{sT2}, s{sT2}, s{sYQ}
    s_add_u32 s{sT2}, s{sT2}, {YB}
    v_lshrrev_b32 v9, 2, v1
    v_lshlrev_b32 v9, 12, v9
    v_lshl_add_u32 v9, v4, 4, v9
    v_add_u32 v{YL}, s{sT2}, v9
    s_mov_b32 s{sYQ}, 0x10000
    s_lshl_b32 s{sT2}, s{sWV}, 11
    s_add_u32 s{sT2}, s{sT2}, {KC}
    v_lshl_add_u32 v{YW}, v1, 4, s{sT2}
    v_lshl_add_u32 v9, v6, 2, v3
    v_lshlrev_b32 v9, 6, v9
    v_lshl_add_u32 v9, v8, 5, v9
    v_lshl_add_u32 v9, v4, 3, v9
    v_add_u32 v{YR}, s{sT2}, v9
    s_lshl_b32 s{sT3}, s{sT3}, 11
    s_add_u32 s{sT3}, s{sT3}, {FY}
    v_lshl_add_u32 v{FYP}, v7, 7, s{sT3}
    s_lshr_b32 s{sT2}, s{sTB}, 1
    s_lshl_b32 s{sT2}, s{sT2}, 11
    s_add_u32 s{sT2}, s{sT2}, {FH}
    v_min_u32 v9, 14, v7
    v_lshl_add_u32 v{FHP}, v9, 7, s{sT2}
    v_lshlrev_b32 v{EXW}, 4, v1
    v_lshlrev_b32 v{LNP}, 2, v1""")
    k(f"""s_mul_i32 s{sT2}, s{sFT}, 6
    s_mul_i32 s{sT3}, s{sT1}, 3
    s_add_u32 s{sT2}, s{sT2}, s{sT3}
    s_lshl_b32 s{sT3}, s{sT2}, 7
    s_add_u32 s{sT3}, s{sT3}, {CS}
    v_lshl_add_u32 v9, v1, 2, s{sT3}
    v_lshl_or_b32 v{CSA}, v6, 31, v9""")
    for j in range(3):
        k(f"""s_add_u32 s{sT3}, s{sT2}, {j}
        s_cmp_lt_u32 s{sT3}, 86
        s_cselect_b32 s{sH0}, 0, {hex(OOB)}
        s_lshl_b32 s{sT3}, s{sT3}, 10
        s_or_b32 s{sT3}, s{sT3}, s{sH0}
        v_lshl_add_u32 v{HS+j}, v1, 4, s{sT3}""")
    k(f"""s_lshl_b32 s{sT2}, s{sMT}, 1
    s_add_u32 s{sT2}, s{sT2}, s{sT0}
    s_lshl_b32 s{sT3}, s{sT2}, 9
    s_add_u32 s{sT3}, s{sT3}, {STATS}
    v_lshl_add_u32 v{ST}, v5, 3, s{sT3}
    s_mul_i32 s{sH0}, s{sT2}, {2*88064}
    s_add_u32 s{sH0}, s{sH0}, {HB}
    s_add_u32 s{sH1}, s{sH0}, 88064""")
    k(f"""v_lshrrev_b32 v9, 1, v0
    v_and_b32 v18, 1, v0
    s_lshl_b32 s{sT2}, s{sP}, 5
    v_lshl_add_u32 v19, v18, 4, s{sT2}
    v_lshl_add_u32 v{UL}, v9, 13, v19
    v_mul_u32_u24 v18, {US}, v18
    v_lshl_add_u32 v18, v9, 4, v18
    v_add_u32 v{UW}, {UO+480}, v18
    v_min_u32 v9, 29, v5
    v_mul_u32_u24 v18, {US}, v6
    v_lshl_add_u32 v18, v9, 4, v18
    v_add_u32 v{UZ}, {UO}, v18
    s_mov_b32 s{sUQ}, 0x100000""")
    k(f"""v_cmp_eq_u32 vcc, 0, v1
    v_mov_b32 v9, {hex(OOB)}
    s_lshl_b32 s{sT2}, s{sMT}, 4
    s_add_u32 s{sT2}, s{sT2}, s{sFT}
    s_lshl_b32 s{sT2}, s{sT2}, 7
    s_add_u32 s{sT2}, s{sT2}, {FH}
    s_cmp_ge_u32 s{sI}, 30
    s_cselect_b32 s{sT2}, {hex(OOB)}, s{sT2}
    s_lshl_b32 s{sT3}, s{sP}, 7
    s_add_u32 s{sT3}, s{sT3}, {FY}
    v_mov_b32 v18, s{sT2}
    v_mov_b32 v19, s{sT3}
    v_cndmask_b32 v24, v19, v18, vcc
    v_add_u32 v18, s{sWV}, v18
    v_add_u32 v19, s{sWV}, v19
    v_cndmask_b32 v{FHS}, v9, v18, vcc
    v_cndmask_b32 v{FYS}, v9, v19, vcc
    v_cmp_gt_u32 vcc, 2, v0
    v_mov_b32 v18, s2
    v_mov_b32 v{ONEB}, 1
    v_cndmask_b32 v58, v9, v24, vcc
    v_cmp_eq_u32 vcc, 0, v0
    s_mov_b32 s{sONE}, 0x01010101
    s_mov_b32 s{sC1}, {SS}
    v_cndmask_b32 v{LNF}, v9, v18, vcc
    s_mov_b32 s{sC2}, {-2*SS}""")
    k(f"""s_mul_i32 s{sT2}, s{sWV}, 22
    s_cmp_eq_u32 s{sWV}, 3
    s_cselect_b32 s{sT2}, 65, s{sT2}
    s_sub_u32 s{sT3}, 22, s{sT1}""")
    if ROT2:
        k(f"""s_mul_i32 s{sCNT}, s{sDB}, 3
        s_lshr_b32 s{sDL}, s{sI}, 3
        s_mul_i32 s{sDL}, s{sDL}, 5
        s_add_u32 s{sCNT}, s{sCNT}, s{sDL}
        v_add_u32 v9, s{sCNT}, v1""")
    else: k("v_mov_b32 v9, v1")
    for _ in range(3):
        k(f"v_subrev_u32 v18, s{sT3}, v9\nv_min_u32 v9, v9, v18")
    k(f"v_add_u32 v9, s{sT2}, v9\nv_lshlrev_b32 v59, 14, v9")
    k(f"""s_mul_i32 s{sT2}, s{sWV}, {TABW}
    s_add_u32 s{sT2}, s{sT2}, {TAB}
    v_lshl_add_u32 v56, v1, 2, s{sT2}
    v_mul_u32_u24 v9, 288, v7
    v_lshl_add_u32 v9, v2, 4, v9
    v_add_u32 v57, s{sT2}, v9
    v_mul_u32_u24 v9, 320, v3
    v_lshl_add_u32 v9, v2, 5, v9
    v_lshl_add_u32 v9, v4, 3, v9
    v_add_u32 v54, s{sT2}, v9
    s_mul_i32 s{sT2}, s{sWV}, 640
    s_add_u32 s{sT2}, s{sT2}, {TAB}
    v_mul_u32_u24 v9, {TABW}, v2
    v_lshl_add_u32 v9, v7, 4, v9
    v_add_u32 v55, s{sT2}, v9
    s_lshl_b32 s{sT2}, s{sRB}, 6
    s_lshl_b32 s{sT3}, s{sWV}, 4
    s_add_u32 s{sT2}, s{sT2}, s{sT3}
    s_add_u32 s{sT2}, s{sT2}, {STATS}
    v_lshl_add_u32 v9, v6, 3, s{sT2}
    v_cmp_eq_u32 vcc, 0, v5
    v_mov_b32 v18, {hex(OOB)}
    s_lshl_b32 s{sT2}, s{sRB}, 13
    s_lshl_b32 s{sT3}, s{sWV}, 11
    v_cndmask_b32 v53, v18, v9, vcc
    s_add_u32 s{sT2}, s{sT2}, s{sT3}
    v_lshl_add_u32 v52, v1, 4, s{sT2}""")
    k(f"""s_lshl_b32 s{sT3}, s{sWV}, 3
    s_lshr_b32 s{sT2}, {hex(sum(o<<(8*j) for j,o in enumerate(PO)))}, s{sT3}
    s_and_b32 s{sT2}, s{sT2}, 0xff
    s_lshl_b32 s{sT2}, s{sT2}, 8
    s_add_u32 s{sT2}, s{sT2}, {PX}
    v_mov_b32 v180, s{sT2}
    v_lshlrev_b32 v9, 5, v7
    v_lshl_add_u32 v9, v8, 4, v9
    v_lshl_add_u32 v9, v6, 9, v9
    v_add_u32 v176, s{sT2}, v9
    v_sub_u32 v9, 4, v6
    v_lshlrev_b32 v9, v9, v7
    v_lshl_add_u32 v9, v2, 8, v9
    s_add_u32 s{sT3}, s{sT2}, 1024
    v_add_u32 v177, s{sT3}, v9
    v_mul_u32_u24 v9, 120, v6
    v_add3_u32 v178, v177, v9, 8
    v_lshlrev_b32 v9, 2, v7
    v_lshl_add_u32 v9, v2, 8, v9
    s_add_u32 s{sT3}, s{sT2}, 2048
    v_add_u32 v179, s{sT3}, v9
    s_waitcnt lgkmcnt(0)
    s_lshl_b32 s{sT1}, s{sT1}, 4
    s_lshr_b32 s{sLD}, s{sLD}, s{sT1}
    s_lshl_b32 s{sLD}, s{sLD}, 16
    s_lshr_b32 s{sDK}, s{sDK}, s{sT1}
    s_lshl_b32 s{sDK}, s{sDK}, 16
    s_cmp_eq_u32 s{sT0}, 0
    s_cselect_b32 s{sDK}, s{sDK}, 0
    v_cmp_eq_u32 vcc, 0, v1
    v_mov_b32 v9, s{sDK}
    v_mov_b32 v165, 0
    v_cndmask_b32 v164, 0, v9, vcc
    v_mov_b32 v166, 0
    v_mov_b32 v167, 0""")
    k.dq=[]
    for j in range(22): k(f"v_readlane_b32 s{4+j}, v59, {j}")
    k.stamp('addr')
    k.w(v="row")
    k.stamp('row')
    for j in range(8):
        k(f"v_lshlrev_b32 v{20+2*j}, 16, v{10+j}\nv_and_b32 v{21+2*j}, s{sMSK}, v{10+j}")
    def red2():
        k("""s_nop 1
        v_permlane32_swap_b32 v40, v41
        v_add_f32 v40, v40, v41
        v_mov_b32 v41, v40
        s_nop 1
        v_permlane16_swap_b32 v40, v41
        v_add_f32 v40, v40, v41""")
        for r in(8,4,2,1): k(f"s_nop 1\nv_add_f32_dpp v40, v40, v40 row_ror:{r} row_mask:0xf bank_mask:0xf")
        k("v_mul_f32 v40, 0x3b000000, v40")
    for b,d in((20,40),(28,41)):
        k(f"""v_pk_add_f32 v[36:37], v[{b}:{b+1}], v[{b+2}:{b+3}]
        v_pk_add_f32 v[38:39], v[{b+4}:{b+5}], v[{b+6}:{b+7}]
        v_pk_add_f32 v[36:37], v[36:37], v[38:39]
        v_add_f32 v{d}, v36, v37""")
    red2()
    k("""v_mov_b32 v42, v40
    v_mov_b32 v43, v40
    v_cvt_pk_bf16_f32 v50, -v40, -v40
    s_nop 0
    v_permlane32_swap_b32 v42, v43""")
    for h,(b,d) in enumerate(((20,40),(28,41))):
        for j in range(4):
            k(f"v_pk_add_f32 v[38:39], v[{b+2*j}:{b+2*j+1}], v[42:43] op_sel:[0,{h}] op_sel_hi:[1,{h}] neg_lo:[0,1] neg_hi:[0,1]")
            k("v_pk_mul_f32 v[36:37], v[38:39], v[38:39]" if j==0 else "v_pk_fma_f32 v[36:37], v[38:39], v[38:39], v[36:37]")
        k(f"v_add_f32 v{d}, v36, v37")
    red2()
    k(f"""v_cvt_pk_bf16_f32 v40, v40, v40
    v_and_b32 v40, s{sMSK}, v40
    v_add_f32 v40, 0x3727c5ac, v40
    v_cvt_pk_bf16_f32 v40, v40, v40
    v_and_b32 v40, s{sMSK}, v40
    v_sqrt_f32 v40, v40
    v_and_b32 v41, s{sMSK}, v50
    v_cvt_pk_bf16_f32 v40, v40, v40
    v_and_b32 v40, s{sMSK}, v40
    v_rcp_f32 v46, v40
    s_nop 0
    v_mul_f32 v47, v41, v46
    v_mul_f32 v51, v46, v46
    v_mov_b32 v48, v46
    v_mov_b32 v49, v47
    s_nop 0
    v_permlane32_swap_b32 v46, v48
    v_permlane32_swap_b32 v47, v49""")
    k.vm(f"buffer_store_dwordx2 v[50:51], v53, {srd(SW)}, 0 offen sc1","lnst")
    for h,b in enumerate((20,28)):
        P=f"v[{46+2*h}:{47+2*h}]"
        for j in range(4):
            k(f"v_pk_fma_f32 v[{b+2*j}:{b+2*j+1}], v[{b+2*j}:{b+2*j+1}], {P}, {P} op_sel:[0,0,1] op_sel_hi:[1,0,1]")
            k(f"v_cvt_pk_bf16_f32 v{10+4*h+j}, v{b+2*j}, v{b+2*j+1}")
        k.ds(f"ds_write_b128 v55, v[{10+4*h}:{13+4*h}] offset:{320*h}")
    k.w(d=0); k("s_barrier")
    for q in range(2):
        for h in range(2): k.ds(f"ds_read_b64_tr_b16 v[{10+4*q+2*h}:{11+4*q+2*h}], v54 offset:{128*q+1280*h}",f"lt{q}")
    k(f"""v_mov_b32 v66, s{sLD}
    v_mul_f32 v66, 0x3fb8aa3b, v66
    v_exp_f32 v66, v66
    v_mov_b32 v18, 0
    v_cvt_pk_bf16_f32 v66, v66, v66
    v_and_b32 v66, s{sMSK}, v66""")
    for q in range(2):
        k.w(d=f"lt{q}")
        k.vm(f"buffer_store_dwordx4 v[{10+4*q}:{13+4*q}], v52, {srd(SW)}, 0 offen offset:{1024*q} sc1","lnst")
    k.vm(f"buffer_store_dword v18, v58, {srd(SW)}, 0 offen sc1","lnst")
    L=k.lab()
    k(f"""s_cmp_lt_u32 s{sI}, 30
    s_cbranch_scc1 {L}
    s_mul_i32 s{sT2}, s{sFT}, 768
    s_add_u32 s{sT2}, s{sT2}, {CS}
    s_cmp_eq_u32 s{sWV}, 3
    s_cselect_b32 s{sT2}, {hex(OOB)}, s{sT2}
    v_lshl_add_u32 v{CSA}, v0, 2, s{sT2}
    v_mov_b32 v19, -1
    buffer_store_dword v19, v{CSA}, {srd(SW)}, 0 offen sc1
    {L}:""")
    k.stamp('ln')
    k.w(v="par")
    k("""v_pk_mul_f32 v[60:61], v[60:61], v[66:67] op_sel_hi:[1,0]
    v_pk_mul_f32 v[62:63], v[62:63], v[66:67] op_sel_hi:[1,0]
    v_mul_f32 v60, 0x3fb8aa3b, v60
    v_mul_f32 v61, 0.15915494, v61""")
    Q={1:68,8:70,128:72}
    for e,d in Q.items():
        if e==1: k(f"v_exp_f32 v66, v60\nv_fract_f32 v67, v61")
        else: k(f"v_mul_f32 v66, {hex(f2b(float(e)))}, v60\nv_mul_f32 v67, {hex(f2b(float(e)))}, v61\nv_exp_f32 v66, v66\nv_fract_f32 v67, v67")
        k(f"v_cos_f32 v{d}, v67\nv_sin_f32 v{d+1}, v67\ns_nop 0\nv_pk_mul_f32 v[{d}:{d+1}], v[{d}:{d+1}], v[66:67] op_sel_hi:[1,0]")
    pr=lambda a:f"v[{a}:{a+1}]"
    side=dma_list(SS,"d1")+nextk
    cnt=[0]
    def tick():
        cnt[0]+=1
        if cnt[0]%3==0 and side:
            f=side.pop(0); f() if callable(f) else k(f)
    def cmul(d,a,b):
        k(f"v_pk_mul_f32 v[66:67], {pr(a)}, {pr(b)} op_sel:[0,0] op_sel_hi:[0,1]")
        k(f"v_pk_fma_f32 {pr(d)}, {pr(a)}, {pr(b)}, v[66:67] op_sel:[1,1,0] op_sel_hi:[1,0,1] neg_lo:[1,0,0]")
    tp=[0]
    def put(e,a,conj=False):
        t=96+(tp[0]&3); tp[0]+=1
        k(f"v_cvt_pk_bf16_f32 v{t}, v{a}, {'-' if conj else ''}v{a+1}")
        k.ds(f"ds_write_b32 v56, v{t} offset:{288*e}"); tick()
    cmul(74,64,62); put(0,74,True)
    for b in range(1,16): cmul(74,74,70); put(b,74,True)
    k(f"v_mov_b32 v95, 0x3f80"); k.ds(f"ds_write_b32 v56, v95 offset:{288*16}")
    qp={1:68}
    put(17,68)
    for a in range(2,8):
        qp[a]=76+2*(a-2); cmul(qp[a],qp[a-1],68); put(16+a,qp[a])
    put(24,72)
    for a in range(1,8): cmul(88,72,qp[a]); put(24+a,88)
    cur=90
    for a in range(2,17):
        cmul(cur,72 if a==2 else cur,72)
        if a in(2,3):
            e=32+4*(a-2); put(e,cur)
            for j,x in enumerate((2,4,6)): cmul(88,cur,qp[x]); put(e+1+j,88)
        elif a<8:
            e=40+2*(a-4); put(e,cur); cmul(88,cur,qp[4]); put(e+1,88)
        else: put(48+a-8,cur)
    while side:
        f=side.pop(0); f() if callable(f) else (k(f),k("s_nop 0"))
    for st in range(4):
        for T in range(4):
            k.ds(f"ds_read_b128 {vr(100+16*st+4*T,4)}, v57 offset:{T*16*288+64*st}",f"kf{st}")
    for st in range(4):
        k.w(d=f"kf{st}")
        for T in range(3):
            c=vr(164+4*T,4) if (st or T==0) else "0"
            k(f"v_mfma_f32_16x16x32_bf16 {vr(164+4*T,4)}, {vr(100+16*st+4+4*T,4)}, {vr(100+16*st,4)}, {c}")
    k("s_nop 5")
    k.ds("ds_write_b32 v180, v18 offset:3072")
    k.ds("ds_write_b128 v176, v[164:167]")
    k.ds("ds_write_b64 v177, v[168:169]"); k.ds("ds_write_b64 v178, v[170:171]")
    k.ds("ds_write2_b32 v179, v172, v173 offset0:0 offset1:16"); k.ds("ds_write2_b32 v179, v174, v175 offset0:32 offset1:48")
    k(f"""v_and_b32 v9, 7, v1
    v_mul_u32_u24 v9, {KCS}, v9
    v_and_b32 v8, 8, v1
    v_lshl_add_u32 v9, v8, 1, v9
    v_add_u32 v9, {KC+4096}, v9""")
    k.w(d=0); k("s_barrier")
    k.stamp('kgen')
    for c in range(2):
        for i in range(11): k.ds(f"ds_read2st64_b32 {vr(100+24*c+2*i,2)}, v{EX+i} offset0:{PO[2*c]} offset1:{PO[2*c+1]}",f"ex{c}_{i}")
    k("v_mov_b32 v20, 0\nv_mov_b32 v21, 0\nv_mov_b32 v22, 0\nv_mov_b32 v23, 0")
    k.ds("ds_write_b128 v9, v[20:23]")
    for c in range(2):
        for i in range(11):
            if i in(0,4,8): k.w(d=f"ex{c}_{min(i+3,10)}")
            k(f"v_add_f32 v{100+24*c+2*i}, v{100+24*c+2*i}, v{101+24*c+2*i}")
        for s in range(4):
            t=24+16*c+4*s
            for j in range(4):
                i=100+24*c+2*(3-s+2*j)
                k(f"v_cvt_pk_bf16_f32 v{t+j}, v{i}, v{i+2}")
            k.ds(f"ds_write_b128 v{KCW}, {vr(t,4)} offset:{(4*c+s)*KCS}")
    k.stamp('exp')
    k.w(v="lnst",d=0); k("s_barrier")
    k.vm(f"buffer_store_byte v{ONEB}, v{LNF}, {srd(SB)}, 0 offen sc1","lnf")
    k.stamp('barB')
    CSL=k.lab("CS"); MRG=k.lab("MRG")
    k(f"s_cmp_ge_u32 s{sI}, 30\ns_cbranch_scc1 {CSL}")
    ACC=16; FA=(112,132); FB=(124,144); EA=152; EB=164; UR=172; PL=180
    def reads(st,f):
        L=[]
        for e in range(2): L.append(lambda e=e: k.ds(f"ds_read_b128 {vr(FB[f]+4*e,4)}, v{XR+st} offset:{4096*e}","fr"))
        for u in range(3):
            for h in range(2): L.append(lambda u=u,h=h: k.ds(f"ds_read_b64_tr_b16 {vr(FA[f]+4*u+2*h,2)}, v{WR} offset:{3072*st+768*h+32*u}","fr"))
        return [L[0],L[2],L[3],L[1]]+L[4:]
    def mf(f,zero=False):
        return [f"v_mfma_f32_32x32x16_bf16 {vr(ACC+16*(2*u+e),16)}, {vr(FA[f]+4*u,4)}, {vr(FB[f]+4*e,4)}, {'0' if zero else vr(ACC+16*(2*u+e),16)}" for u in range(3) for e in range(2)]
    def mix(a,b):
        o=[];a=list(a);b=list(b)
        while a or b:
            if a:o.append(a.pop(0))
            if a:o.append(a.pop(0))
            if b:o.append(b.pop(0))
        return o
    def adv(delta):
        return [f"v_add_u32 v{r}, {delta}, v{r}" for r in(XR,WR,XR+1,XR+2,XR+3)]
    for f in reads(0,0): f()
    k(f"s_mov_b32 s{sRING}, {2*SS}\ns_mov_b32 s{sCNT}, 0")
    LOOP=k.lab("G1L"); MID=k.lab("G1M")
    D=dma_list(f"s{sRING}","dl")
    k.w(d=0); weave(k,mf(0,True),mix(reads(1,1),D[0:5]),3)
    k(f"s_branch {MID}\n{LOOP}:")
    D=dma_list(f"s{sRING}","dl")
    k.w(d=0); weave(k,mf(0),mix(reads(1,1),D[0:5]),3)
    k(f"{MID}:")
    k.w(d=0); weave(k,mf(1),mix(reads(2,0),D[5:9]),3)
    k.w(d=0); weave(k,mf(0),mix(reads(3,1),D[9:13])+[f"s_cmp_eq_u32 s{sRING}, s{sC1}",f"s_cselect_b32 s{sDL}, s{sC2}, s{sC1}"],3)
    L=k.lab()
    def bar0():
        k(f"s_cmp_eq_u32 s{sCNT}, 0\ns_cbranch_scc1 {L}\ns_waitcnt vmcnt(10)\n{L}:\ns_waitcnt vmcnt(11)\ns_barrier")
    A=adv(f"s{sDL}")
    tailf=nextk+[f"s_add_u32 s{sRING}, s{sRING}, s{sC1}",f"s_cmp_eq_u32 s{sRING}, {3*SS}",f"s_cselect_b32 s{sRING}, 0, s{sRING}",f"s_add_u32 s{sCNT}, s{sCNT}, 1",f"s_cmp_lt_u32 s{sCNT}, 5"]
    k.w(d=0); weave(k,mf(1),[bar0]+A[:2]+reads(0,0)+A[2:]+tailf,[1,5,5,5,5,5])
    k(f"s_cbranch_scc1 {LOOP}")
    k.vq=["dl"]*10
    k.stamp('g1loop')
    def poll(tag,reg,addr,sr,exp,extra=""):
        ok=k.lab("OK"); rt=k.lab("RT")
        k.w(v=tag)
        k(f"v_cmp_ne_u32 vcc, {exp}, v{reg}\ns_cbranch_vccnz {rt}\n{ok}:")
        lp=k.lab("RL")
        k.tail.append(f"""{rt}:
        s_movk_i32 s{sT3}, 4000
        {lp}:
        buffer_load_dword v{reg}, v{addr}, {srd(sr)}, 0 offen sc1
        s_waitcnt vmcnt(0)
        v_cmp_ne_u32 vcc, {exp}, v{reg}
        s_cbranch_vccz {ok}
        s_sub_u32 s{sT3}, s{sT3}, 1
        s_cmp_lg_u32 s{sT3}, 0
        s_cbranch_scc1 {lp}
        s_branch {ok}""")
    lnpoll=lambda: k.vm(f"buffer_load_dword v{PL}, v{LNP}, {srd(SB)}, 0 offen sc1","lnp")
    def uloads():
        return [lambda q=q: k.vm(f"buffer_load_dwordx4 {vr(UR+4*q,4)}, v{UL}, {srd(SW)}, {'s%d'%sUQ if q else 0} offen sc1","u") for q in range(2)]
    def wd_loc(j):
        if j<3: return ('C',2048*j)
        if j<8: return ('A',2048*(j-3))
        if j<13: return ('A',BW+2048*(j-8))
        if j<16: return ('C',2048*(j-13))
        if j<21: return ('A',2048*(j-16))
        return ('A',BW)
    def wd_dma(j):
        r,o=wd_loc(j); b=sCWB if r=='C' else sAW
        return [f"s_add_u32 m0, s{b}, {o}" if o else f"s_mov_b32 m0, s{b}"]+[lambda h=h: k.vm(f"buffer_load_dwordx4 v{WDV+h}, {srd(SD)}, s{4+j} offen offset:{1024*h} lds",f"wd{j}") for h in range(2)]
    def wd_tr(j):
        r,o=wd_loc(j); b=TC if r=='C' else TA
        return [lambda e=e,h=h: k.ds(f"ds_read_b64_tr_b16 {ar(8*j+4*e+2*h,2)}, v{b+e} offset:{o+1024*h}",f"wt{j}") for e in range(2) for h in range(2)]
    def uwrite():
        L=[lambda: k.w(v="u")]
        L+=[lambda q=q: k.ds(f"ds_write_b128 v{UW}, {vr(UR+4*q,4)} offset:{2048*q}","uw") for q in range(2)]
        return L
    D=dma_list(SS,"d7")
    k.w(d=0); weave(k,mf(0),[lnpoll]+mix(reads(1,1),D[0:5]),3)
    k.w(d=0); weave(k,mf(1),mix(reads(2,0),D[5:9]),3)
    k.w(d=0); weave(k,mf(0),mix(reads(3,1),D[9:13]),3)
    A=adv(-2*SS)
    k.w(d=0); weave(k,mf(1),[lambda:(k.w(v="dl"),k("s_barrier"))]+A[:2]+reads(0,0)+A[2:]+[lambda: poll("lnp",PL,LNP,SB,f"s{sONE}")]+uloads(),[1,5,5,3,1,5])
    zer=[f"v_mov_b32 v{r}, 0" for r in list(range(EA,EA+12))+list(range(EB,EB+8)) if (r-EA)%4]
    k.w(d=0); weave(k,mf(0),reads(1,1)+zer,4)
    sl=[lambda e=e: k.vm(f"buffer_load_dword v{EB+4*e}, v{ST}, {srd(SW)}, 0 offen offset:{256*e} sc1","st") for e in range(2)]
    cl=[lambda j=j: k.vm(f"buffer_load_dword v{EA+4*j}, v{CSA}, {srd(SW)}, 0 offen offset:{128*j} sc1","cs") for j in range(3)]
    k.w(d=0); weave(k,mf(1),reads(2,0)+sl+cl,3)
    zpad=[lambda: k.ds(f"ds_write_b128 v{UZ}, v[184:187]","uw")]
    k("v_mov_b32 v184, 0\nv_mov_b32 v185, 0\nv_mov_b32 v186, 0\nv_mov_b32 v187, 0")
    k.w(d=0); weave(k,mf(0),mix(reads(3,1),wd_dma(0)+wd_dma(1))+zpad,3)
    A=adv(SS)
    k.w(d=0); weave(k,mf(1),[lambda:(k.w(v="d7"),k("s_barrier"))]+A[:2]+reads(0,0)+A[2:]+wd_dma(2),[1,5,5,5,5,5])
    k.w(d=0); weave(k,mf(0),mix(reads(1,1),wd_dma(3)+wd_dma(4)),3)
    k.w(d=0); weave(k,mf(1),mix(reads(2,0),wd_dma(5)+wd_dma(6)),3)
    k.w(d=0); weave(k,mf(0),mix(reads(3,1),wd_dma(7))+uwrite(),3)
    CS0A,CS0B=('a',176),('a',208); CS1A,CS1B=('v',16),('v',48); CACC=112
    def rg(t,o,n): return (ar if t[0]=='a' else vr)(t[1]+o,n)
    def conv_reads(rho):
        SA,SBb=((CS0A,CS0B),(CS1A,CS1B))[rho&1]
        L=[]
        for i in range(8):
            L.append(lambda i=i: k.ds(f"ds_read_b128 {rg(SBb,4*i,4)}, v{CB} offset:{192-64*rho+512*i}",f"cv{rho}"))
            for h in range(2): L.append(lambda i=i,h=h: k.ds(f"ds_read_b64 {rg(SA,4*i+2*h,2)}, v{CA} offset:{3776-512*i-64*rho+8*h}",f"cv{rho}"))
        return L
    def cscheck():
        k.w(v="cs")
        ok=k.lab("OK"); rt=k.lab("RT"); lp=k.lab("RL")
        k(f"v_max3_u32 v{PL}, v{EA}, v{EA+4}, v{EA+8}\nv_cmp_eq_u32 vcc, -1, v{PL}\ns_cbranch_vccnz {rt}\n{ok}:")
        k.tail.append(f"""{rt}:
        s_movk_i32 s{sT3}, 4000
        {lp}:
        buffer_load_dword v{EA}, v{CSA}, {srd(SW)}, 0 offen sc1
        buffer_load_dword v{EA+4}, v{CSA}, {srd(SW)}, 0 offen offset:128 sc1
        buffer_load_dword v{EA+8}, v{CSA}, {srd(SW)}, 0 offen offset:256 sc1
        s_waitcnt vmcnt(0)
        v_max3_u32 v{PL}, v{EA}, v{EA+4}, v{EA+8}
        v_cmp_eq_u32 vcc, -1, v{PL}
        s_cbranch_vccz {ok}
        s_sub_u32 s{sT3}, s{sT3}, 1
        s_cmp_lg_u32 s{sT3}, 0
        s_cbranch_scc1 {lp}
        s_branch {ok}""")
    CR0=conv_reads(0)
    k.w(d=0); weave(k,mf(1),["s_barrier"]+CR0[:16]+[cscheck],[1,4,4,4,4,1])
    k.stamp('g1s7')
    mx=[f"v_mfma_f32_32x32x16_bf16 {vr(ACC+16*(2*u+e),16)}, {vr(EA+4*u,4)}, {vr(EB+4*e,4)}, {vr(ACC+16*(2*u+e),16)}" for u in range(3) for e in range(2)]
    def hepi(b):
        a=ACC+16*b; u,e=b>>1,b&1
        L=[f"v_mul_f32 v{a+r}, v{a+r}, v{a+8+r}" for r in range(8)]
        L+=[f"v_cvt_pk_bf16_f32 v{a+8+j}, v{a+2*j}, v{a+2*j+1}" for j in range(4)]
        L.append(lambda: k.vm(f"buffer_store_dwordx4 {vr(a+8,4)}, v{HS+u}, {srd(SW)}, s{sH0+e} offen sc1","h"))
        return L
    weave(k,mx,CR0[16:]+["s_nop 1"]+hepi(0)+hepi(1),[4,4,1,6,6,6])
    for b in range(2,6):
        for f in hepi(b): f() if callable(f) else k(f)
    vq_main=list(k.vq); dq_main=list(k.dq)
    k(f"{MRG}:")
    k.stamp('hepi')
    def conv_mf(rho):
        SA,SBb=((CS0A,CS0B),(CS1A,CS1B))[rho&1]
        L=[]
        for s in range(8):
            for i in range(s+1):
                I=s
                c="0" if (rho==0 and i==0) else vr(CACC+4*I,4)
                L.append(f"v_mfma_f32_16x16x32_bf16 {vr(CACC+4*I,4)}, {rg(SA,4*i,4)}, {rg(SBb,4*(I-i),4)}, {c}")
        return L
    def trs(js):
        L=[]
        for j in js: L+=[lambda j=j: k.w(v=f"wd{j}")]+wd_tr(j)
        return L
    def redma(jn,jold):
        D=wd_dma(jn); return [D[0],lambda: k.w(d=f"wt{jold}")]+D[1:]
    hflag=[lambda: k.w(v="h"), lambda: k.vm(f"buffer_store_byte v{ONEB}, v{FHS}, {srd(SW)}, 0 offen sc1","hf")]
    k.w(d="cv0"); weave(k,conv_mf(0),mix(conv_reads(1),wd_dma(8)+wd_dma(9)+wd_dma(10)+wd_dma(11))+wd_dma(12)+trs([0,1,2])+redma(13,0)+redma(14,1)+redma(15,2),2)
    k.w(d="cv1"); weave(k,conv_mf(1),conv_reads(2)+hflag+trs([3,4,5,6,7])+redma(16,3)+redma(17,4)+redma(18,5)+redma(19,6),2)
    k.w(d="cv2"); weave(k,conv_mf(2),conv_reads(3)+redma(20,7)+trs([8,9,10])+redma(21,8)+[lambda: k.vm(f"buffer_load_dword v{PL-80}, v{FHP}, {srd(SW)}, 0 offen sc1","hp")],2)
    HR=144
    def hload(j):
        r=HR+8*(j%(DEPTH+1))
        return [f"s_lshr_b32 s{sT0}, s{4+j}, 4"]+[lambda e=e: k.vm(f"buffer_load_dwordx4 {vr(r+4*e,4)}, v{HL+e}, {srd(SW)}, s{sT0} offen sc1",f"h{j}") for e in range(2)]
    pre=[lambda: poll("hp",PL-80,FHP,SW,f"s{sONE}")]
    for j in range(DEPTH): pre+=hload(j)
    k.w(d="cv3"); weave(k,conv_mf(3),pre,2,start=20)
    k.stamp('conv')
    H1=k.lab("H1"); HE=k.lab("HE")
    k(f"""s_add_u32 s{sT1}, s{sAW}, {BW+2048}
    v_add_u32 v96, s{sT1}, v{EXW}
    s_xor_b32 s{sT2}, s{sWV}, 1
    s_mul_i32 s{sT2}, s{sT2}, {AWS}
    s_add_u32 s{sT2}, s{sT2}, {BW+2048}
    v_add_u32 v97, s{sT2}, v{EXW}
    s_bitcmp1_b32 s{sWV}, 0
    s_cbranch_scc1 {H1}""")
    for hh in range(2):
        snd=CACC+16*(1-hh); own=CACC+16*hh
        if hh==0: k("s_nop 1")
        for j in range(4): k(f"ds_write_b128 v96, {vr(snd+4*j,4)} offset:{1024*j}")
        k("s_waitcnt lgkmcnt(0)\ns_barrier")
        for j in range(4): k(f"ds_read_b128 {vr(80+4*j,4)}, v97 offset:{1024*j}")
        for j in range(4):
            k(f"s_waitcnt lgkmcnt({3-j})")
            k(f"v_pk_add_f32 {vr(80+4*j,2)}, {vr(80+4*j,2)}, {vr(own+4*j,2)}\nv_pk_add_f32 {vr(82+4*j,2)}, {vr(82+4*j,2)}, {vr(own+4*j+2,2)}")
        if hh==0: k(f"s_branch {HE}\n{H1}:")
    k(f"{HE}:"); k.dq=[]
    for j in range(4): k(f"v_cvt_pk_bf16_f32 v{112+2*j}, v{80+4*j}, v{81+4*j}\nv_cvt_pk_bf16_f32 v{113+2*j}, v{82+4*j}, v{83+4*j}")
    k("s_nop 0")
    for j in range(2):
        k(f"v_permlane16_swap_b32 v{112+4*j}, v{114+4*j}\nv_permlane16_swap_b32 v{113+4*j}, v{115+4*j}")
    for j in range(2): k.vm(f"buffer_store_dwordx4 {vr(112+4*j,4)}, v{YS}, {srd(SW)}, 0 offen offset:{1024*j} sc1","y")
    k.vm(f"buffer_load_dwordx4 v[136:139], v{XO}, {srd(SX)}, 0 offen","x")
    k.vm(f"buffer_load_dwordx4 v[140:143], v{XO}, {srd(SX)}, 0 offen offset:32","x")
    k.vm(f"buffer_load_dword v135, v{RS}, {srd(SW)}, 0 offen sc1","x")
    k.w(v="wd21")
    for j in range(11,22):
        for f in wd_tr(j): f()
    k.stamp('xchg')
    A2=16
    def g2mf(j):
        r=HR+8*(j%(DEPTH+1))
        return [f"v_mfma_f32_32x32x16_bf16 {vr(A2+16*(2*d+t),16)}, {ar(8*j+4*d,4)}, {vr(r+4*t,4)}, {'0' if j==0 else vr(A2+16*(2*d+t),16)}" for d,t in((1,1),(1,0),(0,1),(0,0))]
    SK=k.lab("SK")
    waited=False
    for j in range(22):
        fl=[]
        if j+DEPTH<22: fl+=hload(j+DEPTH)
        if j==DEPTH: fl+=[lambda: k.vm(f"buffer_store_byte v{ONEB}, v{FYS}, {srd(SW)}, 0 offen sc1","yf")]
        if j==12: fl+=[lambda: k.vm(f"buffer_load_dword v134, v{FYP}, {srd(SW)}, 0 offen sc1","yp")]
        if j==17:
            fl+=[lambda: poll("yp",134,FYP,SW,f"s{sONE}")]
            fl+=[lambda q=q: k.vm(f"buffer_load_dwordx4 {vr(112+4*q,4)}, v{YL}, {srd(SW)}, {'s%d'%sYQ if q else 0} offen sc1","yl") for q in range(2)]
        if j==21: k(f"s_cmp_ge_u32 s{sWV}, 2\ns_cbranch_scc1 {SK}")
        if j>=11 and not waited: k.w(v=f"h{j}",d=0); waited=True
        else: k.w(v=f"h{j}")
        weave(k,g2mf(j),fl,3)
    k(f"{SK}:")
    k.stamp('g2')
    k(f"""v_add_u32 v96, s{sAW}, v{EXW}
    v_add_u32 v97, s{sCWB}, v{EXW}""")
    for x in (1,2,3):
        k(f"s_xor_b32 s{sT0}, s{sWV}, {x}")
        if x<3: k(f"s_mul_i32 s{sT0}, s{sT0}, {AWS}\ns_add_u32 s{sT0}, s{sT0}, {4096*(x-1)}")
        else: k(f"s_mul_i32 s{sT0}, s{sT0}, {CWS}\ns_add_u32 s{sT0}, s{sT0}, {CW}")
        k(f"v_add_u32 v{97+x}, s{sT0}, v{EXW}")
    for x in (3,2,1):
        for a in range(4):
            k.ds(f"ds_write_b128 v{97 if x==3 else 96}, {vr(A2+16*x+4*a,4)} offset:{1024*a+(4096 if x==2 else 0)}")
    k.w(v="yl")
    for q in range(2): k.ds(f"ds_write_b128 v{YW}, {vr(112+4*q,4)} offset:{1024*q}")
    for a in range(4): k.ds(f"ds_read_b64_tr_b16 {vr(120+2*a,2)}, v{YR} offset:{512*a}","yt")
    k.w(d=0); k("s_barrier")
    for x in (1,2,3):
        for a in range(4): k.ds(f"ds_read_b128 {vr(144+16*(x-1)+4*a,4)}, v{97+x} offset:{1024*a}",f"rd{x}")
    for j in range(8): k(f"v_lshlrev_b32 v{80+2*j}, 16, v{120+j}\nv_and_b32 v{81+2*j}, s{sMSK}, v{120+j}")
    for x in (1,2,3):
        k.w(d=f"rd{x}")
        for j in range(8): k(f"v_pk_add_f32 {vr(A2+2*j,2)}, {vr(A2+2*j,2)}, {vr(144+16*(x-1)+2*j,2)}")
    for j in range(8): k(f"v_pk_fma_f32 {vr(A2+2*j,2)}, {vr(A2+2*j,2)}, v[134:135], {vr(80+2*j,2)} op_sel:[0,1,0] op_sel_hi:[1,1,1]")
    for j in range(8): k(f"v_lshlrev_b32 v{80+2*j}, 16, v{136+j}\nv_and_b32 v{81+2*j}, s{sMSK}, v{136+j}")
    for a in(0,2):
        for r in range(4): k(f"v_permlane32_swap_b32 v{A2+4*a+r}, v{A2+4*a+4+r}")
    for j in range(8):
        k(f"v_pk_add_f32 {vr(A2+2*j,2)}, {vr(A2+2*j,2)}, {vr(80+2*j,2)}\nv_cvt_pk_bf16_f32 v{100+j}, v{A2+2*j}, v{A2+2*j+1}")
        if j%4==3: k.vm(f"buffer_store_dwordx4 {vr(100+j-3,4)}, v{XO}, {srd(SO)}, 0 offen offset:{32*(j//4)}","o")
    if prof:
        k.stamp('epi'); k("s_waitcnt vmcnt(0) lgkmcnt(0)"); k.stamp('drain'); k("s_waitcnt lgkmcnt(0)"); k.stamp(); k.stamp()
        k("; STAMPS "+" ".join(k.names[:-2]))
        k("s_memrealtime s[94:95]\ns_waitcnt lgkmcnt(0)\nv_writelane_b32 v199, s94, 62\nv_writelane_b32 v199, s96, 63")
        k(f"s_lshl_b32 s{sT0}, s2, 2\ns_add_u32 s{sT0}, s{sT0}, s{sWV}\ns_lshl_b32 s{sT0}, s{sT0}, 8\ns_add_u32 s{sT0}, s{sT0}, {PROF}\nv_lshl_add_u32 v2, v1, 2, s{sT0}")
        k(f"buffer_store_dword v199, v2, {srd(SW)}, 0 offen")
        if pace:
            L=k.lab(); LP=k.lab()
            k(f"""s_cmp_lg_u32 s{sWV}, 0
            s_cbranch_scc1 {L}
            s_cmp_lg_u32 s2, {pwg}
            s_cbranch_scc1 {L}""")
            if pace==1: k(f"s_mov_b32 s{sT0}, 6000")
            if pace==2: k(f"s_sub_u32 s{sT0}, s94, s96\ns_lshl_b32 s{sT0}, s{sT0}, 2")
            if pace==3: k(f"v_readlane_b32 s{sT0}, v199, {k.names.index(pidx)}\ns_sub_u32 s{sT0}, s{sT0}, s34\ns_lshr_b32 s{sT0}, s{sT0}, {psh}\ns_add_u32 s{sT0}, s{sT0}, 4000")
            k(f"""s_min_u32 s{sT0}, s{sT0}, 30000
            s_mov_b32 s{sT2}, 100000
            {LP}:
            s_memrealtime s[94:95]
            s_waitcnt lgkmcnt(0)
            s_sub_u32 s{sT1}, s94, s96
            s_cmp_ge_u32 s{sT1}, s{sT0}
            s_cbranch_scc1 {L}
            s_sub_u32 s{sT2}, s{sT2}, 1
            s_cmp_lg_u32 s{sT2}, 0
            s_cbranch_scc1 {LP}
            {L}:""")
        if dbg:
            L=k.lab()
            k(f"""s_cmp_lg_u32 s{sWV}, 0
            s_cbranch_scc1 {L}
            s_and_b32 s{sT0}, s2, 0x18
            s_cmp_lg_u32 s{sT0}, 0
            s_cbranch_scc1 {L}
            s_sub_u32 s{sT0}, s94, s96
            v_writelane_b32 v199, s{sT0}, 2
            s_or_b32 s{sT0}, s94, 0x80000000
            s_not_b32 s{sT1}, s96
            s_or_b32 s{sT1}, s{sT1}, 0x80000000
            s_or_b32 s{sT2}, s96, 0x80000000
            v_mov_b32 v4, s{sT0}
            v_writelane_b32 v4, s{sT1}, 1
            v_writelane_b32 v4, s{sT2}, 2
            v_cmp_gt_u32 vcc, 3, v1
            v_lshlrev_b32 v6, 2, v1
            v_add_u32 v6, 52, v6
            v_mov_b32 v7, {hex(OOB)}
            v_cndmask_b32 v6, v7, v6, vcc
            buffer_atomic_umax v4, v6, {srd(SB)}, 0 offen sc1
            s_cmp_lg_u32 s2, {dbg-1}
            s_cbranch_scc1 {L}
            v_readlane_b32 s{sT0}, v199, 2
            v_readlane_b32 s{sT1}, v199, 14
            v_subrev_u32 v4, s34, v199
            s_sub_u32 s{sT1}, s{sT1}, s34
            v_writelane_b32 v4, s{sT0}, 2
            v_writelane_b32 v4, s{sT1}, 13
            v_cmp_gt_u32 vcc, 14, v1
            v_lshlrev_b32 v6, 2, v1
            v_add_u32 v6, -4, v6
            v_cndmask_b32 v6, v7, v6, vcc
            buffer_store_dword v4, v6, {srd(SB)}, 0 offen sc1
            {L}:""")
    k("s_endpgm")
    k(f"{CSL}:")
    k(f"""s_mul_i32 s{sT0}, s{sWV}, 3072
    s_lshr_b32 s{sT1}, s{sWV}, 1
    s_mul_i32 s{sT1}, s{sT1}, 96
    s_sub_u32 s{sT0}, s{sT0}, s{sT1}
    v_add_u32 v{WR}, s{sT0}, v{WR}
    v_mov_b32 v112, 0x3f803f80
    v_mov_b32 v113, v112
    v_mov_b32 v114, v112
    v_mov_b32 v115, v112
    s_mov_b32 s{sRING}, {2*SS}
    s_mov_b32 s{sCNT}, 0""")
    for r in range(16,112): k(f"v_mov_b32 v{r}, 0")
    def csdma():
        D=dma_list(f"s{sRING}","c")[5:]
        for f in D: f() if callable(f) else (k(f),k("s_nop 0"))
        for f in nextk: k(f)
    csdma()
    CL=k.lab("CL"); CN=k.lab("CN")
    k(f"{CL}:\ns_waitcnt vmcnt(12)\ns_cmp_lt_u32 s{sCNT}, 6\ns_cbranch_scc1 {CN}\ns_waitcnt vmcnt(0)\n{CN}:")
    for u in range(6):
        for h in range(2): k(f"ds_read_b64_tr_b16 {vr(116+4*u+2*h,2)}, v{WR} offset:{768*h+32*u}")
    CN2=k.lab("CN")
    k(f"""s_add_u32 s{sRING}, s{sRING}, s{sC1}
    s_cmp_eq_u32 s{sRING}, {3*SS}
    s_cselect_b32 s{sRING}, 0, s{sRING}
    s_cmp_eq_u32 s{sRING}, {2*SS}
    s_cselect_b32 s{sDL}, s{sC2}, s{sC1}
    v_add_u32 v{WR}, s{sDL}, v{WR}
    s_waitcnt lgkmcnt(0)
    s_cmp_ge_u32 s{sCNT}, 5
    s_cbranch_scc1 {CN2}""")
    csdma()
    k(f"{CN2}:")
    for u in range(6): k(f"v_mfma_f32_32x32x16_bf16 {vr(16+16*u,16)}, v[112:115], {vr(116+4*u,4)}, {vr(16+16*u,16)}")
    k(f"s_add_u32 s{sCNT}, s{sCNT}, 1\ns_cmp_lt_u32 s{sCNT}, 8\ns_cbranch_scc1 {CL}")
    k(f"""s_mul_i32 s{sT0}, s{sWV}, 768
    s_add_u32 s{sT0}, s{sT0}, {PT}
    v_and_b32 v2, 31, v1
    v_lshl_add_u32 v2, v2, 2, s{sT0}
    v_min_u32 v3, 191, v0
    v_lshlrev_b32 v3, 2, v3
    v_add_u32 v3, {PT}, v3
    s_nop 7""")
    for u in range(6): k(f"ds_write_b32 v2, v{16+16*u} offset:{128*u}")
    k("s_waitcnt lgkmcnt(0)\ns_barrier")
    for j in range(4): k(f"ds_read_b32 v{4+j}, v3 offset:{768*j}")
    k(f"""s_waitcnt lgkmcnt(0)
    v_add_f32 v4, v4, v5
    v_add_f32 v6, v6, v7
    v_add_f32 v4, v4, v6
    v_cvt_pk_bf16_f32 v5, v4, v4
    v_and_b32 v5, s{sMSK}, v5
    v_sub_f32 v6, v4, v5
    v_cvt_pk_bf16_f32 v5, v5, v6
    buffer_store_dword v5, v{CSA}, {srd(SW)}, 0 offen sc1""")
    k.vq=[]; k.dq=[]
    lnpoll(); poll("lnp",PL,LNP,SB,f"s{sONE}")
    for f in uloads(): f()
    k("v_mov_b32 v184, 0\nv_mov_b32 v185, 0\nv_mov_b32 v186, 0\nv_mov_b32 v187, 0")
    for j in range(8):
        for f in wd_dma(j): f() if callable(f) else (k(f),k("s_nop 0"))
    zpad[0]()
    for f in uwrite(): f()
    k("s_waitcnt lgkmcnt(0)\ns_barrier")
    for f in conv_reads(0): f()
    k(f"s_waitcnt vmcnt(0) lgkmcnt(0)\ns_branch {MRG}")
    for t in k.tail: k(t)
    k(f"{END}:")
    return k
import struct
def f2b(x): return struct.unpack('<I',struct.pack('<f',x))[0]
if __name__=='__main__':
    out=sys.argv[1]; opts=dict(a.split('=') for a in sys.argv[2:])
    opts={a:(int(b) if b.lstrip('-').isdigit() else b) for a,b in opts.items()}
    k=gen(**opts)
    hdr="".join(l for l in open('cdna_kernels/'+NAME[:-7]+'.s.ref') if l.startswith(';') and '@launch' not in l)
    txt=module([k],[(None,256,256,163840)],hdr)
    open(out,'w').write(txt)
    print("hazards:",haz.check(txt.split('\n')))
```

```python
import sys
sys.path.insert(0,'w')
from gl import *
import haz
NAME="parallel_sum__ssm_conv_s4__glu_gated_bilinear__prompt_kernel"
XNB=0; STATS=0x200000; FH=0x210000; FY=0x218000; PROF=0x220000; HB=0x400000; YB=0xA00000; CS=0xC00000; WSEND=CS+86*128
SS=41216; WG_O=16384; WU_D=12320
TAB=82432; TABW=16416; KC=123648; KCS=4160; PT=156928; PTS=3088
UO=82432; US=4608; CW=91648; CWS=6144; AWS=10240; BW=41216
OOB=0x80000000
PX=95744; PO=(0,13,77,239)
class G(K):
    def __init__(s,*a,**kw):
        super().__init__(*a,**kw); s.vq=[]; s.dq=[]; s.tail=[]; s.nst=0; s.names=['start']
    def vm(s,t,tag=None):
        if t.endswith(' lds') and ' m0,' in s.L[-1]: s("s_nop 0")
        s(t); s.vq.append(tag)
    def ds(s,t,tag=None): s(t); s.dq.append(tag)
    def nv(s,tag):
        i=max(j for j,x in enumerate(s.vq) if x==tag); return min(len(s.vq)-1-i,63)
    def nd(s,tag):
        i=max(j for j,x in enumerate(s.dq) if x==tag); return min(len(s.dq)-1-i,15)
    def w(s,v=None,d=None):
        o=[]
        if v is not None: o.append(f"vmcnt({s.nv(v) if isinstance(v,str) else v})")
        if d is not None: o.append(f"lgkmcnt({s.nd(d) if isinstance(d,str) else d})")
        s("s_waitcnt "+" ".join(o))
    def stamp(s,name=''):
        if s.prof:
            n=s.nst; R=(90,92,98,100); a=R[n&3]
            s(f"s_memtime s[{a}:{a+1}]")
            if n>=2: s(f"v_writelane_b32 v199, s{R[(n-2)&3]}, {n-1}")
            elif n==0: s("v_writelane_b32 v199, s34, 0")
            s.names.append(name); s.nst+=1
def vr(a,n): return f"v[{a}:{a+n-1}]" if n>1 else f"v{a}"
def ar(a,n): return f"a[{a}:{a+n-1}]" if n>1 else f"a{a}"
def weave(k,mf,fl,per,start=0):
    fl=list(fl)
    for i,m in enumerate(mf):
        k(m)
        if i>=start:
            n=per[i] if isinstance(per,(list,tuple)) else per
            for _ in range(n):
                if fl:
                    f=fl.pop(0); f() if callable(f) else k(f)
    for f in fl: f() if callable(f) else k(f)

SX,SG,SU,SD,SW,SO,SB=36,40,44,48,52,56,60
sXCD,sI,sWV,sP,sFT,sMT,sRB,sLD,sDK=64,65,66,67,68,69,70,71,72
sKS,sOX,sOW,sMX,sMG,sRING,sDL,sCNT,sC1,sC2=73,74,75,76,77,78,79,80,81,82
sH0,sH1,sMSK,sONE,sAW,sCWB,sT0,sT1,sT2,sT3=83,84,85,86,87,88,26,27,28,29
sUQ=30; sYQ=31; sTB=32; sDB=33
def srd(d): return f"s[{d}:{d+3}]"
XD=200; WD=204; XR=207; WR=211; KCW=212; EX=213
CA=224; CB=225; WDV=226; TA=228; TC=230; HL=232; HS=234; UL=237; UW=238; UZ=239; ST=240; CSA=241
XO=242; RS=243; YL=244; YW=245; YR=246; YS=247; EXW=248; FHP=249; FYP=250; FHS=251; FYS=252; LNP=253; LNF=254; ONEB=255

def gen(prof=False, ROT1=True, ROT2=True, DEPTH=5, dbg=0, pace=0, pidx=14, psh=3, pwg=0, PF=1, PFS=128, probe=0, pidx2=None, OSF=''):
    k=G(NAME,vgpr=256,agpr=256,sgpr=102); k.prof=prof; k.pst=90
    END=k.lab("END")
    if prof: k("s_memtime s[34:35]\ns_memrealtime s[96:97]")
    k(f"s_cmp_ge_u32 s2, 0x100\ns_cbranch_scc1 {END}")
    k("s_load_dwordx16 s[4:19], s[0:1], 0\ns_load_dwordx2 s[20:21], s[0:1], 64")
    if PF:
        PC=k.lab("PC")
        k(f'''s_getpc_b64 s[22:23]
        {PC}:
        v_mul_u32_u24 v2, {PFS}, v0
        v_mov_b32 v5, s23
        v_add_u32 v3, {PFS*256}, v2
        v_min_u32 v2, {END}-{PC}, v2
        v_min_u32 v3, {END}-{PC}, v3
        v_add_co_u32 v4, vcc, s22, v2
        v_addc_co_u32 v5, vcc, 0, v5, vcc
        global_load_dword v196, v[4:5], off
        v_mov_b32 v5, s23
        v_add_co_u32 v4, vcc, s22, v3
        v_addc_co_u32 v5, vcc, 0, v5, vcc''')
        if PFS<128: k("global_load_dword v197, v[4:5], off")
    for d,o in((SX,0),(SG,80),(SU,88),(SD,96),(SO,104),(SB,112),(SW,120)): k(f"s_load_dwordx2 s[{d}:{d+1}], s[0:1], {o}")
    for d,n in((SX,0x200000),(SG,512*2752),(SU,512*2752),(SD,1376*1024),(SO,0x200000),(SB,256),(SW,WSEND)):
        k(f"s_mov_b32 s{d+2}, {hex(n)}\ns_mov_b32 s{d+3}, 0x00020000")
    k(f"""v_lshrrev_b32 v2, 6, v0
    v_and_b32 v1, 63, v0
    v_readfirstlane_b32 s{sWV}, v2
    s_and_b32 s{sXCD}, s2, 7
    s_lshr_b32 s{sI}, s2, 3
    s_lshl_b32 s{sP}, s{sXCD}, 5
    s_add_u32 s{sP}, s{sP}, s{sI}
    s_and_b32 s{sT0}, s{sXCD}, 1
    s_lshr_b32 s{sT1}, s{sXCD}, 1
    s_lshl_b32 s{sRB}, s{sT0}, 7
    s_lshl_b32 s{sT2}, s{sT1}, 5
    s_add_u32 s{sRB}, s{sRB}, s{sT2}
    s_add_u32 s{sRB}, s{sRB}, s{sI}
    s_mul_i32 s{sT2}, s{sT1}, 30
    s_add_u32 s{sT2}, s{sT2}, s{sI}
    s_lshr_b32 s{sFT}, s{sT2}, 3
    s_and_b32 s{sT2}, s{sT2}, 7
    s_lshl_b32 s{sMT}, s{sT0}, 3
    s_add_u32 s{sMT}, s{sMT}, s{sT2}
    s_lshl_b32 s{sT1}, s{sT1}, 2
    s_lshl_b32 s{sT0}, s{sT0}, 1
    s_add_u32 s{sT1}, s{sT1}, s{sT0}
    s_add_u32 s{sT1}, s{sT1}, s{sI}
    s_sub_u32 s{sT1}, s{sT1}, 30
    s_cmp_ge_u32 s{sI}, 30
    s_cselect_b32 s{sFT}, s{sT1}, s{sFT}
    s_mov_b32 s{sMSK}, 0xffff0000""")
    k(f"""s_lshl_b32 s{sT0}, s{sRB}, 13
    s_lshl_b32 s{sT1}, s{sWV}, 11
    s_add_u32 s{sT0}, s{sT0}, s{sT1}
    v_lshl_add_u32 v3, v1, 4, s{sT0}
    s_lshl_b32 s{sT0}, s{sP}, 9
    v_lshl_add_u32 v4, v0, 1, s{sT0}""")
    for j in range(6): k(f"v_mov_b32 v{60+j}, 0")
    k(f"""s_lshl_b32 s{sT0}, s{sMT}, 17
    s_lshl_b32 s{sT1}, s{sWV}, 15
    s_add_u32 s{sT0}, s{sT0}, s{sT1}
    v_lshrrev_b32 v5, 3, v1
    v_lshl_add_u32 v5, v5, 10, s{sT0}
    v_lshrrev_b32 v6, 4, v1
    v_xor_b32 v7, v1, v6
    v_and_b32 v7, 7, v7
    v_lshl_add_u32 v{XD}, v7, 4, v5
    v_xor_b32 v5, 64, v{XD}
    v_add_u32 v{XD+1}, 7168, v5
    v_add_u32 v{XD+2}, 14336, v{XD}
    v_add_u32 v{XD+3}, 21504, v5
    s_mul_i32 s{sT0}, s{sFT}, 192
    s_mul_i32 s{sT1}, s{sWV}, {16*2752}""")
    for q in range(3):
        k(f"""v_add_u32 v5, {64*q}, v1
        v_mul_u32_u24 v7, 5462, v5
        v_lshrrev_b32 v7, 16, v7
        v_mul_u32_u24 v8, 12, v7
        v_sub_u32 v8, v5, v8
        v_lshl_add_u32 v8, v8, 4, s{sT0}
        v_min_u32 v8, 2736, v8
        v_mul_u32_u24 v7, 2752, v7
        v_add3_u32 v{WD+q}, v7, v8, s{sT1}""")
        if q: k(f"v_subrev_u32 v{WD+q}, {1024*q}, v{WD+q}")
    if ROT1: k(f"s_add_u32 s{sKS}, s{sMT}, s{sFT}\ns_and_b32 s{sKS}, s{sKS}, 3\ns_lshl_b32 s{sKS}, s{sKS}, 1")
    else: k(f"s_mov_b32 s{sKS}, 0")
    k(f"""s_lshl_b32 s{sMX}, s{sWV}, 12
    s_mul_i32 s{sMG}, s{sWV}, 3072
    s_add_u32 s{sMG}, s{sMG}, {WG_O}
    s_lshl_b32 s{sOX}, s{sKS}, 7
    s_mul_i32 s{sOW}, s{sKS}, {64*2752}
    s_lshl_b32 s{sT0}, s{sP}, 2""")
    k.stamp('pre')
    k("s_waitcnt lgkmcnt(0)")
    k.stamp('karg')
    k(f"s_load_dword s{sLD}, s[18:19], s{sT0}\ns_load_dword s{sDK}, s[20:21], s{sT0}")
    k.vm(f"buffer_load_dwordx4 v[10:13], v3, {srd(SX)}, 0 offen","row")
    k.vm(f"buffer_load_dwordx4 v[14:17], v3, {srd(SX)}, 0 offen offset:1024","row")
    for j in range(6): k.vm(f"global_load_short_d16_hi v{60+j}, v4, s[{6+2*j}:{7+2*j}]","par")
    def dma_list(ring,tag):
        L=[]
        if isinstance(ring,int):
            a=lambda s: f"s_add_u32 m0, s{s}, {ring}" if ring else f"s_mov_b32 m0, s{s}"
        else: a=lambda s: f"s_add_u32 m0, s{s}, {ring}"
        L.append(a(sMX))
        for q in range(4): L.append(lambda q=q: k.vm(f"buffer_load_dwordx4 v{XD+q}, {srd(SX)}, s{sOX} offen offset:{1024*q} lds",tag))
        L.append(a(sMG))
        for q in range(3): L.append(lambda q=q: k.vm(f"buffer_load_dwordx4 v{WD+q}, {srd(SG)}, s{sOW} offen offset:{1024*q} lds",tag))
        L.append(f"s_add_u32 m0, m0, {WU_D}")
        for q in range(3): L.append(lambda q=q: k.vm(f"buffer_load_dwordx4 v{WD+q}, {srd(SU)}, s{sOW} offen offset:{1024*q} lds",tag))
        return L
    nextk=[f"s_add_u32 s{sKS}, s{sKS}, 1",f"s_and_b32 s{sKS}, s{sKS}, 7",f"s_lshl_b32 s{sOX}, s{sKS}, 7",f"s_mul_i32 s{sOW}, s{sKS}, {64*2752}"]
    for f in dma_list(0,"d0"):
        if callable(f): f()
        else: k(f); k("s_nop 0")
    for f in nextk: k(f)
    k.stamp('dma0')
    if probe==1: k("s_waitcnt vmcnt(16)"); k.stamp('rowl'); k("s_waitcnt vmcnt(0)"); k.stamp('land0'); k("s_waitcnt lgkmcnt(0)")
    k(f"""v_lshrrev_b32 v2, 4, v1
    v_bfe_u32 v3, v1, 2, 2
    v_and_b32 v4, 3, v1
    v_and_b32 v5, 31, v1
    v_lshrrev_b32 v6, 5, v1
    v_and_b32 v7, 15, v1
    s_and_b32 s{sT0}, s{sWV}, 1
    s_lshr_b32 s{sT1}, s{sWV}, 1""")
    k(f"""v_bfe_u32 v8, v1, 1, 3
    v_xor_b32 v8, v8, v6
    v_lshlrev_b32 v8, 4, v8
    v_lshl_add_u32 v8, v5, 7, v8
    s_lshl_b32 s{sT2}, s{sT0}, 13
    v_add_u32 v{XR}, s{sT2}, v8
    v_xor_b32 v{XR+1}, 32, v{XR}
    v_xor_b32 v{XR+2}, 64, v{XR}
    v_xor_b32 v{XR+3}, 0x60, v{XR}""")
    k(f"""v_and_b32 v8, 1, v2
    v_mul_u32_u24 v9, {WU_D}, v8
    v_lshl_add_u32 v18, v6, 3, v3
    v_mul_u32_u24 v18, 192, v18
    v_add_u32 v9, v9, v18
    v_lshl_add_u32 v9, v4, 3, v9
    s_mul_i32 s{sT2}, s{sT1}, 96
    s_add_u32 s{sT2}, s{sT2}, {WG_O}
    v_add_u32 v{WR}, s{sT2}, v9""")
    k(f"v_lshlrev_b32 v9, 4, v0\nv_add_u32 v{KCW}, {KC}, v9")
    k(f"""v_lshlrev_b32 v9, 3, v0
    v_sub_u32 v18, 2047, v9
    v_cvt_f32_i32 v18, v18
    v_sub_u32 v19, {2047+0x4280}, v9
    s_mov_b32 s{sT2}, {768+0x4280}
    s_mov_b32 s{sT3}, {PX-4*0x4280}""")
    for i in range(0,11,2):
        k(f"v_subrev_f32 v24, {float(i)}, v18" if i in(0,2,4) else f"v_subrev_f32 v24, {hex(f2b(float(i)))}, v18")
        k(f"v_subrev_f32 v25, 1.0, v24\nv_cvt_pk_bf16_f32 v24, v24, v25")
        for h in range(2):
            if i+h>10: break
            k(f"v_and_b32 v25, 0xffff, v24" if h==0 else "v_lshrrev_b32 v25, 16, v24")
            k(f"""v_subrev_u32 v26, {i+h}, v19
            v_min_i32 v26, {128+0x4280}, v26
            v_med3_i32 v25, v25, v26, s{sT2}
            v_lshl_add_u32 v{EX+i+h}, v25, 2, s{sT3}""")
    k(f"""s_mul_i32 s{sT2}, s{sT1}, {4*KCS}
    s_lshl_b32 s{sT3}, s{sT0}, 8
    s_sub_u32 s{sT2}, s{sT2}, s{sT3}
    s_add_u32 s{sT2}, s{sT2}, {KC+4056-3776}
    v_mul_u32_u24 v9, {KCS}, v4
    v_lshl_add_u32 v9, v2, 4, v9
    v_lshlrev_b32 v18, 3, v3
    v_sub_u32 v9, v9, v18
    v_add_u32 v{CA}, s{sT2}, v9
    s_mul_i32 s{sT2}, s{sT1}, {US}
    s_sub_u32 s{sT2}, s{sT2}, s{sT3}
    s_add_u32 s{sT2}, s{sT2}, {UO+256}
    v_lshlrev_b32 v9, 4, v2
    v_lshl_add_u32 v9, v7, 5, v9
    v_add_u32 v{CB}, s{sT2}, v9""")
    k(f"""s_lshl_b32 s{sT2}, s{sP}, 1
    s_add_u32 s{sT2}, s{sT2}, s{sT1}
    s_lshl_b32 s{sT2}, s{sT2}, 12
    s_lshl_b32 s{sT3}, s{sT0}, 11
    s_add_u32 s{sT2}, s{sT2}, s{sT3}
    s_add_u32 s{sT2}, s{sT2}, {YB}
    v_lshlrev_b32 v9, 9, v8
    v_lshl_add_u32 v9, v7, 5, v9
    v_lshl_add_u32 v9, v6, 4, v9
    v_add_u32 v{YS}, s{sT2}, v9""")
    k(f"""s_lshr_b32 s{sT2}, s{sI}, 3
    s_lshl_b32 s{sTB}, s{sXCD}, 2
    s_add_u32 s{sTB}, s{sTB}, s{sT2}
    s_and_b32 s{sDB}, s{sI}, 7""")
    k(f"""v_lshlrev_b32 v9, 2, v8
    v_xor_b32 v9, v9, v1
    v_and_b32 v9, 7, v9
    v_lshlrev_b32 v9, 4, v9
    v_lshrrev_b32 v18, 3, v1
    v_lshl_add_u32 v9, v18, 10, v9
    s_lshl_b32 s{sT2}, s{sDB}, 7
    v_add_u32 v{WDV}, s{sT2}, v9
    v_add_u32 v{WDV+1}, 7168, v{WDV}""")
    k(f"""v_lshl_add_u32 v9, v6, 2, v3
    v_lshlrev_b32 v9, 7, v9
    v_lshrrev_b32 v18, 1, v3
    v_xor_b32 v18, s{sT1}, v18
    v_lshl_add_u32 v9, v18, 6, v9
    v_lshl_add_u32 v9, v8, 5, v9
    v_lshl_add_u32 v9, v4, 3, v9
    s_mul_i32 s{sAW}, s{sWV}, {AWS}
    s_mul_i32 s{sCWB}, s{sWV}, {CWS}
    s_add_u32 s{sCWB}, s{sCWB}, {CW}
    v_add_u32 v{TA}, s{sAW}, v9
    v_xor_b32 v{TA+1}, 64, v{TA}
    v_add_u32 v{TC}, s{sCWB}, v9
    v_xor_b32 v{TC+1}, 64, v{TC}""")
    k(f"""s_lshl_b32 s{sT2}, s{sTB}, 1
    s_add_u32 s{sT2}, s{sT2}, s{sT0}
    s_mul_i32 s{sT3}, s{sT2}, 88064
    s_add_u32 s{sT3}, s{sT3}, {HB}
    v_lshl_add_u32 v{HL}, v1, 4, s{sT3}
    s_xor_b32 s{sT3}, s{sT2}, 1
    s_mul_i32 s{sT3}, s{sT3}, 88064
    s_add_u32 s{sT3}, s{sT3}, {HB}
    v_lshl_add_u32 v{HL+1}, v1, 4, s{sT3}""")
    k(f"""s_lshl_b32 s{sT3}, s{sT2}, 5
    v_add_u32 v9, s{sT3}, v5
    v_lshlrev_b32 v18, 3, v9
    v_add_u32 v{RS}, {STATS+4}, v18
    s_lshl_b32 s{sT3}, s{sDB}, 1
    s_add_u32 s{sT3}, s{sT3}, s{sT1}
    s_lshl_b32 s{sYQ}, s{sT3}, 6
    v_lshlrev_b32 v9, 10, v9
    v_lshl_add_u32 v9, v6, 4, v9
    v_add_u32 v{XO}, s{sYQ}, v9
    s_lshl_b32 s{sYQ}, s{sT3}, 17
    s_lshl_b32 s{sT2}, s{sT2}, 6
    s_add_u32 s{sT2}, s{sT2}, s{sYQ}
    s_add_u32 s{sT2}, s{sT2}, {YB}
    v_lshrrev_b32 v9, 2, v1
    v_lshlrev_b32 v9, 12, v9
    v_lshl_add_u32 v9, v4, 4, v9
    v_add_u32 v{YL}, s{sT2}, v9
    s_mov_b32 s{sYQ}, 0x10000
    s_lshl_b32 s{sT2}, s{sWV}, 11
    s_add_u32 s{sT2}, s{sT2}, {KC}
    v_lshl_add_u32 v{YW}, v1, 4, s{sT2}
    v_lshl_add_u32 v9, v6, 2, v3
    v_lshlrev_b32 v9, 6, v9
    v_lshl_add_u32 v9, v8, 5, v9
    v_lshl_add_u32 v9, v4, 3, v9
    v_add_u32 v{YR}, s{sT2}, v9
    s_lshl_b32 s{sT3}, s{sT3}, 11
    s_add_u32 s{sT3}, s{sT3}, {FY}
    v_lshl_add_u32 v{FYP}, v7, 7, s{sT3}
    s_lshr_b32 s{sT2}, s{sTB}, 1
    s_lshl_b32 s{sT2}, s{sT2}, 11
    s_add_u32 s{sT2}, s{sT2}, {FH}
    v_min_u32 v9, 14, v7
    v_lshl_add_u32 v{FHP}, v9, 7, s{sT2}
    v_lshlrev_b32 v{EXW}, 4, v1
    v_lshlrev_b32 v{LNP}, 2, v1""")
    k(f"""s_mul_i32 s{sT2}, s{sFT}, 6
    s_mul_i32 s{sT3}, s{sT1}, 3
    s_add_u32 s{sT2}, s{sT2}, s{sT3}
    s_lshl_b32 s{sT3}, s{sT2}, 7
    s_add_u32 s{sT3}, s{sT3}, {CS}
    v_lshl_add_u32 v9, v1, 2, s{sT3}
    v_lshl_or_b32 v{CSA}, v6, 31, v9""")
    for j in range(3):
        k(f"""s_add_u32 s{sT3}, s{sT2}, {j}
        s_cmp_lt_u32 s{sT3}, 86
        s_cselect_b32 s{sH0}, 0, {hex(OOB)}
        s_lshl_b32 s{sT3}, s{sT3}, 10
        s_or_b32 s{sT3}, s{sT3}, s{sH0}
        v_lshl_add_u32 v{HS+j}, v1, 4, s{sT3}""")
    k(f"""s_lshl_b32 s{sT2}, s{sMT}, 1
    s_add_u32 s{sT2}, s{sT2}, s{sT0}
    s_lshl_b32 s{sT3}, s{sT2}, 9
    s_add_u32 s{sT3}, s{sT3}, {STATS}
    v_lshl_add_u32 v{ST}, v5, 3, s{sT3}
    s_mul_i32 s{sH0}, s{sT2}, {2*88064}
    s_add_u32 s{sH0}, s{sH0}, {HB}
    s_add_u32 s{sH1}, s{sH0}, 88064""")
    k(f"""v_lshrrev_b32 v9, 1, v0
    v_and_b32 v18, 1, v0
    s_lshl_b32 s{sT2}, s{sP}, 5
    v_lshl_add_u32 v19, v18, 4, s{sT2}
    v_lshl_add_u32 v{UL}, v9, 13, v19
    v_mul_u32_u24 v18, {US}, v18
    v_lshl_add_u32 v18, v9, 4, v18
    v_add_u32 v{UW}, {UO+480}, v18
    v_min_u32 v9, 29, v5
    v_mul_u32_u24 v18, {US}, v6
    v_lshl_add_u32 v18, v9, 4, v18
    v_add_u32 v{UZ}, {UO}, v18
    s_mov_b32 s{sUQ}, 0x100000""")
    k(f"""v_cmp_eq_u32 vcc, 0, v1
    v_mov_b32 v9, {hex(OOB)}
    s_lshl_b32 s{sT2}, s{sMT}, 4
    s_add_u32 s{sT2}, s{sT2}, s{sFT}
    s_lshl_b32 s{sT2}, s{sT2}, 7
    s_add_u32 s{sT2}, s{sT2}, {FH}
    s_cmp_ge_u32 s{sI}, 30
    s_cselect_b32 s{sT2}, {hex(OOB)}, s{sT2}
    s_lshl_b32 s{sT3}, s{sP}, 7
    s_add_u32 s{sT3}, s{sT3}, {FY}
    v_mov_b32 v18, s{sT2}
    v_mov_b32 v19, s{sT3}
    v_cndmask_b32 v24, v19, v18, vcc
    v_add_u32 v18, s{sWV}, v18
    v_add_u32 v19, s{sWV}, v19
    v_cndmask_b32 v{FHS}, v9, v18, vcc
    v_cndmask_b32 v{FYS}, v9, v19, vcc
    v_cmp_gt_u32 vcc, 2, v0
    v_mov_b32 v18, s2
    v_mov_b32 v{ONEB}, 1
    v_cndmask_b32 v58, v9, v24, vcc
    v_cmp_eq_u32 vcc, 0, v0
    s_mov_b32 s{sONE}, 0x01010101
    s_mov_b32 s{sC1}, {SS}
    v_cndmask_b32 v{LNF}, v9, v18, vcc
    s_mov_b32 s{sC2}, {-2*SS}""")
    k(f"""s_mul_i32 s{sT2}, s{sWV}, 22
    s_cmp_eq_u32 s{sWV}, 3
    s_cselect_b32 s{sT2}, 65, s{sT2}
    s_sub_u32 s{sT3}, 22, s{sT1}""")
    if ROT2:
        k(f"""s_mul_i32 s{sCNT}, s{sDB}, 3
        s_lshr_b32 s{sDL}, s{sI}, 3
        s_mul_i32 s{sDL}, s{sDL}, 5
        s_add_u32 s{sCNT}, s{sCNT}, s{sDL}
        v_add_u32 v9, s{sCNT}, v1""")
    else: k("v_mov_b32 v9, v1")
    for _ in range(3):
        k(f"v_subrev_u32 v18, s{sT3}, v9\nv_min_u32 v9, v9, v18")
    k(f"v_add_u32 v9, s{sT2}, v9\nv_lshlrev_b32 v59, 14, v9")
    k(f"""s_mul_i32 s{sT2}, s{sWV}, {TABW}
    s_add_u32 s{sT2}, s{sT2}, {TAB}
    v_lshl_add_u32 v56, v1, 2, s{sT2}
    v_mul_u32_u24 v9, 288, v7
    v_lshl_add_u32 v9, v2, 4, v9
    v_add_u32 v57, s{sT2}, v9
    v_mul_u32_u24 v9, 320, v3
    v_lshl_add_u32 v9, v2, 5, v9
    v_lshl_add_u32 v9, v4, 3, v9
    v_add_u32 v54, s{sT2}, v9
    s_mul_i32 s{sT2}, s{sWV}, 640
    s_add_u32 s{sT2}, s{sT2}, {TAB}
    v_mul_u32_u24 v9, {TABW}, v2
    v_lshl_add_u32 v9, v7, 4, v9
    v_add_u32 v55, s{sT2}, v9
    s_lshl_b32 s{sT2}, s{sRB}, 6
    s_lshl_b32 s{sT3}, s{sWV}, 4
    s_add_u32 s{sT2}, s{sT2}, s{sT3}
    s_add_u32 s{sT2}, s{sT2}, {STATS}
    v_lshl_add_u32 v9, v6, 3, s{sT2}
    v_cmp_eq_u32 vcc, 0, v5
    v_mov_b32 v18, {hex(OOB)}
    s_lshl_b32 s{sT2}, s{sRB}, 13
    s_lshl_b32 s{sT3}, s{sWV}, 11
    v_cndmask_b32 v53, v18, v9, vcc
    s_add_u32 s{sT2}, s{sT2}, s{sT3}
    v_lshl_add_u32 v52, v1, 4, s{sT2}""")
    k(f"""s_lshl_b32 s{sT3}, s{sWV}, 3
    s_lshr_b32 s{sT2}, {hex(sum(o<<(8*j) for j,o in enumerate(PO)))}, s{sT3}
    s_and_b32 s{sT2}, s{sT2}, 0xff
    s_lshl_b32 s{sT2}, s{sT2}, 8
    s_add_u32 s{sT2}, s{sT2}, {PX}
    v_mov_b32 v180, s{sT2}
    v_lshlrev_b32 v9, 5, v7
    v_lshl_add_u32 v9, v8, 4, v9
    v_lshl_add_u32 v9, v6, 9, v9
    v_add_u32 v176, s{sT2}, v9
    v_sub_u32 v9, 4, v6
    v_lshlrev_b32 v9, v9, v7
    v_lshl_add_u32 v9, v2, 8, v9
    s_add_u32 s{sT3}, s{sT2}, 1024
    v_add_u32 v177, s{sT3}, v9
    v_mul_u32_u24 v9, 120, v6
    v_add3_u32 v178, v177, v9, 8
    v_lshlrev_b32 v9, 2, v7
    v_lshl_add_u32 v9, v2, 8, v9
    s_add_u32 s{sT3}, s{sT2}, 2048
    v_add_u32 v179, s{sT3}, v9
    s_waitcnt lgkmcnt(0)
    s_lshl_b32 s{sT1}, s{sT1}, 4
    s_lshr_b32 s{sLD}, s{sLD}, s{sT1}
    s_lshl_b32 s{sLD}, s{sLD}, 16
    s_lshr_b32 s{sDK}, s{sDK}, s{sT1}
    s_lshl_b32 s{sDK}, s{sDK}, 16
    s_cmp_eq_u32 s{sT0}, 0
    s_cselect_b32 s{sDK}, s{sDK}, 0
    v_cmp_eq_u32 vcc, 0, v1
    v_mov_b32 v9, s{sDK}
    v_mov_b32 v165, 0
    v_cndmask_b32 v164, 0, v9, vcc
    v_mov_b32 v166, 0
    v_mov_b32 v167, 0""")
    k.dq=[]
    for j in range(22): k(f"v_readlane_b32 s{4+j}, v59, {j}")
    k.stamp('addr')
    k.w(v="row")
    k.stamp('row')
    for j in range(8):
        k(f"v_lshlrev_b32 v{20+2*j}, 16, v{10+j}\nv_and_b32 v{21+2*j}, s{sMSK}, v{10+j}")
    def red2():
        k("""s_nop 1
        v_permlane32_swap_b32 v40, v41
        v_add_f32 v40, v40, v41
        v_mov_b32 v41, v40
        s_nop 1
        v_permlane16_swap_b32 v40, v41
        v_add_f32 v40, v40, v41""")
        for r in(8,4,2,1): k(f"s_nop 1\nv_add_f32_dpp v40, v40, v40 row_ror:{r} row_mask:0xf bank_mask:0xf")
        k("v_mul_f32 v40, 0x3b000000, v40")
    for b,d in((20,40),(28,41)):
        k(f"""v_pk_add_f32 v[36:37], v[{b}:{b+1}], v[{b+2}:{b+3}]
        v_pk_add_f32 v[38:39], v[{b+4}:{b+5}], v[{b+6}:{b+7}]
        v_pk_add_f32 v[36:37], v[36:37], v[38:39]
        v_add_f32 v{d}, v36, v37""")
    red2()
    k("""v_mov_b32 v42, v40
    v_mov_b32 v43, v40
    v_cvt_pk_bf16_f32 v50, -v40, -v40
    s_nop 0
    v_permlane32_swap_b32 v42, v43""")
    for h,(b,d) in enumerate(((20,40),(28,41))):
        for j in range(4):
            k(f"v_pk_add_f32 v[38:39], v[{b+2*j}:{b+2*j+1}], v[42:43] op_sel:[0,{h}] op_sel_hi:[1,{h}] neg_lo:[0,1] neg_hi:[0,1]")
            k("v_pk_mul_f32 v[36:37], v[38:39], v[38:39]" if j==0 else "v_pk_fma_f32 v[36:37], v[38:39], v[38:39], v[36:37]")
        k(f"v_add_f32 v{d}, v36, v37")
    red2()
    k(f"""v_cvt_pk_bf16_f32 v40, v40, v40
    v_and_b32 v40, s{sMSK}, v40
    v_add_f32 v40, 0x3727c5ac, v40
    v_cvt_pk_bf16_f32 v40, v40, v40
    v_and_b32 v40, s{sMSK}, v40
    v_sqrt_f32 v40, v40
    v_and_b32 v41, s{sMSK}, v50
    v_cvt_pk_bf16_f32 v40, v40, v40
    v_and_b32 v40, s{sMSK}, v40
    v_rcp_f32 v46, v40
    s_nop 0
    v_mul_f32 v47, v41, v46
    v_mul_f32 v51, v46, v46
    v_mov_b32 v48, v46
    v_mov_b32 v49, v47
    s_nop 0
    v_permlane32_swap_b32 v46, v48
    v_permlane32_swap_b32 v47, v49""")
    k.vm(f"buffer_store_dwordx2 v[50:51], v53, {srd(SW)}, 0 offen sc1","lnst")
    for h,b in enumerate((20,28)):
        P=f"v[{46+2*h}:{47+2*h}]"
        for j in range(4):
            k(f"v_pk_fma_f32 v[{b+2*j}:{b+2*j+1}], v[{b+2*j}:{b+2*j+1}], {P}, {P} op_sel:[0,0,1] op_sel_hi:[1,0,1]")
            k(f"v_cvt_pk_bf16_f32 v{10+4*h+j}, v{b+2*j}, v{b+2*j+1}")
        k.ds(f"ds_write_b128 v55, v[{10+4*h}:{13+4*h}] offset:{320*h}")
    k.w(d=0); k("s_barrier")
    for q in range(2):
        for h in range(2): k.ds(f"ds_read_b64_tr_b16 v[{10+4*q+2*h}:{11+4*q+2*h}], v54 offset:{128*q+1280*h}",f"lt{q}")
    k(f"""v_mov_b32 v66, s{sLD}
    v_mul_f32 v66, 0x3fb8aa3b, v66
    v_exp_f32 v66, v66
    v_mov_b32 v18, 0
    v_cvt_pk_bf16_f32 v66, v66, v66
    v_and_b32 v66, s{sMSK}, v66""")
    for q in range(2):
        k.w(d=f"lt{q}")
        k.vm(f"buffer_store_dwordx4 v[{10+4*q}:{13+4*q}], v52, {srd(SW)}, 0 offen offset:{1024*q} sc1","lnst")
    k.vm(f"buffer_store_dword v18, v58, {srd(SW)}, 0 offen sc1","lnst")
    L=k.lab()
    k(f"""s_cmp_lt_u32 s{sI}, 30
    s_cbranch_scc1 {L}
    s_mul_i32 s{sT2}, s{sFT}, 768
    s_add_u32 s{sT2}, s{sT2}, {CS}
    s_cmp_eq_u32 s{sWV}, 3
    s_cselect_b32 s{sT2}, {hex(OOB)}, s{sT2}
    v_lshl_add_u32 v{CSA}, v0, 2, s{sT2}
    v_mov_b32 v19, -1
    buffer_store_dword v19, v{CSA}, {srd(SW)}, 0 offen sc1
    {L}:""")
    k.stamp('ln')
    k.w(v="par")
    k("""v_pk_mul_f32 v[60:61], v[60:61], v[66:67] op_sel_hi:[1,0]
    v_pk_mul_f32 v[62:63], v[62:63], v[66:67] op_sel_hi:[1,0]
    v_mul_f32 v60, 0x3fb8aa3b, v60
    v_mul_f32 v61, 0.15915494, v61""")
    Q={1:68,8:70,128:72}
    for e,d in Q.items():
        if e==1: k(f"v_exp_f32 v66, v60\nv_fract_f32 v67, v61")
        else: k(f"v_mul_f32 v66, {hex(f2b(float(e)))}, v60\nv_mul_f32 v67, {hex(f2b(float(e)))}, v61\nv_exp_f32 v66, v66\nv_fract_f32 v67, v67")
        k(f"v_cos_f32 v{d}, v67\nv_sin_f32 v{d+1}, v67\ns_nop 0\nv_pk_mul_f32 v[{d}:{d+1}], v[{d}:{d+1}], v[66:67] op_sel_hi:[1,0]")
    pr=lambda a:f"v[{a}:{a+1}]"
    side=dma_list(SS,"d1")+nextk
    cnt=[0]
    def tick():
        cnt[0]+=1
        if cnt[0]%3==0 and side:
            f=side.pop(0); f() if callable(f) else k(f)
    def cmul(d,a,b):
        k(f"v_pk_mul_f32 v[66:67], {pr(a)}, {pr(b)} op_sel:[0,0] op_sel_hi:[0,1]")
        k(f"v_pk_fma_f32 {pr(d)}, {pr(a)}, {pr(b)}, v[66:67] op_sel:[1,1,0] op_sel_hi:[1,0,1] neg_lo:[1,0,0]")
    tp=[0]
    def put(e,a,conj=False):
        t=96+(tp[0]&3); tp[0]+=1
        k(f"v_cvt_pk_bf16_f32 v{t}, v{a}, {'-' if conj else ''}v{a+1}")
        k.ds(f"ds_write_b32 v56, v{t} offset:{288*e}"); tick()
    cmul(74,64,62); put(0,74,True)
    for b in range(1,16): cmul(74,74,70); put(b,74,True)
    k(f"v_mov_b32 v95, 0x3f80"); k.ds(f"ds_write_b32 v56, v95 offset:{288*16}")
    qp={1:68}
    put(17,68)
    for a in range(2,8):
        qp[a]=76+2*(a-2); cmul(qp[a],qp[a-1],68); put(16+a,qp[a])
    put(24,72)
    for a in range(1,8): cmul(88,72,qp[a]); put(24+a,88)
    cur=90
    for a in range(2,17):
        cmul(cur,72 if a==2 else cur,72)
        if a in(2,3):
            e=32+4*(a-2); put(e,cur)
            for j,x in enumerate((2,4,6)): cmul(88,cur,qp[x]); put(e+1+j,88)
        elif a<8:
            e=40+2*(a-4); put(e,cur); cmul(88,cur,qp[4]); put(e+1,88)
        else: put(48+a-8,cur)
    while side:
        f=side.pop(0); f() if callable(f) else (k(f),k("s_nop 0"))
    for st in range(4):
        for T in range(4):
            k.ds(f"ds_read_b128 {vr(100+16*st+4*T,4)}, v57 offset:{T*16*288+64*st}",f"kf{st}")
    for st in range(4):
        k.w(d=f"kf{st}")
        for T in range(3):
            c=vr(164+4*T,4) if (st or T==0) else "0"
            k(f"v_mfma_f32_16x16x32_bf16 {vr(164+4*T,4)}, {vr(100+16*st+4+4*T,4)}, {vr(100+16*st,4)}, {c}")
    k("s_nop 5")
    k.ds("ds_write_b32 v180, v18 offset:3072")
    k.ds("ds_write_b128 v176, v[164:167]")
    k.ds("ds_write_b64 v177, v[168:169]"); k.ds("ds_write_b64 v178, v[170:171]")
    k.ds("ds_write2_b32 v179, v172, v173 offset0:0 offset1:16"); k.ds("ds_write2_b32 v179, v174, v175 offset0:32 offset1:48")
    k(f"""v_and_b32 v9, 7, v1
    v_mul_u32_u24 v9, {KCS}, v9
    v_and_b32 v8, 8, v1
    v_lshl_add_u32 v9, v8, 1, v9
    v_add_u32 v9, {KC+4096}, v9""")
    k.w(d=0); k("s_barrier")
    k.stamp('kgen')
    for c in range(2):
        for i in range(11): k.ds(f"ds_read2st64_b32 {vr(100+24*c+2*i,2)}, v{EX+i} offset0:{PO[2*c]} offset1:{PO[2*c+1]}",f"ex{c}_{i}")
    k("v_mov_b32 v20, 0\nv_mov_b32 v21, 0\nv_mov_b32 v22, 0\nv_mov_b32 v23, 0")
    k.ds("ds_write_b128 v9, v[20:23]")
    for c in range(2):
        for i in range(11):
            if i in(0,4,8): k.w(d=f"ex{c}_{min(i+3,10)}")
            k(f"v_add_f32 v{100+24*c+2*i}, v{100+24*c+2*i}, v{101+24*c+2*i}")
        for s in range(4):
            t=24+16*c+4*s
            for j in range(4):
                i=100+24*c+2*(3-s+2*j)
                k(f"v_cvt_pk_bf16_f32 v{t+j}, v{i}, v{i+2}")
            k.ds(f"ds_write_b128 v{KCW}, {vr(t,4)} offset:{(4*c+s)*KCS}")
    k.stamp('exp')
    k.w(v="lnst",d=0); k("s_barrier")
    k.vm(f"buffer_store_byte v{ONEB}, v{LNF}, {srd(SB)}, 0 offen sc1","lnf")
    k.stamp('barB')
    CSL=k.lab("CS"); MRG=k.lab("MRG")
    k(f"s_cmp_ge_u32 s{sI}, 30\ns_cbranch_scc1 {CSL}")
    ACC=16; FA=(112,132); FB=(124,144); EA=152; EB=164; UR=172; PL=180
    def reads(st,f):
        L=[]
        for e in range(2): L.append(lambda e=e: k.ds(f"ds_read_b128 {vr(FB[f]+4*e,4)}, v{XR+st} offset:{4096*e}","fr"))
        for u in range(3):
            for h in range(2): L.append(lambda u=u,h=h: k.ds(f"ds_read_b64_tr_b16 {vr(FA[f]+4*u+2*h,2)}, v{WR} offset:{3072*st+768*h+32*u}","fr"))
        return [L[0],L[2],L[3],L[1]]+L[4:]
    def mf(f,zero=False):
        return [f"v_mfma_f32_32x32x16_bf16 {vr(ACC+16*(2*u+e),16)}, {vr(FA[f]+4*u,4)}, {vr(FB[f]+4*e,4)}, {'0' if zero else vr(ACC+16*(2*u+e),16)}" for u in range(3) for e in range(2)]
    def mix(a,b):
        o=[];a=list(a);b=list(b)
        while a or b:
            if a:o.append(a.pop(0))
            if a:o.append(a.pop(0))
            if b:o.append(b.pop(0))
        return o
    def adv(delta):
        return [f"v_add_u32 v{r}, {delta}, v{r}" for r in(XR,WR,XR+1,XR+2,XR+3)]
    for f in reads(0,0): f()
    k(f"s_mov_b32 s{sRING}, {2*SS}\ns_mov_b32 s{sCNT}, 0")
    LOOP=k.lab("G1L"); MID=k.lab("G1M")
    D=dma_list(f"s{sRING}","dl")
    k.w(d=0); weave(k,mf(0,True),mix(reads(1,1),D[0:5]),3)
    k(f"s_branch {MID}\n{LOOP}:")
    D=dma_list(f"s{sRING}","dl")
    k.w(d=0); weave(k,mf(0),mix(reads(1,1),D[0:5]),3)
    k(f"{MID}:")
    k.w(d=0); weave(k,mf(1),mix(reads(2,0),D[5:9]),3)
    k.w(d=0); weave(k,mf(0),mix(reads(3,1),D[9:13])+[f"s_cmp_eq_u32 s{sRING}, s{sC1}",f"s_cselect_b32 s{sDL}, s{sC2}, s{sC1}"],3)
    L=k.lab()
    def bar0():
        k(f"s_cmp_eq_u32 s{sCNT}, 0\ns_cbranch_scc1 {L}\ns_waitcnt vmcnt(10)\n{L}:\ns_waitcnt vmcnt(11)\ns_barrier")
    A=adv(f"s{sDL}")
    tailf=nextk+[f"s_add_u32 s{sRING}, s{sRING}, s{sC1}",f"s_cmp_eq_u32 s{sRING}, {3*SS}",f"s_cselect_b32 s{sRING}, 0, s{sRING}",f"s_add_u32 s{sCNT}, s{sCNT}, 1",f"s_cmp_lt_u32 s{sCNT}, 5"]
    k.w(d=0); weave(k,mf(1),[bar0]+A[:2]+reads(0,0)+A[2:]+tailf,[1,5,5,5,5,5])
    k(f"s_cbranch_scc1 {LOOP}")
    k.vq=["dl"]*10
    k.stamp('g1loop')
    def poll(tag,reg,addr,sr,exp,extra=""):
        ok=k.lab("OK"); rt=k.lab("RT")
        k.w(v=tag)
        k(f"v_cmp_ne_u32 vcc, {exp}, v{reg}\ns_cbranch_vccnz {rt}\n{ok}:")
        lp=k.lab("RL")
        k.tail.append(f"""{rt}:
        s_movk_i32 s{sT3}, 4000
        {lp}:
        buffer_load_dword v{reg}, v{addr}, {srd(sr)}, 0 offen sc1
        s_waitcnt vmcnt(0)
        v_cmp_ne_u32 vcc, {exp}, v{reg}
        s_cbranch_vccz {ok}
        s_sub_u32 s{sT3}, s{sT3}, 1
        s_cmp_lg_u32 s{sT3}, 0
        s_cbranch_scc1 {lp}
        s_branch {ok}""")
    lnpoll=lambda: k.vm(f"buffer_load_dword v{PL}, v{LNP}, {srd(SB)}, 0 offen sc1","lnp")
    def uloads():
        return [lambda q=q: k.vm(f"buffer_load_dwordx4 {vr(UR+4*q,4)}, v{UL}, {srd(SW)}, {'s%d'%sUQ if q else 0} offen sc1","u") for q in range(2)]
    def wd_loc(j):
        if j<3: return ('C',2048*j)
        if j<8: return ('A',2048*(j-3))
        if j<13: return ('A',BW+2048*(j-8))
        if j<16: return ('C',2048*(j-13))
        if j<21: return ('A',2048*(j-16))
        return ('A',BW)
    def wd_dma(j):
        r,o=wd_loc(j); b=sCWB if r=='C' else sAW
        return [f"s_add_u32 m0, s{b}, {o}" if o else f"s_mov_b32 m0, s{b}"]+[lambda h=h: k.vm(f"buffer_load_dwordx4 v{WDV+h}, {srd(SD)}, s{4+j} offen offset:{1024*h} lds",f"wd{j}") for h in range(2)]
    def wd_tr(j):
        r,o=wd_loc(j); b=TC if r=='C' else TA
        return [lambda e=e,h=h: k.ds(f"ds_read_b64_tr_b16 {ar(8*j+4*e+2*h,2)}, v{b+e} offset:{o+1024*h}",f"wt{j}") for e in range(2) for h in range(2)]
    def uwrite():
        L=[lambda: k.w(v="u")]
        L+=[lambda q=q: k.ds(f"ds_write_b128 v{UW}, {vr(UR+4*q,4)} offset:{2048*q}","uw") for q in range(2)]
        return L
    D=dma_list(SS,"d7")
    k.w(d=0); weave(k,mf(0),[lnpoll]+mix(reads(1,1),D[0:5]),3)
    k.w(d=0); weave(k,mf(1),mix(reads(2,0),D[5:9]),3)
    k.w(d=0); weave(k,mf(0),mix(reads(3,1),D[9:13]),3)
    A=adv(-2*SS)
    k.w(d=0); weave(k,mf(1),[lambda:(k.w(v="dl"),k("s_barrier"))]+A[:2]+reads(0,0)+A[2:]+[lambda: poll("lnp",PL,LNP,SB,f"s{sONE}")]+uloads(),[1,5,5,3,1,5])
    zer=[f"v_mov_b32 v{r}, 0" for r in list(range(EA,EA+12))+list(range(EB,EB+8)) if (r-EA)%4]
    k.w(d=0); weave(k,mf(0),reads(1,1)+zer,4)
    sl=[lambda e=e: k.vm(f"buffer_load_dword v{EB+4*e}, v{ST}, {srd(SW)}, 0 offen offset:{256*e} sc1","st") for e in range(2)]
    cl=[lambda j=j: k.vm(f"buffer_load_dword v{EA+4*j}, v{CSA}, {srd(SW)}, 0 offen offset:{128*j} sc1","cs") for j in range(3)]
    k.w(d=0); weave(k,mf(1),reads(2,0)+sl+cl,3)
    zpad=[lambda: k.ds(f"ds_write_b128 v{UZ}, v[184:187]","uw")]
    k("v_mov_b32 v184, 0\nv_mov_b32 v185, 0\nv_mov_b32 v186, 0\nv_mov_b32 v187, 0")
    k.w(d=0); weave(k,mf(0),mix(reads(3,1),wd_dma(0)+wd_dma(1))+zpad,3)
    A=adv(SS)
    k.w(d=0); weave(k,mf(1),[lambda:(k.w(v="d7"),k("s_barrier"))]+A[:2]+reads(0,0)+A[2:]+wd_dma(2),[1,5,5,5,5,5])
    k.w(d=0); weave(k,mf(0),mix(reads(1,1),wd_dma(3)+wd_dma(4)),3)
    k.w(d=0); weave(k,mf(1),mix(reads(2,0),wd_dma(5)+wd_dma(6)),3)
    k.w(d=0); weave(k,mf(0),mix(reads(3,1),wd_dma(7))+uwrite(),3)
    CS0A,CS0B=('a',176),('a',208); CS1A,CS1B=('v',16),('v',48); CACC=112
    def rg(t,o,n): return (ar if t[0]=='a' else vr)(t[1]+o,n)
    def conv_reads(rho):
        SA,SBb=((CS0A,CS0B),(CS1A,CS1B))[rho&1]
        L=[]
        for i in range(8):
            L.append(lambda i=i: k.ds(f"ds_read_b128 {rg(SBb,4*i,4)}, v{CB} offset:{192-64*rho+512*i}",f"cv{rho}"))
            for h in range(2): L.append(lambda i=i,h=h: k.ds(f"ds_read_b64 {rg(SA,4*i+2*h,2)}, v{CA} offset:{3776-512*i-64*rho+8*h}",f"cv{rho}"))
        return L
    def cscheck():
        k.w(v="cs")
        ok=k.lab("OK"); rt=k.lab("RT"); lp=k.lab("RL")
        k(f"v_max3_u32 v{PL}, v{EA}, v{EA+4}, v{EA+8}\nv_cmp_eq_u32 vcc, -1, v{PL}\ns_cbranch_vccnz {rt}\n{ok}:")
        k.tail.append(f"""{rt}:
        s_movk_i32 s{sT3}, 4000
        {lp}:
        buffer_load_dword v{EA}, v{CSA}, {srd(SW)}, 0 offen sc1
        buffer_load_dword v{EA+4}, v{CSA}, {srd(SW)}, 0 offen offset:128 sc1
        buffer_load_dword v{EA+8}, v{CSA}, {srd(SW)}, 0 offen offset:256 sc1
        s_waitcnt vmcnt(0)
        v_max3_u32 v{PL}, v{EA}, v{EA+4}, v{EA+8}
        v_cmp_eq_u32 vcc, -1, v{PL}
        s_cbranch_vccz {ok}
        s_sub_u32 s{sT3}, s{sT3}, 1
        s_cmp_lg_u32 s{sT3}, 0
        s_cbranch_scc1 {lp}
        s_branch {ok}""")
    CR0=conv_reads(0)
    k.w(d=0); weave(k,mf(1),["s_barrier"]+CR0[:16]+[cscheck],[1,4,4,4,4,1])
    k.stamp('g1s7')
    mx=[f"v_mfma_f32_32x32x16_bf16 {vr(ACC+16*(2*u+e),16)}, {vr(EA+4*u,4)}, {vr(EB+4*e,4)}, {vr(ACC+16*(2*u+e),16)}" for u in range(3) for e in range(2)]
    def hepi(b):
        a=ACC+16*b; u,e=b>>1,b&1
        L=[f"v_mul_f32 v{a+r}, v{a+r}, v{a+8+r}" for r in range(8)]
        L+=[f"v_cvt_pk_bf16_f32 v{a+8+j}, v{a+2*j}, v{a+2*j+1}" for j in range(4)]
        L.append(lambda: k.vm(f"buffer_store_dwordx4 {vr(a+8,4)}, v{HS+u}, {srd(SW)}, s{sH0+e} offen sc1","h"))
        return L
    if probe==2: k("s_waitcnt vmcnt(0)"); k.stamp('hA')
    weave(k,mx,CR0[16:]+["s_nop 1"]+hepi(0)+hepi(1),[4,4,1,6,6,6])
    for b in range(2,6):
        for f in hepi(b): f() if callable(f) else k(f)
    if probe==2: k.stamp('hB'); k("s_waitcnt vmcnt(0)"); k.stamp('hC'); k("s_waitcnt lgkmcnt(0)")
    vq_main=list(k.vq); dq_main=list(k.dq)
    k(f"{MRG}:")
    k.stamp('hepi')
    def conv_mf(rho):
        SA,SBb=((CS0A,CS0B),(CS1A,CS1B))[rho&1]
        L=[]
        for s in range(8):
            for i in range(s+1):
                I=s
                c="0" if (rho==0 and i==0) else vr(CACC+4*I,4)
                L.append(f"v_mfma_f32_16x16x32_bf16 {vr(CACC+4*I,4)}, {rg(SA,4*i,4)}, {rg(SBb,4*(I-i),4)}, {c}")
        return L
    def trs(js):
        L=[]
        for j in js: L+=[lambda j=j: k.w(v=f"wd{j}")]+wd_tr(j)
        return L
    def redma(jn,jold):
        D=wd_dma(jn); return [D[0],lambda: k.w(d=f"wt{jold}")]+D[1:]
    hflag=[lambda: k.w(v="h"), lambda: k.vm(f"buffer_store_byte v{ONEB}, v{FHS}, {srd(SW)}, 0 offen sc1","hf")]
    k.w(d="cv0"); weave(k,conv_mf(0),mix(conv_reads(1),wd_dma(8)+wd_dma(9)+wd_dma(10)+wd_dma(11))+wd_dma(12)+trs([0,1,2])+redma(13,0)+redma(14,1)+redma(15,2),2)
    k.w(d="cv1"); weave(k,conv_mf(1),conv_reads(2)+hflag+trs([3,4,5,6,7])+redma(16,3)+redma(17,4)+redma(18,5)+redma(19,6),2)
    k.w(d="cv2"); weave(k,conv_mf(2),conv_reads(3)+redma(20,7)+trs([8,9,10])+redma(21,8)+[lambda: k.vm(f"buffer_load_dword v{PL-80}, v{FHP}, {srd(SW)}, 0 offen sc1","hp")],2)
    HR=144
    def hload(j):
        r=HR+8*(j%(DEPTH+1))
        return [f"s_lshr_b32 s{sT0}, s{4+j}, 4"]+[lambda e=e: k.vm(f"buffer_load_dwordx4 {vr(r+4*e,4)}, v{HL+e}, {srd(SW)}, s{sT0} offen sc1",f"h{j}") for e in range(2)]
    pre=[lambda: poll("hp",PL-80,FHP,SW,f"s{sONE}")]
    for j in range(DEPTH): pre+=hload(j)
    k.w(d="cv3"); weave(k,conv_mf(3),pre,2,start=20)
    k.stamp('conv')
    H1=k.lab("H1"); HE=k.lab("HE")
    k(f"""s_add_u32 s{sT1}, s{sAW}, {BW+2048}
    v_add_u32 v96, s{sT1}, v{EXW}
    s_xor_b32 s{sT2}, s{sWV}, 1
    s_mul_i32 s{sT2}, s{sT2}, {AWS}
    s_add_u32 s{sT2}, s{sT2}, {BW+2048}
    v_add_u32 v97, s{sT2}, v{EXW}
    s_bitcmp1_b32 s{sWV}, 0
    s_cbranch_scc1 {H1}""")
    for hh in range(2):
        snd=CACC+16*(1-hh); own=CACC+16*hh
        if hh==0: k("s_nop 1")
        for j in range(4): k(f"ds_write_b128 v96, {vr(snd+4*j,4)} offset:{1024*j}")
        k("s_waitcnt lgkmcnt(0)\ns_barrier")
        for j in range(4): k(f"ds_read_b128 {vr(80+4*j,4)}, v97 offset:{1024*j}")
        for j in range(4):
            k(f"s_waitcnt lgkmcnt({3-j})")
            k(f"v_pk_add_f32 {vr(80+4*j,2)}, {vr(80+4*j,2)}, {vr(own+4*j,2)}\nv_pk_add_f32 {vr(82+4*j,2)}, {vr(82+4*j,2)}, {vr(own+4*j+2,2)}")
        if hh==0: k(f"s_branch {HE}\n{H1}:")
    k(f"{HE}:"); k.dq=[]
    for j in range(4): k(f"v_cvt_pk_bf16_f32 v{112+2*j}, v{80+4*j}, v{81+4*j}\nv_cvt_pk_bf16_f32 v{113+2*j}, v{82+4*j}, v{83+4*j}")
    k("s_nop 0")
    for j in range(2):
        k(f"v_permlane16_swap_b32 v{112+4*j}, v{114+4*j}\nv_permlane16_swap_b32 v{113+4*j}, v{115+4*j}")
    for j in range(2): k.vm(f"buffer_store_dwordx4 {vr(112+4*j,4)}, v{YS}, {srd(SW)}, 0 offen offset:{1024*j} sc1","y")
    k.vm(f"buffer_load_dwordx4 v[136:139], v{XO}, {srd(SX)}, 0 offen","x")
    k.vm(f"buffer_load_dwordx4 v[140:143], v{XO}, {srd(SX)}, 0 offen offset:32","x")
    k.vm(f"buffer_load_dword v135, v{RS}, {srd(SW)}, 0 offen sc1","x")
    k.w(v="wd21")
    for j in range(11,22):
        for f in wd_tr(j): f()
    k.stamp('xchg')
    A2=16
    def g2mf(j):
        r=HR+8*(j%(DEPTH+1))
        return [f"v_mfma_f32_32x32x16_bf16 {vr(A2+16*(2*d+t),16)}, {ar(8*j+4*d,4)}, {vr(r+4*t,4)}, {'0' if j==0 else vr(A2+16*(2*d+t),16)}" for d,t in((1,1),(1,0),(0,1),(0,0))]
    SK=k.lab("SK")
    waited=False
    for j in range(22):
        fl=[]
        if j+DEPTH<22: fl+=hload(j+DEPTH)
        if j==DEPTH: fl+=[lambda: k.vm(f"buffer_store_byte v{ONEB}, v{FYS}, {srd(SW)}, 0 offen sc1","yf")]
        if j==12: fl+=[lambda: k.vm(f"buffer_load_dword v134, v{FYP}, {srd(SW)}, 0 offen sc1","yp")]
        if j==17:
            fl+=[lambda: poll("yp",134,FYP,SW,f"s{sONE}")]
            fl+=[lambda q=q: k.vm(f"buffer_load_dwordx4 {vr(112+4*q,4)}, v{YL}, {srd(SW)}, {'s%d'%sYQ if q else 0} offen sc1","yl") for q in range(2)]
        if j==21: k(f"s_cmp_ge_u32 s{sWV}, 2\ns_cbranch_scc1 {SK}")
        if j>=11 and not waited: k.w(v=f"h{j}",d=0); waited=True
        else: k.w(v=f"h{j}")
        weave(k,g2mf(j),fl,3)
    k(f"{SK}:")
    k.stamp('g2')
    k(f"""v_add_u32 v96, s{sAW}, v{EXW}
    v_add_u32 v97, s{sCWB}, v{EXW}""")
    for x in (1,2,3):
        k(f"s_xor_b32 s{sT0}, s{sWV}, {x}")
        if x<3: k(f"s_mul_i32 s{sT0}, s{sT0}, {AWS}\ns_add_u32 s{sT0}, s{sT0}, {4096*(x-1)}")
        else: k(f"s_mul_i32 s{sT0}, s{sT0}, {CWS}\ns_add_u32 s{sT0}, s{sT0}, {CW}")
        k(f"v_add_u32 v{97+x}, s{sT0}, v{EXW}")
    for x in (3,2,1):
        for a in range(4):
            k.ds(f"ds_write_b128 v{97 if x==3 else 96}, {vr(A2+16*x+4*a,4)} offset:{1024*a+(4096 if x==2 else 0)}")
    k.w(v="yl")
    for q in range(2): k.ds(f"ds_write_b128 v{YW}, {vr(112+4*q,4)} offset:{1024*q}")
    for a in range(4): k.ds(f"ds_read_b64_tr_b16 {vr(120+2*a,2)}, v{YR} offset:{512*a}","yt")
    k.w(d=0); k("s_barrier")
    for x in (1,2,3):
        for a in range(4): k.ds(f"ds_read_b128 {vr(144+16*(x-1)+4*a,4)}, v{97+x} offset:{1024*a}",f"rd{x}")
    for j in range(8): k(f"v_lshlrev_b32 v{80+2*j}, 16, v{120+j}\nv_and_b32 v{81+2*j}, s{sMSK}, v{120+j}")
    for x in (1,2,3):
        k.w(d=f"rd{x}")
        for j in range(8): k(f"v_pk_add_f32 {vr(A2+2*j,2)}, {vr(A2+2*j,2)}, {vr(144+16*(x-1)+2*j,2)}")
    for j in range(8): k(f"v_pk_fma_f32 {vr(A2+2*j,2)}, {vr(A2+2*j,2)}, v[134:135], {vr(80+2*j,2)} op_sel:[0,1,0] op_sel_hi:[1,1,1]")
    for j in range(8): k(f"v_lshlrev_b32 v{80+2*j}, 16, v{136+j}\nv_and_b32 v{81+2*j}, s{sMSK}, v{136+j}")
    for a in(0,2):
        for r in range(4): k(f"v_permlane32_swap_b32 v{A2+4*a+r}, v{A2+4*a+4+r}")
    for j in range(8):
        k(f"v_pk_add_f32 {vr(A2+2*j,2)}, {vr(A2+2*j,2)}, {vr(80+2*j,2)}\nv_cvt_pk_bf16_f32 v{100+j}, v{A2+2*j}, v{A2+2*j+1}")
        if j%4==3: k.vm(f"buffer_store_dwordx4 {vr(100+j-3,4)}, v{XO}, {srd(SO)}, 0 offen offset:{32*(j//4)} {OSF.replace('_',' ')}","o")
    if prof:
        k.stamp('epi'); k("s_waitcnt vmcnt(0) lgkmcnt(0)"); k.stamp('drain'); k("s_waitcnt lgkmcnt(0)"); k.stamp(); k.stamp()
        k("; STAMPS "+" ".join(k.names[:-2]))
        k("s_memrealtime s[94:95]\ns_waitcnt lgkmcnt(0)\nv_writelane_b32 v199, s94, 62\nv_writelane_b32 v199, s96, 63")
        k(f"s_lshl_b32 s{sT0}, s2, 2\ns_add_u32 s{sT0}, s{sT0}, s{sWV}\ns_lshl_b32 s{sT0}, s{sT0}, 8\ns_add_u32 s{sT0}, s{sT0}, {PROF}\nv_lshl_add_u32 v2, v1, 2, s{sT0}")
        k(f"buffer_store_dword v199, v2, {srd(SW)}, 0 offen")
        if pace:
            L=k.lab(); LP=k.lab()
            k(f"""s_cmp_lg_u32 s{sWV}, 0
            s_cbranch_scc1 {L}
            s_cmp_lg_u32 s2, {pwg}
            s_cbranch_scc1 {L}""")
            if pace==1: k(f"s_mov_b32 s{sT0}, 6000")
            if pace==2: k(f"s_sub_u32 s{sT0}, s94, s96\ns_lshl_b32 s{sT0}, s{sT0}, 2")
            if pace==3: k(f"v_readlane_b32 s{sT0}, v199, {k.names.index(pidx)}\ns_sub_u32 s{sT0}, s{sT0}, s34\ns_lshr_b32 s{sT0}, s{sT0}, {psh}\ns_add_u32 s{sT0}, s{sT0}, 4000")
            if pace==4: k(f"v_readlane_b32 s{sT0}, v199, {k.names.index(pidx)}\nv_readlane_b32 s{sT1}, v199, {k.names.index(pidx2)}\ns_sub_u32 s{sT0}, s{sT0}, s{sT1}\ns_lshr_b32 s{sT0}, s{sT0}, {psh}\ns_add_u32 s{sT0}, s{sT0}, 4000")
            k(f"""s_min_u32 s{sT0}, s{sT0}, 30000
            s_mov_b32 s{sT2}, 100000
            {LP}:
            s_memrealtime s[94:95]
            s_waitcnt lgkmcnt(0)
            s_sub_u32 s{sT1}, s94, s96
            s_cmp_ge_u32 s{sT1}, s{sT0}
            s_cbranch_scc1 {L}
            s_sub_u32 s{sT2}, s{sT2}, 1
            s_cmp_lg_u32 s{sT2}, 0
            s_cbranch_scc1 {LP}
            {L}:""")
        if dbg:
            L=k.lab()
            k(f"""s_cmp_lg_u32 s{sWV}, 0
            s_cbranch_scc1 {L}
            s_and_b32 s{sT0}, s2, 0x18
            s_cmp_lg_u32 s{sT0}, 0
            s_cbranch_scc1 {L}
            s_sub_u32 s{sT0}, s94, s96
            v_writelane_b32 v199, s{sT0}, 2
            s_or_b32 s{sT0}, s94, 0x80000000
            s_not_b32 s{sT1}, s96
            s_or_b32 s{sT1}, s{sT1}, 0x80000000
            s_or_b32 s{sT2}, s96, 0x80000000
            v_mov_b32 v4, s{sT0}
            v_writelane_b32 v4, s{sT1}, 1
            v_writelane_b32 v4, s{sT2}, 2
            v_cmp_gt_u32 vcc, 3, v1
            v_lshlrev_b32 v6, 2, v1
            v_add_u32 v6, 52, v6
            v_mov_b32 v7, {hex(OOB)}
            v_cndmask_b32 v6, v7, v6, vcc
            buffer_atomic_umax v4, v6, {srd(SB)}, 0 offen sc1
            s_cmp_lg_u32 s2, {dbg-1}
            s_cbranch_scc1 {L}
            v_readlane_b32 s{sT0}, v199, 2
            v_readlane_b32 s{sT1}, v199, 14
            v_subrev_u32 v4, s34, v199
            s_sub_u32 s{sT1}, s{sT1}, s34
            v_writelane_b32 v4, s{sT0}, 2
            v_writelane_b32 v4, s{sT1}, 13
            v_cmp_gt_u32 vcc, 14, v1
            v_lshlrev_b32 v6, 2, v1
            v_add_u32 v6, -4, v6
            v_cndmask_b32 v6, v7, v6, vcc
            buffer_store_dword v4, v6, {srd(SB)}, 0 offen sc1
            {L}:""")
    k("s_endpgm")
    k(f"{CSL}:")
    k(f"""s_mul_i32 s{sT0}, s{sWV}, 3072
    s_lshr_b32 s{sT1}, s{sWV}, 1
    s_mul_i32 s{sT1}, s{sT1}, 96
    s_sub_u32 s{sT0}, s{sT0}, s{sT1}
    v_add_u32 v{WR}, s{sT0}, v{WR}
    v_mov_b32 v112, 0x3f803f80
    v_mov_b32 v113, v112
    v_mov_b32 v114, v112
    v_mov_b32 v115, v112
    s_mov_b32 s{sRING}, {2*SS}
    s_mov_b32 s{sCNT}, 0""")
    for r in range(16,112): k(f"v_mov_b32 v{r}, 0")
    def csdma():
        D=dma_list(f"s{sRING}","c")[5:]
        for f in D: f() if callable(f) else (k(f),k("s_nop 0"))
        for f in nextk: k(f)
    csdma()
    CL=k.lab("CL"); CN=k.lab("CN")
    k(f"{CL}:\ns_waitcnt vmcnt(12)\ns_cmp_lt_u32 s{sCNT}, 6\ns_cbranch_scc1 {CN}\ns_waitcnt vmcnt(0)\n{CN}:")
    for u in range(6):
        for h in range(2): k(f"ds_read_b64_tr_b16 {vr(116+4*u+2*h,2)}, v{WR} offset:{768*h+32*u}")
    CN2=k.lab("CN")
    k(f"""s_add_u32 s{sRING}, s{sRING}, s{sC1}
    s_cmp_eq_u32 s{sRING}, {3*SS}
    s_cselect_b32 s{sRING}, 0, s{sRING}
    s_cmp_eq_u32 s{sRING}, {2*SS}
    s_cselect_b32 s{sDL}, s{sC2}, s{sC1}
    v_add_u32 v{WR}, s{sDL}, v{WR}
    s_waitcnt lgkmcnt(0)
    s_cmp_ge_u32 s{sCNT}, 5
    s_cbranch_scc1 {CN2}""")
    csdma()
    k(f"{CN2}:")
    for u in range(6): k(f"v_mfma_f32_32x32x16_bf16 {vr(16+16*u,16)}, v[112:115], {vr(116+4*u,4)}, {vr(16+16*u,16)}")
    k(f"s_add_u32 s{sCNT}, s{sCNT}, 1\ns_cmp_lt_u32 s{sCNT}, 8\ns_cbranch_scc1 {CL}")
    k(f"""s_mul_i32 s{sT0}, s{sWV}, 768
    s_add_u32 s{sT0}, s{sT0}, {PT}
    v_and_b32 v2, 31, v1
    v_lshl_add_u32 v2, v2, 2, s{sT0}
    v_min_u32 v3, 191, v0
    v_lshlrev_b32 v3, 2, v3
    v_add_u32 v3, {PT}, v3
    s_nop 7""")
    for u in range(6): k(f"ds_write_b32 v2, v{16+16*u} offset:{128*u}")
    k("s_waitcnt lgkmcnt(0)\ns_barrier")
    for j in range(4): k(f"ds_read_b32 v{4+j}, v3 offset:{768*j}")
    k(f"""s_waitcnt lgkmcnt(0)
    v_add_f32 v4, v4, v5
    v_add_f32 v6, v6, v7
    v_add_f32 v4, v4, v6
    v_cvt_pk_bf16_f32 v5, v4, v4
    v_and_b32 v5, s{sMSK}, v5
    v_sub_f32 v6, v4, v5
    v_cvt_pk_bf16_f32 v5, v5, v6
    buffer_store_dword v5, v{CSA}, {srd(SW)}, 0 offen sc1""")
    k.vq=[]; k.dq=[]
    lnpoll(); poll("lnp",PL,LNP,SB,f"s{sONE}")
    for f in uloads(): f()
    k("v_mov_b32 v184, 0\nv_mov_b32 v185, 0\nv_mov_b32 v186, 0\nv_mov_b32 v187, 0")
    for j in range(8):
        for f in wd_dma(j): f() if callable(f) else (k(f),k("s_nop 0"))
    zpad[0]()
    for f in uwrite(): f()
    k("s_waitcnt lgkmcnt(0)\ns_barrier")
    for f in conv_reads(0): f()
    k(f"s_waitcnt vmcnt(0) lgkmcnt(0)\ns_branch {MRG}")
    for t in k.tail: k(t)
    k(f"{END}:")
    return k
import struct
def f2b(x): return struct.unpack('<I',struct.pack('<f',x))[0]
if __name__=='__main__':
    out=sys.argv[1]; opts=dict(a.split('=') for a in sys.argv[2:])
    opts={a:(int(b) if b.lstrip('-').isdigit() else b) for a,b in opts.items()}
    k=gen(**opts)
    hdr="".join(l for l in open('cdna_kernels/'+NAME[:-7]+'.s.ref') if l.startswith(';') and '@launch' not in l)
    txt=module([k],[(None,256,256,163840)],hdr)
    open(out,'w').write(txt)
    print("hazards:",haz.check(txt.split('\n')))
```

```python
import sys
sys.path.insert(0,'w')
from gl import *
import haz
NAME="parallel_sum__ssm_conv_s4__glu_gated_bilinear__prompt_kernel"
XNB=0; STATS=0x200000; FH=0x210000; FY=0x218000; PROF=0x220000; HB=0x400000; YB=0xA00000; CS=0xC00000; WSEND=CS+86*128
SS=41216; WG_O=16384; WU_D=12320
TAB=82432; TABW=16416; KC=123648; KCS=4160; PT=156928; PTS=3088
UO=82432; US=4608; CW=91648; CWS=6144; AWS=10240; BW=41216
OOB=0x80000000
PX=95744; PO=(0,13,77,239)
class G(K):
    def __init__(s,*a,**kw):
        super().__init__(*a,**kw); s.vq=[]; s.dq=[]; s.tail=[]; s.nst=0; s.names=['start']
    def vm(s,t,tag=None):
        if t.endswith(' lds') and ' m0,' in s.L[-1]: s("s_nop 0")
        s(t); s.vq.append(tag)
    def ds(s,t,tag=None): s(t); s.dq.append(tag)
    def nv(s,tag):
        i=max(j for j,x in enumerate(s.vq) if x==tag); return min(len(s.vq)-1-i,63)
    def nd(s,tag):
        i=max(j for j,x in enumerate(s.dq) if x==tag); return min(len(s.dq)-1-i,15)
    def w(s,v=None,d=None):
        o=[]
        if v is not None: o.append(f"vmcnt({s.nv(v) if isinstance(v,str) else v})")
        if d is not None:
            n=s.nd(d) if isinstance(d,str) else d
            if getattr(s,'smem',0) and n==0: print("SMEM region: lgkmcnt(0) at line",len(s.L),d)
            o.append(f"lgkmcnt({n})")
        s("s_waitcnt "+" ".join(o))
    def stamp(s,name=''):
        if s.prof:
            n=s.nst; R=(90,92,98,100); a=R[n&3]
            s(f"s_memtime s[{a}:{a+1}]")
            if n>=2: s(f"v_writelane_b32 v199, s{R[(n-2)&3]}, {n-1}")
            elif n==0: s("v_writelane_b32 v199, s34, 0")
            s.names.append(name); s.nst+=1
def vr(a,n): return f"v[{a}:{a+n-1}]" if n>1 else f"v{a}"
def ar(a,n): return f"a[{a}:{a+n-1}]" if n>1 else f"a{a}"
def weave(k,mf,fl,per,start=0):
    fl=list(fl)
    for i,m in enumerate(mf):
        k(m)
        if i>=start:
            n=per[i] if isinstance(per,(list,tuple)) else per
            for _ in range(n):
                if fl:
                    f=fl.pop(0); f() if callable(f) else k(f)
    for f in fl: f() if callable(f) else k(f)

SX,SG,SU,SD,SW,SO,SB=36,40,44,48,52,56,60
sXCD,sI,sWV,sP,sFT,sMT,sRB,sLD,sDK=64,65,66,67,68,69,70,71,72
sKS,sOX,sOW,sMX,sMG,sRING,sDL,sCNT,sC1,sC2=73,74,75,76,77,78,79,80,81,82
sH0,sH1,sMSK,sONE,sAW,sCWB,sT0,sT1,sT2,sT3=83,84,85,86,87,88,26,27,28,29
sUQ=30; sYQ=31; sTB=32; sDB=33
def srd(d): return f"s[{d}:{d+3}]"
XD=200; WD=204; XR=207; WR=211; KCW=212; EX=213
CA=224; CB=225; WDV=226; TA=228; TC=230; HL=232; HS=234; UL=237; UW=238; UZ=239; ST=240; CSA=241
XO=242; RS=243; YL=244; YW=245; YR=246; YS=247; EXW=248; FHP=249; FYP=250; FHS=251; FYS=252; LNP=253; LNF=254; ONEB=255

def gen(prof=False, ROT1=True, ROT2=True, DEPTH=5, dbg=0, pace=0, pidx=14, psh=3, pwg=0, PF=1, PFS=128, probe=0, pidx2=None, OSF='', FV=0, FW=0, FWK='b32', FG=-1, FC=1, FX=0, SA=0):
    k=G(NAME,vgpr=256,agpr=256,sgpr=102); k.prof=prof; k.pst=90
    END=k.lab("END")
    if prof: k("s_memtime s[34:35]\ns_memrealtime s[96:97]")
    k(f"s_cmp_ge_u32 s2, 0x100\ns_cbranch_scc1 {END}")
    k("s_load_dwordx16 s[4:19], s[0:1], 0\ns_load_dwordx2 s[20:21], s[0:1], 64")
    if PF:
        PC=k.lab("PC")
        k(f'''s_getpc_b64 s[22:23]
        {PC}:
        v_mul_u32_u24 v2, {PFS}, v0
        v_mov_b32 v5, s23
        v_add_u32 v3, {PFS*256}, v2
        v_min_u32 v2, {END}-{PC}, v2
        v_min_u32 v3, {END}-{PC}, v3
        v_add_co_u32 v4, vcc, s22, v2
        v_addc_co_u32 v5, vcc, 0, v5, vcc
        global_load_dword v196, v[4:5], off
        v_mov_b32 v5, s23
        v_add_co_u32 v4, vcc, s22, v3
        v_addc_co_u32 v5, vcc, 0, v5, vcc''')
        if PFS<128: k("global_load_dword v197, v[4:5], off")
    for d,o in((SX,0),(SG,80),(SU,88),(SD,96),(SO,104),(SB,112),(SW,120)): k(f"s_load_dwordx2 s[{d}:{d+1}], s[0:1], {o}")
    for d,n in((SX,0x200000),(SG,512*2752),(SU,512*2752),(SD,1376*1024),(SO,0x200000),(SB,256),(SW,WSEND)):
        k(f"s_mov_b32 s{d+2}, {hex(n)}\ns_mov_b32 s{d+3}, 0x00020000")
    k(f"""v_lshrrev_b32 v2, 6, v0
    v_and_b32 v1, 63, v0
    v_readfirstlane_b32 s{sWV}, v2
    s_and_b32 s{sXCD}, s2, 7
    s_lshr_b32 s{sI}, s2, 3
    s_lshl_b32 s{sP}, s{sXCD}, 5
    s_add_u32 s{sP}, s{sP}, s{sI}
    s_and_b32 s{sT0}, s{sXCD}, 1
    s_lshr_b32 s{sT1}, s{sXCD}, 1
    s_lshl_b32 s{sRB}, s{sT0}, 7
    s_lshl_b32 s{sT2}, s{sT1}, 5
    s_add_u32 s{sRB}, s{sRB}, s{sT2}
    s_add_u32 s{sRB}, s{sRB}, s{sI}
    s_mul_i32 s{sT2}, s{sT1}, 30
    s_add_u32 s{sT2}, s{sT2}, s{sI}
    s_lshr_b32 s{sFT}, s{sT2}, 3
    s_and_b32 s{sT2}, s{sT2}, 7
    s_lshl_b32 s{sMT}, s{sT0}, 3
    s_add_u32 s{sMT}, s{sMT}, s{sT2}
    s_lshl_b32 s{sT1}, s{sT1}, 2
    s_lshl_b32 s{sT0}, s{sT0}, 1
    s_add_u32 s{sT1}, s{sT1}, s{sT0}
    s_add_u32 s{sT1}, s{sT1}, s{sI}
    s_sub_u32 s{sT1}, s{sT1}, 30
    s_cmp_ge_u32 s{sI}, 30
    s_cselect_b32 s{sFT}, s{sT1}, s{sFT}
    s_mov_b32 s{sMSK}, 0xffff0000""")
    k(f"""s_lshl_b32 s{sT0}, s{sRB}, 13
    s_lshl_b32 s{sT1}, s{sWV}, 11
    s_add_u32 s{sT0}, s{sT0}, s{sT1}
    v_lshl_add_u32 v3, v1, 4, s{sT0}
    s_lshl_b32 s{sT0}, s{sP}, 9
    v_lshl_add_u32 v4, v0, 1, s{sT0}""")
    for j in range(6): k(f"v_mov_b32 v{60+j}, 0")
    k(f"""s_lshl_b32 s{sT0}, s{sMT}, 17
    s_lshl_b32 s{sT1}, s{sWV}, 15
    s_add_u32 s{sT0}, s{sT0}, s{sT1}
    v_lshrrev_b32 v5, 3, v1
    v_lshl_add_u32 v5, v5, 10, s{sT0}
    v_lshrrev_b32 v6, 4, v1
    v_xor_b32 v7, v1, v6
    v_and_b32 v7, 7, v7
    v_lshl_add_u32 v{XD}, v7, 4, v5
    v_xor_b32 v5, 64, v{XD}
    v_add_u32 v{XD+1}, 7168, v5
    v_add_u32 v{XD+2}, 14336, v{XD}
    v_add_u32 v{XD+3}, 21504, v5
    s_mul_i32 s{sT0}, s{sFT}, 192
    s_mul_i32 s{sT1}, s{sWV}, {16*2752}""")
    for q in range(3):
        k(f"""v_add_u32 v5, {64*q}, v1
        v_mul_u32_u24 v7, 5462, v5
        v_lshrrev_b32 v7, 16, v7
        v_mul_u32_u24 v8, 12, v7
        v_sub_u32 v8, v5, v8
        v_lshl_add_u32 v8, v8, 4, s{sT0}
        v_min_u32 v8, 2736, v8
        v_mul_u32_u24 v7, 2752, v7
        v_add3_u32 v{WD+q}, v7, v8, s{sT1}""")
        if q: k(f"v_subrev_u32 v{WD+q}, {1024*q}, v{WD+q}")
    if ROT1: k(f"s_add_u32 s{sKS}, s{sMT}, s{sFT}\ns_and_b32 s{sKS}, s{sKS}, 3\ns_lshl_b32 s{sKS}, s{sKS}, 1")
    else: k(f"s_mov_b32 s{sKS}, 0")
    k(f"""s_lshl_b32 s{sMX}, s{sWV}, 12
    s_mul_i32 s{sMG}, s{sWV}, 3072
    s_add_u32 s{sMG}, s{sMG}, {WG_O}
    s_lshl_b32 s{sOX}, s{sKS}, 7
    s_mul_i32 s{sOW}, s{sKS}, {64*2752}
    s_lshl_b32 s{sT0}, s{sP}, 2""")
    k.stamp('pre')
    k("s_waitcnt lgkmcnt(0)")
    k.stamp('karg')
    k(f"s_load_dword s{sLD}, s[18:19], s{sT0}\ns_load_dword s{sDK}, s[20:21], s{sT0}")
    k.vm(f"buffer_load_dwordx4 v[10:13], v3, {srd(SX)}, 0 offen","row")
    k.vm(f"buffer_load_dwordx4 v[14:17], v3, {srd(SX)}, 0 offen offset:1024","row")
    for j in range(6): k.vm(f"global_load_short_d16_hi v{60+j}, v4, s[{6+2*j}:{7+2*j}]","par")
    def dma_list(ring,tag):
        L=[]
        if isinstance(ring,int):
            a=lambda s: f"s_add_u32 m0, s{s}, {ring}" if ring else f"s_mov_b32 m0, s{s}"
        else: a=lambda s: f"s_add_u32 m0, s{s}, {ring}"
        L.append(a(sMX))
        for q in range(4): L.append(lambda q=q: k.vm(f"buffer_load_dwordx4 v{XD+q}, {srd(SX)}, s{sOX} offen offset:{1024*q} lds",tag))
        L.append(a(sMG))
        for q in range(3): L.append(lambda q=q: k.vm(f"buffer_load_dwordx4 v{WD+q}, {srd(SG)}, s{sOW} offen offset:{1024*q} lds",tag))
        L.append(f"s_add_u32 m0, m0, {WU_D}")
        for q in range(3): L.append(lambda q=q: k.vm(f"buffer_load_dwordx4 v{WD+q}, {srd(SU)}, s{sOW} offen offset:{1024*q} lds",tag))
        return L
    nextk=[f"s_add_u32 s{sKS}, s{sKS}, 1",f"s_and_b32 s{sKS}, s{sKS}, 7",f"s_lshl_b32 s{sOX}, s{sKS}, 7",f"s_mul_i32 s{sOW}, s{sKS}, {64*2752}"]
    for f in dma_list(0,"d0"):
        if callable(f): f()
        else: k(f); k("s_nop 0")
    for f in nextk: k(f)
    k.stamp('dma0')
    if probe==1: k("s_waitcnt vmcnt(16)"); k.stamp('rowl'); k("s_waitcnt vmcnt(0)"); k.stamp('land0'); k("s_waitcnt lgkmcnt(0)")
    k(f"""v_lshrrev_b32 v2, 4, v1
    v_bfe_u32 v3, v1, 2, 2
    v_and_b32 v4, 3, v1
    v_and_b32 v5, 31, v1
    v_lshrrev_b32 v6, 5, v1
    v_and_b32 v7, 15, v1
    s_and_b32 s{sT0}, s{sWV}, 1
    s_lshr_b32 s{sT1}, s{sWV}, 1""")
    k(f"""v_bfe_u32 v8, v1, 1, 3
    v_xor_b32 v8, v8, v6
    v_lshlrev_b32 v8, 4, v8
    v_lshl_add_u32 v8, v5, 7, v8
    s_lshl_b32 s{sT2}, s{sT0}, 13
    v_add_u32 v{XR}, s{sT2}, v8
    v_xor_b32 v{XR+1}, 32, v{XR}
    v_xor_b32 v{XR+2}, 64, v{XR}
    v_xor_b32 v{XR+3}, 0x60, v{XR}""")
    k(f"""v_and_b32 v8, 1, v2
    v_mul_u32_u24 v9, {WU_D}, v8
    v_lshl_add_u32 v18, v6, 3, v3
    v_mul_u32_u24 v18, 192, v18
    v_add_u32 v9, v9, v18
    v_lshl_add_u32 v9, v4, 3, v9
    s_mul_i32 s{sT2}, s{sT1}, 96
    s_add_u32 s{sT2}, s{sT2}, {WG_O}
    v_add_u32 v{WR}, s{sT2}, v9""")
    k(f"v_lshlrev_b32 v9, 4, v0\nv_add_u32 v{KCW}, {KC}, v9")
    k(f"""v_lshlrev_b32 v9, 3, v0
    v_sub_u32 v18, 2047, v9
    v_cvt_f32_i32 v18, v18
    v_sub_u32 v19, {2047+0x4280}, v9
    s_mov_b32 s{sT2}, {768+0x4280}
    s_mov_b32 s{sT3}, {PX-4*0x4280}""")
    for i in range(0,11,2):
        k(f"v_subrev_f32 v24, {float(i)}, v18" if i in(0,2,4) else f"v_subrev_f32 v24, {hex(f2b(float(i)))}, v18")
        k(f"v_subrev_f32 v25, 1.0, v24\nv_cvt_pk_bf16_f32 v24, v24, v25")
        for h in range(2):
            if i+h>10: break
            k(f"v_and_b32 v25, 0xffff, v24" if h==0 else "v_lshrrev_b32 v25, 16, v24")
            k(f"""v_subrev_u32 v26, {i+h}, v19
            v_min_i32 v26, {128+0x4280}, v26
            v_med3_i32 v25, v25, v26, s{sT2}
            v_lshl_add_u32 v{EX+i+h}, v25, 2, s{sT3}""")
    k(f"""s_mul_i32 s{sT2}, s{sT1}, {4*KCS}
    s_lshl_b32 s{sT3}, s{sT0}, 8
    s_sub_u32 s{sT2}, s{sT2}, s{sT3}
    s_add_u32 s{sT2}, s{sT2}, {KC+4056-3776}
    v_mul_u32_u24 v9, {KCS}, v4
    v_lshl_add_u32 v9, v2, 4, v9
    v_lshlrev_b32 v18, 3, v3
    v_sub_u32 v9, v9, v18
    v_add_u32 v{CA}, s{sT2}, v9
    s_mul_i32 s{sT2}, s{sT1}, {US}
    s_sub_u32 s{sT2}, s{sT2}, s{sT3}
    s_add_u32 s{sT2}, s{sT2}, {UO+256}
    v_lshlrev_b32 v9, 4, v2
    v_lshl_add_u32 v9, v7, 5, v9
    v_add_u32 v{CB}, s{sT2}, v9""")
    k(f"""s_lshl_b32 s{sT2}, s{sP}, 1
    s_add_u32 s{sT2}, s{sT2}, s{sT1}
    s_lshl_b32 s{sT2}, s{sT2}, 12
    s_lshl_b32 s{sT3}, s{sT0}, 11
    s_add_u32 s{sT2}, s{sT2}, s{sT3}
    s_add_u32 s{sT2}, s{sT2}, {YB}
    v_lshlrev_b32 v9, 9, v8
    v_lshl_add_u32 v9, v7, 5, v9
    v_lshl_add_u32 v9, v6, 4, v9
    v_add_u32 v{YS}, s{sT2}, v9""")
    k(f"""s_lshr_b32 s{sT2}, s{sI}, 3
    s_lshl_b32 s{sTB}, s{sXCD}, 2
    s_add_u32 s{sTB}, s{sTB}, s{sT2}
    s_and_b32 s{sDB}, s{sI}, 7""")
    k(f"""v_lshlrev_b32 v9, 2, v8
    v_xor_b32 v9, v9, v1
    v_and_b32 v9, 7, v9
    v_lshlrev_b32 v9, 4, v9
    v_lshrrev_b32 v18, 3, v1
    v_lshl_add_u32 v9, v18, 10, v9
    s_lshl_b32 s{sT2}, s{sDB}, 7
    v_add_u32 v{WDV}, s{sT2}, v9
    v_add_u32 v{WDV+1}, 7168, v{WDV}""")
    k(f"""v_lshl_add_u32 v9, v6, 2, v3
    v_lshlrev_b32 v9, 7, v9
    v_lshrrev_b32 v18, 1, v3
    v_xor_b32 v18, s{sT1}, v18
    v_lshl_add_u32 v9, v18, 6, v9
    v_lshl_add_u32 v9, v8, 5, v9
    v_lshl_add_u32 v9, v4, 3, v9
    s_mul_i32 s{sAW}, s{sWV}, {AWS}
    s_mul_i32 s{sCWB}, s{sWV}, {CWS}
    s_add_u32 s{sCWB}, s{sCWB}, {CW}
    v_add_u32 v{TA}, s{sAW}, v9
    v_xor_b32 v{TA+1}, 64, v{TA}
    v_add_u32 v{TC}, s{sCWB}, v9
    v_xor_b32 v{TC+1}, 64, v{TC}""")
    k(f"""s_lshl_b32 s{sT2}, s{sTB}, 1
    s_add_u32 s{sT2}, s{sT2}, s{sT0}
    s_mul_i32 s{sT3}, s{sT2}, 88064
    s_add_u32 s{sT3}, s{sT3}, {HB}
    v_lshl_add_u32 v{HL}, v1, 4, s{sT3}
    s_xor_b32 s{sT3}, s{sT2}, 1
    s_mul_i32 s{sT3}, s{sT3}, 88064
    s_add_u32 s{sT3}, s{sT3}, {HB}
    v_lshl_add_u32 v{HL+1}, v1, 4, s{sT3}""")
    k(f"""s_lshl_b32 s{sT3}, s{sT2}, 5
    v_add_u32 v9, s{sT3}, v5
    v_lshlrev_b32 v18, 3, v9
    v_add_u32 v{RS}, {STATS+4}, v18
    s_lshl_b32 s{sT3}, s{sDB}, 1
    s_add_u32 s{sT3}, s{sT3}, s{sT1}
    s_lshl_b32 s{sYQ}, s{sT3}, 6
    v_lshlrev_b32 v9, 10, v9
    v_lshl_add_u32 v9, v6, 4, v9
    v_add_u32 v{XO}, s{sYQ}, v9
    s_lshl_b32 s{sYQ}, s{sT3}, 17
    s_lshl_b32 s{sT2}, s{sT2}, 6
    s_add_u32 s{sT2}, s{sT2}, s{sYQ}
    s_add_u32 s{sT2}, s{sT2}, {YB}
    v_lshrrev_b32 v9, 2, v1
    v_lshlrev_b32 v9, 12, v9
    v_lshl_add_u32 v9, v4, 4, v9
    v_add_u32 v{YL}, s{sT2}, v9
    s_mov_b32 s{sYQ}, 0x10000
    s_lshl_b32 s{sT2}, s{sWV}, 11
    s_add_u32 s{sT2}, s{sT2}, {KC}
    v_lshl_add_u32 v{YW}, v1, 4, s{sT2}
    v_lshl_add_u32 v9, v6, 2, v3
    v_lshlrev_b32 v9, 6, v9
    v_lshl_add_u32 v9, v8, 5, v9
    v_lshl_add_u32 v9, v4, 3, v9
    v_add_u32 v{YR}, s{sT2}, v9
    s_lshl_b32 s{sT3}, s{sT3}, 11
    s_add_u32 s{sT3}, s{sT3}, {FY}
    v_lshl_add_u32 v{FYP}, v7, 7, s{sT3}
    s_lshr_b32 s{sT2}, s{sTB}, 1
    s_lshl_b32 s{sT2}, s{sT2}, 11
    s_add_u32 s{sT2}, s{sT2}, {FH}
    v_min_u32 v9, 14, v7
    v_lshl_add_u32 v{FHP}, v9, 7, s{sT2}
    v_lshlrev_b32 v{EXW}, 4, v1
    v_lshlrev_b32 v{LNP}, {'6, v4' if SA else '2, v1'}""")
    k(f"""s_mul_i32 s{sT2}, s{sFT}, 6
    s_mul_i32 s{sT3}, s{sT1}, 3
    s_add_u32 s{sT2}, s{sT2}, s{sT3}
    s_lshl_b32 s{sT3}, s{sT2}, 7
    s_add_u32 s{sT3}, s{sT3}, {CS}
    v_lshl_add_u32 v9, v1, 2, s{sT3}
    v_lshl_or_b32 v{CSA}, v6, 31, v9""")
    for j in range(3):
        k(f"""s_add_u32 s{sT3}, s{sT2}, {j}
        s_cmp_lt_u32 s{sT3}, 86
        s_cselect_b32 s{sH0}, 0, {hex(OOB)}
        s_lshl_b32 s{sT3}, s{sT3}, 10
        s_or_b32 s{sT3}, s{sT3}, s{sH0}
        v_lshl_add_u32 v{HS+j}, v1, 4, s{sT3}""")
    k(f"""s_lshl_b32 s{sT2}, s{sMT}, 1
    s_add_u32 s{sT2}, s{sT2}, s{sT0}
    s_lshl_b32 s{sT3}, s{sT2}, 9
    s_add_u32 s{sT3}, s{sT3}, {STATS}
    v_lshl_add_u32 v{ST}, v5, 3, s{sT3}
    s_mul_i32 s{sH0}, s{sT2}, {2*88064}
    s_add_u32 s{sH0}, s{sH0}, {HB}
    s_add_u32 s{sH1}, s{sH0}, 88064""")
    k(f"""v_lshrrev_b32 v9, 1, v0
    v_and_b32 v18, 1, v0
    s_lshl_b32 s{sT2}, s{sP}, 5
    v_lshl_add_u32 v19, v18, 4, s{sT2}
    v_lshl_add_u32 v{UL}, v9, 13, v19
    v_mul_u32_u24 v18, {US}, v18
    v_lshl_add_u32 v18, v9, 4, v18
    v_add_u32 v{UW}, {UO+480}, v18
    v_min_u32 v9, 29, v5
    v_mul_u32_u24 v18, {US}, v6
    v_lshl_add_u32 v18, v9, 4, v18
    v_add_u32 v{UZ}, {UO}, v18
    s_mov_b32 s{sUQ}, 0x100000""")
    k(f"""v_cmp_eq_u32 vcc, 0, v1
    v_mov_b32 v9, {hex(OOB)}
    s_lshl_b32 s{sT2}, s{sMT}, 4
    s_add_u32 s{sT2}, s{sT2}, s{sFT}
    s_lshl_b32 s{sT2}, s{sT2}, 7
    s_add_u32 s{sT2}, s{sT2}, {FH}
    s_cmp_ge_u32 s{sI}, 30
    {f's_cselect_b32 s94, {FH+15*128}, s{sT2}' if SA else ''}
    s_cselect_b32 s{sT2}, {hex(OOB)}, s{sT2}
    s_lshl_b32 s{sT3}, s{sP}, 7
    s_add_u32 s{sT3}, s{sT3}, {FY}
    v_mov_b32 v18, s{sT2}
    v_mov_b32 v19, s{sT3}
    {f's_mov_b32 s95, s{sT3}' if SA else ''}
    v_cndmask_b32 v24, v19, v18, vcc
    v_add_u32 v18, s{sWV}, v18
    v_add_u32 v19, s{sWV}, v19
    v_cndmask_b32 v{FHS}, v9, v18, vcc
    v_cndmask_b32 v{FYS}, v9, v19, vcc
    v_cmp_gt_u32 vcc, 2, v0
    v_mov_b32 v18, s2
    v_mov_b32 v{ONEB}, 1
    v_cndmask_b32 v58, v9, v24, vcc
    v_cmp_eq_u32 vcc, 0, v0
    s_mov_b32 s{sONE}, {1 if SA else '0x01010101'}
    s_mov_b32 s{sC1}, {SS}
    v_cndmask_b32 v{LNF}, v9, v18, vcc
    s_mov_b32 s{sC2}, {-2*SS}""")
    k(f"""s_mul_i32 s{sT2}, s{sWV}, 22
    s_cmp_eq_u32 s{sWV}, 3
    s_cselect_b32 s{sT2}, 65, s{sT2}
    s_sub_u32 s{sT3}, 22, s{sT1}""")
    if ROT2:
        k(f"""s_mul_i32 s{sCNT}, s{sDB}, 3
        s_lshr_b32 s{sDL}, s{sI}, 3
        s_mul_i32 s{sDL}, s{sDL}, 5
        s_add_u32 s{sCNT}, s{sCNT}, s{sDL}
        v_add_u32 v9, s{sCNT}, v1""")
    else: k("v_mov_b32 v9, v1")
    for _ in range(3):
        k(f"v_subrev_u32 v18, s{sT3}, v9\nv_min_u32 v9, v9, v18")
    k(f"v_add_u32 v9, s{sT2}, v9\nv_lshlrev_b32 v59, 14, v9")
    k(f"""s_mul_i32 s{sT2}, s{sWV}, {TABW}
    s_add_u32 s{sT2}, s{sT2}, {TAB}
    v_lshl_add_u32 v56, v1, 2, s{sT2}
    v_mul_u32_u24 v9, 288, v7
    v_lshl_add_u32 v9, v2, 4, v9
    v_add_u32 v57, s{sT2}, v9
    v_mul_u32_u24 v9, 320, v3
    v_lshl_add_u32 v9, v2, 5, v9
    v_lshl_add_u32 v9, v4, 3, v9
    v_add_u32 v54, s{sT2}, v9
    s_mul_i32 s{sT2}, s{sWV}, 640
    s_add_u32 s{sT2}, s{sT2}, {TAB}
    v_mul_u32_u24 v9, {TABW}, v2
    v_lshl_add_u32 v9, v7, 4, v9
    v_add_u32 v55, s{sT2}, v9
    s_lshl_b32 s{sT2}, s{sRB}, 6
    s_lshl_b32 s{sT3}, s{sWV}, 4
    s_add_u32 s{sT2}, s{sT2}, s{sT3}
    s_add_u32 s{sT2}, s{sT2}, {STATS}
    v_lshl_add_u32 v9, v6, 3, s{sT2}
    v_cmp_eq_u32 vcc, 0, v5
    v_mov_b32 v18, {hex(OOB)}
    s_lshl_b32 s{sT2}, s{sRB}, 13
    s_lshl_b32 s{sT3}, s{sWV}, 11
    v_cndmask_b32 v53, v18, v9, vcc
    s_add_u32 s{sT2}, s{sT2}, s{sT3}
    v_lshl_add_u32 v52, v1, 4, s{sT2}""")
    k(f"""s_lshl_b32 s{sT3}, s{sWV}, 3
    s_lshr_b32 s{sT2}, {hex(sum(o<<(8*j) for j,o in enumerate(PO)))}, s{sT3}
    s_and_b32 s{sT2}, s{sT2}, 0xff
    s_lshl_b32 s{sT2}, s{sT2}, 8
    s_add_u32 s{sT2}, s{sT2}, {PX}
    v_mov_b32 v180, s{sT2}
    v_lshlrev_b32 v9, 5, v7
    v_lshl_add_u32 v9, v8, 4, v9
    v_lshl_add_u32 v9, v6, 9, v9
    v_add_u32 v176, s{sT2}, v9
    v_sub_u32 v9, 4, v6
    v_lshlrev_b32 v9, v9, v7
    v_lshl_add_u32 v9, v2, 8, v9
    s_add_u32 s{sT3}, s{sT2}, 1024
    v_add_u32 v177, s{sT3}, v9
    v_mul_u32_u24 v9, 120, v6
    v_add3_u32 v178, v177, v9, 8
    v_lshlrev_b32 v9, 2, v7
    v_lshl_add_u32 v9, v2, 8, v9
    s_add_u32 s{sT3}, s{sT2}, 2048
    v_add_u32 v179, s{sT3}, v9
    s_waitcnt lgkmcnt(0)
    s_lshl_b32 s{sT1}, s{sT1}, 4
    s_lshr_b32 s{sLD}, s{sLD}, s{sT1}
    s_lshl_b32 s{sLD}, s{sLD}, 16
    s_lshr_b32 s{sDK}, s{sDK}, s{sT1}
    s_lshl_b32 s{sDK}, s{sDK}, 16
    s_cmp_eq_u32 s{sT0}, 0
    s_cselect_b32 s{sDK}, s{sDK}, 0
    v_cmp_eq_u32 vcc, 0, v1
    v_mov_b32 v9, s{sDK}
    v_mov_b32 v165, 0
    v_cndmask_b32 v164, 0, v9, vcc
    v_mov_b32 v166, 0
    v_mov_b32 v167, 0""")
    k.dq=[]
    for j in range(22): k(f"v_readlane_b32 s{4+j}, v59, {j}")
    k.stamp('addr')
    k.w(v="row")
    k.stamp('row')
    for j in range(8):
        k(f"v_lshlrev_b32 v{20+2*j}, 16, v{10+j}\nv_and_b32 v{21+2*j}, s{sMSK}, v{10+j}")
    def red2():
        k("""s_nop 1
        v_permlane32_swap_b32 v40, v41
        v_add_f32 v40, v40, v41
        v_mov_b32 v41, v40
        s_nop 1
        v_permlane16_swap_b32 v40, v41
        v_add_f32 v40, v40, v41""")
        for r in(8,4,2,1): k(f"s_nop 1\nv_add_f32_dpp v40, v40, v40 row_ror:{r} row_mask:0xf bank_mask:0xf")
        k("v_mul_f32 v40, 0x3b000000, v40")
    for b,d in((20,40),(28,41)):
        k(f"""v_pk_add_f32 v[36:37], v[{b}:{b+1}], v[{b+2}:{b+3}]
        v_pk_add_f32 v[38:39], v[{b+4}:{b+5}], v[{b+6}:{b+7}]
        v_pk_add_f32 v[36:37], v[36:37], v[38:39]
        v_add_f32 v{d}, v36, v37""")
    red2()
    k("""v_mov_b32 v42, v40
    v_mov_b32 v43, v40
    v_cvt_pk_bf16_f32 v50, -v40, -v40
    s_nop 0
    v_permlane32_swap_b32 v42, v43""")
    for h,(b,d) in enumerate(((20,40),(28,41))):
        for j in range(4):
            k(f"v_pk_add_f32 v[38:39], v[{b+2*j}:{b+2*j+1}], v[42:43] op_sel:[0,{h}] op_sel_hi:[1,{h}] neg_lo:[0,1] neg_hi:[0,1]")
            k("v_pk_mul_f32 v[36:37], v[38:39], v[38:39]" if j==0 else "v_pk_fma_f32 v[36:37], v[38:39], v[38:39], v[36:37]")
        k(f"v_add_f32 v{d}, v36, v37")
    red2()
    k(f"""v_cvt_pk_bf16_f32 v40, v40, v40
    v_and_b32 v40, s{sMSK}, v40
    v_add_f32 v40, 0x3727c5ac, v40
    v_cvt_pk_bf16_f32 v40, v40, v40
    v_and_b32 v40, s{sMSK}, v40
    v_sqrt_f32 v40, v40
    v_and_b32 v41, s{sMSK}, v50
    v_cvt_pk_bf16_f32 v40, v40, v40
    v_and_b32 v40, s{sMSK}, v40
    v_rcp_f32 v46, v40
    s_nop 0
    v_mul_f32 v47, v41, v46
    v_mul_f32 v51, v46, v46
    v_mov_b32 v48, v46
    v_mov_b32 v49, v47
    s_nop 0
    v_permlane32_swap_b32 v46, v48
    v_permlane32_swap_b32 v47, v49""")
    k.vm(f"buffer_store_dwordx2 v[50:51], v53, {srd(SW)}, 0 offen sc1","lnst")
    for h,b in enumerate((20,28)):
        P=f"v[{46+2*h}:{47+2*h}]"
        for j in range(4):
            k(f"v_pk_fma_f32 v[{b+2*j}:{b+2*j+1}], v[{b+2*j}:{b+2*j+1}], {P}, {P} op_sel:[0,0,1] op_sel_hi:[1,0,1]")
            k(f"v_cvt_pk_bf16_f32 v{10+4*h+j}, v{b+2*j}, v{b+2*j+1}")
        k.ds(f"ds_write_b128 v55, v[{10+4*h}:{13+4*h}] offset:{320*h}")
    k.w(d=0); k("s_barrier")
    for q in range(2):
        for h in range(2): k.ds(f"ds_read_b64_tr_b16 v[{10+4*q+2*h}:{11+4*q+2*h}], v54 offset:{128*q+1280*h}",f"lt{q}")
    k(f"""v_mov_b32 v66, s{sLD}
    v_mul_f32 v66, 0x3fb8aa3b, v66
    v_exp_f32 v66, v66
    v_mov_b32 v18, 0
    v_cvt_pk_bf16_f32 v66, v66, v66
    v_and_b32 v66, s{sMSK}, v66""")
    for q in range(2):
        k.w(d=f"lt{q}")
        k.vm(f"buffer_store_dwordx4 v[{10+4*q}:{13+4*q}], v52, {srd(SW)}, 0 offen offset:{1024*q} sc1","lnst")
    k.vm(f"buffer_store_dword v18, v58, {srd(SW)}, 0 offen sc1","lnst")
    L=k.lab()
    k(f"""s_cmp_lt_u32 s{sI}, 30
    s_cbranch_scc1 {L}
    s_mul_i32 s{sT2}, s{sFT}, 768
    s_add_u32 s{sT2}, s{sT2}, {CS}
    s_cmp_eq_u32 s{sWV}, 3
    s_cselect_b32 s{sT2}, {hex(OOB)}, s{sT2}
    v_lshl_add_u32 v{CSA}, v0, 2, s{sT2}
    v_mov_b32 v19, -1
    buffer_store_dword v19, v{CSA}, {srd(SW)}, 0 offen sc1
    {L}:""")
    k.stamp('ln')
    k.w(v="par")
    k("""v_pk_mul_f32 v[60:61], v[60:61], v[66:67] op_sel_hi:[1,0]
    v_pk_mul_f32 v[62:63], v[62:63], v[66:67] op_sel_hi:[1,0]
    v_mul_f32 v60, 0x3fb8aa3b, v60
    v_mul_f32 v61, 0.15915494, v61""")
    Q={1:68,8:70,128:72}
    for e,d in Q.items():
        if e==1: k(f"v_exp_f32 v66, v60\nv_fract_f32 v67, v61")
        else: k(f"v_mul_f32 v66, {hex(f2b(float(e)))}, v60\nv_mul_f32 v67, {hex(f2b(float(e)))}, v61\nv_exp_f32 v66, v66\nv_fract_f32 v67, v67")
        k(f"v_cos_f32 v{d}, v67\nv_sin_f32 v{d+1}, v67\ns_nop 0\nv_pk_mul_f32 v[{d}:{d+1}], v[{d}:{d+1}], v[66:67] op_sel_hi:[1,0]")
    pr=lambda a:f"v[{a}:{a+1}]"
    side=dma_list(SS,"d1")+nextk
    cnt=[0]
    def tick():
        cnt[0]+=1
        if cnt[0]%3==0 and side:
            f=side.pop(0); f() if callable(f) else k(f)
    def cmul(d,a,b):
        k(f"v_pk_mul_f32 v[66:67], {pr(a)}, {pr(b)} op_sel:[0,0] op_sel_hi:[0,1]")
        k(f"v_pk_fma_f32 {pr(d)}, {pr(a)}, {pr(b)}, v[66:67] op_sel:[1,1,0] op_sel_hi:[1,0,1] neg_lo:[1,0,0]")
    tp=[0]
    def put(e,a,conj=False):
        t=96+(tp[0]&3); tp[0]+=1
        k(f"v_cvt_pk_bf16_f32 v{t}, v{a}, {'-' if conj else ''}v{a+1}")
        k.ds(f"ds_write_b32 v56, v{t} offset:{288*e}"); tick()
    cmul(74,64,62); put(0,74,True)
    for b in range(1,16): cmul(74,74,70); put(b,74,True)
    k(f"v_mov_b32 v95, 0x3f80"); k.ds(f"ds_write_b32 v56, v95 offset:{288*16}")
    qp={1:68}
    put(17,68)
    for a in range(2,8):
        qp[a]=76+2*(a-2); cmul(qp[a],qp[a-1],68); put(16+a,qp[a])
    put(24,72)
    for a in range(1,8): cmul(88,72,qp[a]); put(24+a,88)
    cur=90
    for a in range(2,17):
        cmul(cur,72 if a==2 else cur,72)
        if a in(2,3):
            e=32+4*(a-2); put(e,cur)
            for j,x in enumerate((2,4,6)): cmul(88,cur,qp[x]); put(e+1+j,88)
        elif a<8:
            e=40+2*(a-4); put(e,cur); cmul(88,cur,qp[4]); put(e+1,88)
        else: put(48+a-8,cur)
    while side:
        f=side.pop(0); f() if callable(f) else (k(f),k("s_nop 0"))
    for st in range(4):
        for T in range(4):
            k.ds(f"ds_read_b128 {vr(100+16*st+4*T,4)}, v57 offset:{T*16*288+64*st}",f"kf{st}")
    for st in range(4):
        k.w(d=f"kf{st}")
        for T in range(3):
            c=vr(164+4*T,4) if (st or T==0) else "0"
            k(f"v_mfma_f32_16x16x32_bf16 {vr(164+4*T,4)}, {vr(100+16*st+4+4*T,4)}, {vr(100+16*st,4)}, {c}")
    k("s_nop 5")
    k.ds("ds_write_b32 v180, v18 offset:3072")
    k.ds("ds_write_b128 v176, v[164:167]")
    k.ds("ds_write_b64 v177, v[168:169]"); k.ds("ds_write_b64 v178, v[170:171]")
    k.ds("ds_write2_b32 v179, v172, v173 offset0:0 offset1:16"); k.ds("ds_write2_b32 v179, v174, v175 offset0:32 offset1:48")
    k(f"""v_and_b32 v9, 7, v1
    v_mul_u32_u24 v9, {KCS}, v9
    v_and_b32 v8, 8, v1
    v_lshl_add_u32 v9, v8, 1, v9
    v_add_u32 v9, {KC+4096}, v9""")
    k.w(d=0); k("s_barrier")
    k.stamp('kgen')
    for c in range(2):
        for i in range(11): k.ds(f"ds_read2st64_b32 {vr(100+24*c+2*i,2)}, v{EX+i} offset0:{PO[2*c]} offset1:{PO[2*c+1]}",f"ex{c}_{i}")
    k("v_mov_b32 v20, 0\nv_mov_b32 v21, 0\nv_mov_b32 v22, 0\nv_mov_b32 v23, 0")
    k.ds("ds_write_b128 v9, v[20:23]")
    for c in range(2):
        for i in range(11):
            if i in(0,4,8): k.w(d=f"ex{c}_{min(i+3,10)}")
            k(f"v_add_f32 v{100+24*c+2*i}, v{100+24*c+2*i}, v{101+24*c+2*i}")
        for s in range(4):
            t=24+16*c+4*s
            for j in range(4):
                i=100+24*c+2*(3-s+2*j)
                k(f"v_cvt_pk_bf16_f32 v{t+j}, v{i}, v{i+2}")
            k.ds(f"ds_write_b128 v{KCW}, {vr(t,4)} offset:{(4*c+s)*KCS}")
    k.stamp('exp')
    k.w(v="lnst",d=0); k("s_barrier")
    if SA:
        L=k.lab(); k(f"s_cmp_lg_u32 s{sWV}, 0\ns_cbranch_scc1 {L}\ns_and_b32 s{sT0}, s2, 3\ns_lshl_b32 s{sT0}, s{sT0}, 6\ns_atomic_add s{sONE}, s[{SB}:{SB+1}], s{sT0}\n{L}:"); k.smem=1
    elif not FX: k.vm(f"buffer_store_byte v{ONEB}, v{LNF}, {srd(SB)}, 0 offen sc1","lnf")
    k.stamp('barB')
    CSL=k.lab("CS"); MRG=k.lab("MRG")
    k(f"s_cmp_ge_u32 s{sI}, 30\ns_cbranch_scc1 {CSL}")
    ACC=16; FA=(112,132); FB=(124,144); EA=152; EB=164; UR=172; PL=180
    def reads(st,f):
        L=[]
        for e in range(2): L.append(lambda e=e: k.ds(f"ds_read_b128 {vr(FB[f]+4*e,4)}, v{XR+st} offset:{4096*e}","fr"))
        for u in range(3):
            for h in range(2): L.append(lambda u=u,h=h: k.ds(f"ds_read_b64_tr_b16 {vr(FA[f]+4*u+2*h,2)}, v{WR} offset:{3072*st+768*h+32*u}","fr"))
        return [L[0],L[2],L[3],L[1]]+L[4:]+([lambda: k.ds(f"ds_read_b32 v198, v{EXW}","dum")] if getattr(k,'smem',0) else [])
    def mf(f,zero=False):
        return [f"v_mfma_f32_32x32x16_bf16 {vr(ACC+16*(2*u+e),16)}, {vr(FA[f]+4*u,4)}, {vr(FB[f]+4*e,4)}, {'0' if zero else vr(ACC+16*(2*u+e),16)}" for u in range(3) for e in range(2)]
    def mix(a,b):
        o=[];a=list(a);b=list(b)
        while a or b:
            if a:o.append(a.pop(0))
            if a:o.append(a.pop(0))
            if b:o.append(b.pop(0))
        return o
    def adv(delta):
        return [f"v_add_u32 v{r}, {delta}, v{r}" for r in(XR,WR,XR+1,XR+2,XR+3)]
    for f in reads(0,0): f()
    k(f"s_mov_b32 s{sRING}, {2*SS}\ns_mov_b32 s{sCNT}, 0")
    if FV or FW:
        k(f"v_lshlrev_b32 v198, {4 if FWK=='b128' else 2}, v1\nv_add_u32 v198, {PT}, v198")
        _w=globals()['weave']; gc=[0]
        def weave(k,mf,fl,per,start=0):
            if gc[0]>=30: return _w(k,mf,fl,per,start)
            fl=list(fl)
            for i,m in enumerate(mf):
                k(m)
                n=per[i] if isinstance(per,(list,tuple)) else per
                for _ in range(n):
                    if fl:
                        f=fl.pop(0); f() if callable(f) else k(f)
                g=gc[0]-6 if gc[0]>=6 else gc[0]; gc[0]+=1
                for j in range(FV): k(f"v_fma_f32 v{188+(g*FV+j)%4}, v{192+j%4}, v{192+j%4}, v{188+(g*FV+j)%4}")
                for j in range(((g+1)*FW//24-g*FW//24) if FG<0 else (FW if g==FG else 0)):
                    if FWK=='tid': k.ds("ds_write_addtid_b32 v197 offset:%d"%(0*PT+256*((g+j)%8))); continue
                    k.ds("ds_write_b32 v198, v197 offset:%d"%(256*((g+j)%8)) if FWK=='b32' else "ds_write_b128 v198, v[192:195] offset:%d"%(1024*((g+j)%4)))
            for f in fl: f() if callable(f) else k(f)
    else: weave=globals()['weave']
    LOOP=k.lab("G1L"); MID=k.lab("G1M")
    D=dma_list(f"s{sRING}","dl")
    nwf=lambda g:(((g+1)*FW//24-g*FW//24) if FG<0 else (FW if g==FG else 0))
    cw=lambda a,b: 1 if SA else (min(15,sum(nwf(g) for g in range(a,b))) if FC else 0)
    k.w(d=cw(0,0)); weave(k,mf(0,True),mix(reads(1,1),D[0:5]),3)
    k(f"s_branch {MID}\n{LOOP}:")
    D=dma_list(f"s{sRING}","dl")
    k.w(d=cw(20,24)); weave(k,mf(0),mix(reads(1,1),D[0:5]),3)
    k(f"{MID}:")
    k.w(d=cw(3,6)); weave(k,mf(1),mix(reads(2,0),D[5:9]),3)
    k.w(d=cw(9,12)); weave(k,mf(0),mix(reads(3,1),D[9:13])+[f"s_cmp_eq_u32 s{sRING}, s{sC1}",f"s_cselect_b32 s{sDL}, s{sC2}, s{sC1}"],3)
    L=k.lab()
    def bar0():
        k(f"s_cmp_eq_u32 s{sCNT}, 0\ns_cbranch_scc1 {L}\ns_waitcnt vmcnt(10)\n{L}:\ns_waitcnt vmcnt({10 if FX or SA else 11})\ns_barrier")
    A=adv(f"s{sDL}")
    tailf=nextk+[f"s_add_u32 s{sRING}, s{sRING}, s{sC1}",f"s_cmp_eq_u32 s{sRING}, {3*SS}",f"s_cselect_b32 s{sRING}, 0, s{sRING}",f"s_add_u32 s{sCNT}, s{sCNT}, 1",f"s_cmp_lt_u32 s{sCNT}, 5"]
    k.w(d=cw(15,18)); weave(k,mf(1),[bar0]+A[:2]+reads(0,0)+A[2:]+tailf,[1,5,5,5,5,5])
    k(f"s_cbranch_scc1 {LOOP}")
    k.vq=["dl"]*10
    k.stamp('g1loop')
    if FX: k.vm(f"buffer_store_byte v{ONEB}, v{LNF}, {srd(SB)}, 0 offen sc1","lnf")
    def poll(tag,reg,addr,sr,exp,extra=""):
        ok=k.lab("OK"); rt=k.lab("RT")
        k.w(v=tag)
        cmp="gt" if exp==64 else "ne"
        k(f"v_cmp_{cmp}_u32 vcc, {exp}, v{reg}\ns_cbranch_vccnz {rt}\n{ok}:")
        lp=k.lab("RL")
        k.tail.append(f"""{rt}:
        s_movk_i32 s{sT3}, 4000
        {lp}:
        buffer_load_dword v{reg}, v{addr}, {srd(sr)}, 0 offen sc1
        s_waitcnt vmcnt(0)
        v_cmp_{cmp}_u32 vcc, {exp}, v{reg}
        s_cbranch_vccz {ok}
        s_sub_u32 s{sT3}, s{sT3}, 1
        s_cmp_lg_u32 s{sT3}, 0
        s_cbranch_scc1 {lp}
        s_branch {ok}""")
    LNX=64 if SA else f"s{sONE}"; FLX=4 if SA else f"s{sONE}"
    def sat(so): k(f"s_atomic_add s{sONE}, s[{SW}:{SW+1}], s{so}"); k.smem=1
    lnpoll=lambda: k.vm(f"buffer_load_dword v{PL}, v{LNP}, {srd(SB)}, 0 offen sc1","lnp")
    def uloads():
        return [lambda q=q: k.vm(f"buffer_load_dwordx4 {vr(UR+4*q,4)}, v{UL}, {srd(SW)}, {'s%d'%sUQ if q else 0} offen sc1","u") for q in range(2)]
    def wd_loc(j):
        if j<3: return ('C',2048*j)
        if j<8: return ('A',2048*(j-3))
        if j<13: return ('A',BW+2048*(j-8))
        if j<16: return ('C',2048*(j-13))
        if j<21: return ('A',2048*(j-16))
        return ('A',BW)
    def wd_dma(j):
        r,o=wd_loc(j); b=sCWB if r=='C' else sAW
        return [f"s_add_u32 m0, s{b}, {o}" if o else f"s_mov_b32 m0, s{b}"]+[lambda h=h: k.vm(f"buffer_load_dwordx4 v{WDV+h}, {srd(SD)}, s{4+j} offen offset:{1024*h} lds",f"wd{j}") for h in range(2)]
    def wd_tr(j):
        r,o=wd_loc(j); b=TC if r=='C' else TA
        return [lambda e=e,h=h: k.ds(f"ds_read_b64_tr_b16 {ar(8*j+4*e+2*h,2)}, v{b+e} offset:{o+1024*h}",f"wt{j}") for e in range(2) for h in range(2)]
    def uwrite():
        L=[lambda: k.w(v="u")]
        L+=[lambda q=q: k.ds(f"ds_write_b128 v{UW}, {vr(UR+4*q,4)} offset:{2048*q}","uw") for q in range(2)]
        return L
    D=dma_list(SS,"d7")
    k.w(d="fr"); weave(k,mf(0),[lnpoll]+mix(reads(1,1),D[0:5]),3)
    k.w(d="fr"); weave(k,mf(1),mix(reads(2,0),D[5:9]),3)
    k.w(d="fr"); weave(k,mf(0),mix(reads(3,1),D[9:13]),3)
    A=adv(-2*SS)
    k.w(d="fr"); k.smem=0; weave(k,mf(1),[lambda:(k.w(v="dl"),k("s_barrier"))]+A[:2]+reads(0,0)+A[2:]+[lambda: poll("lnp",PL,LNP,SB,LNX)]+uloads(),[1,5,5,3,1,5])
    zer=[f"v_mov_b32 v{r}, 0" for r in list(range(EA,EA+12))+list(range(EB,EB+8)) if (r-EA)%4]
    k.w(d=0); weave(k,mf(0),reads(1,1)+zer,4)
    sl=[lambda e=e: k.vm(f"buffer_load_dword v{EB+4*e}, v{ST}, {srd(SW)}, 0 offen offset:{256*e} sc1","st") for e in range(2)]
    cl=[lambda j=j: k.vm(f"buffer_load_dword v{EA+4*j}, v{CSA}, {srd(SW)}, 0 offen offset:{128*j} sc1","cs") for j in range(3)]
    k.w(d=0); weave(k,mf(1),reads(2,0)+sl+cl,3)
    zpad=[lambda: k.ds(f"ds_write_b128 v{UZ}, v[184:187]","uw")]
    k("v_mov_b32 v184, 0\nv_mov_b32 v185, 0\nv_mov_b32 v186, 0\nv_mov_b32 v187, 0")
    k.w(d=0); weave(k,mf(0),mix(reads(3,1),wd_dma(0)+wd_dma(1))+zpad,3)
    A=adv(SS)
    k.w(d=0); weave(k,mf(1),[lambda:(k.w(v="d7"),k("s_barrier"))]+A[:2]+reads(0,0)+A[2:]+wd_dma(2),[1,5,5,5,5,5])
    k.w(d=0); weave(k,mf(0),mix(reads(1,1),wd_dma(3)+wd_dma(4)),3)
    k.w(d=0); weave(k,mf(1),mix(reads(2,0),wd_dma(5)+wd_dma(6)),3)
    k.w(d=0); weave(k,mf(0),mix(reads(3,1),wd_dma(7))+uwrite(),3)
    CS0A,CS0B=('a',176),('a',208); CS1A,CS1B=('v',16),('v',48); CACC=112
    def rg(t,o,n): return (ar if t[0]=='a' else vr)(t[1]+o,n)
    def conv_reads(rho):
        SA,SBb=((CS0A,CS0B),(CS1A,CS1B))[rho&1]
        L=[]
        for i in range(8):
            L.append(lambda i=i: k.ds(f"ds_read_b128 {rg(SBb,4*i,4)}, v{CB} offset:{192-64*rho+512*i}",f"cv{rho}"))
            for h in range(2): L.append(lambda i=i,h=h: k.ds(f"ds_read_b64 {rg(SA,4*i+2*h,2)}, v{CA} offset:{3776-512*i-64*rho+8*h}",f"cv{rho}"))
        return L
    def cscheck():
        k.w(v="cs")
        ok=k.lab("OK"); rt=k.lab("RT"); lp=k.lab("RL")
        k(f"v_max3_u32 v{PL}, v{EA}, v{EA+4}, v{EA+8}\nv_cmp_eq_u32 vcc, -1, v{PL}\ns_cbranch_vccnz {rt}\n{ok}:")
        k.tail.append(f"""{rt}:
        s_movk_i32 s{sT3}, 4000
        {lp}:
        buffer_load_dword v{EA}, v{CSA}, {srd(SW)}, 0 offen sc1
        buffer_load_dword v{EA+4}, v{CSA}, {srd(SW)}, 0 offen offset:128 sc1
        buffer_load_dword v{EA+8}, v{CSA}, {srd(SW)}, 0 offen offset:256 sc1
        s_waitcnt vmcnt(0)
        v_max3_u32 v{PL}, v{EA}, v{EA+4}, v{EA+8}
        v_cmp_eq_u32 vcc, -1, v{PL}
        s_cbranch_vccz {ok}
        s_sub_u32 s{sT3}, s{sT3}, 1
        s_cmp_lg_u32 s{sT3}, 0
        s_cbranch_scc1 {lp}
        s_branch {ok}""")
    CR0=conv_reads(0)
    k.w(d=0); weave(k,mf(1),["s_barrier"]+CR0[:16]+[cscheck],[1,4,4,4,4,1])
    k.stamp('g1s7')
    mx=[f"v_mfma_f32_32x32x16_bf16 {vr(ACC+16*(2*u+e),16)}, {vr(EA+4*u,4)}, {vr(EB+4*e,4)}, {vr(ACC+16*(2*u+e),16)}" for u in range(3) for e in range(2)]
    def hepi(b):
        a=ACC+16*b; u,e=b>>1,b&1
        L=[f"v_mul_f32 v{a+r}, v{a+r}, v{a+8+r}" for r in range(8)]
        L+=[f"v_cvt_pk_bf16_f32 v{a+8+j}, v{a+2*j}, v{a+2*j+1}" for j in range(4)]
        L.append(lambda: k.vm(f"buffer_store_dwordx4 {vr(a+8,4)}, v{HS+u}, {srd(SW)}, s{sH0+e} offen sc1","h"))
        return L
    if probe==2: k("s_waitcnt vmcnt(0)"); k.stamp('hA')
    weave(k,mx,CR0[16:]+["s_nop 1"]+hepi(0)+hepi(1),[4,4,1,6,6,6])
    for b in range(2,6):
        for f in hepi(b): f() if callable(f) else k(f)
    if probe==2: k.stamp('hB'); k("s_waitcnt vmcnt(0)"); k.stamp('hC'); k("s_waitcnt lgkmcnt(0)")
    vq_main=list(k.vq); dq_main=list(k.dq)
    k(f"{MRG}:")
    k.stamp('hepi')
    def conv_mf(rho):
        SA,SBb=((CS0A,CS0B),(CS1A,CS1B))[rho&1]
        L=[]
        for s in range(8):
            for i in range(s+1):
                I=s
                c="0" if (rho==0 and i==0) else vr(CACC+4*I,4)
                L.append(f"v_mfma_f32_16x16x32_bf16 {vr(CACC+4*I,4)}, {rg(SA,4*i,4)}, {rg(SBb,4*(I-i),4)}, {c}")
        return L
    def trs(js):
        L=[]
        for j in js: L+=[lambda j=j: k.w(v=f"wd{j}")]+wd_tr(j)
        return L
    def redma(jn,jold):
        D=wd_dma(jn); return [D[0],lambda: k.w(d=f"wt{jold}")]+D[1:]
    hflag=[lambda: k.w(v="h"), (lambda: sat(94)) if SA else (lambda: k.vm(f"buffer_store_byte v{ONEB}, v{FHS}, {srd(SW)}, 0 offen sc1","hf"))]
    k.w(d="cv0"); weave(k,conv_mf(0),mix(conv_reads(1),wd_dma(8)+wd_dma(9)+wd_dma(10)+wd_dma(11))+wd_dma(12)+trs([0,1,2])+redma(13,0)+redma(14,1)+redma(15,2),2)
    k.w(d="cv1"); weave(k,conv_mf(1),conv_reads(2)+hflag+trs([3,4,5,6,7])+redma(16,3)+redma(17,4)+redma(18,5)+redma(19,6),2)
    k.w(d="cv2"); weave(k,conv_mf(2),conv_reads(3)+redma(20,7)+trs([8,9,10])+redma(21,8)+[lambda: k.vm(f"buffer_load_dword v{PL-80}, v{FHP}, {srd(SW)}, 0 offen sc1","hp")],2)
    HR=144
    def hload(j):
        r=HR+8*(j%(DEPTH+1))
        return [f"s_lshr_b32 s{sT0}, s{4+j}, 4"]+[lambda e=e: k.vm(f"buffer_load_dwordx4 {vr(r+4*e,4)}, v{HL+e}, {srd(SW)}, s{sT0} offen sc1",f"h{j}") for e in range(2)]
    pre=[lambda: poll("hp",PL-80,FHP,SW,FLX)]
    for j in range(DEPTH): pre+=hload(j)
    k.w(d="cv3"); weave(k,conv_mf(3),pre,2,start=20)
    k.stamp('conv'); k.smem=0
    H1=k.lab("H1"); HE=k.lab("HE")
    k(f"""s_add_u32 s{sT1}, s{sAW}, {BW+2048}
    v_add_u32 v96, s{sT1}, v{EXW}
    s_xor_b32 s{sT2}, s{sWV}, 1
    s_mul_i32 s{sT2}, s{sT2}, {AWS}
    s_add_u32 s{sT2}, s{sT2}, {BW+2048}
    v_add_u32 v97, s{sT2}, v{EXW}
    s_bitcmp1_b32 s{sWV}, 0
    s_cbranch_scc1 {H1}""")
    for hh in range(2):
        snd=CACC+16*(1-hh); own=CACC+16*hh
        if hh==0: k("s_nop 1")
        for j in range(4): k(f"ds_write_b128 v96, {vr(snd+4*j,4)} offset:{1024*j}")
        k("s_waitcnt lgkmcnt(0)\ns_barrier")
        for j in range(4): k(f"ds_read_b128 {vr(80+4*j,4)}, v97 offset:{1024*j}")
        for j in range(4):
            k(f"s_waitcnt lgkmcnt({3-j})")
            k(f"v_pk_add_f32 {vr(80+4*j,2)}, {vr(80+4*j,2)}, {vr(own+4*j,2)}\nv_pk_add_f32 {vr(82+4*j,2)}, {vr(82+4*j,2)}, {vr(own+4*j+2,2)}")
        if hh==0: k(f"s_branch {HE}\n{H1}:")
    k(f"{HE}:"); k.dq=[]
    for j in range(4): k(f"v_cvt_pk_bf16_f32 v{112+2*j}, v{80+4*j}, v{81+4*j}\nv_cvt_pk_bf16_f32 v{113+2*j}, v{82+4*j}, v{83+4*j}")
    k("s_nop 0")
    for j in range(2):
        k(f"v_permlane16_swap_b32 v{112+4*j}, v{114+4*j}\nv_permlane16_swap_b32 v{113+4*j}, v{115+4*j}")
    for j in range(2): k.vm(f"buffer_store_dwordx4 {vr(112+4*j,4)}, v{YS}, {srd(SW)}, 0 offen offset:{1024*j} sc1","y")
    k.vm(f"buffer_load_dwordx4 v[136:139], v{XO}, {srd(SX)}, 0 offen","x")
    k.vm(f"buffer_load_dwordx4 v[140:143], v{XO}, {srd(SX)}, 0 offen offset:32","x")
    k.vm(f"buffer_load_dword v135, v{RS}, {srd(SW)}, 0 offen sc1","x")
    k.w(v="wd21")
    for j in range(11,22):
        for f in wd_tr(j): f()
    k.stamp('xchg')
    A2=16
    def g2mf(j):
        r=HR+8*(j%(DEPTH+1))
        return [f"v_mfma_f32_32x32x16_bf16 {vr(A2+16*(2*d+t),16)}, {ar(8*j+4*d,4)}, {vr(r+4*t,4)}, {'0' if j==0 else vr(A2+16*(2*d+t),16)}" for d,t in((1,1),(1,0),(0,1),(0,0))]
    SK=k.lab("SK")
    waited=False
    for j in range(22):
        fl=[]
        if j+DEPTH<22: fl+=hload(j+DEPTH)
        if j==DEPTH: fl+=[(lambda: sat(95)) if SA else (lambda: k.vm(f"buffer_store_byte v{ONEB}, v{FYS}, {srd(SW)}, 0 offen sc1","yf"))]
        if j==12: fl+=[lambda: k.vm(f"buffer_load_dword v134, v{FYP}, {srd(SW)}, 0 offen sc1","yp")]
        if j==17:
            fl+=[lambda: poll("yp",134,FYP,SW,FLX)]
            fl+=[lambda q=q: k.vm(f"buffer_load_dwordx4 {vr(112+4*q,4)}, v{YL}, {srd(SW)}, {'s%d'%sYQ if q else 0} offen sc1","yl") for q in range(2)]
        if j==21: k(f"s_cmp_ge_u32 s{sWV}, 2\ns_cbranch_scc1 {SK}")
        if j>=(DEPTH if SA else 11) and not waited: k.w(v=f"h{j}",d=0); waited=True
        else: k.w(v=f"h{j}")
        weave(k,g2mf(j),fl,3)
    k(f"{SK}:")
    k.stamp('g2'); k.smem=0
    k(f"""v_add_u32 v96, s{sAW}, v{EXW}
    v_add_u32 v97, s{sCWB}, v{EXW}""")
    for x in (1,2,3):
        k(f"s_xor_b32 s{sT0}, s{sWV}, {x}")
        if x<3: k(f"s_mul_i32 s{sT0}, s{sT0}, {AWS}\ns_add_u32 s{sT0}, s{sT0}, {4096*(x-1)}")
        else: k(f"s_mul_i32 s{sT0}, s{sT0}, {CWS}\ns_add_u32 s{sT0}, s{sT0}, {CW}")
        k(f"v_add_u32 v{97+x}, s{sT0}, v{EXW}")
    for x in (3,2,1):
        for a in range(4):
            k.ds(f"ds_write_b128 v{97 if x==3 else 96}, {vr(A2+16*x+4*a,4)} offset:{1024*a+(4096 if x==2 else 0)}")
    k.w(v="yl")
    for q in range(2): k.ds(f"ds_write_b128 v{YW}, {vr(112+4*q,4)} offset:{1024*q}")
    for a in range(4): k.ds(f"ds_read_b64_tr_b16 {vr(120+2*a,2)}, v{YR} offset:{512*a}","yt")
    k.w(d=0); k("s_barrier")
    for x in (1,2,3):
        for a in range(4): k.ds(f"ds_read_b128 {vr(144+16*(x-1)+4*a,4)}, v{97+x} offset:{1024*a}",f"rd{x}")
    for j in range(8): k(f"v_lshlrev_b32 v{80+2*j}, 16, v{120+j}\nv_and_b32 v{81+2*j}, s{sMSK}, v{120+j}")
    for x in (1,2,3):
        k.w(d=f"rd{x}")
        for j in range(8): k(f"v_pk_add_f32 {vr(A2+2*j,2)}, {vr(A2+2*j,2)}, {vr(144+16*(x-1)+2*j,2)}")
    for j in range(8): k(f"v_pk_fma_f32 {vr(A2+2*j,2)}, {vr(A2+2*j,2)}, v[134:135], {vr(80+2*j,2)} op_sel:[0,1,0] op_sel_hi:[1,1,1]")
    for j in range(8): k(f"v_lshlrev_b32 v{80+2*j}, 16, v{136+j}\nv_and_b32 v{81+2*j}, s{sMSK}, v{136+j}")
    for a in(0,2):
        for r in range(4): k(f"v_permlane32_swap_b32 v{A2+4*a+r}, v{A2+4*a+4+r}")
    for j in range(8):
        k(f"v_pk_add_f32 {vr(A2+2*j,2)}, {vr(A2+2*j,2)}, {vr(80+2*j,2)}\nv_cvt_pk_bf16_f32 v{100+j}, v{A2+2*j}, v{A2+2*j+1}")
        if j%4==3: k.vm(f"buffer_store_dwordx4 {vr(100+j-3,4)}, v{XO}, {srd(SO)}, 0 offen offset:{32*(j//4)} {OSF.replace('_',' ')}","o")
    if prof:
        k.stamp('epi'); k("s_waitcnt vmcnt(0) lgkmcnt(0)"); k.stamp('drain'); k("s_waitcnt lgkmcnt(0)"); k.stamp(); k.stamp()
        k("; STAMPS "+" ".join(k.names[:-2]))
        k("s_memrealtime s[94:95]\ns_waitcnt lgkmcnt(0)\nv_writelane_b32 v199, s94, 62\nv_writelane_b32 v199, s96, 63")
        k(f"s_lshl_b32 s{sT0}, s2, 2\ns_add_u32 s{sT0}, s{sT0}, s{sWV}\ns_lshl_b32 s{sT0}, s{sT0}, 8\ns_add_u32 s{sT0}, s{sT0}, {PROF}\nv_lshl_add_u32 v2, v1, 2, s{sT0}")
        k(f"buffer_store_dword v199, v2, {srd(SW)}, 0 offen")
        if pace:
            L=k.lab(); LP=k.lab()
            k(f"""s_cmp_lg_u32 s{sWV}, 0
            s_cbranch_scc1 {L}
            s_cmp_lg_u32 s2, {pwg}
            s_cbranch_scc1 {L}""")
            if pace==1: k(f"s_mov_b32 s{sT0}, 6000")
            if pace==2: k(f"s_sub_u32 s{sT0}, s94, s96\ns_lshl_b32 s{sT0}, s{sT0}, 2")
            if pace==3: k(f"v_readlane_b32 s{sT0}, v199, {k.names.index(pidx)}\ns_sub_u32 s{sT0}, s{sT0}, s34\ns_lshr_b32 s{sT0}, s{sT0}, {psh}\ns_add_u32 s{sT0}, s{sT0}, 4000")
            if pace==4: k(f"v_readlane_b32 s{sT0}, v199, {k.names.index(pidx)}\nv_readlane_b32 s{sT1}, v199, {k.names.index(pidx2)}\ns_sub_u32 s{sT0}, s{sT0}, s{sT1}\ns_lshr_b32 s{sT0}, s{sT0}, {psh}\ns_add_u32 s{sT0}, s{sT0}, 4000")
            k(f"""s_min_u32 s{sT0}, s{sT0}, 30000
            s_mov_b32 s{sT2}, 100000
            {LP}:
            s_memrealtime s[94:95]
            s_waitcnt lgkmcnt(0)
            s_sub_u32 s{sT1}, s94, s96
            s_cmp_ge_u32 s{sT1}, s{sT0}
            s_cbranch_scc1 {L}
            s_sub_u32 s{sT2}, s{sT2}, 1
            s_cmp_lg_u32 s{sT2}, 0
            s_cbranch_scc1 {LP}
            {L}:""")
        if dbg:
            L=k.lab()
            k(f"""s_cmp_lg_u32 s{sWV}, 0
            s_cbranch_scc1 {L}
            s_and_b32 s{sT0}, s2, 0x18
            s_cmp_lg_u32 s{sT0}, 0
            s_cbranch_scc1 {L}
            s_sub_u32 s{sT0}, s94, s96
            v_writelane_b32 v199, s{sT0}, 2
            s_or_b32 s{sT0}, s94, 0x80000000
            s_not_b32 s{sT1}, s96
            s_or_b32 s{sT1}, s{sT1}, 0x80000000
            s_or_b32 s{sT2}, s96, 0x80000000
            v_mov_b32 v4, s{sT0}
            v_writelane_b32 v4, s{sT1}, 1
            v_writelane_b32 v4, s{sT2}, 2
            v_cmp_gt_u32 vcc, 3, v1
            v_lshlrev_b32 v6, 2, v1
            v_add_u32 v6, 52, v6
            v_mov_b32 v7, {hex(OOB)}
            v_cndmask_b32 v6, v7, v6, vcc
            buffer_atomic_umax v4, v6, {srd(SB)}, 0 offen sc1
            s_cmp_lg_u32 s2, {dbg-1}
            s_cbranch_scc1 {L}
            v_readlane_b32 s{sT0}, v199, 2
            v_readlane_b32 s{sT1}, v199, 14
            v_subrev_u32 v4, s34, v199
            s_sub_u32 s{sT1}, s{sT1}, s34
            v_writelane_b32 v4, s{sT0}, 2
            v_writelane_b32 v4, s{sT1}, 13
            v_cmp_gt_u32 vcc, 14, v1
            v_lshlrev_b32 v6, 2, v1
            v_add_u32 v6, -4, v6
            v_cndmask_b32 v6, v7, v6, vcc
            buffer_store_dword v4, v6, {srd(SB)}, 0 offen sc1
            {L}:""")
    k("s_endpgm")
    k(f"{CSL}:")
    if FX: k(f"buffer_store_byte v{ONEB}, v{LNF}, {srd(SB)}, 0 offen sc1")
    k(f"""s_mul_i32 s{sT0}, s{sWV}, 3072
    s_lshr_b32 s{sT1}, s{sWV}, 1
    s_mul_i32 s{sT1}, s{sT1}, 96
    s_sub_u32 s{sT0}, s{sT0}, s{sT1}
    v_add_u32 v{WR}, s{sT0}, v{WR}
    v_mov_b32 v112, 0x3f803f80
    v_mov_b32 v113, v112
    v_mov_b32 v114, v112
    v_mov_b32 v115, v112
    s_mov_b32 s{sRING}, {2*SS}
    s_mov_b32 s{sCNT}, 0""")
    for r in range(16,112): k(f"v_mov_b32 v{r}, 0")
    def csdma():
        D=dma_list(f"s{sRING}","c")[5:]
        for f in D: f() if callable(f) else (k(f),k("s_nop 0"))
        for f in nextk: k(f)
    csdma()
    CL=k.lab("CL"); CN=k.lab("CN")
    k(f"{CL}:\ns_waitcnt vmcnt(12)\ns_cmp_lt_u32 s{sCNT}, 6\ns_cbranch_scc1 {CN}\ns_waitcnt vmcnt(0)\n{CN}:")
    for u in range(6):
        for h in range(2): k(f"ds_read_b64_tr_b16 {vr(116+4*u+2*h,2)}, v{WR} offset:{768*h+32*u}")
    CN2=k.lab("CN")
    k(f"""s_add_u32 s{sRING}, s{sRING}, s{sC1}
    s_cmp_eq_u32 s{sRING}, {3*SS}
    s_cselect_b32 s{sRING}, 0, s{sRING}
    s_cmp_eq_u32 s{sRING}, {2*SS}
    s_cselect_b32 s{sDL}, s{sC2}, s{sC1}
    v_add_u32 v{WR}, s{sDL}, v{WR}
    s_waitcnt lgkmcnt(0)
    s_cmp_ge_u32 s{sCNT}, 5
    s_cbranch_scc1 {CN2}""")
    csdma()
    k(f"{CN2}:")
    for u in range(6): k(f"v_mfma_f32_32x32x16_bf16 {vr(16+16*u,16)}, v[112:115], {vr(116+4*u,4)}, {vr(16+16*u,16)}")
    k(f"s_add_u32 s{sCNT}, s{sCNT}, 1\ns_cmp_lt_u32 s{sCNT}, 8\ns_cbranch_scc1 {CL}")
    k(f"""s_mul_i32 s{sT0}, s{sWV}, 768
    s_add_u32 s{sT0}, s{sT0}, {PT}
    v_and_b32 v2, 31, v1
    v_lshl_add_u32 v2, v2, 2, s{sT0}
    v_min_u32 v3, 191, v0
    v_lshlrev_b32 v3, 2, v3
    v_add_u32 v3, {PT}, v3
    s_nop 7""")
    for u in range(6): k(f"ds_write_b32 v2, v{16+16*u} offset:{128*u}")
    k("s_waitcnt lgkmcnt(0)\ns_barrier")
    for j in range(4): k(f"ds_read_b32 v{4+j}, v3 offset:{768*j}")
    k(f"""s_waitcnt lgkmcnt(0)
    v_add_f32 v4, v4, v5
    v_add_f32 v6, v6, v7
    v_add_f32 v4, v4, v6
    v_cvt_pk_bf16_f32 v5, v4, v4
    v_and_b32 v5, s{sMSK}, v5
    v_sub_f32 v6, v4, v5
    v_cvt_pk_bf16_f32 v5, v5, v6
    buffer_store_dword v5, v{CSA}, {srd(SW)}, 0 offen sc1""")
    k.vq=[]; k.dq=[]
    lnpoll(); poll("lnp",PL,LNP,SB,LNX)
    for f in uloads(): f()
    k("v_mov_b32 v184, 0\nv_mov_b32 v185, 0\nv_mov_b32 v186, 0\nv_mov_b32 v187, 0")
    for j in range(8):
        for f in wd_dma(j): f() if callable(f) else (k(f),k("s_nop 0"))
    zpad[0]()
    for f in uwrite(): f()
    k("s_waitcnt lgkmcnt(0)\ns_barrier")
    for f in conv_reads(0): f()
    k(f"s_waitcnt vmcnt(0) lgkmcnt(0)\ns_branch {MRG}")
    for t in k.tail: k(t)
    k(f"{END}:")
    return k
import struct
def f2b(x): return struct.unpack('<I',struct.pack('<f',x))[0]
if __name__=='__main__':
    out=sys.argv[1]; opts=dict(a.split('=') for a in sys.argv[2:])
    opts={a:(int(b) if b.lstrip('-').isdigit() else b) for a,b in opts.items()}
    k=gen(**opts)
    hdr="".join(l for l in open('cdna_kernels/'+NAME[:-7]+'.s.ref') if l.startswith(';') and '@launch' not in l)
    txt=module([k],[(None,256,256,163840)],hdr)
    open(out,'w').write(txt)
    print("hazards:",haz.check(txt.split('\n')))
```

```python
import sys
sys.path.insert(0,'w')
from gl import *
import haz
NAME="parallel_sum__ssm_conv_s4__glu_gated_bilinear__prompt_kernel"
XNB=0; STATS=0x200000; FH=0x210000; FY=0x218000; PROF=0x220000; HB=0x400000; YB=0xA00000; CS=0xC00000; WSEND=CS+86*128
SS=41216; WG_O=16384; WU_D=12320
TAB=82432; TABW=16416; KC=123648; KCS=4160; PT=156928; PTS=3088
UO=82432; US=4608; CW=91648; CWS=6144; AWS=10240; BW=41216
OOB=0x80000000
PX=116292; PO=(0,13,159,172); EXB=11168; TBS=4352; LNS=2560
O7=['04123567','12530467','23061457','30127456']
OROT=['01234567','23456701','45670123','67012345']
class G(K):
    def __init__(s,*a,**kw):
        super().__init__(*a,**kw); s.vq=[]; s.dq=[]; s.tail=[]; s.nst=0; s.names=['start']
    def vm(s,t,tag=None):
        if t.endswith(' lds') and ' m0,' in s.L[-1]: s("s_nop 0")
        s(t); s.vq.append(tag)
    def ds(s,t,tag=None): s(t); s.dq.append(tag)
    def nv(s,tag):
        i=max(j for j,x in enumerate(s.vq) if x==tag); return min(len(s.vq)-1-i,63)
    def nd(s,tag):
        i=max(j for j,x in enumerate(s.dq) if x==tag); return min(len(s.dq)-1-i,15)
    def w(s,v=None,d=None):
        o=[]
        if v is not None: o.append(f"vmcnt({s.nv(v) if isinstance(v,str) else v})")
        if d is not None:
            n=s.nd(d) if isinstance(d,str) else d
            if getattr(s,'smem',0) and n==0: print("SMEM region: lgkmcnt(0) at line",len(s.L),d)
            o.append(f"lgkmcnt({n})")
        s("s_waitcnt "+" ".join(o))
    def stamp(s,name=''):
        if s.prof:
            n=s.nst; R=(90,92,98,100); a=R[n&3]
            s(f"s_memtime s[{a}:{a+1}]")
            if n>=2: s(f"v_writelane_b32 v199, s{R[(n-2)&3]}, {n-1}")
            elif n==0: s("v_writelane_b32 v199, s34, 0")
            s.names.append(name); s.nst+=1
def vr(a,n): return f"v[{a}:{a+n-1}]" if n>1 else f"v{a}"
def ar(a,n): return f"a[{a}:{a+n-1}]" if n>1 else f"a{a}"
def weave(k,mf,fl,per,start=0):
    fl=list(fl)
    for i,m in enumerate(mf):
        k(m)
        if i>=start:
            n=per[i] if isinstance(per,(list,tuple)) else per
            for _ in range(n):
                if fl:
                    f=fl.pop(0); f() if callable(f) else k(f)
    for f in fl: f() if callable(f) else k(f)

SX,SG,SU,SD,SW,SO,SB=36,40,44,48,52,56,60
sXCD,sI,sWV,sP,sFT,sMT,sRB,sLD,sDK=64,65,66,67,68,69,70,71,72
sKS,sOX,sOW,sMX,sMG,sRING,sDL,sCNT,sC1,sC2=73,74,75,76,77,78,79,80,81,82
sH0,sH1,sMSK,sONE,sAW,sCWB,sT0,sT1,sT2,sT3=83,84,85,86,87,88,26,27,28,29
sUQ=30; sYQ=31; sTB=32; sDB=33; sORD=89; sFH=94; sFY=95; sPB=70; sLA=64
def srd(d): return f"s[{d}:{d+3}]"
XD=200; WD=204; XR=207; WR=211; KCW=212; EX=213
CA=224; CB=225; WDV=226; TA=228; TC=230; HL=232; HS=234; UL=237; UW=238; UZ=239; ST=240; CSA=241
XO=242; RS=243; YL=244; YW=245; YR=246; YS=247; EXW=248; FHP=249; FYP=250; TW=251; TR=252; LNP=253; KZ=254; PA0=255
PA1=12; PA2=13; PA3=14; TB=112; PACC=172; PAR=184; JNK=196; PL=197
LTR=156; LST=164; aXN=166; aST=167; aTR=168; aWR=169; aFZ=170; vZ=171

def gen(prof=False, ORD='o7', ROT2=True, DEPTH=5, dbg=0, pace=0, pidx=14, psh=3, pwg=0, PF=1, pidx2=None, OSF='', NS=25, LNPOS=0, NPRE=3, D1E=8, NH=4, NL=2, TWS=8, SCH=0, probe=0, PARP=0):
    k=G(NAME,vgpr=256,agpr=256,sgpr=102); k.prof=prof; k.pst=90
    END=k.lab("END")
    if prof: k("s_memtime s[34:35]\ns_memrealtime s[96:97]")
    k(f"s_cmp_ge_u32 s2, 0x100\ns_cbranch_scc1 {END}")
    k("s_load_dwordx16 s[4:19], s[0:1], 0\ns_load_dwordx2 s[20:21], s[0:1], 64")
    PC=k.lab("PC")
    if PF==1:
        k(f'''s_getpc_b64 s[22:23]
        {PC}:
        v_lshlrev_b32 v2, 7, v0
        v_mov_b32 v5, s23
        v_min_u32 v2, {END}-{PC}, v2
        v_add_co_u32 v4, vcc, s22, v2
        v_addc_co_u32 v5, vcc, 0, v5, vcc
        global_load_dword v{JNK}, v[4:5], off''')
    if PF==2:
        k(f'''s_getpc_b64 s[22:23]
        {PC}:
        s_lshl_b32 s3, s2, 2
        v_lshrrev_b32 v2, 3, v0
        s_and_b32 s3, s3, 0xe0
        v_mov_b32 v5, s23
        v_add_lshl_u32 v2, v2, s3, 7
        v_min_u32 v2, {END}-{PC}, v2
        v_add_co_u32 v4, vcc, s22, v2
        v_addc_co_u32 v5, vcc, 0, v5, vcc
        global_load_dword v{JNK}, v[4:5], off''')
    for d,o in((SX,0),(SG,80),(SU,88),(SD,96),(SO,104),(SB,112),(SW,120)): k(f"s_load_dwordx2 s[{d}:{d+1}], s[0:1], {o}")
    for d,n in((SX,0x200000),(SG,512*2752),(SU,512*2752),(SD,1376*1024),(SO,0x200000),(SB,256),(SW,WSEND)):
        k(f"s_mov_b32 s{d+2}, {hex(n)}\ns_mov_b32 s{d+3}, 0x00020000")
    k(f"""v_lshrrev_b32 v2, 6, v0
    v_and_b32 v1, 63, v0
    v_readfirstlane_b32 s{sWV}, v2
    s_and_b32 s{sXCD}, s2, 7
    s_lshr_b32 s{sI}, s2, 3
    s_lshl_b32 s{sP}, s{sXCD}, 5
    s_add_u32 s{sP}, s{sP}, s{sI}
    s_and_b32 s{sT0}, s{sXCD}, 1
    s_lshr_b32 s{sT1}, s{sXCD}, 1
    s_lshl_b32 s{sRB}, s{sT0}, 7
    s_lshl_b32 s{sT2}, s{sT1}, 5
    s_add_u32 s{sRB}, s{sRB}, s{sT2}
    s_add_u32 s{sRB}, s{sRB}, s{sI}
    s_mul_i32 s{sT2}, s{sT1}, 30
    s_add_u32 s{sT2}, s{sT2}, s{sI}
    s_lshr_b32 s{sFT}, s{sT2}, 3
    s_and_b32 s{sT2}, s{sT2}, 7
    s_lshl_b32 s{sMT}, s{sT0}, 3
    s_add_u32 s{sMT}, s{sMT}, s{sT2}
    s_lshl_b32 s{sT1}, s{sT1}, 2
    s_lshl_b32 s{sT0}, s{sT0}, 1
    s_add_u32 s{sT1}, s{sT1}, s{sT0}
    s_add_u32 s{sT1}, s{sT1}, s{sI}
    s_sub_u32 s{sT1}, s{sT1}, 30
    s_cmp_ge_u32 s{sI}, 30
    s_cselect_b32 s{sFT}, s{sT1}, s{sFT}
    s_mov_b32 s{sMSK}, 0xffff0000""")
    k(f"""s_lshl_b32 s{sT0}, s{sRB}, 13
    s_lshl_b32 s{sT1}, s{sWV}, 11
    s_add_u32 s{sT0}, s{sT0}, s{sT1}
    v_lshl_add_u32 v3, v1, 4, s{sT0}
    s_lshl_b32 s{sT0}, s{sP}, 9
    v_lshl_add_u32 v198, v0, 1, s{sT0}""")
    for j in range(6): k(f"v_mov_b32 v{PAR+j}, 0")
    k(f"""s_lshl_b32 s{sT0}, s{sMT}, 17
    s_lshl_b32 s{sT1}, s{sWV}, 15
    s_add_u32 s{sT0}, s{sT0}, s{sT1}
    v_lshrrev_b32 v5, 3, v1
    v_lshl_add_u32 v5, v5, 10, s{sT0}
    v_lshrrev_b32 v6, 4, v1
    v_xor_b32 v7, v1, v6
    v_and_b32 v7, 7, v7
    v_lshl_add_u32 v{XD}, v7, 4, v5
    v_xor_b32 v5, 64, v{XD}
    v_add_u32 v{XD+1}, 7168, v5
    v_add_u32 v{XD+2}, 14336, v{XD}
    v_add_u32 v{XD+3}, 21504, v5
    s_mul_i32 s{sT0}, s{sFT}, 192
    s_mul_i32 s{sT1}, s{sWV}, {16*2752}""")
    for q in range(3):
        k(f"""v_add_u32 v5, {64*q}, v1
        v_mul_u32_u24 v7, 5462, v5
        v_lshrrev_b32 v7, 16, v7
        v_mul_u32_u24 v8, 12, v7
        v_sub_u32 v8, v5, v8
        v_lshl_add_u32 v8, v8, 4, s{sT0}
        v_min_u32 v8, 2736, v8
        v_mul_u32_u24 v7, 2752, v7
        v_add3_u32 v{WD+q}, v7, v8, s{sT1}""")
        if q: k(f"v_subrev_u32 v{WD+q}, {1024*q}, v{WD+q}")
    O={'o7':O7,'rot':OROT}.get(ORD) or ORD.split('_')
    pk=lambda o: hex(sum(int(ch,16)<<(4*j) for j,ch in enumerate(o)))
    k(f"s_add_u32 s{sT0}, s{sMT}, s{sFT}\ns_and_b32 s{sT0}, s{sT0}, 3\ns_mov_b32 s{sORD}, {pk(O[0])}")
    for g in (1,2,3): k(f"s_cmp_eq_u32 s{sT0}, {g}\ns_cselect_b32 s{sORD}, {pk(O[g])}, s{sORD}")
    k(f"s_and_b32 s{sKS}, s{sORD}, 7")
    k(f"""s_lshl_b32 s{sMX}, s{sWV}, 12
    s_mul_i32 s{sMG}, s{sWV}, 3072
    s_add_u32 s{sMG}, s{sMG}, {WG_O}
    s_lshl_b32 s{sOX}, s{sKS}, 7
    s_mul_i32 s{sOW}, s{sKS}, {64*2752}
    s_lshl_b32 s{sT0}, s{sP}, 2""")
    k.stamp('pre')
    k("s_waitcnt lgkmcnt(0)")
    k.stamp('karg')
    k(f"s_load_dword s{sLD}, s[18:19], s{sT0}\ns_load_dword s{sDK}, s[20:21], s{sT0}")
    k.vm(f"buffer_load_dwordx4 v[10:13], v3, {srd(SX)}, 0 offen","row")
    k.vm(f"buffer_load_dwordx4 v[14:17], v3, {srd(SX)}, 0 offen offset:1024","row")
    def parl():
        for j in range(6): k.vm(f"global_load_short_d16_hi v{PAR+j}, v198, s[{6+2*j}:{7+2*j}]","par")
    if PARP==0: parl()
    def dma_list(ring,tag):
        L=[]
        if isinstance(ring,int):
            a=lambda s: f"s_add_u32 m0, s{s}, {ring}" if ring else f"s_mov_b32 m0, s{s}"
        else: a=lambda s: f"s_add_u32 m0, s{s}, {ring}"
        L.append(a(sMX))
        for q in range(4): L.append(lambda q=q: k.vm(f"buffer_load_dwordx4 v{XD+q}, {srd(SX)}, s{sOX} offen offset:{1024*q} lds",tag))
        L.append(a(sMG))
        for q in range(3): L.append(lambda q=q: k.vm(f"buffer_load_dwordx4 v{WD+q}, {srd(SG)}, s{sOW} offen offset:{1024*q} lds",tag))
        L.append(f"s_add_u32 m0, m0, {WU_D}")
        for q in range(3): L.append(lambda q=q: k.vm(f"buffer_load_dwordx4 v{WD+q}, {srd(SU)}, s{sOW} offen offset:{1024*q} lds",tag))
        return L
    nextk=[f"s_lshr_b32 s{sORD}, s{sORD}, 4",f"s_and_b32 s{sKS}, s{sORD}, 7",f"s_lshl_b32 s{sOX}, s{sKS}, 7",f"s_mul_i32 s{sOW}, s{sKS}, {64*2752}"]
    for f in dma_list(0,"d0"):
        if callable(f): f()
        else: k(f); k("s_nop 0")
    for f in nextk: k(f)
    if PARP==1: parl()
    k.stamp('dma0')
    k(f"""v_lshrrev_b32 v2, 4, v1
    v_bfe_u32 v3, v1, 2, 2
    v_and_b32 v4, 3, v1
    v_and_b32 v5, 31, v1
    v_lshrrev_b32 v6, 5, v1
    v_and_b32 v7, 15, v1
    s_and_b32 s{sT0}, s{sWV}, 1
    s_lshr_b32 s{sT1}, s{sWV}, 1""")
    k(f"""v_bfe_u32 v8, v1, 1, 3
    v_xor_b32 v8, v8, v6
    v_lshlrev_b32 v8, 4, v8
    v_lshl_add_u32 v8, v5, 7, v8
    s_lshl_b32 s{sT2}, s{sT0}, 13
    v_add_u32 v{XR}, s{sT2}, v8
    v_xor_b32 v{XR+1}, 32, v{XR}
    v_xor_b32 v{XR+2}, 64, v{XR}
    v_xor_b32 v{XR+3}, 0x60, v{XR}""")
    k(f"""v_and_b32 v8, 1, v2
    v_mul_u32_u24 v9, {WU_D}, v8
    v_lshl_add_u32 v18, v6, 3, v3
    v_mul_u32_u24 v18, 192, v18
    v_add_u32 v9, v9, v18
    v_lshl_add_u32 v9, v4, 3, v9
    s_mul_i32 s{sT2}, s{sT1}, 96
    s_add_u32 s{sT2}, s{sT2}, {WG_O}
    v_add_u32 v{WR}, s{sT2}, v9""")
    k(f"v_lshlrev_b32 v9, 4, v0\nv_add_u32 v{KCW}, {KC}, v9")
    k(f"""s_mul_i32 s{sT2}, s{sT1}, {4*KCS}
    s_lshl_b32 s{sT3}, s{sT0}, 8
    s_sub_u32 s{sT2}, s{sT2}, s{sT3}
    s_add_u32 s{sT2}, s{sT2}, {KC+4056-3776}
    v_mul_u32_u24 v9, {KCS}, v4
    v_lshl_add_u32 v9, v2, 4, v9
    v_lshlrev_b32 v18, 3, v3
    v_sub_u32 v9, v9, v18
    v_add_u32 v{CA}, s{sT2}, v9
    s_mul_i32 s{sT2}, s{sT1}, {US}
    s_sub_u32 s{sT2}, s{sT2}, s{sT3}
    s_add_u32 s{sT2}, s{sT2}, {UO+256}
    v_lshlrev_b32 v9, 4, v2
    v_lshl_add_u32 v9, v7, 5, v9
    v_add_u32 v{CB}, s{sT2}, v9""")
    k(f"""s_lshl_b32 s{sT2}, s{sP}, 1
    s_add_u32 s{sT2}, s{sT2}, s{sT1}
    s_lshl_b32 s{sT2}, s{sT2}, 12
    s_lshl_b32 s{sT3}, s{sT0}, 11
    s_add_u32 s{sT2}, s{sT2}, s{sT3}
    s_add_u32 s{sT2}, s{sT2}, {YB}
    v_lshlrev_b32 v9, 9, v8
    v_lshl_add_u32 v9, v7, 5, v9
    v_lshl_add_u32 v9, v6, 4, v9
    v_add_u32 v{YS}, s{sT2}, v9""")
    k(f"""s_lshr_b32 s{sT2}, s{sI}, 3
    s_lshl_b32 s{sTB}, s{sXCD}, 2
    s_add_u32 s{sTB}, s{sTB}, s{sT2}
    s_and_b32 s{sDB}, s{sI}, 7""")
    k(f"""v_lshlrev_b32 v9, 2, v8
    v_xor_b32 v9, v9, v1
    v_and_b32 v9, 7, v9
    v_lshlrev_b32 v9, 4, v9
    v_lshrrev_b32 v18, 3, v1
    v_lshl_add_u32 v9, v18, 10, v9
    s_lshl_b32 s{sT2}, s{sDB}, 7
    v_add_u32 v{WDV}, s{sT2}, v9
    v_add_u32 v{WDV+1}, 7168, v{WDV}""")
    k(f"""v_lshl_add_u32 v9, v6, 2, v3
    v_lshlrev_b32 v9, 7, v9
    v_lshrrev_b32 v18, 1, v3
    v_xor_b32 v18, s{sT1}, v18
    v_lshl_add_u32 v9, v18, 6, v9
    v_lshl_add_u32 v9, v8, 5, v9
    v_lshl_add_u32 v9, v4, 3, v9
    s_mul_i32 s{sAW}, s{sWV}, {AWS}
    s_mul_i32 s{sCWB}, s{sWV}, {CWS}
    s_add_u32 s{sCWB}, s{sCWB}, {CW}
    v_add_u32 v{TA}, s{sAW}, v9
    v_xor_b32 v{TA+1}, 64, v{TA}
    v_add_u32 v{TC}, s{sCWB}, v9
    v_xor_b32 v{TC+1}, 64, v{TC}""")
    k(f"""s_lshl_b32 s{sT2}, s{sTB}, 1
    s_add_u32 s{sT2}, s{sT2}, s{sT0}
    s_mul_i32 s{sT3}, s{sT2}, 88064
    s_add_u32 s{sT3}, s{sT3}, {HB}
    v_lshl_add_u32 v{HL}, v1, 4, s{sT3}
    s_xor_b32 s{sT3}, s{sT2}, 1
    s_mul_i32 s{sT3}, s{sT3}, 88064
    s_add_u32 s{sT3}, s{sT3}, {HB}
    v_lshl_add_u32 v{HL+1}, v1, 4, s{sT3}""")
    k(f"""s_lshl_b32 s{sT3}, s{sT2}, 5
    v_add_u32 v9, s{sT3}, v5
    v_lshlrev_b32 v18, 3, v9
    v_add_u32 v{RS}, {STATS+4}, v18
    s_lshl_b32 s{sT3}, s{sDB}, 1
    s_add_u32 s{sT3}, s{sT3}, s{sT1}
    s_lshl_b32 s{sYQ}, s{sT3}, 6
    v_lshlrev_b32 v9, 10, v9
    v_lshl_add_u32 v9, v6, 4, v9
    v_add_u32 v{XO}, s{sYQ}, v9
    s_lshl_b32 s{sYQ}, s{sT3}, 17
    s_lshl_b32 s{sT2}, s{sT2}, 6
    s_add_u32 s{sT2}, s{sT2}, s{sYQ}
    s_add_u32 s{sT2}, s{sT2}, {YB}
    v_lshrrev_b32 v9, 2, v1
    v_lshlrev_b32 v9, 12, v9
    v_lshl_add_u32 v9, v4, 4, v9
    v_add_u32 v{YL}, s{sT2}, v9
    s_mov_b32 s{sYQ}, 0x10000
    s_lshl_b32 s{sT2}, s{sWV}, 11
    s_add_u32 s{sT2}, s{sT2}, {KC}
    v_lshl_add_u32 v{YW}, v1, 4, s{sT2}
    v_lshl_add_u32 v9, v6, 2, v3
    v_lshlrev_b32 v9, 6, v9
    v_lshl_add_u32 v9, v8, 5, v9
    v_lshl_add_u32 v9, v4, 3, v9
    v_add_u32 v{YR}, s{sT2}, v9
    s_lshl_b32 s{sT3}, s{sT3}, 11
    s_add_u32 s{sT3}, s{sT3}, {FY}
    v_lshl_add_u32 v{FYP}, v7, 7, s{sT3}
    s_lshr_b32 s{sT2}, s{sTB}, 1
    s_lshl_b32 s{sT2}, s{sT2}, 11
    s_add_u32 s{sT2}, s{sT2}, {FH}
    v_min_u32 v9, 14, v7
    v_lshl_add_u32 v{FHP}, v9, 7, s{sT2}
    v_lshlrev_b32 v{EXW}, 4, v1
    v_lshlrev_b32 v{LNP}, 6, v4""")
    k(f"""s_mul_i32 s{sT2}, s{sFT}, 6
    s_mul_i32 s{sT3}, s{sT1}, 3
    s_add_u32 s{sT2}, s{sT2}, s{sT3}
    s_lshl_b32 s{sT3}, s{sT2}, 7
    s_add_u32 s{sT3}, s{sT3}, {CS}
    v_lshl_add_u32 v9, v1, 2, s{sT3}
    v_lshl_or_b32 v{CSA}, v6, 31, v9""")
    for j in range(3):
        k(f"""s_add_u32 s{sT3}, s{sT2}, {j}
        s_cmp_lt_u32 s{sT3}, 86
        s_cselect_b32 s{sH0}, 0, {hex(OOB)}
        s_lshl_b32 s{sT3}, s{sT3}, 10
        s_or_b32 s{sT3}, s{sT3}, s{sH0}
        v_lshl_add_u32 v{HS+j}, v1, 4, s{sT3}""")
    k(f"""s_lshl_b32 s{sT2}, s{sMT}, 1
    s_add_u32 s{sT2}, s{sT2}, s{sT0}
    s_lshl_b32 s{sT3}, s{sT2}, 9
    s_add_u32 s{sT3}, s{sT3}, {STATS}
    v_lshl_add_u32 v{ST}, v5, 3, s{sT3}
    s_mul_i32 s{sH0}, s{sT2}, {2*88064}
    s_add_u32 s{sH0}, s{sH0}, {HB}
    s_add_u32 s{sH1}, s{sH0}, 88064""")
    k(f"""v_lshrrev_b32 v9, 1, v0
    v_and_b32 v18, 1, v0
    s_lshl_b32 s{sT2}, s{sP}, 5
    v_lshl_add_u32 v19, v18, 4, s{sT2}
    v_lshl_add_u32 v{UL}, v9, 13, v19
    v_mul_u32_u24 v18, {US}, v18
    v_lshl_add_u32 v18, v9, 4, v18
    v_add_u32 v{UW}, {UO+480}, v18
    v_min_u32 v9, 29, v5
    v_mul_u32_u24 v18, {US}, v6
    v_lshl_add_u32 v18, v9, 4, v18
    v_add_u32 v{UZ}, {UO}, v18
    s_mov_b32 s{sUQ}, 0x100000""")
    k(f"""s_lshl_b32 s{sT2}, s{sMT}, 4
    s_add_u32 s{sT2}, s{sT2}, s{sFT}
    s_lshl_b32 s{sT2}, s{sT2}, 7
    s_add_u32 s{sT2}, s{sT2}, {FH}
    s_cmp_ge_u32 s{sI}, 30
    s_cselect_b32 s{sFH}, {FH+15*128}, s{sT2}
    s_cselect_b32 s{sT2}, {hex(OOB)}, s{sT2}
    s_lshl_b32 s{sFY}, s{sP}, 7
    s_add_u32 s{sFY}, s{sFY}, {FY}
    s_cmp_eq_u32 s{sWV}, 0
    s_cselect_b32 s{sT2}, s{sT2}, {hex(OOB)}
    s_cselect_b32 s{sT3}, s{sFY}, {hex(OOB)}
    v_mov_b32 v{aFZ}, {hex(OOB)}
    s_mov_b32 s{sONE}, 1
    v_writelane_b32 v{aFZ}, s{sT2}, 0
    s_and_b32 s{sLA}, s2, 3
    v_writelane_b32 v{aFZ}, s{sT3}, 1
    s_lshl_b32 s{sLA}, s{sLA}, 6""")
    k(f"""s_mul_i32 s{sT2}, s{sWV}, 22
    s_cmp_eq_u32 s{sWV}, 3
    s_cselect_b32 s{sT2}, 65, s{sT2}
    s_sub_u32 s{sT3}, 22, s{sT1}""")
    if ROT2:
        k(f"""s_mul_i32 s{sCNT}, s{sDB}, 3
        s_lshr_b32 s{sDL}, s{sI}, 3
        s_mul_i32 s{sDL}, s{sDL}, 5
        s_add_u32 s{sCNT}, s{sCNT}, s{sDL}
        v_add_u32 v9, s{sCNT}, v1""")
    else: k("v_mov_b32 v9, v1")
    for _ in range(3):
        k(f"v_subrev_u32 v18, s{sT3}, v9\nv_min_u32 v9, v9, v18")
    k(f"v_add_u32 v9, s{sT2}, v9\nv_lshlrev_b32 v59, 14, v9")
    k(f"""s_mul_i32 s{sT2}, s{sWV}, {LNS}
    s_add_u32 s{sT2}, s{sT2}, {KC}
    v_mul_u32_u24 v9, 320, v3
    v_lshl_add_u32 v9, v2, 5, v9
    v_lshl_add_u32 v9, v4, 3, v9
    v_add_u32 v{aTR}, s{sT2}, v9
    s_mul_i32 s{sT2}, s{sWV}, 640
    s_add_u32 s{sT2}, s{sT2}, {KC}
    v_mul_u32_u24 v9, {LNS}, v2
    v_lshl_add_u32 v9, v7, 4, v9
    v_add_u32 v{aWR}, s{sT2}, v9
    s_lshl_b32 s{sT2}, s{sRB}, 6
    s_lshl_b32 s{sT3}, s{sWV}, 4
    s_add_u32 s{sT2}, s{sT2}, s{sT3}
    s_add_u32 s{sT2}, s{sT2}, {STATS}
    v_lshl_add_u32 v9, v6, 3, s{sT2}
    v_cmp_eq_u32 vcc, 0, v5
    v_mov_b32 v18, {hex(OOB)}
    s_lshl_b32 s{sT2}, s{sRB}, 13
    s_lshl_b32 s{sT3}, s{sWV}, 11
    v_cndmask_b32 v{aST}, v18, v9, vcc
    s_add_u32 s{sT2}, s{sT2}, s{sT3}
    v_lshl_add_u32 v{aXN}, v1, 4, s{sT2}
    v_mov_b32 v{vZ}, 0
    s_lshl_b32 s{sT3}, s{sWV}, 3
    s_lshr_b32 s{sT2}, {hex(sum(o<<(8*j) for j,o in enumerate(PO)))}, s{sT3}
    s_and_b32 s{sT2}, s{sT2}, 0xff
    s_lshl_b32 s{sT2}, s{sT2}, 8
    s_add_u32 s{sPB}, s{sT2}, {PX}
    s_waitcnt lgkmcnt(0)
    s_lshl_b32 s{sT1}, s{sT1}, 4
    s_lshr_b32 s{sLD}, s{sLD}, s{sT1}
    s_lshl_b32 s{sLD}, s{sLD}, 16
    s_lshr_b32 s{sDK}, s{sDK}, s{sT1}
    s_lshl_b32 s{sDK}, s{sDK}, 16
    s_cmp_eq_u32 s{sT0}, 0
    s_cselect_b32 s{sDK}, s{sDK}, 0""")
    for r in (1,3,5,7,9,20,21,22,23): k(f"v_accvgpr_write_b32 a{r}, 0")
    k.dq=[]
    if PARP==2: parl()
    for j in range(22): k(f"v_readlane_b32 s{4+j}, v59, {j}")
    k.stamp('addr')
    def run(L):
        for f in L: f() if callable(f) else k(f)
    k.w(v="row")
    k.stamp('row')
    LN=[]
    def ln(t): LN.extend(x.strip() for x in t.split("\n") if x.strip())
    for j in range(8): ln(f"v_lshlrev_b32 v{20+2*j}, 16, v{10+j}\nv_and_b32 v{21+2*j}, s{sMSK}, v{10+j}")
    def red2():
        ln("""s_nop 1
        v_permlane32_swap_b32 v40, v41
        v_add_f32 v40, v40, v41
        v_mov_b32 v41, v40
        s_nop 1
        v_permlane16_swap_b32 v40, v41
        v_add_f32 v40, v40, v41""")
        for r in(8,4,2,1): ln(f"s_nop 1\nv_add_f32_dpp v40, v40, v40 row_ror:{r} row_mask:0xf bank_mask:0xf")
        ln("v_mul_f32 v40, 0x3b000000, v40")
    for b,d in((20,40),(28,41)):
        ln(f"""v_pk_add_f32 v[36:37], v[{b}:{b+1}], v[{b+2}:{b+3}]
        v_pk_add_f32 v[38:39], v[{b+4}:{b+5}], v[{b+6}:{b+7}]
        v_pk_add_f32 v[36:37], v[36:37], v[38:39]
        v_add_f32 v{d}, v36, v37""")
    red2()
    ln(f"""v_mov_b32 v42, v40
    v_mov_b32 v43, v40
    v_cvt_pk_bf16_f32 v{LST}, -v40, -v40
    s_nop 0
    v_permlane32_swap_b32 v42, v43""")
    for h,(b,d) in enumerate(((20,40),(28,41))):
        for j in range(4):
            ln(f"v_pk_add_f32 v[38:39], v[{b+2*j}:{b+2*j+1}], v[42:43] op_sel:[0,{h}] op_sel_hi:[1,{h}] neg_lo:[0,1] neg_hi:[0,1]")
            ln("v_pk_mul_f32 v[36:37], v[38:39], v[38:39]" if j==0 else "v_pk_fma_f32 v[36:37], v[38:39], v[38:39], v[36:37]")
        ln(f"v_add_f32 v{d}, v36, v37")
    red2()
    ln(f"""v_cvt_pk_bf16_f32 v40, v40, v40
    v_and_b32 v40, s{sMSK}, v40
    v_add_f32 v40, 0x3727c5ac, v40
    v_cvt_pk_bf16_f32 v40, v40, v40
    v_and_b32 v40, s{sMSK}, v40
    v_sqrt_f32 v40, v40
    v_and_b32 v41, s{sMSK}, v{LST}
    v_cvt_pk_bf16_f32 v40, v40, v40
    v_and_b32 v40, s{sMSK}, v40
    v_rcp_f32 v46, v40
    s_nop 0
    v_mul_f32 v47, v41, v46
    v_mul_f32 v{LST+1}, v46, v46
    v_mov_b32 v48, v46
    v_mov_b32 v49, v47
    s_nop 1
    v_permlane32_swap_b32 v46, v48
    v_permlane32_swap_b32 v47, v49""")
    for h,b in enumerate((20,28)):
        P=f"v[{46+2*h}:{47+2*h}]"
        for j in range(4):
            ln(f"v_pk_fma_f32 v[{b+2*j}:{b+2*j+1}], v[{b+2*j}:{b+2*j+1}], {P}, {P} op_sel:[0,0,1] op_sel_hi:[1,0,1]")
            ln(f"v_cvt_pk_bf16_f32 v{10+4*h+j}, v{b+2*j}, v{b+2*j+1}")
        LN.append(lambda h=h: k.ds(f"ds_write_b128 v{aWR}, v[{10+4*h}:{13+4*h}] offset:{320*h}"))
    D1=dma_list(SS,"d1")+nextk
    for i,f in enumerate(LN):
        run([f])
        if i%D1E==D1E-1 and D1:
            g=D1.pop(0); run([g])
            if not callable(g) and D1: run([D1.pop(0)])
    run(D1)
    k.stamp('ln')
    CSL=k.lab("CS"); MRG=k.lab("MRG")
    k(f"s_cmp_ge_u32 s{sI}, 30\ns_cbranch_scc1 {CSL}")
    vq_cs=list(k.vq); dq_cs=list(k.dq); nst_cs=k.nst
    def lntr():
        return [lambda q=q,h=h: k.ds(f"ds_read_b64_tr_b16 v[{LTR+4*q+2*h}:{LTR+1+4*q+2*h}], v{aTR} offset:{128*q+1280*h}",f"lt{q}") for q in range(2) for h in range(2)]
    def lnst():
        L=[lambda: k.vm(f"buffer_store_dwordx2 {vr(LST,2)}, v{aST}, {srd(SW)}, 0 offen sc1","lnst"),
           lambda: k.vm(f"buffer_store_dword v{vZ}, v{aFZ}, {srd(SW)}, 0 offen sc1","lnst")]
        for q in range(2): L.append(lambda q=q:(k.w(d=f"lt{q}"),k.vm(f"buffer_store_dwordx4 {vr(LTR+4*q,4)}, v{aXN}, {srd(SW)}, 0 offen offset:{1024*q} sc1","lnst")))
        return L
    def lnatomic():
        L=k.lab(); k(f"s_cmp_lg_u32 s{sWV}, 0\ns_cbranch_scc1 {L}\ns_atomic_add s{sONE}, s[{SB}:{SB+1}], s{sLA}\n{L}:"); k.smem=1
    def side_list():
        S=[]
        def a(t): S.extend(x.strip() for x in t.split("\n") if x.strip())
        a(f"""v_lshlrev_b32 v9, 3, v0
        s_mov_b32 s{sDL}, {EXB}
        v_sub_u32 v178, 2047, v9
        s_mov_b32 s{sCNT}, {656+0x4280+EXB}
        v_cvt_f32_i32 v178, v178
        v_sub_u32 v179, {2047+0x4280+EXB}, v9
        v_min_i32 v179, {138+0x4280+EXB}, v179""")
        for i in range(0,11,2):
            a(f"v_subrev_f32 v180, {float(i)}, v178" if i in(0,2,4) else f"v_subrev_f32 v180, {hex(f2b(float(i)))}, v178")
            a(f"v_subrev_f32 v181, 1.0, v180\nv_cvt_pk_bf16_f32 v180, v180, v181")
            for h in range(2):
                if i+h>10: break
                a(f"""v_subrev_u32 v182, {i+h}, v179
                v_add_u32_sdwa v181, s{sDL}, v180 dst_sel:DWORD dst_unused:UNUSED_PAD src0_sel:DWORD src1_sel:WORD_{h}
                v_med3_i32 v181, v181, v182, s{sCNT}
                v_lshrrev_b32 v182, 5, v181
                v_add_lshl_u32 v{EX+i+h}, v181, v182, 2""")
        a(f"""v_lshrrev_b32 v9, 2, v7
        v_lshl_add_u32 v9, v7, 3, v9
        v_lshl_add_u32 v9, v8, 2, v9
        v_mul_u32_u24 v10, 132, v6
        v_add_lshl_u32 v9, v9, v10, 2
        v_add_u32 v{PA0}, s{sPB}, v9
        v_sub_u32 v9, 2, v6
        v_lshlrev_b32 v9, v9, v7
        v_lshl_add_u32 v10, v6, 1, 3
        v_lshrrev_b32 v10, v10, v7
        v_mul_u32_u24 v11, 66, v2
        v_add3_u32 v9, v9, v10, v11
        s_add_u32 s{sDL}, s{sPB}, 1056
        v_lshl_add_u32 v{PA1}, v9, 2, s{sDL}
        v_mul_u32_u24 v10, 124, v6
        v_add3_u32 v{PA2}, v{PA1}, v10, 8
        v_add_lshl_u32 v9, v11, v7, 2
        s_add_u32 s{sDL}, s{sPB}, 2112
        v_add_u32 v{PA3}, s{sDL}, v9
        s_mul_i32 s{sDL}, s{sWV}, {TBS}
        s_add_u32 s{sDL}, s{sDL}, {KC}
        v_lshl_add_u32 v{TW}, v1, 4, s{sDL}
        v_lshl_add_u32 v9, v2, 3, v3
        v_lshlrev_b32 v9, 4, v9
        v_lshrrev_b32 v10, 1, v4
        v_mul_u32_u24 v10, 1088, v10
        v_and_b32 v11, 1, v4
        v_lshl_add_u32 v9, v11, 3, v9
        v_add3_u32 v{TR}, v9, v10, s{sDL}
        v_and_b32 v9, 7, v1
        v_mul_u32_u24 v9, {KCS}, v9
        v_lshlrev_b32 v10, 1, v1
        v_and_b32 v10, 16, v10
        v_add_u32 v9, {KC+4096}, v9
        v_add_u32 v{KZ}, v9, v10""")
        q1,q8,q128,X0,X1,C0,C1=172,174,176,190,192,2,4
        p=PAR
        a(f"""v_mov_b32 v192, s{sLD}
        v_mul_f32 v192, 0x3fb8aa3b, v192
        v_exp_f32 v192, v192
        s_nop 0
        v_cvt_pk_bf16_f32 v192, v192, v192
        v_and_b32 v192, s{sMSK}, v192""")
        S.append(lambda: k.w(v="par"))
        for j in range(4): a(f"v_mul_f32 v{p+j}, v{p+j}, v192")
        a(f"""v_mul_f32 v{p}, 0x3fb8aa3b, v{p}
        v_mul_f32 v{p+1}, 0.15915494, v{p+1}
        v_mul_f32 v180, 0x41000000, v{p}
        v_mul_f32 v181, 0x41000000, v{p+1}
        v_mul_f32 v182, 0x43000000, v{p}
        v_mul_f32 v183, 0x43000000, v{p+1}
        v_exp_f32 v178, v{p}
        v_exp_f32 v180, v180
        v_exp_f32 v182, v182
        v_fract_f32 v179, v{p+1}
        v_fract_f32 v181, v181
        v_fract_f32 v183, v183""")
        for j in range(3): a(f"v_cos_f32 v{172+2*j}, v{179+2*j}\nv_sin_f32 v{173+2*j}, v{179+2*j}")
        for j in range(3): a(f"v_mul_f32 v{172+2*j}, v{172+2*j}, v{178+2*j}\nv_mul_f32 v{173+2*j}, v{173+2*j}, v{178+2*j}")
        def cmul(d,x,y):
            a(f"""v_mul_f32 v194, v{x+1}, v{y+1}
            v_mul_f32 v195, v{x+1}, v{y}
            v_fma_f32 v{d+1}, v{x}, v{y+1}, v195
            v_fma_f32 v{d}, v{x}, v{y}, -v194""")
        def pack(t,e,x,y):
            n='-' if t==0 else ''
            re,im=(TB+16*t+(e>>1),TB+16*t+8+(e>>1)) if t<3 else ((TB+48+(e>>1),TB+52+(e>>1)) if e<8 else (TB+56,TB+58))
            o=lambda z,j: (z[j] if isinstance(z,tuple) else f"{n if j else ''}v{z+j}")
            a(f"v_cvt_pk_bf16_f32 v{re}, {o(x,0)}, {o(y,0)}\nv_cvt_pk_bf16_f32 v{im}, {o(x,1)}, {o(y,1)}")
        cmul(X0,p+4,p+2)
        for b in range(0,16,2):
            if b: cmul(X0,X1,q8)
            cmul(X1,X0,q8); pack(0,b,X0,X1)
        qp={1:q1}
        pack(1,0,("1.0","0"),q1)
        for x in range(2,8):
            qp[x]=178+2*(x-2); cmul(qp[x],qp[x-1],q1)
            if x&1: pack(1,x-1,qp[x-1],qp[x])
        cmul(X1,q128,q1); pack(1,8,q128,X1)
        for x in (2,4,6): cmul(X0,q128,qp[x]); cmul(X1,q128,qp[x+1]); pack(1,8+x,X0,X1)
        for x in (2,3):
            cmul(C0,q128 if x==2 else C0,q128)
            cmul(X1,C0,qp[2]); pack(2,4*(x-2),C0,X1)
            cmul(X0,C0,qp[4]); cmul(X1,C0,qp[6]); pack(2,4*(x-2)+2,X0,X1)
        for x in range(4,8):
            cmul(C0,C0,q128); cmul(X1,C0,qp[4]); pack(2,8+2*(x-4),C0,X1)
        for x in range(0,8,2):
            cmul(C1,C0,q128); cmul(C0,C1,q128); pack(3,x,C1,C0)
        cmul(C1,C0,q128); pack(3,8,C1,("0","0"))
        a(f"v_mov_b32 v{PACC}, 0\nv_mov_b32 v{PACC+1}, 0\nv_mov_b32 v{PACC+2}, 0\nv_mov_b32 v{PACC+3}, 0\nv_writelane_b32 v{PACC}, s{sDK}, 0")
        return S
    KF=24
    def tabio():
        L=[]
        for t in range(4):
            R=[TB+16*t+4*j for j in range(4)] if t<3 else [TB+48,TB+56,TB+52,TB+58]
            for j in range(4): L.append(lambda r=R[j],j=j: k.ds(f"ds_write_b128 v{TW}, {vr(r,4)} offset:{1088*j}","tw"))
            for st in range(4):
                for h in range(2): L.append(lambda t=t,st=st,h=h: k.ds(f"ds_read_b64_tr_b16 {ar(KF+16*t+4*st+2*h,2)}, v{TR} offset:{(st&1)*2176+(st>>1)*512+64*h}",f"kf{t}"))
        return L
    ACC=16; FS=(176,196,216,236); EA=0; EB=6; UR=12; AZ=20
    base=[0]
    def rd(slot,st,f,what,tag="fr"):
        o=slot*SS-base[0]; assert 0<=o<=SS
        if what[0]=='b':
            e=what[1]; return [lambda: k.ds(f"ds_read_b128 {ar(FS[f]+12+4*e,4)}, v{XR+st} offset:{o+4096*e}",tag)]
        u=what[1]; return [lambda h=h: k.ds(f"ds_read_b64_tr_b16 {ar(FS[f]+4*u+2*h,2)}, v{WR} offset:{o+3072*st+768*h+32*u}",tag) for h in range(2)]
    def dummy():
        if getattr(k,'smem',0): k.ds(f"ds_read_u8 v{JNK}, v1","dum")
    def reads(slot,st,f):
        return rd(slot,st,f,('b',0))+rd(slot,st,f,('a',0))+rd(slot,st,f,('b',1))+rd(slot,st,f,('a',1))+rd(slot,st,f,('a',2))+[dummy]
    def mf1(f,b,zero=False):
        u,e=b>>1,b&1
        return f"v_mfma_f32_32x32x16_bf16 {vr(ACC+16*b,16)}, {ar(FS[f]+4*u,4)}, {ar(FS[f]+12+4*e,4)}, {'0' if zero else vr(ACC+16*b,16)}"
    def mf(f,zero=False): return [mf1(f,b,zero) for b in range(6)]
    def mix(a,b):
        o=[];a=list(a);b=list(b)
        while a or b:
            if a:o.append(a.pop(0))
            if a:o.append(a.pop(0))
            if b:o.append(b.pop(0))
        return o
    def adv(delta): return [f"v_add_u32 v{r}, {delta}, v{r}" for r in(XR,WR,XR+1,XR+2,XR+3)]
    side=side_list(); nside=len(side); acc=[0]
    def wv(mfs,fl,per):
        fl=list(fl)
        for i,m in enumerate(mfs):
            k(m)
            n=per[i] if isinstance(per,(list,tuple)) else per
            for _ in range(n):
                if fl: run([fl.pop(0)])
            acc[0]+=NS
            while acc[0]>=10:
                acc[0]-=10
                if side: run([side.pop(0)])
        run(fl)
    def poll(tag,reg,addr,sr,exp):
        ok=k.lab("OK"); rt=k.lab("RT")
        k.w(v=tag)
        cmp="gt" if exp==64 else "ne"
        k(f"v_cmp_{cmp}_u32 vcc, {exp}, v{reg}\ns_cbranch_vccnz {rt}\n{ok}:")
        lp=k.lab("RL")
        k.tail.append(f"""{rt}:
        s_movk_i32 s{sT3}, 4000
        {lp}:
        buffer_load_dword v{reg}, v{addr}, {srd(sr)}, 0 offen sc1
        s_waitcnt vmcnt(0)
        v_cmp_{cmp}_u32 vcc, {exp}, v{reg}
        s_cbranch_vccz {ok}
        s_sub_u32 s{sT3}, s{sT3}, 1
        s_cmp_lg_u32 s{sT3}, 0
        s_cbranch_scc1 {lp}
        s_branch {ok}""")
    LNX=64; FLX=4
    def sat(so): k(f"s_atomic_add s{sONE}, s[{SW}:{SW+1}], s{so}"); k.smem=1
    lnpoll=lambda: k.vm(f"buffer_load_dword v{PL}, v{LNP}, {srd(SB)}, 0 offen sc1","lnp")
    def uloads():
        return [lambda q=q: k.vm(f"buffer_load_dwordx4 {ar(UR+4*q,4)}, v{UL}, {srd(SW)}, {'s%d'%sUQ if q else 0} offen sc1","u") for q in range(2)]
    def wd_loc(j):
        if j<3: return ('C',2048*j)
        if j<8: return ('A',2048*(j-3))
        if j<13: return ('A',BW+2048*(j-8))
        if j<16: return ('C',2048*(j-13))
        if j<21: return ('A',2048*(j-16))
        return ('A',BW)
    def wd_dma(j):
        r,o=wd_loc(j); b=sCWB if r=='C' else sAW
        return [f"s_add_u32 m0, s{b}, {o}" if o else f"s_mov_b32 m0, s{b}"]+[lambda h=h: k.vm(f"buffer_load_dwordx4 v{WDV+h}, {srd(SD)}, s{4+j} offen offset:{1024*h} lds",f"wd{j}") for h in range(2)]
    def wd_tr(j):
        r,o=wd_loc(j); b=TC if r=='C' else TA
        return [lambda e=e,h=h: k.ds(f"ds_read_b64_tr_b16 {ar(8*j+4*e+2*h,2)}, v{b+e} offset:{o+1024*h}",f"wt{j}") for e in range(2) for h in range(2)]
    def uwrite():
        L=[lambda: k.w(v="u")]
        L+=[lambda q=q: k.ds(f"ds_write_b128 v{UW}, {ar(UR+4*q,4)} offset:{2048*q}","uw") for q in range(2)]
        L+=[lambda: k.ds(f"ds_write_b128 v{UZ}, {ar(AZ,4)}","uw")]
        return L
    sl=[lambda e=e: k.vm(f"buffer_load_dword a{EB+2*e}, v{ST}, {srd(SW)}, 0 offen offset:{256*e} sc1","st") for e in range(2)]
    cl=[lambda j=j: k.vm(f"buffer_load_dword a{EA+2*j}, v{CSA}, {srd(SW)}, 0 offen offset:{128*j} sc1","cs") for j in range(3)]
    def cscheck():
        k.w(v="cs")
        ok=k.lab("OK"); rt=k.lab("RT"); lp=k.lab("RL")
        chk=f"v_accvgpr_read_b32 v9, a{EA}\nv_accvgpr_read_b32 v10, a{EA+2}\nv_accvgpr_read_b32 v11, a{EA+4}\nv_max3_u32 v9, v9, v10, v11\nv_cmp_eq_u32 vcc, -1, v9"
        k(f"{chk}\ns_cbranch_vccnz {rt}\n{ok}:")
        k.tail.append(f"""{rt}:
        s_movk_i32 s{sT3}, 4000
        {lp}:
        buffer_load_dword a{EA}, v{CSA}, {srd(SW)}, 0 offen sc1
        buffer_load_dword a{EA+2}, v{CSA}, {srd(SW)}, 0 offen offset:128 sc1
        buffer_load_dword a{EA+4}, v{CSA}, {srd(SW)}, 0 offen offset:256 sc1
        s_waitcnt vmcnt(0)
        {chk}
        s_cbranch_vccz {ok}
        s_sub_u32 s{sT3}, s{sT3}, 1
        s_cmp_lg_u32 s{sT3}, 0
        s_cbranch_scc1 {lp}
        s_branch {ok}""")
    if probe==1: k.w(v="d0"); k.stamp('d0'); k.w(d=0); k.stamp('lw'); k.w(d=0)
    k.w(v="d0",d=0); k("s_barrier")
    run(reads(0,0,0)); run(lntr())
    k.stamp('s0')
    for s in range(7):
        slot=s%3
        D=dma_list(((s+2)%3)*SS,f"d{s+2}") if s<6 else []
        X=[[],[],[]]
        if s<6: X=[D[0:5],D[5:9],D[9:13]+(nextk if s<5 else [])]
        if s==0:
            if LNPOS==0: X=[lnst()+D[0:2],D[2:8],D[8:13]+nextk]
            else: X[2]=X[2]+lnst()
        if s==5: X[0]=[lnpoll]+X[0]
        if s==6:
            W=sum((wd_dma(j) for j in range(NPRE)),[])
            X=[sl+cl,W[:5],W[5:]]
        k.w(d="fr"); wv(mf(0,s==0),mix(reads(slot,1,1),X[0]),3)
        k.w(d="fr"); wv(mf(1),mix(reads(slot,2,0),X[1]),3)
        k.w(d="fr"); wv(mf(0),mix(reads(slot,3,1),X[2]),3)
        ns=(s+1)%3; A=[]
        if ns==2: A=adv(SS); base[0]=SS
        if ns==0: A=adv(-SS); base[0]=0
        wt=f"d{s+1}"
        if s==1 and LNPOS: wt="lnst"
        ex=[]
        if s==5: ex=[lambda: poll("lnp",PL,LNP,SB,LNX)]+uloads()
        bar=[lambda wt=wt:(k.w(v=wt),k("s_barrier"))]
        if s==1: bar.append(lnatomic)
        k.w(d="fr")
        if s==5: k.smem=0
        wv(mf(1),bar+A[:2]+reads(ns,0,0)+A[2:]+ex,[len(bar),5,5,3,1,5])
        k.stamp(f's{s+1}')
    print("side",nside,"left",len(side))
    R=[]
    for wh in (('b',0),('a',0),('b',1),('a',1),('a',2)):
        for st in (1,2,3): R+=rd(1,st,st,wh,f"f{wh[0]}{wh[1]}")
    mx=[f"v_mfma_f32_32x32x8_bf16 {vr(ACC+16*b,16)}, {ar(EA+2*(b>>1),2)}, {ar(EB+2*(b&1),2)}, {vr(ACC+16*b,16)}" for b in range(6)]
    def hepi(b):
        a=ACC+16*b; u,e=b>>1,b&1
        L=[f"v_mul_f32 v{a+r}, v{a+r}, v{a+8+r}" for r in range(8)]
        L+=[f"v_cvt_pk_bf16_f32 v{a+8+j}, v{a+2*j}, v{a+2*j+1}" for j in range(4)]
        L.append(lambda: k.vm(f"buffer_store_dwordx4 {vr(a+8,4)}, v{HS+u}, {srd(SW)}, s{sH0+e} offen sc1","h"))
        return L
    k.w(d="fr"); wv(mf(0),R[:20]+[cscheck],[4,4,4,4,4,1])
    run(side); del side[:]
    LQ=R[20:]+uwrite()+tabio(); nR=len(R)-20
    need={0:"fa0",1:"fb1",2:"fa1",4:"fa2"}
    HQ=[]; fin={}; g=6
    def icount(): return sum(1 for l in k.L if not l.endswith(':') and not l.strip().startswith(';'))
    def gap(nh,nl):
        nonlocal nR
        n=0
        while HQ and n<nh and icount()-fin[HQ[0][0]]>=12: run([HQ.pop(0)[1]]); n+=1
        n=0
        while LQ and n<nl and (nR>0 or g>=TWS): run([LQ.pop(0)]); n+=1; nR-=1
    for m in mx: k(m); gap(0,4 if nR>0 else NL); g+=1
    for b in range(6):
        if b in need: k.w(d=need[b])
        for st in (1,2,3):
            k(mf1(st,b))
            if st==3: fin[b]=icount(); HQ+=[(b,f) for f in hepi(b)]
            gap(NH,NL); g+=1
    k.stamp('g1')
    while HQ or LQ:
        n0=icount(); gap(NH,NL)
        if icount()==n0: k("s_nop 0")
    k(f"{MRG}:")
    k.stamp('hepi')
    WQ=sum((wd_dma(j) for j in range(NPRE,NPRE+3)),[])
    nwd=NPRE+3
    k.w(d="kf1")
    for T in range(3):
        if T: k.w(d=f"kf{T+1}")
        for st in range(4):
            c=vr(PACC+4*T,4) if (st or T==0) else "0"
            k(f"v_mfma_f32_16x16x32_bf16 {vr(PACC+4*T,4)}, {ar(KF+16*(T+1)+4*st,4)}, {ar(KF+4*st,4)}, {c}")
            if WQ: run([WQ.pop(0)])
    run(WQ)
    k.ds(f"ds_write2_b32 v{PA0}, v{PACC}, v{PACC+1} offset0:0 offset1:1"); k.ds(f"ds_write2_b32 v{PA0}, v{PACC+2}, v{PACC+3} offset0:2 offset1:3")
    k("s_nop 1")
    k.ds(f"ds_write2_b32 v{PA1}, v{PACC+4}, v{PACC+5} offset0:0 offset1:1"); k.ds(f"ds_write2_b32 v{PA2}, v{PACC+6}, v{PACC+7} offset0:0 offset1:1")
    k("s_nop 2")
    k.ds(f"ds_write2_b32 v{PA3}, v{PACC+8}, v{PACC+9} offset0:0 offset1:16"); k.ds(f"ds_write2_b32 v{PA3}, v{PACC+10}, v{PACC+11} offset0:33 offset1:49")
    k.w(d=0); k("s_barrier")
    k.stamp('kgen')
    for c in range(2):
        for i in range(11): k.ds(f"ds_read2st64_b32 {vr(112+24*c+2*i,2)}, v{EX+i} offset0:{PO[2*c]} offset1:{PO[2*c+1]}",f"ex{c}_{i}")
    k.ds(f"ds_write_b128 v{KZ}, {ar(AZ,4)}")
    for c in range(2):
        for i in range(11):
            if i in(0,4,8): k.w(d=f"ex{c}_{min(i+3,10)}")
            k(f"v_add_f32 v{112+24*c+2*i}, v{112+24*c+2*i}, v{113+24*c+2*i}")
        for s in range(4):
            t=16+16*c+4*s
            for j in range(4):
                i=112+24*c+2*(3-s+2*j)
                k(f"v_cvt_pk_bf16_f32 v{t+j}, v{i}, v{i+2}")
            k.ds(f"ds_write_b128 v{KCW}, {vr(t,4)} offset:{(4*c+s)*KCS}")
    k.w(d=0); k("s_barrier")
    k.stamp('exp')
    CS0A,CS0B=('a',176),('a',208); CS1A,CS1B=('v',16),('v',48); CACC=112
    def rg(t,o,n): return (ar if t[0]=='a' else vr)(t[1]+o,n)
    def conv_reads(rho):
        RA,RB=((CS0A,CS0B),(CS1A,CS1B))[rho&1]
        L=[]
        for i in range(8):
            L.append(lambda i=i: k.ds(f"ds_read_b128 {rg(RB,4*i,4)}, v{CB} offset:{192-64*rho+512*i}",f"cv{rho}"))
            for h in range(2): L.append(lambda i=i,h=h: k.ds(f"ds_read_b64 {rg(RA,4*i+2*h,2)}, v{CA} offset:{3776-512*i-64*rho+8*h}",f"cv{rho}" if (rho or h==0) else f"cv0_{i}"))
        return L
    def conv_mf(rho):
        RA,RB=((CS0A,CS0B),(CS1A,CS1B))[rho&1]
        L=[]
        for s in range(8):
            for i in range(s+1):
                I=s
                c="0" if (rho==0 and i==0) else vr(CACC+4*I,4)
                L.append(f"v_mfma_f32_16x16x32_bf16 {vr(CACC+4*I,4)}, {rg(RA,4*i,4)}, {rg(RB,4*(I-i),4)}, {c}")
        return L
    def trs(js):
        L=[]
        for j in js: L+=[lambda j=j: k.w(v=f"wd{j}")]+wd_tr(j)
        return L
    def redma(jn,jold):
        D=wd_dma(jn); return [D[0],lambda: k.w(d=f"wt{jold}")]+D[1:]
    hflag=[lambda: k.w(v="h"), lambda: sat(sFH)]
    def dm(j):
        old={13:0,14:1,15:2,16:3,17:4,18:5,19:6,20:7,21:8}
        return redma(j,old[j]) if j in old else wd_dma(j)
    def dms(a,b): return sum((dm(j) for j in range(max(a,nwd),b)),[])
    hpl=[lambda: k.vm(f"buffer_load_dword v100, v{FHP}, {srd(SW)}, 0 offen sc1","hp")]
    CR=conv_reads(0); run(CR[:15])
    M=conv_mf(0); M2=[]; i0=0
    for s in range(8):
        M2.append((lambda s=s,m=M[i0]: (k.w(d=f"cv0_{s}"),k(m)))); M2+=M[i0+1:i0+s+1]; i0+=s+1
    def weave2(mfs,fl,per,start=0):
        fl=list(fl)
        for i,m in enumerate(mfs):
            run([m])
            if i>=start:
                for _ in range(per[i] if isinstance(per,(list,tuple)) else per):
                    if fl: run([fl.pop(0)])
        run(fl)
    if SCH==0:
        F0=CR[15:]+conv_reads(1)+trs(range(NPRE))+dms(0,8)
        F1=hflag+dms(8,10)+conv_reads(2)+trs(range(NPRE,6))+dms(10,13)
        F2=conv_reads(3)+dms(13,16)+trs([6,7,8])+dms(16,18)
        F3=dms(18,22)+hpl+trs([9,10])
    st_=lambda n: [lambda: k.stamp(n)] if probe==2 else []
    weave2(M2,F0,[3]*4+[2]*32); run(st_('r0'))
    F1=F1[:1]+st_('hack')+F1[1:]
    k.w(d="cv1"); weave2(conv_mf(1),F1,2); run(st_('r1'))
    k.w(d="cv2"); weave2(conv_mf(2),F2,2); run(st_('r2'))
    HR=144
    def hload(j):
        r=HR+8*(j%(DEPTH+1))
        return [f"s_lshr_b32 s{sT0}, s{4+j}, 4"]+[lambda e=e: k.vm(f"buffer_load_dwordx4 {vr(r+4*e,4)}, v{HL+e}, {srd(SW)}, s{sT0} offen sc1",f"h{j}") for e in range(2)]
    pre=F3+st_('prep')+[lambda: k.w(v="hp")]+st_('hpl')+[lambda: poll("hp",100,FHP,SW,FLX)]+st_('hpok')
    for j in range(DEPTH): pre+=hload(j)
    k.w(d="cv3"); weave2(conv_mf(3),pre,2)
    k.stamp('conv'); k.smem=0
    H1=k.lab("H1"); HE=k.lab("HE")
    k(f"""s_add_u32 s{sT1}, s{sAW}, {BW+2048}
    v_add_u32 v96, s{sT1}, v{EXW}
    s_xor_b32 s{sT2}, s{sWV}, 1
    s_mul_i32 s{sT2}, s{sT2}, {AWS}
    s_add_u32 s{sT2}, s{sT2}, {BW+2048}
    v_add_u32 v97, s{sT2}, v{EXW}
    s_bitcmp1_b32 s{sWV}, 0
    s_cbranch_scc1 {H1}""")
    for hh in range(2):
        snd=CACC+16*(1-hh); own=CACC+16*hh
        if hh==0: k("s_nop 1")
        for j in range(4): k(f"ds_write_b128 v96, {vr(snd+4*j,4)} offset:{1024*j}")
        k("s_waitcnt lgkmcnt(0)\ns_barrier")
        for j in range(4): k(f"ds_read_b128 {vr(80+4*j,4)}, v97 offset:{1024*j}")
        for j in range(4):
            k(f"s_waitcnt lgkmcnt({3-j})")
            k(f"v_pk_add_f32 {vr(80+4*j,2)}, {vr(80+4*j,2)}, {vr(own+4*j,2)}\nv_pk_add_f32 {vr(82+4*j,2)}, {vr(82+4*j,2)}, {vr(own+4*j+2,2)}")
        if hh==0: k(f"s_branch {HE}\n{H1}:")
    k(f"{HE}:"); k.dq=[]
    for j in range(4): k(f"v_cvt_pk_bf16_f32 v{112+2*j}, v{80+4*j}, v{81+4*j}\nv_cvt_pk_bf16_f32 v{113+2*j}, v{82+4*j}, v{83+4*j}")
    k("s_nop 0")
    for j in range(2):
        k(f"v_permlane16_swap_b32 v{112+4*j}, v{114+4*j}\nv_permlane16_swap_b32 v{113+4*j}, v{115+4*j}")
    for j in range(2): k.vm(f"buffer_store_dwordx4 {vr(112+4*j,4)}, v{YS}, {srd(SW)}, 0 offen offset:{1024*j} sc1","y")
    k.vm(f"buffer_load_dwordx4 v[136:139], v{XO}, {srd(SX)}, 0 offen","x")
    k.vm(f"buffer_load_dwordx4 v[140:143], v{XO}, {srd(SX)}, 0 offen offset:32","x")
    k.vm(f"buffer_load_dword v135, v{RS}, {srd(SW)}, 0 offen sc1","x")
    run(st_('yst'))
    k.w(v="wd21")
    for j in range(11,22):
        for f in wd_tr(j): f()
    k.stamp('xchg')
    A2=16
    def g2mf(j):
        r=HR+8*(j%(DEPTH+1))
        return [f"v_mfma_f32_32x32x16_bf16 {vr(A2+16*(2*d+t),16)}, {ar(8*j+4*d,4)}, {vr(r+4*t,4)}, {'0' if j==0 else vr(A2+16*(2*d+t),16)}" for d,t in((1,1),(1,0),(0,1),(0,0))]
    SK=k.lab("SK")
    waited=False
    for j in range(22):
        fl=[]
        if j+DEPTH<22: fl+=hload(j+DEPTH)
        if j==DEPTH: fl+=[lambda: sat(sFY)]
        if j==12: fl+=[lambda: k.vm(f"buffer_load_dword v134, v{FYP}, {srd(SW)}, 0 offen sc1","yp")]
        if j==17:
            fl+=[lambda: poll("yp",134,FYP,SW,FLX)]
            fl+=[lambda q=q: k.vm(f"buffer_load_dwordx4 {vr(112+4*q,4)}, v{YL}, {srd(SW)}, {'s%d'%sYQ if q else 0} offen sc1","yl") for q in range(2)]
        if j==21: k(f"s_cmp_ge_u32 s{sWV}, 2\ns_cbranch_scc1 {SK}")
        if j>=DEPTH and not waited: k.w(v=f"h{j}",d=0); waited=True
        else: k.w(v=f"h{j}")
        weave(k,g2mf(j),fl,3)
        if j in(0,4,5,10,16,17): run(st_(f'u{j}'))
    k(f"{SK}:")
    k.stamp('g2'); k.smem=0
    k(f"""v_add_u32 v96, s{sAW}, v{EXW}
    v_add_u32 v97, s{sCWB}, v{EXW}""")
    for x in (1,2,3):
        k(f"s_xor_b32 s{sT0}, s{sWV}, {x}")
        if x<3: k(f"s_mul_i32 s{sT0}, s{sT0}, {AWS}\ns_add_u32 s{sT0}, s{sT0}, {4096*(x-1)}")
        else: k(f"s_mul_i32 s{sT0}, s{sT0}, {CWS}\ns_add_u32 s{sT0}, s{sT0}, {CW}")
        k(f"v_add_u32 v{97+x}, s{sT0}, v{EXW}")
    for x in (3,2,1):
        for a in range(4):
            k.ds(f"ds_write_b128 v{97 if x==3 else 96}, {vr(A2+16*x+4*a,4)} offset:{1024*a+(4096 if x==2 else 0)}")
    k.w(v="yl")
    for q in range(2): k.ds(f"ds_write_b128 v{YW}, {vr(112+4*q,4)} offset:{1024*q}")
    for a in range(4): k.ds(f"ds_read_b64_tr_b16 {vr(120+2*a,2)}, v{YR} offset:{512*a}","yt")
    k.w(d=0); k("s_barrier")
    for x in (1,2,3):
        for a in range(4): k.ds(f"ds_read_b128 {vr(144+16*(x-1)+4*a,4)}, v{97+x} offset:{1024*a}",f"rd{x}")
    for j in range(8): k(f"v_lshlrev_b32 v{80+2*j}, 16, v{120+j}\nv_and_b32 v{81+2*j}, s{sMSK}, v{120+j}")
    for x in (1,2,3):
        k.w(d=f"rd{x}")
        for j in range(8): k(f"v_pk_add_f32 {vr(A2+2*j,2)}, {vr(A2+2*j,2)}, {vr(144+16*(x-1)+2*j,2)}")
    for j in range(8): k(f"v_pk_fma_f32 {vr(A2+2*j,2)}, {vr(A2+2*j,2)}, v[134:135], {vr(80+2*j,2)} op_sel:[0,1,0] op_sel_hi:[1,1,1]")
    for j in range(8): k(f"v_lshlrev_b32 v{80+2*j}, 16, v{136+j}\nv_and_b32 v{81+2*j}, s{sMSK}, v{136+j}")
    for a in(0,2):
        for r in range(4): k(f"v_permlane32_swap_b32 v{A2+4*a+r}, v{A2+4*a+4+r}")
    for j in range(8):
        k(f"v_pk_add_f32 {vr(A2+2*j,2)}, {vr(A2+2*j,2)}, {vr(80+2*j,2)}\nv_cvt_pk_bf16_f32 v{100+j}, v{A2+2*j}, v{A2+2*j+1}")
        if j%4==3: k.vm(f"buffer_store_dwordx4 {vr(100+j-3,4)}, v{XO}, {srd(SO)}, 0 offen offset:{32*(j//4)} {OSF.replace('_',' ')}","o")
    if prof:
        k.stamp('epi'); k("s_waitcnt vmcnt(0) lgkmcnt(0)"); k.stamp('drain'); k("s_waitcnt lgkmcnt(0)"); k.stamp(); k.stamp()
        k("; STAMPS "+" ".join(k.names[:-2]))
        k("s_memrealtime s[94:95]\ns_waitcnt lgkmcnt(0)\nv_writelane_b32 v199, s94, 62\nv_writelane_b32 v199, s96, 63")
        k(f"s_lshl_b32 s{sT0}, s2, 2\ns_add_u32 s{sT0}, s{sT0}, s{sWV}\ns_lshl_b32 s{sT0}, s{sT0}, 8\ns_add_u32 s{sT0}, s{sT0}, {PROF}\nv_lshl_add_u32 v2, v1, 2, s{sT0}")
        k(f"buffer_store_dword v199, v2, {srd(SW)}, 0 offen")
        if pace:
            L=k.lab(); LP=k.lab()
            k(f"""s_cmp_lg_u32 s{sWV}, 0
            s_cbranch_scc1 {L}
            s_cmp_lg_u32 s2, {pwg}
            s_cbranch_scc1 {L}""")
            if pace==1: k(f"s_mov_b32 s{sT0}, 6000")
            if pace==2: k(f"s_sub_u32 s{sT0}, s94, s96\ns_lshl_b32 s{sT0}, s{sT0}, 2")
            if pace==3: k(f"v_readlane_b32 s{sT0}, v199, {k.names.index(pidx)}\ns_sub_u32 s{sT0}, s{sT0}, s34\ns_lshr_b32 s{sT0}, s{sT0}, {psh}\ns_add_u32 s{sT0}, s{sT0}, 4000")
            if pace==4: k(f"v_readlane_b32 s{sT0}, v199, {k.names.index(pidx)}\nv_readlane_b32 s{sT1}, v199, {k.names.index(pidx2)}\ns_sub_u32 s{sT0}, s{sT0}, s{sT1}\ns_lshr_b32 s{sT0}, s{sT0}, {psh}\ns_add_u32 s{sT0}, s{sT0}, 4000")
            k(f"""s_min_u32 s{sT0}, s{sT0}, 30000
            s_mov_b32 s{sT2}, 100000
            {LP}:
            s_memrealtime s[94:95]
            s_waitcnt lgkmcnt(0)
            s_sub_u32 s{sT1}, s94, s96
            s_cmp_ge_u32 s{sT1}, s{sT0}
            s_cbranch_scc1 {L}
            s_sub_u32 s{sT2}, s{sT2}, 1
            s_cmp_lg_u32 s{sT2}, 0
            s_cbranch_scc1 {LP}
            {L}:""")
        if dbg:
            L=k.lab()
            k(f"""s_cmp_lg_u32 s{sWV}, 0
            s_cbranch_scc1 {L}
            s_and_b32 s{sT0}, s2, 0x18
            s_cmp_lg_u32 s{sT0}, 0
            s_cbranch_scc1 {L}
            s_sub_u32 s{sT0}, s94, s96
            v_writelane_b32 v199, s{sT0}, 2
            s_or_b32 s{sT0}, s94, 0x80000000
            s_not_b32 s{sT1}, s96
            s_or_b32 s{sT1}, s{sT1}, 0x80000000
            s_or_b32 s{sT2}, s96, 0x80000000
            v_mov_b32 v4, s{sT0}
            v_writelane_b32 v4, s{sT1}, 1
            v_writelane_b32 v4, s{sT2}, 2
            v_cmp_gt_u32 vcc, 3, v1
            v_lshlrev_b32 v6, 2, v1
            v_add_u32 v6, 52, v6
            v_mov_b32 v7, {hex(OOB)}
            v_cndmask_b32 v6, v7, v6, vcc
            buffer_atomic_umax v4, v6, {srd(SB)}, 0 offen sc1
            s_cmp_lg_u32 s2, {dbg-1}
            s_cbranch_scc1 {L}
            v_readlane_b32 s{sT0}, v199, 2
            v_readlane_b32 s{sT1}, v199, 14
            v_subrev_u32 v4, s34, v199
            s_sub_u32 s{sT1}, s{sT1}, s34
            v_writelane_b32 v4, s{sT0}, 2
            v_writelane_b32 v4, s{sT1}, 13
            v_cmp_gt_u32 vcc, 14, v1
            v_lshlrev_b32 v6, 2, v1
            v_add_u32 v6, -4, v6
            v_cndmask_b32 v6, v7, v6, vcc
            buffer_store_dword v4, v6, {srd(SB)}, 0 offen sc1
            {L}:""")
    k("s_endpgm")
    k(f"{CSL}:")
    k.vq=vq_cs; k.dq=dq_cs; k.smem=0
    k("s_waitcnt lgkmcnt(0)\ns_barrier")
    run(lntr())
    k(f"""s_mul_i32 s{sT2}, s{sFT}, 768
    s_add_u32 s{sT2}, s{sT2}, {CS}
    s_cmp_eq_u32 s{sWV}, 3
    s_cselect_b32 s{sT2}, {hex(OOB)}, s{sT2}
    v_lshl_add_u32 v{CSA}, v0, 2, s{sT2}
    v_mov_b32 v19, -1
    s_mov_b32 s{sC1}, {SS}
    s_mov_b32 s{sC2}, {-2*SS}
    buffer_store_dword v19, v{CSA}, {srd(SW)}, 0 offen sc1""")
    run(lnst())
    k(f"""s_mul_i32 s{sT0}, s{sWV}, 3072
    s_lshr_b32 s{sT1}, s{sWV}, 1
    s_mul_i32 s{sT1}, s{sT1}, 96
    s_sub_u32 s{sT0}, s{sT0}, s{sT1}
    v_add_u32 v{WR}, s{sT0}, v{WR}
    v_mov_b32 v112, 0x3f803f80
    v_mov_b32 v113, v112
    v_mov_b32 v114, v112
    v_mov_b32 v115, v112
    s_mov_b32 s{sRING}, {2*SS}
    s_mov_b32 s{sCNT}, 0""")
    for r in range(16,112): k(f"v_mov_b32 v{r}, 0")
    def csdma():
        D=dma_list(f"s{sRING}","c")[5:]
        for f in D: f() if callable(f) else (k(f),k("s_nop 0"))
        for f in nextk: k(f)
    csdma()
    CL=k.lab("CL"); CN=k.lab("CN")
    k(f"{CL}:\ns_waitcnt vmcnt(12)\ns_cmp_lt_u32 s{sCNT}, 6\ns_cbranch_scc1 {CN}\ns_waitcnt vmcnt(0)\n{CN}:")
    CA_=k.lab("CN")
    k(f"s_cmp_lg_u32 s{sCNT}, 1\ns_cbranch_scc1 {CA_}\ns_barrier"); lnatomic(); k(f"{CA_}:")
    for u in range(6):
        for h in range(2): k(f"ds_read_b64_tr_b16 {vr(116+4*u+2*h,2)}, v{WR} offset:{768*h+32*u}")
    k(f"ds_read_u8 v{JNK}, v1")
    CN2=k.lab("CN")
    k(f"""s_add_u32 s{sRING}, s{sRING}, s{sC1}
    s_cmp_eq_u32 s{sRING}, {3*SS}
    s_cselect_b32 s{sRING}, 0, s{sRING}
    s_cmp_eq_u32 s{sRING}, {2*SS}
    s_cselect_b32 s{sDL}, s{sC2}, s{sC1}
    v_add_u32 v{WR}, s{sDL}, v{WR}
    s_waitcnt lgkmcnt(1)
    s_cmp_ge_u32 s{sCNT}, 5
    s_cbranch_scc1 {CN2}""")
    csdma()
    k(f"{CN2}:")
    for u in range(6): k(f"v_mfma_f32_32x32x16_bf16 {vr(16+16*u,16)}, v[112:115], {vr(116+4*u,4)}, {vr(16+16*u,16)}")
    k(f"s_add_u32 s{sCNT}, s{sCNT}, 1\ns_cmp_lt_u32 s{sCNT}, 8\ns_cbranch_scc1 {CL}")
    k(f"""s_mul_i32 s{sT0}, s{sWV}, 768
    s_add_u32 s{sT0}, s{sT0}, {PT}
    v_lshl_add_u32 v140, v5, 2, s{sT0}
    v_min_u32 v141, 191, v0
    v_lshlrev_b32 v141, 2, v141
    v_add_u32 v141, {PT}, v141
    s_nop 7""")
    for u in range(6): k(f"ds_write_b32 v140, v{16+16*u} offset:{128*u}")
    k("s_waitcnt lgkmcnt(0)\ns_barrier")
    for j in range(4): k(f"ds_read_b32 v{144+j}, v141 offset:{768*j}")
    k(f"""s_waitcnt lgkmcnt(0)
    v_add_f32 v144, v144, v145
    v_add_f32 v146, v146, v147
    v_add_f32 v144, v144, v146
    v_cvt_pk_bf16_f32 v145, v144, v144
    v_and_b32 v145, s{sMSK}, v145
    v_sub_f32 v146, v144, v145
    v_cvt_pk_bf16_f32 v145, v145, v146
    buffer_store_dword v145, v{CSA}, {srd(SW)}, 0 offen sc1""")
    k.vq=["par"]+[None]*20; k.dq=[]; k.smem=0
    run(side_list())
    lnpoll(); poll("lnp",PL,LNP,SB,LNX)
    run(uloads())
    for j in range(NPRE): run(wd_dma(j))
    k("s_barrier")
    run(tabio()); run(uwrite())
    k(f"s_waitcnt vmcnt(0) lgkmcnt(0)\ns_branch {MRG}")
    for t in k.tail: k(t)
    k(f"{END}:")
    return k
import struct
def f2b(x): return struct.unpack('<I',struct.pack('<f',x))[0]
if __name__=='__main__':
    out=sys.argv[1]; opts=dict(a.split('=') for a in sys.argv[2:])
    opts={a:(int(b) if b.lstrip('-').isdigit() else b) for a,b in opts.items()}
    k=gen(**opts)
    hdr="".join(l for l in open('cdna_kernels/'+NAME[:-7]+'.s.ref') if l.startswith(';') and '@launch' not in l)
    txt=module([k],[(None,256,256,163840)],hdr)
    open(out,'w').write(txt)
    print("hazards:",haz.check(txt.split('\n')))
```

```python
import sys
sys.path.insert(0,'w')
from gl import *
import haz
NAME="parallel_sum__ssm_conv_s4__glu_gated_bilinear__prompt_kernel"
XNB=0; STATS=0x200000; FH=0x210000; FY=0x218000; PROF=0x220000; HB=0x400000; YB=0xA00000; CS=0xC00000; WSEND=CS+86*128
SS=41216; WG_O=16384; WU_D=12320
TAB=82432; TABW=16416; KC=123648; KCS=4160; PT=156928; PTS=3088
UO=119040; US=37888; CW=82432; CWS=8192; AWS=10240; BW=41216
OOB=0x80000000
PX=132*937; PO=(0,17,34,51); EXB=32*937-0x4280; TBS=4352; LNS=2560; LNB=KC+4*TBS
O7=['04123567','12530467','23061457','30127456']
OROT=['01234567','23456701','45670123','67012345']
class G(K):
    def __init__(s,*a,**kw):
        super().__init__(*a,**kw); s.vq=[]; s.dq=[]; s.tail=[]; s.nst=0; s.names=['start']
    def vm(s,t,tag=None):
        if t.endswith(' lds') and ' m0,' in s.L[-1]: s("s_nop 0")
        pb=tag in getattr(s,'ptags',()) and s.prof
        if pb: s.stamp('<'+tag)
        s(t); s.vq.append(tag)
        if pb: s.stamp('>')
    def ds(s,t,tag=None): s(t); s.dq.append(tag)
    def nv(s,tag):
        i=max(j for j,x in enumerate(s.vq) if x==tag); return min(len(s.vq)-1-i,63)
    def nd(s,tag):
        i=max(j for j,x in enumerate(s.dq) if x==tag); return min(len(s.dq)-1-i,15)
    def w(s,v=None,d=None):
        o=[]
        if v is not None: o.append(f"vmcnt({s.nv(v) if isinstance(v,str) else v})")
        if d is not None:
            n=s.nd(d) if isinstance(d,str) else d
            if getattr(s,'smem',0) and n==0:
                if getattr(s,'autod',0): s.ds(f"ds_read_u8 v{JNK}, v1","dum"); n=1
                else: print("SMEM region: lgkmcnt(0) at line",len(s.L),d)
            o.append(f"lgkmcnt({n})")
        s("s_waitcnt "+" ".join(o))
    def stamp(s,name=''):
        if s.prof:
            n=s.nst; R=(90,92,98,100); a=R[n&3]
            s(f"s_memtime s[{a}:{a+1}]")
            if n>=2: s(f"v_writelane_b32 v199, s{R[(n-2)&3]}, {n-1}")
            elif n==0: s("v_writelane_b32 v199, s34, 0")
            s.names.append(name); s.nst+=1
def vr(a,n): return f"v[{a}:{a+n-1}]" if n>1 else f"v{a}"
def ar(a,n): return f"a[{a}:{a+n-1}]" if n>1 else f"a{a}"
def weave(k,mf,fl,per,start=0):
    fl=list(fl)
    for i,m in enumerate(mf):
        k(m)
        if i>=start:
            n=per[i] if isinstance(per,(list,tuple)) else per
            for _ in range(n):
                if fl:
                    f=fl.pop(0); f() if callable(f) else k(f)
    for f in fl: f() if callable(f) else k(f)

SX,SG,SU,SD,SW,SO,SB=36,40,44,48,52,56,60
sXCD,sI,sWV,sP,sFT,sMT,sRB,sLD,sDK=64,65,66,67,68,69,70,71,72
sKS,sOX,sOW,sMX,sMG,sRING,sDL,sCNT,sC1,sC2=73,74,75,76,77,78,79,80,81,82
sH0,sH1,sMSK,sONE,sAW,sCWB,sT0,sT1,sT2,sT3=83,84,85,86,87,88,26,27,28,29
sUQ=30; sYQ=31; sTB=32; sDB=33; sORD=89; sFH=94; sFY=95; sPB=70; sLA=64
def srd(d): return f"s[{d}:{d+3}]"
XD=200; WD=204; XR=207; WR=211; KCW=212; EX=213
CA=224; CB=225; WDV=226; TA=228; TC=230; HL=232; HS=234; UL=237; UW=238; UZ=239; ST=240; CSA=241
XO=242; RS=243; YL=244; YW=245; YR=246; YS=247; EXW=248; FHP=249; FYP=250; TW=251; TR=252; LNP=253; KZ=254; PA0=255
PA1=193; PA2=194; PA3=195; KX=160; TB=112; PACC=172; PAR=184; JNK=196; PL=197
LTR=88; LST=12; aXN=14; aST=15; aTR=10; aWR=11; ROW=50
EA=144; EB=150; UR=156; AZ=164; AP=168; KF=24

def gen(prof=False, ORD='rot', ROT2=True, DEPTH=8, dbg=0, pace=0, pidx=14, psh=3, pwg=0, PF=2, pidx2=None, OSF='', NS=20, LNPOS=0, NPRE=4, D1E=10, NH=4, NL=2, TWS=8, SCH=0, probe=0, PARP=0, TWK=12, NA7=0, NE=2, D1S=200, KCB=2, YP=1, PP='0_1_2', HFG=40, HPG=120, YLU=17, QM=0, WDT='12345', G7=0, XP=0, IOP=2, LPS=4, CLS=5, WDN=2, W0E=2, EXS=1, LAS=1, D5L=1, TRG=9, T3B=1, D1P=0, D1C=130, D2P=0, D2G=0, LSP=0, YPS=-1, NSC=0, SLP=0, SLH=0, HFW=0, VP=0, T1=12, TL=36, NB=3, NWC=22, HP=15, XW=0, PT_='', PB=0, PTS=0, LSG=0, D0L=0, D0K=0, CST=0, PTW=60, D1L='', D2L='', PTG=0, CSN=0, XOB=0, WPX=0, CSJ=9, CSB=250, CSB0=500, CSL_=0, CSA_=2):
    k=G(NAME,vgpr=256,agpr=256,sgpr=102); k.prof=prof; k.pst=90; k.autod=1; k.ptags=str(PT_).split('_')
    END=k.lab("END")
    if prof: k("s_memtime s[34:35]\ns_memrealtime s[96:97]")
    k(f"s_cmp_ge_u32 s2, 0x100\ns_cbranch_scc1 {END}")
    k("s_load_dwordx16 s[4:19], s[0:1], 0\ns_load_dwordx2 s[20:21], s[0:1], 64")
    PC=k.lab("PC")
    if PF==1:
        k(f'''s_getpc_b64 s[22:23]
        {PC}:
        v_lshlrev_b32 v2, 7, v0
        v_mov_b32 v5, s23
        v_min_u32 v2, {END}-{PC}, v2
        v_add_co_u32 v4, vcc, s22, v2
        v_addc_co_u32 v5, vcc, 0, v5, vcc
        global_load_dword v{JNK}, v[4:5], off''')
    if PF==2:
        k(f'''s_getpc_b64 s[22:23]
        {PC}:
        s_lshl_b32 s3, s2, 2
        v_lshrrev_b32 v2, 3, v0
        s_and_b32 s3, s3, 0xe0
        v_mov_b32 v5, s23
        v_add_lshl_u32 v2, v2, s3, 7
        v_min_u32 v2, {END}-{PC}, v2
        v_add_co_u32 v4, vcc, s22, v2
        v_addc_co_u32 v5, vcc, 0, v5, vcc
        global_load_dword v{JNK}, v[4:5], off''')
    for d,o in((SX,0),(SG,80),(SU,88),(SD,96),(SO,104),(SB,112),(SW,120)): k(f"s_load_dwordx2 s[{d}:{d+1}], s[0:1], {o}")
    for d,n in((SX,0x200000),(SG,512*2752),(SU,512*2752),(SD,1376*1024),(SO,0x200000),(SB,256),(SW,WSEND)):
        k(f"s_mov_b32 s{d+2}, {hex(n)}\ns_mov_b32 s{d+3}, 0x00020000")
    k(f"""v_lshrrev_b32 v2, 6, v0
    v_and_b32 v1, 63, v0
    v_readfirstlane_b32 s{sWV}, v2
    s_and_b32 s{sXCD}, s2, 7
    s_lshr_b32 s{sI}, s2, 3
    s_lshl_b32 s{sP}, s{sXCD}, 5
    s_add_u32 s{sP}, s{sP}, s{sI}
    s_and_b32 s{sT0}, s{sXCD}, 1
    s_lshr_b32 s{sT1}, s{sXCD}, 1
    s_lshl_b32 s{sRB}, s{sT0}, 7
    s_lshl_b32 s{sT2}, s{sT1}, 5
    s_add_u32 s{sRB}, s{sRB}, s{sT2}
    s_add_u32 s{sRB}, s{sRB}, s{sI}
    s_mul_i32 s{sT2}, s{sT1}, 30
    s_add_u32 s{sT2}, s{sT2}, s{sI}
    s_lshr_b32 s{sFT}, s{sT2}, 3
    s_and_b32 s{sT2}, s{sT2}, 7
    s_lshl_b32 s{sMT}, s{sT0}, 3
    s_add_u32 s{sMT}, s{sMT}, s{sT2}
    s_lshl_b32 s{sT1}, s{sT1}, 2
    s_lshl_b32 s{sT0}, s{sT0}, 1
    s_add_u32 s{sT1}, s{sT1}, s{sT0}
    s_add_u32 s{sT1}, s{sT1}, s{sI}
    s_sub_u32 s{sT1}, s{sT1}, 30
    s_cmp_ge_u32 s{sI}, 30
    s_cselect_b32 s{sFT}, s{sT1}, s{sFT}
    s_mov_b32 s{sMSK}, 0xffff0000""")
    k(f"""s_lshl_b32 s{sT0}, s{sRB}, 13
    s_lshl_b32 s{sT1}, s{sWV}, 11
    s_add_u32 s{sT0}, s{sT0}, s{sT1}
    v_lshl_add_u32 v3, v1, 4, s{sT0}
    s_lshl_b32 s{sT0}, s{sP}, 9
    v_lshl_add_u32 v198, v0, 1, s{sT0}""")
    for j in range(6): k(f"v_mov_b32 v{PAR+j}, 0")
    k(f"""s_lshl_b32 s{sT0}, s{sMT}, 17
    s_lshl_b32 s{sT1}, s{sWV}, 15
    s_add_u32 s{sT0}, s{sT0}, s{sT1}
    {f"s_cmp_ge_u32 s{sI}, 30"+chr(10)+f"s_cselect_b32 s{sT0}, {hex(OOB)}, s{sT0}" if XOB else ""}
    v_lshrrev_b32 v5, 3, v1
    v_lshl_add_u32 v5, v5, 10, s{sT0}
    v_lshrrev_b32 v6, 4, v1
    v_xor_b32 v7, v1, v6
    v_and_b32 v7, 7, v7
    v_lshl_add_u32 v{XD}, v7, 4, v5
    v_xor_b32 v5, 64, v{XD}
    v_add_u32 v{XD+1}, 7168, v5
    v_add_u32 v{XD+2}, 14336, v{XD}
    v_add_u32 v{XD+3}, 21504, v5
    s_mul_i32 s{sT0}, s{sFT}, 192
    s_mul_i32 s{sT1}, s{sWV}, {16*2752}""")
    for q in range(3):
        k(f"""v_add_u32 v5, {64*q}, v1
        v_mul_u32_u24 v7, 5462, v5
        v_lshrrev_b32 v7, 16, v7
        v_mul_u32_u24 v8, 12, v7
        v_sub_u32 v8, v5, v8
        v_lshl_add_u32 v8, v8, 4, s{sT0}
        v_min_u32 v8, 2736, v8
        v_mul_u32_u24 v7, 2752, v7
        v_add3_u32 v{WD+q}, v7, v8, s{sT1}""")
        if q: k(f"v_subrev_u32 v{WD+q}, {1024*q}, v{WD+q}")
    O={'o7':O7,'rot':OROT}.get(ORD) or str(ORD).zfill(8).split('_')
    pk=lambda o: hex(sum(int(ch,16)<<(4*j) for j,ch in enumerate(o)))
    k(f"s_add_u32 s{sT0}, s{sMT}, s{sFT}")
    if len(O)==3: k(f"s_mul_i32 s{sT1}, s{sT0}, 11\ns_lshr_b32 s{sT1}, s{sT1}, 5\ns_mul_i32 s{sT1}, s{sT1}, 3\ns_sub_u32 s{sT0}, s{sT0}, s{sT1}")
    else: k(f"s_and_b32 s{sT0}, s{sT0}, {len(O)-1}")
    k(f"s_mov_b32 s{sORD}, {pk(O[0])}")
    for g in range(1,len(O)): k(f"s_cmp_eq_u32 s{sT0}, {g}\ns_cselect_b32 s{sORD}, {pk(O[g])}, s{sORD}")
    k(f"s_and_b32 s{sKS}, s{sORD}, 7")
    k(f"""s_lshl_b32 s{sMX}, s{sWV}, 12
    s_mul_i32 s{sMG}, s{sWV}, 3072
    s_add_u32 s{sMG}, s{sMG}, {WG_O}
    s_lshl_b32 s{sOX}, s{sKS}, 7
    s_mul_i32 s{sOW}, s{sKS}, {64*2752}
    s_lshl_b32 s{sT0}, s{sP}, 2""")
    k.stamp('pre')
    k("s_waitcnt lgkmcnt(0)")
    k.stamp('karg')
    k(f"s_load_dword s{sLD}, s[18:19], s{sT0}\ns_load_dword s{sDK}, s[20:21], s{sT0}")
    def rowl():
        k.vm(f"buffer_load_dwordx4 {vr(ROW,4)}, v3, {srd(SX)}, 0 offen","row")
        k.vm(f"buffer_load_dwordx4 {vr(ROW+4,4)}, v3, {srd(SX)}, 0 offen offset:1024","row")
    def parl():
        for j in range(6): k.vm(f"global_load_short_d16_hi v{PAR+j}, v198, s[{6+2*j}:{7+2*j}]","par")
    if PB<2: rowl()
    if PARP==0: parl()
    if PB==3: k("s_barrier")
    if PB>=2: rowl()
    if YPS==-2:
        k(f"""s_lshl_b32 s{sT2}, s{sP}, 13
        s_lshl_b32 s{sT3}, s{sWV}, 11
        s_add_u32 s{sT2}, s{sT2}, s{sT3}
        s_add_u32 s{sT2}, s{sT2}, {YB}
        v_lshl_add_u32 v9, v1, 4, s{sT2}""")
        for r in range(16,20): k(f"v_mov_b32 v{r}, -1")
        for j in range(2): k.vm(f"buffer_store_dwordx4 v[16:19], v9, {srd(SW)}, 0 offen offset:{1024*j} sc1","psn")
    if PB in(1,2): k("s_barrier")
    def dma_list(ring,tag):
        L=[]
        if isinstance(ring,int):
            a=lambda s: f"s_add_u32 m0, s{s}, {ring}" if ring else f"s_mov_b32 m0, s{s}"
        else: a=lambda s: f"s_add_u32 m0, s{s}, {ring}"
        L.append(a(sMX))
        for q in range(4): L.append(lambda q=q: k.vm(f"buffer_load_dwordx4 v{XD+q}, {srd(SX)}, s{sOX} offen offset:{1024*q} lds",tag))
        L.append(a(sMG))
        for q in range(3): L.append(lambda q=q: k.vm(f"buffer_load_dwordx4 v{WD+q}, {srd(SG)}, s{sOW} offen offset:{1024*q} lds",tag))
        L.append(f"s_add_u32 m0, m0, {WU_D}")
        for q in range(3): L.append(lambda q=q: k.vm(f"buffer_load_dwordx4 v{WD+q}, {srd(SU)}, s{sOW} offen offset:{1024*q} lds",tag))
        return L
    nextk=[f"s_lshr_b32 s{sORD}, s{sORD}, 4",f"s_and_b32 s{sKS}, s{sORD}, 7",f"s_lshl_b32 s{sOX}, s{sKS}, 7",f"s_mul_i32 s{sOW}, s{sKS}, {64*2752}"]
    D0R=[]
    def issue_d0():
        L=dma_list(0,"d0")+nextk; n=0
        while L:
            if n>=10-D0L and D0L and callable(L[0]): break
            f=L.pop(0)
            if callable(f): f(); n+=1
            else: k(f)
        D0R.extend(L)
    if not XP&1: issue_d0()
    if PARP==1: parl()
    k.stamp('dma0')
    def run(L):
        for f in L: f() if callable(f) else k(f)
    k(f"""v_lshrrev_b32 v2, 4, v1
    v_bfe_u32 v3, v1, 2, 2
    v_and_b32 v4, 3, v1
    v_and_b32 v5, 31, v1
    v_lshrrev_b32 v6, 5, v1
    v_and_b32 v7, 15, v1
    s_and_b32 s{sT0}, s{sWV}, 1
    s_lshr_b32 s{sT1}, s{sWV}, 1""")
    k(f"""v_bfe_u32 v8, v1, 1, 3
    v_xor_b32 v8, v8, v6
    v_lshlrev_b32 v8, 4, v8
    v_lshl_add_u32 v8, v5, 7, v8
    s_lshl_b32 s{sT2}, s{sT0}, 13
    v_add_u32 v{XR}, s{sT2}, v8
    v_xor_b32 v{XR+1}, 32, v{XR}
    v_xor_b32 v{XR+2}, 64, v{XR}
    v_xor_b32 v{XR+3}, 0x60, v{XR}""")
    k(f"""v_and_b32 v8, 1, v2
    v_mul_u32_u24 v9, {WU_D}, v8
    v_lshl_add_u32 v18, v6, 3, v3
    v_mul_u32_u24 v18, 192, v18
    v_add_u32 v9, v9, v18
    v_lshl_add_u32 v9, v4, 3, v9
    s_mul_i32 s{sT2}, s{sT1}, 96
    s_add_u32 s{sT2}, s{sT2}, {WG_O}
    v_add_u32 v{WR}, s{sT2}, v9""")
    k(f"v_lshlrev_b32 v9, 4, v0\nv_add_u32 v{KCW}, {KC}, v9")
    k(f"""s_lshl_b32 s{sT2}, s{sP}, 1
    s_add_u32 s{sT2}, s{sT2}, s{sT1}
    s_lshl_b32 s{sT2}, s{sT2}, 12
    s_lshl_b32 s{sT3}, s{sT0}, 11
    s_add_u32 s{sT2}, s{sT2}, s{sT3}
    s_add_u32 s{sT2}, s{sT2}, {YB}
    v_lshlrev_b32 v9, 9, v8
    v_lshl_add_u32 v9, v7, 5, v9
    v_lshl_add_u32 v9, v6, 4, v9
    v_add_u32 v{YS}, s{sT2}, v9""")
    k(f"""s_lshr_b32 s{sT2}, s{sI}, 3
    s_lshl_b32 s{sTB}, s{sXCD}, 2
    s_add_u32 s{sTB}, s{sTB}, s{sT2}
    s_and_b32 s{sDB}, s{sI}, 7""")
    k(f"""s_lshl_b32 s{sT2}, s{sMT}, 4
    s_add_u32 s{sT2}, s{sT2}, s{sFT}
    s_lshl_b32 s{sT2}, s{sT2}, 7
    s_add_u32 s{sT2}, s{sT2}, {FH}
    s_cmp_ge_u32 s{sI}, 30
    s_cselect_b32 s{sFH}, {FH+15*128}, s{sT2}
    s_cselect_b32 s{sT2}, {hex(OOB)}, s{sT2}
    s_lshl_b32 s{sFY}, s{sP}, 7
    s_add_u32 s{sFY}, s{sFY}, {FY}
    s_cmp_eq_u32 s{sWV}, 0
    s_cselect_b32 s{sC1}, s{sT2}, {hex(OOB)}
    s_cselect_b32 s{sC2}, s{sFY}, {hex(OOB)}
    s_mov_b32 s{sONE}, 1
    s_and_b32 s{sLA}, s2, 3
    s_lshl_b32 s{sLA}, s{sLA}, 6""")
    k(f"""s_mul_i32 s{sT2}, s{sWV}, {LNS}
    s_add_u32 s{sT2}, s{sT2}, {LNB}
    v_mul_u32_u24 v9, 320, v3
    v_lshl_add_u32 v9, v2, 5, v9
    v_lshl_add_u32 v9, v4, 3, v9
    v_add_u32 v{aTR}, s{sT2}, v9
    s_mul_i32 s{sT2}, s{sWV}, 640
    s_add_u32 s{sT2}, s{sT2}, {LNB}
    v_mul_u32_u24 v9, {LNS}, v2
    v_lshl_add_u32 v9, v7, 4, v9
    v_add_u32 v{aWR}, s{sT2}, v9
    s_lshl_b32 s{sT2}, s{sRB}, 6
    s_lshl_b32 s{sT3}, s{sWV}, 4
    s_add_u32 s{sT2}, s{sT2}, s{sT3}
    s_add_u32 s{sT2}, s{sT2}, {STATS}
    v_lshl_add_u32 v9, v6, 3, s{sT2}
    v_cmp_eq_u32 vcc, 0, v5
    v_mov_b32 v18, {hex(OOB)}
    s_lshl_b32 s{sT2}, s{sRB}, 13
    s_lshl_b32 s{sT3}, s{sWV}, 11
    v_cndmask_b32 v{aST}, v18, v9, vcc
    s_add_u32 s{sT2}, s{sT2}, s{sT3}
    v_lshl_add_u32 v{aXN}, v1, 4, s{sT2}
    v_writelane_b32 v{aST}, s{sC1}, 1""")
    if not YP: k(f"v_writelane_b32 v{aST}, s{sC2}, 2")
    k(f"""s_mul_i32 s{sT2}, s{sWV}, {TBS}
    s_add_u32 s{sPB}, s{sT2}, {PX}
    s_waitcnt lgkmcnt(0)
    s_lshl_b32 s{sT2}, s{sT1}, 4
    s_lshr_b32 s{sLD}, s{sLD}, s{sT2}
    s_lshl_b32 s{sLD}, s{sLD}, 16
    s_lshr_b32 s{sDK}, s{sDK}, s{sT2}
    s_lshl_b32 s{sDK}, s{sDK}, 16
    s_cmp_eq_u32 s{sT0}, 0
    s_cselect_b32 s{sDK}, s{sDK}, 0""")
    for r in (AZ,AZ+1,AZ+2,AZ+3): k(f"v_accvgpr_write_b32 a{r}, 0")
    if YP and YPS!=-2:
        for r in range(AP,AP+4): k(f"v_accvgpr_write_b32 a{r}, -1")
    k(f"""v_lshlrev_b32 v9, 3, v0
    s_mov_b32 s{sDL}, {EXB}
    v_sub_u32 v18, 2047, v9
    s_mov_b32 s{sCNT}, {656+0x4280+EXB}
    v_cvt_f32_i32 v18, v18
    v_sub_u32 v19, {2047+0x4280+EXB}, v9
    v_min_i32 v19, {138+0x4280+EXB}, v19""")
    for i in range(0,11,2):
        k(f"v_subrev_f32 v24, {float(i)}, v18" if i in(0,2,4) else f"v_subrev_f32 v24, {hex(f2b(float(i)))}, v18")
        k(f"v_subrev_f32 v25, 1.0, v24\nv_cvt_pk_bf16_f32 v24, v24, v25")
        for h in range(2):
            if i+h>10: break
            k(f"""v_subrev_u32 v26, {i+h}, v19
            v_add_u32_sdwa v25, s{sDL}, v24 dst_sel:DWORD dst_unused:UNUSED_PAD src0_sel:DWORD src1_sel:WORD_{h}
            v_med3_i32 v25, v25, v26, s{sCNT}
            v_lshrrev_b32 v26, 5, v25
            v_add_lshl_u32 v{EX+i+h}, v25, v26, 2""")
    k(f"""v_lshrrev_b32 v9, 2, v7
    v_lshl_add_u32 v9, v7, 3, v9
    v_lshl_add_u32 v9, v8, 2, v9
    v_mul_u32_u24 v27, 132, v6
    v_add_lshl_u32 v9, v9, v27, 2
    v_add_u32 v{PA0}, s{sPB}, v9
    v_sub_u32 v9, 2, v6
    v_lshlrev_b32 v9, v9, v7
    v_lshl_add_u32 v27, v6, 1, 3
    v_lshrrev_b32 v27, v27, v7
    v_mul_u32_u24 v28, 66, v2
    v_add3_u32 v9, v9, v27, v28
    s_add_u32 s{sDL}, s{sPB}, 1056
    v_lshl_add_u32 v{PA1}, v9, 2, s{sDL}
    v_mul_u32_u24 v27, 124, v6
    v_add3_u32 v{PA2}, v{PA1}, v27, 8
    v_add_lshl_u32 v9, v28, v7, 2
    s_add_u32 s{sDL}, s{sPB}, 2112
    v_add_u32 v{PA3}, s{sDL}, v9
    s_sub_u32 s{sDL}, s{sPB}, {PX-KC}
    v_lshl_add_u32 v{TW}, v1, 4, s{sDL}
    v_lshl_add_u32 v9, v2, 3, v3
    v_lshlrev_b32 v9, 4, v9
    v_lshrrev_b32 v27, 1, v4
    v_mul_u32_u24 v27, 1088, v27
    v_and_b32 v28, 1, v4
    v_lshl_add_u32 v9, v28, 3, v9
    v_add3_u32 v{TR}, v9, v27, s{sDL}
    v_and_b32 v9, 7, v1
    v_mul_u32_u24 v9, {KCS}, v9
    v_lshlrev_b32 v27, 1, v1
    v_and_b32 v27, 16, v27
    v_add_u32 v9, {KC+4096}, v9
    v_add_u32 v{KZ}, v9, v27""")
    sH0_=sDL
    def late_blocks():
        B=[]
        def blk(t):
            L=[]
            for x in t.split("\n"):
                x=x.strip()
                if not x: continue
                if x.startswith('s_cselect') : L[-1]+="\n"+x
                else: L.append(x)
            B.append(L)
        t=f"""s_mul_i32 s{sT2}, s{sFT}, 6
        s_mul_i32 s{sT3}, s{sT1}, 3
        s_add_u32 s{sT2}, s{sT2}, s{sT3}
        s_lshl_b32 s{sT3}, s{sT2}, 7
        s_add_u32 s{sT3}, s{sT3}, {CS}
        v_lshl_add_u32 v9, v1, 2, s{sT3}
        v_lshl_or_b32 v{CSA}, v6, 31, v9
        """
        for j in range(3):
            t+=f"""s_add_u32 s{sT3}, s{sT2}, {j}
            s_cmp_lt_u32 s{sT3}, 86
            s_cselect_b32 s{sH0}, 0, {hex(OOB)}
            s_lshl_b32 s{sT3}, s{sT3}, 10
            s_or_b32 s{sT3}, s{sT3}, s{sH0}
            v_lshl_add_u32 v{HS+j}, v1, 4, s{sT3}
            """
        t+=f"""s_lshl_b32 s{sT2}, s{sMT}, 1
        s_add_u32 s{sT2}, s{sT2}, s{sT0}
        s_lshl_b32 s{sT3}, s{sT2}, 9
        s_add_u32 s{sT3}, s{sT3}, {STATS}
        v_lshl_add_u32 v{ST}, v5, 3, s{sT3}
        s_mul_i32 s{sH0}, s{sT2}, {2*88064}
        s_add_u32 s{sH0}, s{sH0}, {HB}
        s_add_u32 s{sH1}, s{sH0}, 88064
        v_lshlrev_b32 v{LNP}, 6, v4
        """
        for r in (EA+1,EA+3,EA+5,EB+1,EB+3): t+=f"v_accvgpr_write_b32 a{r}, 0\n"
        blk(t)
        blk(f"""v_lshrrev_b32 v9, 1, v0
        v_and_b32 v192, 1, v0
        s_lshl_b32 s{sT2}, s{sP}, 5
        v_lshl_add_u32 v198, v192, 4, s{sT2}
        v_lshl_add_u32 v{UL}, v9, 13, v198
        v_mul_u32_u24 v192, {US}, v192
        v_lshl_add_u32 v192, v9, 4, v192
        v_add_u32 v{UW}, {UO+480}, v192
        v_min_u32 v9, 29, v5
        v_mul_u32_u24 v192, {US}, v6
        v_lshl_add_u32 v192, v9, 4, v192
        v_add_u32 v{UZ}, {UO}, v192
        s_mov_b32 s{sUQ}, 0x100000""")
        blk(f"""v_lshlrev_b32 v9, 2, v8
        v_xor_b32 v9, v9, v1
        v_and_b32 v9, 7, v9
        v_lshlrev_b32 v9, 4, v9
        v_lshrrev_b32 v192, 3, v1
        v_lshl_add_u32 v9, v192, 10, v9
        s_lshl_b32 s{sT2}, s{sDB}, 7
        v_add_u32 v{WDV}, s{sT2}, v9
        v_add_u32 v{WDV+1}, 7168, v{WDV}
        v_lshl_add_u32 v9, v6, 2, v3
        v_lshlrev_b32 v9, 7, v9
        v_lshrrev_b32 v192, 1, v3
        v_xor_b32 v192, s{sT1}, v192
        v_lshl_add_u32 v9, v192, 6, v9
        v_lshl_add_u32 v9, v8, 5, v9
        v_lshl_add_u32 v9, v4, 3, v9
        s_mul_i32 s{sAW}, s{sWV}, {AWS}
        s_mul_i32 s{sCWB}, s{sWV}, {CWS}
        s_add_u32 s{sCWB}, s{sCWB}, {CW}
        v_add_u32 v{TA}, s{sAW}, v9
        v_xor_b32 v{TA+1}, 64, v{TA}
        v_add_u32 v{TC}, s{sCWB}, v9
        v_xor_b32 v{TC+1}, 64, v{TC}""")
        t=f"""s_mul_i32 s{sT2}, s{sWV}, 22
        s_cmp_eq_u32 s{sWV}, 3
        s_cselect_b32 s{sT2}, 65, s{sT2}
        s_sub_u32 s{sT3}, 22, s{sT1}
        """
        if ROT2:
            t+=f"""s_mul_i32 s{sCNT}, s{sDB}, 3
            s_lshr_b32 s{sDL}, s{sI}, 3
            s_mul_i32 s{sDL}, s{sDL}, 5
            s_add_u32 s{sCNT}, s{sCNT}, s{sDL}
            v_add_u32 v9, s{sCNT}, v1
            """
        else: t+="v_mov_b32 v9, v1\n"
        for _ in range(3): t+=f"v_subrev_u32 v192, s{sT3}, v9\nv_min_u32 v9, v9, v192\n"
        t+=f"v_add_u32 v9, s{sT2}, v9\nv_lshlrev_b32 v192, 14, v9\ns_nop 0\n"
        for j in range(22):
            jj=j
            if QM: jj={21-QM:21,21:21-QM}.get(j,j)
            t+=f"v_readlane_b32 s{4+j}, v192, {jj}\n"
        blk(t)
        blk(f"""s_mul_i32 s{sT2}, s{sT1}, {4*KCS}
        s_lshl_b32 s{sT3}, s{sT0}, 8
        s_sub_u32 s{sT2}, s{sT2}, s{sT3}
        s_add_u32 s{sT2}, s{sT2}, {KC+4056-3776}
        v_mul_u32_u24 v9, {KCS}, v4
        v_lshl_add_u32 v9, v2, 4, v9
        v_lshlrev_b32 v192, 3, v3
        v_sub_u32 v9, v9, v192
        v_add_u32 v{CA}, s{sT2}, v9
        s_mul_i32 s{sT2}, s{sT1}, {US}
        s_sub_u32 s{sT2}, s{sT2}, s{sT3}
        s_add_u32 s{sT2}, s{sT2}, {UO+256}
        v_lshlrev_b32 v9, 4, v2
        v_lshl_add_u32 v9, v7, 5, v9
        v_add_u32 v{CB}, s{sT2}, v9""")
        blk(f"""s_lshl_b32 s{sT2}, s{sTB}, 1
        s_add_u32 s{sT2}, s{sT2}, s{sT0}
        s_mul_i32 s{sT3}, s{sT2}, 88064
        s_add_u32 s{sT3}, s{sT3}, {HB}
        v_lshl_add_u32 v{HL}, v1, 4, s{sT3}
        s_xor_b32 s{sT3}, s{sT2}, 1
        s_mul_i32 s{sT3}, s{sT3}, 88064
        s_add_u32 s{sT3}, s{sT3}, {HB}
        v_lshl_add_u32 v{HL+1}, v1, 4, s{sT3}
        s_lshl_b32 s{sT3}, s{sT2}, 5
        v_add_u32 v9, s{sT3}, v5
        v_lshlrev_b32 v192, 3, v9
        v_add_u32 v{RS}, {STATS+4}, v192
        s_lshl_b32 s{sT3}, s{sDB}, 1
        s_add_u32 s{sT3}, s{sT3}, s{sT1}
        s_lshl_b32 s{sYQ}, s{sT3}, 6
        v_lshlrev_b32 v9, 10, v9
        v_lshl_add_u32 v9, v6, 4, v9
        v_add_u32 v{XO}, s{sYQ}, v9
        s_lshl_b32 s{sYQ}, s{sT3}, 17
        s_lshl_b32 s{sT2}, s{sT2}, 6
        s_add_u32 s{sT2}, s{sT2}, s{sYQ}
        s_add_u32 s{sT2}, s{sT2}, {YB}
        v_lshrrev_b32 v9, 2, v1
        v_lshlrev_b32 v9, 12, v9
        v_lshl_add_u32 v9, v4, 4, v9
        v_add_u32 v{YL}, s{sT2}, v9
        s_mov_b32 s{sYQ}, 0x10000
        s_lshl_b32 s{sT2}, s{sWV}, 11
        s_add_u32 s{sT2}, s{sT2}, {KC}
        v_lshl_add_u32 v{YW}, v1, 4, s{sT2}
        v_lshl_add_u32 v9, v6, 2, v3
        v_lshlrev_b32 v9, 6, v9
        v_lshl_add_u32 v9, v8, 5, v9
        v_lshl_add_u32 v9, v4, 3, v9
        v_add_u32 v{YR}, s{sT2}, v9
        s_lshl_b32 s{sT3}, s{sT3}, 11
        s_add_u32 s{sT3}, s{sT3}, {FY}
        v_lshl_add_u32 v{FYP}, v7, 7, s{sT3}
        s_lshr_b32 s{sT2}, s{sTB}, 1
        s_lshl_b32 s{sT2}, s{sT2}, 11
        s_add_u32 s{sT2}, s{sT2}, {FH}
        {"v_min_u32 v9, 14, v7" if not HFW else f"s_mul_i32 s{sT3}, s{sWV}, 7"+chr(10)+f"s_lshr_b32 s{sT3}, s{sT3}, 1"+chr(10)+f"s_add_u32 s{sH0_}, s{sT0}, 3"+chr(10)+f"v_min_u32 v9, s{sH0_}, v7"+chr(10)+f"v_add_u32 v9, s{sT3}, v9"}
        v_lshl_add_u32 v{FHP}, v9, 7, s{sT2}
        v_lshlrev_b32 v{EXW}, 4, v1""")
        return B
    for b in late_blocks()[:NE]: run(b)
    def late(): return sum(late_blocks()[NE:],[])
    k.dq=[]
    if probe&1: k.stamp('ad0')
    if not D0K: run(D0R); D0R=[]
    k.stamp('addr')
    def kgen():
        def sp(t): return [x.strip() for x in t.split("\n") if x.strip()]
        q1,q8,q128=172,174,176
        p=PAR; pr=lambda x:f"v[{x}:{x+1}]"
        S=sp(f"""v_mov_b32 v60, s{sLD}
        v_mul_f32 v60, 0x3fb8aa3b, v60
        v_exp_f32 v60, v60
        s_nop 0
        v_cvt_pk_bf16_f32 v60, v60, v60
        v_and_b32 v60, s{sMSK}, v60""")
        S.append(lambda: (k.w(v="par"),k.stamp('par'),run(D0R)))
        S+=sp(f"""v_pk_mul_f32 {pr(p)}, {pr(p)}, v[60:61] op_sel_hi:[1,0]
        v_pk_mul_f32 {pr(p+2)}, {pr(p+2)}, v[60:61] op_sel_hi:[1,0]
        v_mul_f32 v{p}, 0x3fb8aa3b, v{p}
        v_mul_f32 v{p+1}, 0.15915494, v{p+1}
        v_mul_f32 v180, 0x41000000, v{p}
        v_mul_f32 v181, 0x41000000, v{p+1}
        v_mul_f32 v182, 0x43000000, v{p}
        v_mul_f32 v183, 0x43000000, v{p+1}
        v_exp_f32 v180, v180
        v_exp_f32 v178, v{p}
        v_exp_f32 v182, v182
        v_fract_f32 v181, v181
        v_fract_f32 v179, v{p+1}
        v_fract_f32 v183, v183""")
        def cmul(L,T,d,x,y):
            L+=[f"v_pk_mul_f32 {pr(T)}, {pr(x)}, {pr(y)} op_sel:[0,0] op_sel_hi:[0,1]",
                f"v_pk_fma_f32 {pr(d)}, {pr(x)}, {pr(y)}, {pr(T)} op_sel:[1,1,0] op_sel_hi:[1,0,1] neg_lo:[1,0,0]"]
        cmul(S,64,60,p+4,p+2)
        for j in (1,0,2): S+=sp(f"v_cos_f32 v{172+2*j}, v{179+2*j}\nv_sin_f32 v{173+2*j}, v{179+2*j}")
        for j in (1,0,2): S.append(f"v_pk_mul_f32 {pr(172+2*j)}, {pr(172+2*j)}, {pr(178+2*j)} op_sel_hi:[1,0]")
        def pack(L,t,e,x,y):
            n='-' if t==0 else ''
            re,im=(TB+16*t+(e>>1),TB+16*t+8+(e>>1)) if t<3 else ((TB+48+(e>>1),TB+52+(e>>1)) if e<8 else (TB+56,TB+58))
            o=lambda z,j: (z[j] if isinstance(z,tuple) else f"{n if j else ''}v{z+j}")
            L+=[f"v_cvt_pk_bf16_f32 v{re}, {o(x,0)}, {o(y,0)}",f"v_cvt_pk_bf16_f32 v{im}, {o(x,1)}, {o(y,1)}"]
        A=[];X0,X1,T=60,62,64
        for b in range(0,16,2):
            if b: cmul(A,T,X0,X1,q8)
            cmul(A,T,X1,X0,q8); pack(A,0,b,X0,X1)
        A.append(('T',0))
        B=[];X0,X1,T=66,68,70
        qp={1:q1}
        pack(B,1,0,("1.0","0"),q1)
        for x in range(2,8):
            qp[x]=178+2*(x-2); cmul(B,T,qp[x],qp[x-1],q1)
            if x&1: pack(B,1,x-1,qp[x-1],qp[x])
        cmul(B,T,X1,q128,q1); pack(B,1,8,q128,X1)
        for x in (2,4,6): cmul(B,T,X0,q128,qp[x]); cmul(B,T,X1,q128,qp[x+1]); pack(B,1,8+x,X0,X1)
        B.append(('T',1))
        C=[];C0,X0,X1,T=72,74,76,78
        D=[];D0,D1,TD=80,82,84
        cmul(C,T,C0,q128,q128)
        cmul(D,TD,D0,q128,q128); cmul(D,TD,D0,D0,D0); cmul(D,TD,D1,D0,D0)
        for x in (2,3):
            if x==3: cmul(C,T,C0,C0,q128)
            cmul(C,T,X1,C0,qp[2]); pack(C,2,4*(x-2),C0,X1)
            cmul(C,T,X0,C0,qp[4]); cmul(C,T,X1,C0,qp[6]); pack(C,2,4*(x-2)+2,X0,X1)
        for x in range(4,8):
            cmul(C,T,C0,C0,q128); cmul(C,T,X1,C0,qp[4]); pack(C,2,8+2*(x-4),C0,X1)
        C.append(('T',2))
        for x in range(0,8,2):
            if x: cmul(D,TD,D1,D0,q128)
            cmul(D,TD,D0,D1,q128); pack(D,3,x,D1,D0)
        cmul(D,TD,D1,D0,q128); pack(D,3,8,D1,("0","0"))
        D.append(('T',3))
        def rr(a,b):
            o=[];a=list(a);b=list(b);na,nb=len(a),len(b)
            while a or b:
                if a and (not b or len(a)*nb>=len(b)*na): o.append(a.pop(0))
                else: o.append(b.pop(0))
            return o
        S+=rr(A,B)+rr(C,D)
        S+=sp(f"v_mov_b32 v{PACC}, 0\nv_mov_b32 v{PACC+1}, 0\nv_mov_b32 v{PACC+2}, 0\nv_mov_b32 v{PACC+3}, 0\nv_writelane_b32 v{PACC}, s{sDK}, 0")
        return S
    def tabio(t):
        L=[]
        R=[TB+16*t+4*j for j in range(4)] if t<3 else [TB+48,TB+56,TB+52,TB+58]
        for j in range(4):
            if t==3 and j&1 and T3B: L.append(('r',lambda r=R[j],j=j: k.ds(f"ds_write_b32 v{TW}, v{r} offset:{1088*j}","tw")))
            else: L.append(('w',lambda r=R[j],j=j: k.ds(f"ds_write_b128 v{TW}, {vr(r,4)} offset:{1088*j}","tw")))
        for st in range(4):
            for h in range(2): L.append(('r',lambda t=t,st=st,h=h: k.ds(f"ds_read_b64_tr_b16 {ar(KF+16*t+4*st+2*h,2)}, v{TR} offset:{(st&1)*2176+(st>>1)*512+64*h}",f"kf{t}")))
        return L
    def pmf(T):
        return [f"v_mfma_f32_16x16x32_bf16 {vr(PACC+4*T,4)}, {ar(KF+16*(T+1)+4*st,4)}, {ar(KF+4*st,4)}, {vr(PACC+4*T,4) if (st or T==0) else '0'}" for st in range(4)]
    def pwr(T):
        if T==0: k.ds(f"ds_write2_b32 v{PA0}, v{PACC}, v{PACC+1} offset0:0 offset1:1"); k.ds(f"ds_write2_b32 v{PA0}, v{PACC+2}, v{PACC+3} offset0:2 offset1:3")
        if T==1: k.ds(f"ds_write2_b32 v{PA1}, v{PACC+4}, v{PACC+5} offset0:0 offset1:1"); k.ds(f"ds_write2_b32 v{PA2}, v{PACC+6}, v{PACC+7} offset0:0 offset1:1")
        if T==2: k.ds(f"ds_write2_b32 v{PA3}, v{PACC+8}, v{PACC+9} offset0:0 offset1:16"); k.ds(f"ds_write2_b32 v{PA3}, v{PACC+10}, v{PACC+11} offset0:33 offset1:49")
    LN=[lambda: (k.w(v="row"),k.stamp('kg'))]
    def ln(t): LN.extend(x.strip() for x in t.split("\n") if x.strip())
    for j in range(8): ln(f"v_lshlrev_b32 v{20+2*j}, 16, v{ROW+j}\nv_and_b32 v{21+2*j}, s{sMSK}, v{ROW+j}")
    def red2(m):
        LN.append(('M',m))
        ln("""s_nop 1
        v_permlane32_swap_b32 v40, v41
        v_add_f32 v40, v40, v41
        v_mov_b32 v41, v40
        s_nop 1
        v_permlane16_swap_b32 v40, v41
        v_add_f32 v40, v40, v41""")
        for r in(8,4,2,1): ln(f"s_nop 1\nv_add_f32_dpp v40, v40, v40 row_ror:{r} row_mask:0xf bank_mask:0xf")
        ln("v_mul_f32 v40, 0x3b000000, v40")
    for b,d in((20,40),(28,41)):
        ln(f"""v_pk_add_f32 v[36:37], v[{b}:{b+1}], v[{b+2}:{b+3}]
        v_pk_add_f32 v[38:39], v[{b+4}:{b+5}], v[{b+6}:{b+7}]
        v_pk_add_f32 v[36:37], v[36:37], v[38:39]
        v_add_f32 v{d}, v36, v37""")
    red2(0)
    ln(f"""v_mov_b32 v42, v40
    v_mov_b32 v43, v40
    v_cvt_pk_bf16_f32 v{LST}, -v40, -v40
    s_nop 0
    v_permlane32_swap_b32 v42, v43""")
    for h,(b,d) in enumerate(((20,40),(28,41))):
        for j in range(4):
            ln(f"v_pk_add_f32 v[38:39], v[{b+2*j}:{b+2*j+1}], v[42:43] op_sel:[0,{h}] op_sel_hi:[1,{h}] neg_lo:[0,1] neg_hi:[0,1]")
            ln("v_pk_mul_f32 v[36:37], v[38:39], v[38:39]" if j==0 else "v_pk_fma_f32 v[36:37], v[38:39], v[38:39], v[36:37]")
        ln(f"v_add_f32 v{d}, v36, v37")
    red2(1)
    LN.append(('M',2))
    ln(f"""v_cvt_pk_bf16_f32 v40, v40, v40
    v_and_b32 v40, s{sMSK}, v40
    v_add_f32 v40, 0x3727c5ac, v40
    v_cvt_pk_bf16_f32 v40, v40, v40
    v_and_b32 v40, s{sMSK}, v40
    v_sqrt_f32 v40, v40
    v_and_b32 v41, s{sMSK}, v{LST}
    v_cvt_pk_bf16_f32 v40, v40, v40
    v_and_b32 v40, s{sMSK}, v40
    v_rcp_f32 v46, v40
    s_nop 0
    v_mul_f32 v47, v41, v46
    v_mul_f32 v{LST+1}, v46, v46
    v_mov_b32 v48, v46
    v_mov_b32 v49, v47
    s_nop 1
    v_permlane32_swap_b32 v46, v48
    v_permlane32_swap_b32 v47, v49""")
    LN.append(('M',3))
    for h,b in enumerate((20,28)):
        P=f"v[{46+2*h}:{47+2*h}]"
        for j in range(4):
            ln(f"v_pk_fma_f32 v[{b+2*j}:{b+2*j+1}], v[{b+2*j}:{b+2*j+1}], {P}, {P} op_sel:[0,0,1] op_sel_hi:[1,0,1]")
            ln(f"v_cvt_pk_bf16_f32 v{ROW+4*h+j}, v{b+2*j}, v{b+2*j+1}")
        LN.append(lambda h=h: k.ds(f"ds_write_b128 v{aWR}, {vr(ROW+4*h,4)} offset:{320*h}"))
    LN.append(('M',4))
    D1=dma_list(SS,"d1")+nextk
    if XP&16:
        for i in range(10,-1,-1): k.w(v=i); k.stamp(f'w{i}')
    if XP&32:
        i=0
        for f in D1:
            run([f])
            if callable(f): k.stamp(f'i{i}'); i+=1
        for i in range(10,-1,-1): k.w(v=i); k.stamp(f'w{i}')
        D1=[]
    IO=[]; IOL=[]; lastw=-99; n=0; nt=0
    def icount(): return sum(1 for l in k.L if not l.endswith(':') and not l.strip().startswith(';'))
    def cost(l):
        l=l.strip()
        if l.endswith(':') or l.startswith(';') or not l: return 0
        if l.startswith('ds_write_b128'): return 50
        if l.startswith('ds_'): return 12
        if l.split()[0][:5] in('v_exp','v_sin','v_cos','v_rcp','v_sqr','v_log'): return 8
        if l.startswith('s_nop'): return 4 if int(l.split()[1])<4 else 8
        return 4
    clk=None; nx=D1C; l0=len(k.L)
    DL=[int(x) for x in D1L.split('_')] if D1L else []
    if DL: nx=DL.pop(0)
    for f in kgen()+LN:
        if isinstance(f,tuple):
            if f[0]=='T':
                (IO if nt<IOP else IOL).extend(tabio(f[1])); nt+=1
            continue
        run([f]); n+=1
        if clk is None and callable(f): clk=0; l0=len(k.L)
        if IO:
            if IO[0][0]=='r': run([IO.pop(0)[1]])
            elif n-lastw>=TWK: run([IO.pop(0)[1]]); lastw=n
        if D1P:
            if clk is not None:
                clk+=sum(cost(l) for l in k.L[l0:]); l0=len(k.L)
                if clk>=nx and D1:
                    while D1 and not callable(D1[0]): run([D1.pop(0)])
                    if D1: run([D1.pop(0)])
                    nx=(DL.pop(0) if DL else nx) if D1L else nx+D1P
        elif n>=D1S and (n-D1S)%D1E==D1E-1 and D1:
            g=D1.pop(0); run([g])
            if not callable(g) and D1: run([D1.pop(0)])
    print("prologue cost after par",clk,"d1 left",len(D1))
    run([x[1] for x in IO])
    run(D1)
    def ptail(F=[]):
        fin={}; F=list(F)
        for T in range(3):
            k.w(d=min(k.nd("kf0"),k.nd(f"kf{T+1}")))
            for m in pmf(T):
                k(m); fin[T]=icount()
                if F:
                    f=F.pop(0); run([f])
                    if not callable(f) and F: run([F.pop(0)])
        run(F)
        for T in range(3):
            d=8-(icount()-fin[T])
            if d>0: k(f"s_nop {d-1}")
            pwr(T)
    def ptail_items():
        L=[]; fin={}
        for T in range(3):
            for i,m in enumerate(pmf(T)):
                L.append(lambda T=T,i=i,m=m: (k.w(d=min(k.nd("kf0"),k.nd(f"kf{T+1}"))) if i==0 else 0, k(m), fin.__setitem__(T,icount())))
        def pw(T):
            d=8-(icount()-fin[T])
            if d>0: k(f"s_nop {d-1}")
            pwr(T)
        if PTS==2:
            def blk():
                k.w(d=min(k.nd(f"kf{t}") for t in range(4)))
                for st in range(4):
                    for T in range(3): k(pmf(T)[st]); fin[T]=icount()
            return [blk,"s_nop 0","s_nop 0",lambda:pw(0),"s_nop 0",lambda:pw(1),"s_nop 0",lambda:pw(2)]
        return L[:8]+[lambda:pw(0)]+L[8:]+[lambda:pw(1),"s_nop 0",lambda:pw(2)]
    k.stamp('ln')
    CSL=k.lab("CS"); MRG=k.lab("MRG")
    k(f"s_cmp_ge_u32 s{sI}, 30\ns_cbranch_scc1 {CSL}")
    vq_cs=list(k.vq); dq_cs=list(k.dq); nst_cs=k.nst; IOL_cs=list(IOL)
    def lntr():
        return [lambda q=q,h=h: k.ds(f"ds_read_b64_tr_b16 {ar(LTR+4*q+2*h,2)}, v{aTR} offset:{128*q+1280*h}",f"lt{q}") for q in range(2) for h in range(2)]
    def poison(): return [lambda j=j: k.vm(f"buffer_store_dwordx4 {ar(AP,4)}, v{YS}, {srd(SW)}, 0 offen offset:{1024*j} sc1","lnst") for j in range(2)]
    def lnst(yp=1):
        L=[f"v_writelane_b32 v{LST}, 0, 1"]
        if not YP: L+=[f"v_writelane_b32 v{LST}, 0, 2"]
        L+=[lambda: k.vm(f"buffer_store_dwordx2 {vr(LST,2)}, v{aST}, {srd(SW)}, 0 offen sc1","lnst")]
        if YP and yp: L+=poison()
        for q in range(2): L.append(lambda q=q:(k.w(d=f"lt{q}"),k.vm(f"buffer_store_dwordx4 {ar(LTR+4*q,4)}, v{aXN}, {srd(SW)}, 0 offen offset:{1024*q} sc1","lnst")))
        return L
    def lnatomic():
        L=k.lab(); k(f"s_cmp_lg_u32 s{sWV}, 0\ns_cbranch_scc1 {L}\ns_atomic_add s{sONE}, s[{SB}:{SB+1}], s{sLA}\n{L}:"); k.smem=1
    def exrd(c): return [lambda i=i: k.ds(f"ds_read2st64_b32 {vr(112+24*c+2*i,2)}, v{EX+i} offset0:{PO[2*c]} offset1:{PO[2*c+1]}",f"ex{c}_{i}") for i in range(11)]
    def exva(c):
        L=[]
        for i in range(11):
            t=f"v_add_f32 v{112+24*c+2*i}, v{112+24*c+2*i}, v{113+24*c+2*i}"
            L.append((lambda i=i,t=t:(k.w(d=f"ex{c}_{min(i+3,10)}"),k(t))) if i in(0,4,8) else t)
        for s in range(4):
            for j in range(4):
                i=112+24*c+2*(3-s+2*j)
                L.append(f"v_cvt_pk_bf16_f32 v{KX+16*c+4*s+j}, v{i}, v{i+2}")
        return L
    def kcw():
        return [lambda r=r: k.ds(f"ds_write_b128 v{KCW}, {vr(KX+4*r,4)} offset:{r*KCS}","kcw") for r in range(8)]+[lambda: k.ds(f"ds_write_b128 v{KZ}, {ar(AZ,4)}","kcw")]
    ACC=16; FS=(176,196,216,236)
    base=[0]
    def rd(slot,st,f,what,tag="fr"):
        o=slot*SS-base[0]; assert 0<=o<=SS
        if what[0]=='b':
            e=what[1]; return [lambda: k.ds(f"ds_read_b128 {ar(FS[f]+12+4*e,4)}, v{XR+st} offset:{o+4096*e}",tag)]
        u=what[1]; return [lambda h=h: k.ds(f"ds_read_b64_tr_b16 {ar(FS[f]+4*u+2*h,2)}, v{WR} offset:{o+3072*st+768*h+32*u}",tag) for h in range(2)]
    def dummy():
        if getattr(k,'smem',0): k.ds(f"ds_read_u8 v{JNK}, v1","dum")
    def reads(slot,st,f):
        return rd(slot,st,f,('b',0))+rd(slot,st,f,('a',0))+rd(slot,st,f,('b',1))+rd(slot,st,f,('a',1))+rd(slot,st,f,('a',2))+[dummy]
    def mf1(f,b,zero=False):
        u,e=b>>1,b&1
        return f"v_mfma_f32_32x32x16_bf16 {vr(ACC+16*b,16)}, {ar(FS[f]+4*u,4)}, {ar(FS[f]+12+4*e,4)}, {'0' if zero else vr(ACC+16*b,16)}"
    def mf(f,zero=False): return [mf1(f,b,zero) for b in range(6)]
    def mix(a,b):
        o=[];a=list(a);b=list(b)
        while a or b:
            if a:o.append(a.pop(0))
            if a:o.append(a.pop(0))
            if b:o.append(b.pop(0))
        return o
    def adv(delta): return [f"v_add_u32 v{r}, {delta}, v{r}" for r in(XR,WR,XR+1,XR+2,XR+3)]
    side=[]; acc=[0]
    def wv(mfs,fl,per):
        fl=list(fl)
        for i,m in enumerate(mfs):
            run([m])
            n=per[i] if isinstance(per,(list,tuple)) else per
            for _ in range(n):
                if fl: run([fl.pop(0)])
            acc[0]+=NS
            while acc[0]>=10:
                acc[0]-=10
                if side: run([side.pop(0)])
        run(fl)
    def poll(tag,reg,addr,sr,exp):
        ok=k.lab("OK"); rt=k.lab("RT")
        k.w(v=tag)
        cmp="gt" if exp==64 else "ne"
        k(f"v_cmp_{cmp}_u32 vcc, {exp}, v{reg}\ns_cbranch_vccnz {rt}\n{ok}:")
        lp=k.lab("RL"); sl_=SLP if exp==64 else SLH
        k.tail.append(f"""{rt}:
        s_movk_i32 s{sRING}, 4000
        {lp}:
        {'s_sleep %d'%sl_ if sl_ else ''}
        buffer_load_dword v{reg}, v{addr}, {srd(sr)}, 0 offen sc1
        s_waitcnt vmcnt(0)
        v_cmp_{cmp}_u32 vcc, {exp}, v{reg}
        s_cbranch_vccz {ok}
        s_sub_u32 s{sRING}, s{sRING}, 1
        s_cmp_lg_u32 s{sRING}, 0
        s_cbranch_scc1 {lp}
        s_branch {ok}""")
    LNX=64; FLX=4
    def sat(so): k(f"s_atomic_add s{sONE}, s[{SW}:{SW+1}], s{so}"); k.smem=1
    lnpoll=lambda: k.vm(f"buffer_load_dword v{PL}, v{LNP}, {srd(SB)}, 0 offen sc1","lnp")
    def uloads():
        return [lambda q=q: k.vm(f"buffer_load_dwordx4 {ar(UR+4*q,4)}, v{UL}, {srd(SW)}, {'s%d'%sUQ if q else 0} offen{'' if NSC&1 else ' sc1'}","u") for q in range(2)]
    def wd_loc(j):
        if j<4: return ('C',2048*j)
        if j<9: return ('A',2048*(j-4))
        if j<14: return ('A',BW+2048*(j-9))
        if j<18: return ('C',2048*(j-14))
        return ('A',2048*(j-18))
    def wd_dma(j):
        r,o=wd_loc(j); b=sCWB if r=='C' else sAW
        return [f"s_add_u32 m0, s{b}, {o}" if o else f"s_mov_b32 m0, s{b}"]+[lambda h=h: k.vm(f"buffer_load_dwordx4 v{WDV+h}, {srd(SD)}, s{4+j} offen offset:{1024*h} lds",f"wd{j}") for h in range(2)]
    def wd_tr(j):
        r,o=wd_loc(j); b=TC if r=='C' else TA
        return [lambda e=e,h=h: k.ds(f"ds_read_b64_tr_b16 {ar(8*j+4*e+2*h,2)}, v{b+e} offset:{o+1024*h}",f"wt{j}") for e in range(2) for h in range(2)]
    def uwrite():
        L=[lambda: k.ds(f"ds_write_b128 v{UZ}, {ar(AZ,4)}","uw")]
        L+=[lambda q=q: (k.w(v="u"),k.ds(f"ds_write_b128 v{UW}, {ar(UR+4*q,4)} offset:{2048*q}","uw")) for q in range(2)]
        return L
    sl=[lambda e=e: k.vm(f"buffer_load_dword a{EB+2*e}, v{ST}, {srd(SW)}, 0 offen offset:{256*e} sc1","st") for e in range(2)]
    cl=[lambda j=j: k.vm(f"buffer_load_dword a{EA+2*j}, v{CSA}, {srd(SW)}, 0 offen offset:{128*j} sc1","cs") for j in range(3)]
    def cscheck():
        k.w(v="cs")
        ok=k.lab("OK"); rt=k.lab("RT"); lp=k.lab("RL")
        chk=f"v_accvgpr_read_b32 v9, a{EA}\nv_accvgpr_read_b32 v10, a{EA+2}\nv_accvgpr_read_b32 v11, a{EA+4}\nv_max3_u32 v9, v9, v10, v11\nv_cmp_eq_u32 vcc, -1, v9"
        k(f"{chk}\ns_cbranch_vccnz {rt}\n{ok}:")
        k.tail.append(f"""{rt}:
        s_movk_i32 s{sRING}, 4000
        {lp}:
        buffer_load_dword a{EA}, v{CSA}, {srd(SW)}, 0 offen sc1
        buffer_load_dword a{EA+2}, v{CSA}, {srd(SW)}, 0 offen offset:128 sc1
        buffer_load_dword a{EA+4}, v{CSA}, {srd(SW)}, 0 offen offset:256 sc1
        s_waitcnt vmcnt(0)
        {chk}
        s_cbranch_vccz {ok}
        s_sub_u32 s{sRING}, s{sRING}, 1
        s_cmp_lg_u32 s{sRING}, 0
        s_cbranch_scc1 {lp}
        s_branch {ok}""")
    if probe&1: k.w(v="d0"); k.stamp('d0')
    k.w(v="d0",d=0); k("s_barrier")
    if XP&64:
        for i in range(9,-1,-1): k.w(v=i); k.stamp(f'w{i}')
    run(reads(0,0,0)); run(lntr())
    k.stamp('s0')
    KW=[]
    WT=[int(c) for c in str(WDT) if c.isdigit()] if WDT!=-1 else []
    NT=-(-92//max(len(WT),1))
    def touch(s):
        L=[]
        if s==WT[0]: L.append(f"""s_lshl_b32 s{sC1}, s{sI}, 2
            s_add_u32 s{sC1}, s{sC1}, s{sWV}
            s_mul_i32 s{sC1}, s{sC1}, {NT*len(WT)*128}
            v_min_u32 v10, {NT-1}, v1
            v_lshl_add_u32 v10, v10, 7, s{sC1}""")
        else: L.append(f"v_add_u32 v10, {NT*128}, v10")
        L.append(lambda: k.vm(f"buffer_load_dword v11, v10, {srd(SD)}, 0 offen","tch"))
        return L
    cur=[0]
    for s in range(7):
        slot=s%3; cur[0]=s
        D=dma_list(((s+2)%3)*SS,f"d{s+2}") if s<6 else []
        X=[[],[],[]]; per=[3,3,3]
        if s<6: X=[D[0:5],D[5:9],D[9:13]+(nextk if s<5 else [])]
        if s==1 and DE:
            print("d2 left for stage 1:",sum(callable(x) for x in DE)); Z=DE+X[0]+X[1]+X[2]; n3_=len(Z)//3
            X=[Z[:n3_],Z[n3_:2*n3_],Z[2*n3_:]]
        if s==1:
            LB=late_blocks(); LB[:NE]=[[]]*NE
            EXP=exrd(0)+exrd(1)[:3]+mix(exva(0),exrd(1)[3:])+exva(1)
            if PTS:
                P=[x for x in ptail_items()]; Q=LB[0]+LB[1]+LB[2]+LB[3]
                side+=Q[:PTG]; Q=Q[PTG:]
                while P:
                    x=P.pop(0)
                    if x!="s_nop 0" or PTS==1: side.append(x)
                    if Q: side.append(Q.pop(0))
                np_=len(side); side+=Q; n1=n3=len(side); bpos=len(side)
                side+=[lambda: (_ for _ in ()).throw(AssertionError("expansion too early")) if cur[0]<2 else 0]+EXP; n2=len(side)
            else:
                side+=LB[0]+LB[1]; n1=len(side)
                side+=EXP; n2=len(side)
                side+=LB[2]+LB[3]; n3=len(side)
            side+=LB[4]+LB[5]; nside=len(side)
        def flush(n):
            c=0
            while len(side)>nside-n: run([side.pop(0)]); c+=1
            if c: print("flushed",c,"at stage",s)
        if s==LPS: flush(n1)
        if s==3 and KCB==0: flush(n2)
        if s==6: flush(n3)
        if s>=3 and KW:
            for j in range(3):
                if KW: X[j]=X[j]+[KW.pop(0)]
        if s==LPS: X[0]=[lnpoll]+X[0]
        if s==LPS+1 and D5L and s<6: X=[[],X[0],X[1]+X[2]]
        if s==CLS and CLS!=LPS: X[0]=cl+X[0]
        if s in WT: X[2]=X[2]+touch(s)
        if s and s==LSP: X[2]=X[2]+lnst(YPS==-1)
        if s and s==YPS: X[2]=X[2]+poison()
        if s==6:
            W=sum((wd_dma(j) for j in range(NPRE)),[])
            X=[X[0]+W[:3],W[3:9],W[9:]]
        if s==0:
            F=[reads(0,1,1),reads(0,2,0),reads(0,3,1)]; g=0; LS=lnst(YPS==-1) if LSP==0 else []; lw=-9
            DE=[]
            if D2P:
                DE=D+nextk; D=[]
                if not LSG: D=LS; LS=[]
            d2t=[D2G]
            if D2L: D2Q=[int(x) for x in D2L.split('_')]; d2t=[D2Q.pop(0)]
            def d2w(g):
                while DE and g>=d2t[0]:
                    while DE and not callable(DE[0]): run([DE.pop(0)])
                    if DE: run([DE.pop(0)])
                    while DE and not any(callable(x) for x in DE): run([DE.pop(0)])
                    if D2L: d2t[0]=D2Q.pop(0) if D2Q else d2t[0]
                    else: d2t[0]+=D2P/10
            for st in range(3):
                k.w(d="fr")
                for i,m in enumerate(mf(st&1,st==0)):
                    k(m); n=0
                    while F[st] and n<2: run([F[st].pop(0)]); n+=1
                    if IOL and IOL[0][0]=='w':
                        if g-lw>=W0E: run([IOL.pop(0)[1]]); lw=g
                    else:
                        while IOL and IOL[0][0]=='r' and n<4: run([IOL.pop(0)[1]]); n+=1
                    if LSG:
                        if g>=LSG-1 and LS: run([LS.pop(0)])
                    elif st>=1 and LS and n<3: run([LS.pop(0)])
                    d2w(g)
                    g+=1
                run(F[st])
            run([x[1] for x in IOL]); run(LS)
            if probe&1: k.stamp('io')
            if PTS==0:
                if LSG:
                    F=[]
                    for i in range(12): F.append(lambda i=i: d2w(18+i*PTW/120))
                    ptail(F); g0_=18+PTW/10
                else: ptail(DE+D if D2P else D+nextk); DE=[]
                D=[]
            elif not LSG: run(DE); DE=[]
            else: g0_=18
            if KCB==0: KW=kcw()
            if probe&1: k.stamp('d2')
        else:
            k.w(d="fr"); wv(mf(0),mix(reads(slot,1,1),X[0]),per[0])
            k.w(d="fr"); wv(mf(1),mix(reads(slot,2,0),X[1]),per[1])
            k.w(d="fr"); wv(mf(0),mix(reads(slot,3,1),X[2]),per[2])
        ns=(s+1)%3; A=[]
        if ns==2: A=adv(SS); base[0]=SS
        if ns==0: A=adv(-SS); base[0]=0
        wt=f"d{s+1}"
        ex=[]
        if s==LPS: ex=[lambda: poll("lnp",PL,LNP,SB,LNX)]+sl+(cl if CLS==LPS else [])+uloads()
        bar=[lambda wt=wt:(k.w(v=wt),k("s_barrier"))]
        if s==LAS:
            bar.append(lnatomic); bar[0]=lambda wt=wt:(k.w(v=min(k.nv(wt),k.nv('lnst'))),k('s_barrier'))
            assert LAS>=max(LSP,YPS)
        if s==1 and PTS: flush(np_)
        if s==min(PTS,1): k.w(d=0)
        else: k.w(d="fr")
        if s==0 and PTS: ex=D
        if s==6: flush(nside)
        if s==LAS+3: k.smem=0
        M3=mf(1)
        if s==0 and DE: M3=[(lambda i=i,m=m: (k(m),d2w(g0_+i))) for i,m in enumerate(M3)]
        wv(M3,bar+A[:2]+reads(ns,0,0)+A[2:]+ex,[len(bar),5,5,3,2,5])
        k.stamp(f's{s+1}')
    R=[]
    for wh in (('b',0),('a',0),('b',1),('a',1),('a',2)):
        for st in (1,2,3): R+=rd(1,st,st,wh,f"f{wh[0]}{wh[1]}")
    mx=[f"v_mfma_f32_32x32x8_bf16 {vr(ACC+16*b,16)}, {ar(EA+2*(b>>1),2)}, {ar(EB+2*(b&1),2)}, {vr(ACC+16*b,16)}" for b in range(6)]
    def hepi(b):
        a=ACC+16*b; u,e=b>>1,b&1
        L=[f"v_mul_f32 v{a+r}, v{a+r}, v{a+8+r}" for r in range(8)]
        L+=[f"v_cvt_pk_bf16_f32 v{a+8+j}, v{a+2*j}, v{a+2*j+1}" for j in range(4)]
        L.append(lambda: k.vm(f"buffer_store_dwordx4 {vr(a+8,4)}, v{HS+u}, {srd(SW)}, s{sH0+e} offen sc1","h"))
        return L
    WA=sum((wd_dma(j) for j in range(NPRE,NPRE+NA7)),[]); nwd=NPRE+NA7
    k.w(d="fr"); wv(mf(0),mix(R[:18],WA[:G7])+[cscheck],[4,4,4,4,4,9])
    LQ=mix(R[18:],WA[G7:])+uwrite(); nR=len(LQ)-3
    need={0:"fa0",1:"fb1",2:"fa1",4:"fa2"}
    HQ=[]; fin={}; g=6
    def gap(nh,nl):
        nonlocal nR
        n=0
        while HQ and n<nh and icount()-fin[HQ[0][0]]>=12: run([HQ.pop(0)[1]]); n+=1
        n=0
        while LQ and n<nl and (nR>0 or g>=TWS): run([LQ.pop(0)]); n+=1; nR-=1
    for m in mx: k(m); gap(0,4 if nR>0 else 1); g+=1
    for b in range(6):
        if b in need: k.w(d=need[b])
        for st in (1,2,3):
            k(mf1(st,b))
            if st==3: fin[b]=icount(); HQ+=[(b,f) for f in hepi(b)]
            gap(NH,4 if nR>0 else (g&1)); g+=1
    k.stamp('g1')
    while HQ or LQ:
        n0=icount(); gap(NH,NL)
        if icount()==n0: k("s_nop 0")
    if KCB==2: k.stamp('hepi'); run(kcw())
    k(f"{MRG}:"); nst_mrg=k.nst
    k.w(d=0); k("s_barrier")
    k.stamp('exp')
    CS0A,CS0B=('a',176),('a',208); CS1A,CS1B=('v',16),('v',48); CACC=112
    def rg(t,o,n): return (ar if t[0]=='a' else vr)(t[1]+o,n)
    def conv_reads(rho):
        RA,RB=((CS0A,CS0B),(CS1A,CS1B))[rho&1]
        L=[]
        for i in range(8):
            L.append(lambda i=i: k.ds(f"ds_read_b128 {rg(RB,4*i,4)}, v{CB} offset:{192-64*rho+512*i}",f"cv{rho}"))
            for h in range(2): L.append(lambda i=i,h=h: k.ds(f"ds_read_b64 {rg(RA,4*i+2*h,2)}, v{CA} offset:{3776-512*i-64*rho+8*h}",f"cv{rho}" if (rho or h==0) else f"cv0_{i}"))
        return L
    def conv_mf(rho):
        RA,RB=((CS0A,CS0B),(CS1A,CS1B))[rho&1]
        L=[]
        for s in range(8):
            for i in range(s+1):
                I=s
                c="0" if (rho==0 and i==0) else vr(CACC+4*I,4)
                L.append(f"v_mfma_f32_16x16x32_bf16 {vr(CACC+4*I,4)}, {rg(RA,4*i,4)}, {rg(RB,4*(I-i),4)}, {c}")
        return L
    st_=lambda n: [lambda: k.stamp(n)] if probe&2 else []
    def trs(js):
        L=[]
        for j in js:
            T=wd_tr(j); L+=[lambda j=j,f=T[0]: (k.w(v=f"wd{j}"),f())]+T[1:]
        return L
    def dm(j):
        D=wd_dma(j)
        if j>=14: return [lambda: (k(D[0]),k.w(d=f"wt{j-14}"))]+D[1:]
        return D
    def dms(a,b): return sum((dm(j) for j in range(max(a,nwd),b)),[])
    HSL=[('v',144+8*i) for i in range(6)]+[('a',240),('a',248)]+[('a',176+8*i) for i in range(8)]
    HSL=HSL[:DEPTH+1]
    def hload(j):
        r=HSL[j%(DEPTH+1)]
        return [lambda: (k(f"s_lshr_b32 s{sT0}, s{4+j}, 4"),k.vm(f"buffer_load_dwordx4 {rg(r,0,4)}, v{HL}, {srd(SW)}, s{sT0} offen{'' if NSC&2 else ' sc1'}",f"h{j}")),
                lambda: k.vm(f"buffer_load_dwordx4 {rg(r,4,4)}, v{HL+1}, {srd(SW)}, s{sT0} offen{'' if NSC&2 else ' sc1'}",f"h{j}")]
    hflag=st_('hw')+[lambda: (k.w(v="h"),sat(sFH))]+st_('hack')
    hpl=[lambda: k.vm(f"buffer_load_dword v100, v{FHP}, {srd(SW)}, 0 offen sc1","hp")]
    xl=[lambda: k.vm(f"buffer_load_dwordx4 v[104:107], v{XO}, {srd(SX)}, 0 offen","x"),
        lambda: k.vm(f"buffer_load_dwordx4 v[108:111], v{XO}, {srd(SX)}, 0 offen offset:32","x"),
        lambda: k.vm(f"buffer_load_dword v103, v{RS}, {srd(SW)}, 0 offen sc1","x")]
    hchk=st_('prep')+[lambda: poll("hp",100,FHP,SW,FLX)]+st_('hpok')+sum((hload(j) for j in range(DEPTH)),[])
    CR=conv_reads(0); run(CR[:15])
    M=[]
    for rho in range(4):
        m=conv_mf(rho)
        if rho==0:
            i0=0
            for s in range(8): m[i0]=(lambda s=s,t=m[i0]: (k.w(d=f"cv0_{s}"),k(t))); i0+=s+1
        else: m[0]=(lambda rho=rho,t=m[0]: (run(st_(f'r{rho-1}')),k.w(d=f"cv{rho}"),k(t),k("s_barrier" if rho==3 else "")))
        M+=m
    SC=eval(SCH.replace('_',',')) if isinstance(SCH,str) else None
    g0,g1,g2,g3,g4,g5,g6=SC or (0,20,44,60,64,80,20)
    n0=nwd+3
    if not VP: PL_=[(0,CR[15:]+conv_reads(1)),(36,conv_reads(2)),(72,conv_reads(3)),
         (g0,dms(0,n0)),(g1,trs(range(0,NPRE))),(HFG,hflag),(g2,dms(n0,14)+xl),(g3,dms(14,18)),(g4,trs(range(NPRE,TRG))+dms(18,22)),(HPG-g6,hpl),(HPG,hchk)]
    else:
        PL_=[(0,CR[15:]+conv_reads(1)),(36,conv_reads(2)),(72,conv_reads(3)),(g0,dms(0,n0)),(g1,trs(range(0,nwd))),(HFG,hflag)]
        tg={j:g1+2*j for j in range(nwd)}
        for j in range(nwd,n0): tg[j]=HFG+T1+2*(j-nwd); PL_.append((tg[j],trs([j])))
        t=HFG+1.0
        for j in range(n0,NWC):
            if j>=14: t=max(t,tg[j-14]+3)
            D=dm(j); PL_.append((int(t),D[:2])); st=1 if j<n0+NB else VP/10
            PL_.append((int(t+st),D[2:]))
            if j<TRG: tg[j]=int(t+st)+TL; PL_.append((tg[j],trs([j])))
            t+=2*st
        print("wd sched end",t,tg)
        PL_+=[(HPG-g6,hpl),(HPG,hchk[:-2*DEPTH])]
        t=HPG+1.0
        for f in hchk[-2*DEPTH:]+xl: PL_.append((int(t),[f])); t+=HP/10
    PL_=[(a+(0.5 if a%36==0 and i>2 else 0),b) for i,(a,b) in enumerate(PL_)]
    PL_=sorted([(a,list(b)) for a,b in PL_],key=lambda x:x[0])
    for g,m in enumerate(M):
        run([m]); n=3 if g<4 else 2
        if g%36==35: n=99
        for a,L in PL_:
            while a<=g and L and n>0 and not (g%36==35 and a%36): run([L.pop(0)]); n-=1
    LEFT=sum((L for a,L in PL_),[])
    if not XW: run(LEFT); LEFT=[]
    k.stamp('conv'); k.smem=0
    H1=k.lab("H1"); HE=k.lab("HE")
    k(f"""s_lshl_b32 s{sT1}, s{sWV}, 12
    s_add_u32 s{sT1}, s{sT1}, {KC+8192}
    v_add_u32 v96, s{sT1}, v{EXW}
    s_xor_b32 s{sT2}, s{sWV}, 1
    s_lshl_b32 s{sT2}, s{sT2}, 12
    s_add_u32 s{sT2}, s{sT2}, {KC+8192}
    v_add_u32 v97, s{sT2}, v{EXW}
    s_bitcmp1_b32 s{sWV}, 0
    s_cbranch_scc1 {H1}""")
    for hh in range(2):
        snd=CACC+16*(1-hh); own=CACC+16*hh
        if hh==0: k("s_nop 1")
        for j in range(4): k(f"ds_write_b128 v96, {vr(snd+4*j,4)} offset:{1024*j}")
        k("s_waitcnt lgkmcnt(0)\ns_barrier")
        for j in range(4): k(f"ds_read_b128 {vr(80+4*j,4)}, v97 offset:{1024*j}")
        for j in range(4):
            k(f"s_waitcnt lgkmcnt({3-j})")
            k(f"v_pk_add_f32 {vr(80+4*j,2)}, {vr(80+4*j,2)}, {vr(own+4*j,2)}\nv_pk_add_f32 {vr(82+4*j,2)}, {vr(82+4*j,2)}, {vr(own+4*j+2,2)}")
        if hh==0: k(f"s_branch {HE}\n{H1}:")
    k(f"{HE}:"); k.dq=[]
    for j in range(4): k(f"v_cvt_pk_bf16_f32 v{112+2*j}, v{80+4*j}, v{81+4*j}\nv_cvt_pk_bf16_f32 v{113+2*j}, v{82+4*j}, v{83+4*j}")
    k("s_nop 0")
    for j in range(2):
        k(f"v_permlane16_swap_b32 v{112+4*j}, v{114+4*j}\nv_permlane16_swap_b32 v{113+4*j}, v{115+4*j}")
    for j in range(2): k.vm(f"buffer_store_dwordx4 {vr(112+4*j,4)}, v{YS}, {srd(SW)}, 0 offen offset:{1024*j} sc1","y")
    run(st_('yst'))
    k.stamp('xchg')
    A2=16
    def g2m(j,d,t):
        r=HSL[j%(DEPTH+1)]
        return f"v_mfma_f32_32x32x16_bf16 {vr(A2+16*(2*d+t),16)}, {ar(8*j+4*d,4)}, {rg(r,4*t,4)}, {'0' if j==0 else vr(A2+16*(2*d+t),16)}"
    def g2mf(j): return [g2m(j,d,t) for d,t in((1,1),(1,0),(0,1),(0,0))]
    yl=[lambda q=q: k.vm(f"buffer_load_dwordx4 {vr(112+4*q,4)}, v{YL}, {srd(SW)}, {'s%d'%sYQ if q else 0} offen sc1","yl") for q in range(2)]
    def ycheck():
        k.w(v="yl")
        if not YP: return
        ok=k.lab("OK"); rt=k.lab("RT"); lp=k.lab("RL")
        chk=f"v_max3_u32 v101, v112, v113, v114\nv_max3_u32 v102, v115, v116, v117\nv_max3_u32 v101, v101, v118, v119\nv_max_u32 v101, v101, v102\nv_cmp_eq_u32 vcc, -1, v101"
        k(f"{chk}\ns_cbranch_vccnz {rt}\n{ok}:")
        k.tail.append(f"""{rt}:
        s_movk_i32 s{sRING}, 4000
        {lp}:
        buffer_load_dwordx4 v[112:115], v{YL}, {srd(SW)}, 0 offen sc1
        buffer_load_dwordx4 v[116:119], v{YL}, {srd(SW)}, s{sYQ} offen sc1
        s_waitcnt vmcnt(0)
        {chk}
        s_cbranch_vccz {ok}
        s_sub_u32 s{sRING}, s{sRING}, 1
        s_cmp_lg_u32 s{sRING}, 0
        s_cbranch_scc1 {lp}
        s_branch {ok}""")
    RAD=[f"v_add_u32 v96, s{sAW}, v{EXW}",f"v_add_u32 v97, s{sCWB}, v{EXW}"]
    for x in (1,2,3):
        RAD.append(f"s_xor_b32 s{sT1}, s{sWV}, {x}")
        if x<3: RAD+=[f"s_mul_i32 s{sT1}, s{sT1}, {AWS}",f"s_add_u32 s{sT1}, s{sT1}, {4096*(x-1)}"]
        else: RAD+=[f"s_mul_i32 s{sT1}, s{sT1}, {CWS}",f"s_add_u32 s{sT1}, s{sT1}, {CW}"]
        RAD.append(f"v_add_u32 v{97+x}, s{sT1}, v{EXW}")
    XU=[]
    for j in range(8): XU+=[f"v_lshlrev_b32 v{80+2*j}, 16, v{104+j}",f"v_and_b32 v{81+2*j}, s{sMSK}, v{104+j}"]
    XU[0]=(lambda t=XU[0]: (k.w(v="x"),k(t)))
    SK=k.lab("SK"); OPT=21-QM
    waited=False
    for j in range(22-QM):
        fl=[]
        if VP and NWC+j<22: fl+=dm(NWC+j)
        if j+DEPTH<22: fl+=hload(j+DEPTH)
        if not YP:
            if j==3: fl+=[lambda: (k.w(v="y"),sat(sFY))]
            if j==YLU-4: fl+=[lambda: k.vm(f"buffer_load_dword v134, v{FYP}, {srd(SW)}, 0 offen sc1","yp")]
            if j==YLU: fl+=[lambda: poll("yp",134,FYP,SW,FLX)]+yl
        elif j==YLU: fl+=yl
        if j==6: fl+=RAD
        if j in(8,9): fl+=XU[8*(j-8):8*(j-7)]
        TD=max(3,QM+1)
        if TRG<=j+TD<22: fl=trs([j+TD])+fl
        if j==0: fl=trs(range(TRG,TD))+fl
        if j==OPT:
            run(fl); fl=[]
            k(f"s_cmp_ge_u32 s{sWV}, 2\ns_cbranch_scc1 {SK}")
        if j>=TRG: k.w(v=f"h{j}",d=f"wt{j}")
        else: k.w(v=f"h{j}")
        weave(k,g2mf(j),fl,3)
        if j==OPT: k(f"{SK}:")
        if j in(0,4,10,16,17): run(st_(f'u{j}'))
    def rwr(x): return [lambda a=a: k.ds(f"ds_write_b128 v{97 if x==3 else 96}, {vr(A2+16*x+4*a,4)} offset:{1024*a+(4096 if x==2 else 0)}") for a in range(4)]
    yw=[lambda q=q: k.ds(f"ds_write_b128 v{YW}, {vr(112+4*q,4)} offset:{1024*q}") for q in range(2)]
    yt=[lambda a=a: k.ds(f"ds_read_b64_tr_b16 {vr(120+2*a,2)}, v{YR} offset:{512*a}","yt") for a in range(4)]
    if QM:
        js=list(range(22-QM,22))
        FQ=[]
        if YLU>=22-QM: FQ+=yl
        for x in (3,2,1,0):
            for i,j in enumerate(js):
                if x==3: k.w(v=f"h{j}",d=f"wt{j}")
                k(g2m(j,x>>1,x&1))
                if i==2 and x<3: FQ+=rwr(x+1)
                if FQ and (i>=2 or x==3): run([FQ.pop(0)])
        k.stamp('g2'); k.smem=0
        run(FQ); ycheck(); run(yw+yt)
    else:
        k.stamp('g2'); k.smem=0
        k("s_nop 8")
        for x in (3,2,1): run(rwr(x))
        ycheck(); run(yw+yt)
    k.w(d=0); k("s_barrier")
    for x in (1,2,3):
        for a in range(4): k.ds(f"ds_read_b128 {vr(144+16*(x-1)+4*a,4)}, v{97+x} offset:{1024*a}",f"rd{x}")
    for j in range(8): k(f"v_lshlrev_b32 v{32+2*j}, 16, v{120+j}\nv_and_b32 v{33+2*j}, s{sMSK}, v{120+j}")
    for x in (1,2,3):
        k.w(d=f"rd{x}")
        for j in range(8): k(f"v_pk_add_f32 {vr(A2+2*j,2)}, {vr(A2+2*j,2)}, {vr(144+16*(x-1)+2*j,2)}")
    for j in range(8): k(f"v_pk_fma_f32 {vr(A2+2*j,2)}, {vr(A2+2*j,2)}, v[102:103], {vr(32+2*j,2)} op_sel:[0,1,0] op_sel_hi:[1,1,1]")
    for a in(0,2):
        for r in range(4): k(f"v_permlane32_swap_b32 v{A2+4*a+r}, v{A2+4*a+4+r}")
    for j in range(8):
        k(f"v_pk_add_f32 {vr(A2+2*j,2)}, {vr(A2+2*j,2)}, {vr(80+2*j,2)}\nv_cvt_pk_bf16_f32 v{104+j}, v{A2+2*j}, v{A2+2*j+1}")
        if j%4==3: k.vm(f"buffer_store_dwordx4 {vr(104+j-3,4)}, v{XO}, {srd(SO)}, 0 offen offset:{32*(j//4)} {OSF.replace('_',' ')}","o")
    if prof:
        k.stamp('epi'); k("s_waitcnt vmcnt(0) lgkmcnt(0)"); k.stamp('drain'); k("s_waitcnt lgkmcnt(0)"); k.stamp(); k.stamp()
        k("; STAMPS "+" ".join(k.names[:-2]))
        k("s_memrealtime s[94:95]\ns_waitcnt lgkmcnt(0)\nv_writelane_b32 v199, s94, 62\nv_writelane_b32 v199, s96, 63")
        k(f"s_lshl_b32 s{sT0}, s2, 2\ns_add_u32 s{sT0}, s{sT0}, s{sWV}\ns_lshl_b32 s{sT0}, s{sT0}, 8\ns_add_u32 s{sT0}, s{sT0}, {PROF}\nv_lshl_add_u32 v2, v1, 2, s{sT0}")
        k(f"buffer_store_dword v199, v2, {srd(SW)}, 0 offen")
        if pace:
            L=k.lab(); LP=k.lab()
            k(f"""s_cmp_lg_u32 s{sWV}, 0
            s_cbranch_scc1 {L}
            s_cmp_lg_u32 s2, {pwg}
            s_cbranch_scc1 {L}""")
            if pace==1: k(f"s_mov_b32 s{sT0}, 6000")
            if pace==2: k(f"s_sub_u32 s{sT0}, s94, s96\ns_lshl_b32 s{sT0}, s{sT0}, 2")
            if pace==3: k(f"v_readlane_b32 s{sT0}, v199, {k.names.index(pidx)}\ns_sub_u32 s{sT0}, s{sT0}, s34\ns_lshr_b32 s{sT0}, s{sT0}, {psh}\ns_add_u32 s{sT0}, s{sT0}, 4000")
            if pace==4: k(f"v_readlane_b32 s{sT0}, v199, {k.names.index(pidx)}\nv_readlane_b32 s{sT1}, v199, {k.names.index(pidx2)}\ns_sub_u32 s{sT0}, s{sT0}, s{sT1}\ns_lshr_b32 s{sT0}, s{sT0}, {psh}\ns_add_u32 s{sT0}, s{sT0}, 4000")
            k(f"""s_min_u32 s{sT0}, s{sT0}, 30000
            s_mov_b32 s{sT2}, 100000
            {LP}:
            s_memrealtime s[94:95]
            s_waitcnt lgkmcnt(0)
            s_sub_u32 s{sT1}, s94, s96
            s_cmp_ge_u32 s{sT1}, s{sT0}
            s_cbranch_scc1 {L}
            s_sub_u32 s{sT2}, s{sT2}, 1
            s_cmp_lg_u32 s{sT2}, 0
            s_cbranch_scc1 {LP}
            {L}:""")
        if dbg:
            L=k.lab()
            k(f"""s_cmp_lg_u32 s{sWV}, 0
            s_cbranch_scc1 {L}
            s_and_b32 s{sT0}, s2, 0x18
            s_cmp_lg_u32 s{sT0}, 0
            s_cbranch_scc1 {L}
            s_sub_u32 s{sT0}, s94, s96
            v_writelane_b32 v199, s{sT0}, 2
            s_or_b32 s{sT0}, s94, 0x80000000
            s_not_b32 s{sT1}, s96
            s_or_b32 s{sT1}, s{sT1}, 0x80000000
            s_or_b32 s{sT2}, s96, 0x80000000
            v_mov_b32 v4, s{sT0}
            v_writelane_b32 v4, s{sT1}, 1
            v_writelane_b32 v4, s{sT2}, 2
            v_cmp_gt_u32 vcc, 3, v1
            v_lshlrev_b32 v6, 2, v1
            v_add_u32 v6, 52, v6
            v_mov_b32 v7, {hex(OOB)}
            v_cndmask_b32 v6, v7, v6, vcc
            buffer_atomic_umax v4, v6, {srd(SB)}, 0 offen sc1
            s_cmp_lg_u32 s2, {dbg-1}
            s_cbranch_scc1 {L}
            v_readlane_b32 s{sT0}, v199, 2
            v_readlane_b32 s{sT1}, v199, 14
            v_subrev_u32 v4, s34, v199
            s_sub_u32 s{sT1}, s{sT1}, s34
            v_writelane_b32 v4, s{sT0}, 2
            v_writelane_b32 v4, s{sT1}, 13
            v_cmp_gt_u32 vcc, 14, v1
            v_lshlrev_b32 v6, 2, v1
            v_add_u32 v6, -4, v6
            v_cndmask_b32 v6, v7, v6, vcc
            buffer_store_dword v4, v6, {srd(SB)}, 0 offen sc1
            {L}:""")
    k("s_endpgm")
    k(f"{CSL}:")
    k.vq=vq_cs; k.dq=dq_cs; k.smem=0; k.nst=nst_cs; k.ptags=()
    def cst(n):
        if k.nst<nst_mrg: k.stamp(n)
    if not CSN:
        run([x[1] for x in IOL_cs]); ptail()
        k("s_waitcnt lgkmcnt(0)\ns_barrier"); cst('pt')
        run(lntr())
        k(f"""s_mul_i32 s{sT2}, s{sFT}, 768
        s_add_u32 s{sT2}, s{sT2}, {CS}
        s_cmp_eq_u32 s{sWV}, 3
        s_cselect_b32 s{sT2}, {hex(OOB)}, s{sT2}
        v_lshl_add_u32 v{CSA}, v0, 2, s{sT2}
        v_mov_b32 v19, -1
        s_mov_b32 s{sC1}, {SS}
        s_mov_b32 s{sC2}, {-2*SS}""")
        k.vm(f"buffer_store_dword v19, v{CSA}, {srd(SW)}, 0 offen sc1","lnst")
        run(lnst(YPS!=-2))
        k(f"""s_mul_i32 s{sT0}, s{sWV}, 3072
        s_lshr_b32 s{sT1}, s{sWV}, 1
        s_mul_i32 s{sT1}, s{sT1}, 96
        s_sub_u32 s{sT0}, s{sT0}, s{sT1}
        v_add_u32 v{WR}, s{sT0}, v{WR}
        v_mov_b32 v112, 0x3f803f80
        v_mov_b32 v113, v112
        v_mov_b32 v114, v112
        v_mov_b32 v115, v112
        s_mov_b32 s{sRING}, {2*SS}
        s_mov_b32 s{sCNT}, 0""")
        for r in range(16,112): k(f"v_mov_b32 v{r}, 0")
        def csdma():
            D=dma_list(f"s{sRING}","c")[5:]
            for f in D: f() if callable(f) else (k(f),k("s_nop 0"))
            for f in nextk: k(f)
        csdma()
        cst('pre'); CL=k.lab("CL"); CN=k.lab("CN"); CA_=k.lab("CN")
        k.w(v="d0"); k(f"s_branch {CA_}")
        k(f"{CL}:\ns_waitcnt vmcnt(12)\ns_cmp_lt_u32 s{sCNT}, 6\ns_cbranch_scc1 {CN}\ns_waitcnt vmcnt(0)\n{CN}:")
        k(f"s_cmp_lg_u32 s{sCNT}, 1\ns_cbranch_scc1 {CA_}\ns_barrier"); lnatomic(); k(f"{CA_}:")
        for u in range(6):
            for h in range(2): k(f"ds_read_b64_tr_b16 {vr(116+4*u+2*h,2)}, v{WR} offset:{768*h+32*u}")
        k(f"ds_read_u8 v{JNK}, v1")
        CN2=k.lab("CN")
        k(f"""s_add_u32 s{sRING}, s{sRING}, s{sC1}
        s_cmp_eq_u32 s{sRING}, {3*SS}
        s_cselect_b32 s{sRING}, 0, s{sRING}
        s_cmp_eq_u32 s{sRING}, {2*SS}
        s_cselect_b32 s{sDL}, s{sC2}, s{sC1}
        v_add_u32 v{WR}, s{sDL}, v{WR}
        s_waitcnt lgkmcnt(1)
        s_cmp_ge_u32 s{sCNT}, 5
        s_cbranch_scc1 {CN2}""")
        csdma()
        k(f"{CN2}:")
        for u in range(6): k(f"v_mfma_f32_32x32x16_bf16 {vr(16+16*u,16)}, v[112:115], {vr(116+4*u,4)}, {vr(16+16*u,16)}")
        k(f"s_add_u32 s{sCNT}, s{sCNT}, 1\ns_cmp_lt_u32 s{sCNT}, 8\ns_cbranch_scc1 {CL}")
        cst('loop')
        k(f"""s_mul_i32 s{sT0}, s{sWV}, 768
        s_add_u32 s{sT0}, s{sT0}, {PT}
        v_lshl_add_u32 v140, v5, 2, s{sT0}
        v_min_u32 v141, 191, v0
        v_lshlrev_b32 v141, 2, v141
        v_add_u32 v141, {PT}, v141
        s_nop 7""")
        for u in range(6): k(f"ds_write_b32 v140, v{16+16*u} offset:{128*u}")
        k("s_waitcnt lgkmcnt(0)\ns_barrier")
        for j in range(4): k(f"ds_read_b32 v{144+j}, v141 offset:{768*j}")
        k(f"""s_waitcnt lgkmcnt(0)
        v_add_f32 v144, v144, v145
        v_add_f32 v146, v146, v147
        v_add_f32 v144, v144, v146
        v_cvt_pk_bf16_f32 v145, v144, v144
        v_and_b32 v145, s{sMSK}, v145
        v_sub_f32 v146, v144, v145
        v_cvt_pk_bf16_f32 v145, v145, v146
        buffer_store_dword v145, v{CSA}, {srd(SW)}, 0 offen sc1
        s_and_b32 s{sT0}, s{sWV}, 1
        s_lshr_b32 s{sT1}, s{sWV}, 1""")
        k.vq=[]; k.dq=[]; k.smem=0; cst('cs')
        if CST:
            k(f"""s_lshl_b32 s{sT2}, s{sFT}, 2
            s_add_u32 s{sT2}, s{sT2}, s{sWV}
            s_mul_i32 s{sT2}, s{sT2}, {22016}
            v_lshl_add_u32 v140, v1, {CST}, s{sT2}""")
            for j in range(-(-22016//(64<<CST))):
                if j: k(f"v_add_u32 v140, {64<<CST}, v140")
                k.vm(f"buffer_load_dword v{16+j}, v140, {srd(SD)}, 0 offen","tch")
        run(exrd(0)+exrd(1)+exva(0)+exva(1))
        k("s_waitcnt lgkmcnt(0)\ns_barrier")
        cst('ex'); run(kcw()); cst('kc')
        run(late()); cst('late')
        k("s_nop 4")
        lnpoll(); poll("lnp",PL,LNP,SB,LNX)
        cst('poll'); run(uloads())
        for j in range(nwd): run(wd_dma(j))
        run(uwrite())
        cst('uw')
        k(f"s_waitcnt vmcnt(0) lgkmcnt(0)")
        while prof and k.nst<nst_mrg: cst('x')
        k(f"s_branch {MRG}")
    else:
        k.autod=1; ON=96; CF=176
        def csdma(i):
            run(dma_list((i%3)*SS,f"d{i}")[5:])
            if i<7: run(nextk)
        csdma(2)
        k(f"""s_mul_i32 s{sT2}, s{sFT}, 768
        s_add_u32 s{sT2}, s{sT2}, {CS}
        s_cmp_eq_u32 s{sWV}, 3
        s_cselect_b32 s{sT2}, {hex(OOB)}, s{sT2}
        v_lshl_add_u32 v{CSA}, v0, 2, s{sT2}
        s_mul_i32 s{sT2}, s{sWV}, 3072
        s_mul_i32 s{sT3}, s{sT1}, 96
        s_sub_u32 s{sT2}, s{sT2}, s{sT3}
        v_add_u32 v{WR}, s{sT2}, v{WR}
        v_mov_b32 v9, 0x3f803f80
        v_add_u32 v{XR}, {SS}, v{WR}
        v_add_u32 v{XR+1}, {2*SS}, v{WR}""")
        for r in range(4): k(f"v_accvgpr_write_b32 a{ON+r}, v9")
        k(f"v_mov_b32 v11, -1")
        k.w(d=0); k("s_barrier")
        run(lntr())
        bar=lambda:(k.w(d=0),k("s_barrier"))
        P=ptail_items() if PTS==2 else [ptail]
        FQ=[x[1] for x in IOL_cs]+[t for t in P if t!="s_nop 0"]+[bar]+exrd(0)+exrd(1)[:3]+mix(exva(0),exrd(1)[3:])+exva(1)+[bar]+kcw()+late()
        def it(i,W=[]):
            k.w(v=f"d{i}")
            for u in range(6):
                for h in range(2): k.ds(f"ds_read_b64_tr_b16 {ar(CF+4*u+2*h,2)}, v{(WR,XR,XR+1)[i%3]} offset:{768*h+32*u}","cf")
            k.w(d="cf")
            D=(dma_list((i%3)*SS,f"d{i+3}")[5:]+(nextk if i<4 else [])) if i<5 else []
            weave(k,[f"v_mfma_f32_32x32x16_bf16 {vr(16+16*u,16)}, {ar(ON,4)}, {ar(CF+4*u,4)}, {vr(16+16*u,16) if i else '0'}" for u in range(6)],D,2)
            run(W); l0=len(k.L)
            while FQ and i<7 and sum(cost(l) for l in k.L[l0:])<(CSB if i else CSB0): run([FQ.pop(0)])
            cst(f'i{i}')
        for i in range(8):
            W=[]
            if i==CSL_: W=[lambda: k.vm(f"buffer_store_dword v11, v{CSA}, {srd(SW)}, 0 offen sc1","lnst")]+lnst(YPS!=-2)
            if i==CSA_: W=[lambda:(k.w(v="lnst"),k("s_barrier")),lnatomic]
            it(i,W)
        k.smem=0
        k(f"""s_mul_i32 s{sC1}, s{sWV}, 768
        s_add_u32 s{sC1}, s{sC1}, {PT}
        s_nop 4
        v_lshl_add_u32 v17, v5, 2, s{sC1}
        v_min_u32 v18, 191, v0
        v_lshlrev_b32 v18, 2, v18
        v_add_u32 v18, {PT}, v18
        s_nop 1""")
        for u in range(6): k(f"ds_write_b32 v17, v{16+16*u} offset:{128*u}")
        k("s_waitcnt lgkmcnt(0)\ns_barrier")
        for j in range(4): k(f"ds_read_b32 v{20+j}, v18 offset:{768*j}")
        k(f"""s_waitcnt lgkmcnt(0)
        v_add_f32 v20, v20, v21
        v_add_f32 v22, v22, v23
        v_add_f32 v20, v20, v22
        v_cvt_pk_bf16_f32 v21, v20, v20
        v_and_b32 v21, s{sMSK}, v21
        v_sub_f32 v22, v20, v21
        v_cvt_pk_bf16_f32 v21, v21, v22
        buffer_store_dword v21, v{CSA}, {srd(SW)}, 0 offen sc1""")
        k.vq=[]; cst('cs'); print("cs filler left",len(FQ))
        if CST:
            k(f"""s_lshl_b32 s{sC1}, s{sFT}, 2
            s_add_u32 s{sC1}, s{sC1}, s{sWV}
            s_mul_i32 s{sC1}, s{sC1}, {22016}
            v_lshl_add_u32 v24, v1, {CST}, s{sC1}""")
            for j in range(min(CSJ,-(-22016//(64<<CST)))):
                if j: k(f"v_add_u32 v24, {64<<CST}, v24")
                k.vm(f"buffer_load_dword v{25+j}, v24, {srd(SD)}, 0 offen","tch")
        run(FQ); cst('fq')
        lnpoll(); poll("lnp",PL,LNP,SB,LNX)
        cst('poll'); k("s_barrier"); run(uloads())
        for j in range(nwd): run(wd_dma(j))
        run(uwrite())
        k(f"v_mov_b32 v9, {hex(OOB)}")
        for j in range(6): k.vm(f"buffer_load_dword v10, v9, {srd(SW)}, 0 offen","h")
        cst('uw')
        while prof and k.nst<nst_mrg: cst('x')
        k(f"s_branch {MRG}")
    for t in k.tail: k(t)
    k(f"{END}:")
    return k
import struct
def f2b(x): return struct.unpack('<I',struct.pack('<f',x))[0]
if __name__=='__main__':
    out=sys.argv[1]; opts=dict(a.split('=') for a in sys.argv[2:])
    opts={a:(int(b) if b.lstrip('-').isdigit() else b) for a,b in opts.items()}
    k=gen(**opts)
    hdr="".join(l for l in open('cdna_kernels/'+NAME[:-7]+'.s.ref') if l.startswith(';') and '@launch' not in l)
    txt=module([k],[(None,256,256,163840)],hdr)
    open(out,'w').write(txt)
    print("hazards:",haz.check(txt.split('\n')))
```

```python
import sys
sys.path.insert(0,'w')
from gl import *
import haz
NAME="parallel_sum__ssm_conv_s4__glu_gated_bilinear__prompt_kernel"
XNB=0; STATS=0x200000; FH=0x210000; FY=0x218000; PROF=0x220000; HB=0x400000; YB=0xA00000; CS=0xC00000; WSEND=CS+86*128
SS=41216; WG_O=16384; WU_D=12320
TAB=82432; TABW=16416; KC=123648; KCS=4160; PT=156928; PTS=3088
UO=119040; US=37888; CW=82432; CWS=8192; AWS=10240; BW=41216
OOB=0x80000000
PX=132*937; PO=(0,17,34,51); EXB=32*937-0x4280; TBS=4352; LNS=2560; LNB=KC+4*TBS
O7=['04123567','12530467','23061457','30127456']
OROT=['01234567','23456701','45670123','67012345']
class G(K):
    def __init__(s,*a,**kw):
        super().__init__(*a,**kw); s.vq=[]; s.dq=[]; s.tail=[]; s.nst=0; s.names=['start']
    def vm(s,t,tag=None):
        if t.endswith(' lds') and ' m0,' in s.L[-1]: s("s_nop 0")
        pb=tag in getattr(s,'ptags',()) and s.prof
        if pb: s.stamp('<'+tag)
        s(t); s.vq.append(tag)
        if pb: s.stamp('>')
    def ds(s,t,tag=None): s(t); s.dq.append(tag)
    def nv(s,tag):
        i=max(j for j,x in enumerate(s.vq) if x==tag); return min(len(s.vq)-1-i,63)
    def nd(s,tag):
        i=max(j for j,x in enumerate(s.dq) if x==tag); return min(len(s.dq)-1-i,15)
    def w(s,v=None,d=None):
        o=[]
        if v is not None: o.append(f"vmcnt({s.nv(v) if isinstance(v,str) else v})")
        if d is not None:
            n=s.nd(d) if isinstance(d,str) else d
            if getattr(s,'smem',0) and n==0:
                if getattr(s,'autod',0): s.ds(f"ds_read_u8 v{JNK}, v1","dum"); n=1
                else: print("SMEM region: lgkmcnt(0) at line",len(s.L),d)
            o.append(f"lgkmcnt({n})")
        s("s_waitcnt "+" ".join(o))
    def stamp(s,name=''):
        if s.prof:
            n=s.nst; R=(90,92,98,100); a=R[n&3]
            s(f"s_memtime s[{a}:{a+1}]")
            if n>=2: s(f"v_writelane_b32 v199, s{R[(n-2)&3]}, {n-1}")
            elif n==0: s("v_writelane_b32 v199, s34, 0")
            s.names.append(name); s.nst+=1
def vr(a,n): return f"v[{a}:{a+n-1}]" if n>1 else f"v{a}"
def ar(a,n): return f"a[{a}:{a+n-1}]" if n>1 else f"a{a}"
def weave(k,mf,fl,per,start=0):
    fl=list(fl)
    for i,m in enumerate(mf):
        k(m)
        if i>=start:
            n=per[i] if isinstance(per,(list,tuple)) else per
            for _ in range(n):
                if fl:
                    f=fl.pop(0); f() if callable(f) else k(f)
    for f in fl: f() if callable(f) else k(f)

SX,SG,SU,SD,SW,SO,SB=36,40,44,48,52,56,60
sXCD,sI,sWV,sP,sFT,sMT,sRB,sLD,sDK=64,65,66,67,68,69,70,71,72
sKS,sOX,sOW,sMX,sMG,sRING,sDL,sCNT,sC1,sC2=73,74,75,76,77,78,79,80,81,82
sH0,sH1,sMSK,sONE,sAW,sCWB,sT0,sT1,sT2,sT3=83,84,85,86,87,88,26,27,28,29
sUQ=30; sYQ=31; sTB=32; sDB=33; sORD=89; sFH=94; sFY=95; sPB=70; sLA=64
def srd(d): return f"s[{d}:{d+3}]"
XD=200; WD=204; XR=207; WR=211; KCW=212; EX=213
CA=224; CB=225; WDV=226; TA=228; TC=230; HL=232; HS=234; UL=237; UW=238; UZ=239; ST=240; CSA=241
XO=242; RS=243; YL=244; YW=245; YR=246; YS=247; EXW=248; FHP=249; FYP=250; TW=251; TR=252; LNP=253; KZ=254; PA0=255
PA1=193; PA2=194; PA3=195; KX=160; TB=112; PACC=172; PAR=184; JNK=196; PL=197
LTR=88; LST=12; aXN=14; aST=15; aTR=10; aWR=11; ROW=50
EA=144; EB=150; UR=156; AZ=164; AP=168; KF=24

def gen(prof=False, ORD='rot', ROT2=True, DEPTH=8, dbg=0, pace=0, pidx=14, psh=3, pwg=0, PF=2, pidx2=None, OSF='', NS=20, LNPOS=0, NPRE=4, D1E=10, NH=4, NL=2, TWS=8, SCH=0, probe=0, PARP=0, TWK=12, NA7=0, NE=2, D1S=200, KCB=2, YP=1, PP='0_1_2', HFG=40, HPG=120, YLU=17, QM=0, WDT='12345', G7=0, XP=0, IOP=2, LPS=4, CLS=5, WDN=2, W0E=2, EXS=1, LAS=1, D5L=1, TRG=9, T3B=1, D1P=0, D1C=130, D2P=0, D2G=0, LSP=0, YPS=-1, NSC=0, SLP=0, SLH=0, HFW=0, VP=0, T1=12, TL=36, NB=3, NWC=22, HP=15, XW=0, PT_='', PB=0, PTS=0, LSG=0, D0L=0, D0K=0, CST=0, PTW=60, D1L='', D2L='', PTG=0, CSN=0, XOB=0, WPX=0, CSJ=9, CSB=250, CSB0=500, CSL_=0, CSA_=2, WT6=0, WTP=0, WT0=3, CT2='', CTI=8, M2=0, RA=3, RB=5, CE=0, W6S=0, NX0=99, NX1=0, HPD=20, NE6=0, GE6=30, WG0=0, WGS=1):
    k=G(NAME,vgpr=256,agpr=256,sgpr=102); k.prof=prof; k.pst=90; k.autod=1; k.ptags=str(PT_).split('_')
    END=k.lab("END")
    if prof: k("s_memtime s[34:35]\ns_memrealtime s[96:97]")
    k(f"s_cmp_ge_u32 s2, 0x100\ns_cbranch_scc1 {END}")
    k("s_load_dwordx16 s[4:19], s[0:1], 0\ns_load_dwordx2 s[20:21], s[0:1], 64")
    PC=k.lab("PC")
    if PF==1:
        k(f'''s_getpc_b64 s[22:23]
        {PC}:
        v_lshlrev_b32 v2, 7, v0
        v_mov_b32 v5, s23
        v_min_u32 v2, {END}-{PC}, v2
        v_add_co_u32 v4, vcc, s22, v2
        v_addc_co_u32 v5, vcc, 0, v5, vcc
        global_load_dword v{JNK}, v[4:5], off''')
    if PF==2:
        k(f'''s_getpc_b64 s[22:23]
        {PC}:
        s_lshl_b32 s3, s2, 2
        v_lshrrev_b32 v2, 3, v0
        s_and_b32 s3, s3, 0xe0
        v_mov_b32 v5, s23
        v_add_lshl_u32 v2, v2, s3, 7
        v_min_u32 v2, {END}-{PC}, v2
        v_add_co_u32 v4, vcc, s22, v2
        v_addc_co_u32 v5, vcc, 0, v5, vcc
        global_load_dword v{JNK}, v[4:5], off''')
    for d,o in((SX,0),(SG,80),(SU,88),(SD,96),(SO,104),(SB,112),(SW,120)): k(f"s_load_dwordx2 s[{d}:{d+1}], s[0:1], {o}")
    for d,n in((SX,0x200000),(SG,512*2752),(SU,512*2752),(SD,1376*1024),(SO,0x200000),(SB,256),(SW,WSEND)):
        k(f"s_mov_b32 s{d+2}, {hex(n)}\ns_mov_b32 s{d+3}, 0x00020000")
    k(f"""v_lshrrev_b32 v2, 6, v0
    v_and_b32 v1, 63, v0
    v_readfirstlane_b32 s{sWV}, v2
    s_and_b32 s{sXCD}, s2, 7
    s_lshr_b32 s{sI}, s2, 3
    s_lshl_b32 s{sP}, s{sXCD}, 5
    s_add_u32 s{sP}, s{sP}, s{sI}
    s_and_b32 s{sT0}, s{sXCD}, 1
    s_lshr_b32 s{sT1}, s{sXCD}, 1
    s_lshl_b32 s{sRB}, s{sT0}, 7
    s_lshl_b32 s{sT2}, s{sT1}, 5
    s_add_u32 s{sRB}, s{sRB}, s{sT2}
    s_add_u32 s{sRB}, s{sRB}, s{sI}
    s_mul_i32 s{sT2}, s{sT1}, 30
    s_add_u32 s{sT2}, s{sT2}, s{sI}
    s_lshr_b32 s{sFT}, s{sT2}, 3
    s_and_b32 s{sT2}, s{sT2}, 7
    s_lshl_b32 s{sMT}, s{sT0}, 3
    s_add_u32 s{sMT}, s{sMT}, s{sT2}
    s_lshl_b32 s{sT1}, s{sT1}, 2
    s_lshl_b32 s{sT0}, s{sT0}, 1
    s_add_u32 s{sT1}, s{sT1}, s{sT0}
    s_add_u32 s{sT1}, s{sT1}, s{sI}
    s_sub_u32 s{sT1}, s{sT1}, 30
    s_cmp_ge_u32 s{sI}, 30
    s_cselect_b32 s{sFT}, s{sT1}, s{sFT}
    s_mov_b32 s{sMSK}, 0xffff0000""")
    k(f"""s_lshl_b32 s{sT0}, s{sRB}, 13
    s_lshl_b32 s{sT1}, s{sWV}, 11
    s_add_u32 s{sT0}, s{sT0}, s{sT1}
    v_lshl_add_u32 v3, v1, 4, s{sT0}
    s_lshl_b32 s{sT0}, s{sP}, 9
    v_lshl_add_u32 v198, v0, 1, s{sT0}""")
    for j in range(6): k(f"v_mov_b32 v{PAR+j}, 0")
    k(f"""s_lshl_b32 s{sT0}, s{sMT}, 17
    s_lshl_b32 s{sT1}, s{sWV}, 15
    s_add_u32 s{sT0}, s{sT0}, s{sT1}
    {f"s_cmp_ge_u32 s{sI}, 30"+chr(10)+f"s_cselect_b32 s{sT0}, {hex(OOB)}, s{sT0}" if XOB else ""}
    v_lshrrev_b32 v5, 3, v1
    v_lshl_add_u32 v5, v5, 10, s{sT0}
    v_lshrrev_b32 v6, 4, v1
    v_xor_b32 v7, v1, v6
    v_and_b32 v7, 7, v7
    v_lshl_add_u32 v{XD}, v7, 4, v5
    v_xor_b32 v5, 64, v{XD}
    v_add_u32 v{XD+1}, 7168, v5
    v_add_u32 v{XD+2}, 14336, v{XD}
    v_add_u32 v{XD+3}, 21504, v5
    s_mul_i32 s{sT0}, s{sFT}, 192
    s_mul_i32 s{sT1}, s{sWV}, {16*2752}""")
    for q in range(3):
        k(f"""v_add_u32 v5, {64*q}, v1
        v_mul_u32_u24 v7, 5462, v5
        v_lshrrev_b32 v7, 16, v7
        v_mul_u32_u24 v8, 12, v7
        v_sub_u32 v8, v5, v8
        v_lshl_add_u32 v8, v8, 4, s{sT0}
        v_min_u32 v8, 2736, v8
        v_mul_u32_u24 v7, 2752, v7
        v_add3_u32 v{WD+q}, v7, v8, s{sT1}""")
        if q: k(f"v_subrev_u32 v{WD+q}, {1024*q}, v{WD+q}")
    O={'o7':O7,'rot':OROT}.get(ORD) or str(ORD).zfill(8).split('_')
    pk=lambda o: hex(sum(int(ch,16)<<(4*j) for j,ch in enumerate(o)))
    k(f"s_add_u32 s{sT0}, s{sMT}, s{sFT}")
    if len(O)==3: k(f"s_mul_i32 s{sT1}, s{sT0}, 11\ns_lshr_b32 s{sT1}, s{sT1}, 5\ns_mul_i32 s{sT1}, s{sT1}, 3\ns_sub_u32 s{sT0}, s{sT0}, s{sT1}")
    else: k(f"s_and_b32 s{sT0}, s{sT0}, {len(O)-1}")
    k(f"s_mov_b32 s{sORD}, {pk(O[0])}")
    for g in range(1,len(O)): k(f"s_cmp_eq_u32 s{sT0}, {g}\ns_cselect_b32 s{sORD}, {pk(O[g])}, s{sORD}")
    k(f"s_and_b32 s{sKS}, s{sORD}, 7")
    k(f"""s_lshl_b32 s{sMX}, s{sWV}, 12
    s_mul_i32 s{sMG}, s{sWV}, 3072
    s_add_u32 s{sMG}, s{sMG}, {WG_O}
    s_lshl_b32 s{sOX}, s{sKS}, 7
    s_mul_i32 s{sOW}, s{sKS}, {64*2752}
    s_lshl_b32 s{sT0}, s{sP}, 2""")
    k.stamp('pre')
    k("s_waitcnt lgkmcnt(0)")
    k.stamp('karg')
    k(f"s_load_dword s{sLD}, s[18:19], s{sT0}\ns_load_dword s{sDK}, s[20:21], s{sT0}")
    def rowl():
        k.vm(f"buffer_load_dwordx4 {vr(ROW,4)}, v3, {srd(SX)}, 0 offen","row")
        k.vm(f"buffer_load_dwordx4 {vr(ROW+4,4)}, v3, {srd(SX)}, 0 offen offset:1024","row")
    def parl():
        for j in range(6): k.vm(f"global_load_short_d16_hi v{PAR+j}, v198, s[{6+2*j}:{7+2*j}]","par")
    if PB<2: rowl()
    if PARP==0: parl()
    if PB==3: k("s_barrier")
    if PB>=2: rowl()
    if YPS==-2:
        k(f"""s_lshl_b32 s{sT2}, s{sP}, 13
        s_lshl_b32 s{sT3}, s{sWV}, 11
        s_add_u32 s{sT2}, s{sT2}, s{sT3}
        s_add_u32 s{sT2}, s{sT2}, {YB}
        v_lshl_add_u32 v9, v1, 4, s{sT2}""")
        for r in range(16,20): k(f"v_mov_b32 v{r}, -1")
        for j in range(2): k.vm(f"buffer_store_dwordx4 v[16:19], v9, {srd(SW)}, 0 offen offset:{1024*j} sc1","psn")
    if PB in(1,2): k("s_barrier")
    def dma_list(ring,tag):
        L=[]
        if isinstance(ring,int):
            a=lambda s: f"s_add_u32 m0, s{s}, {ring}" if ring else f"s_mov_b32 m0, s{s}"
        else: a=lambda s: f"s_add_u32 m0, s{s}, {ring}"
        L.append(a(sMX))
        for q in range(4): L.append(lambda q=q: k.vm(f"buffer_load_dwordx4 v{XD+q}, {srd(SX)}, s{sOX} offen offset:{1024*q} lds",tag))
        L.append(a(sMG))
        for q in range(3): L.append(lambda q=q: k.vm(f"buffer_load_dwordx4 v{WD+q}, {srd(SG)}, s{sOW} offen offset:{1024*q} lds",tag))
        L.append(f"s_add_u32 m0, m0, {WU_D}")
        for q in range(3): L.append(lambda q=q: k.vm(f"buffer_load_dwordx4 v{WD+q}, {srd(SU)}, s{sOW} offen offset:{1024*q} lds",tag))
        return L
    nextk=[f"s_lshr_b32 s{sORD}, s{sORD}, 4",f"s_and_b32 s{sKS}, s{sORD}, 7",f"s_lshl_b32 s{sOX}, s{sKS}, 7",f"s_mul_i32 s{sOW}, s{sKS}, {64*2752}"]
    D0R=[]
    def issue_d0():
        L=dma_list(0,"d0")+nextk; n=0
        while L:
            if n>=10-D0L and D0L and callable(L[0]): break
            f=L.pop(0)
            if callable(f): f(); n+=1
            else: k(f)
        D0R.extend(L)
    if not XP&1: issue_d0()
    if PARP==1: parl()
    k.stamp('dma0')
    def run(L):
        for f in L: f() if callable(f) else k(f)
    k(f"""v_lshrrev_b32 v2, 4, v1
    v_bfe_u32 v3, v1, 2, 2
    v_and_b32 v4, 3, v1
    v_and_b32 v5, 31, v1
    v_lshrrev_b32 v6, 5, v1
    v_and_b32 v7, 15, v1
    s_and_b32 s{sT0}, s{sWV}, 1
    s_lshr_b32 s{sT1}, s{sWV}, 1""")
    k(f"""v_bfe_u32 v8, v1, 1, 3
    v_xor_b32 v8, v8, v6
    v_lshlrev_b32 v8, 4, v8
    v_lshl_add_u32 v8, v5, 7, v8
    s_lshl_b32 s{sT2}, s{sT0}, 13
    v_add_u32 v{XR}, s{sT2}, v8
    v_xor_b32 v{XR+1}, 32, v{XR}
    v_xor_b32 v{XR+2}, 64, v{XR}
    v_xor_b32 v{XR+3}, 0x60, v{XR}""")
    k(f"""v_and_b32 v8, 1, v2
    v_mul_u32_u24 v9, {WU_D}, v8
    v_lshl_add_u32 v18, v6, 3, v3
    v_mul_u32_u24 v18, 192, v18
    v_add_u32 v9, v9, v18
    v_lshl_add_u32 v9, v4, 3, v9
    s_mul_i32 s{sT2}, s{sT1}, 96
    s_add_u32 s{sT2}, s{sT2}, {WG_O}
    v_add_u32 v{WR}, s{sT2}, v9""")
    k(f"v_lshlrev_b32 v9, 4, v0\nv_add_u32 v{KCW}, {KC}, v9")
    k(f"""s_lshl_b32 s{sT2}, s{sP}, 1
    s_add_u32 s{sT2}, s{sT2}, s{sT1}
    s_lshl_b32 s{sT2}, s{sT2}, 12
    s_lshl_b32 s{sT3}, s{sT0}, 11
    s_add_u32 s{sT2}, s{sT2}, s{sT3}
    s_add_u32 s{sT2}, s{sT2}, {YB}
    v_lshlrev_b32 v9, 9, v8
    v_lshl_add_u32 v9, v7, 5, v9
    v_lshl_add_u32 v9, v6, 4, v9
    v_add_u32 v{YS}, s{sT2}, v9""")
    k(f"""s_lshr_b32 s{sT2}, s{sI}, 3
    s_lshl_b32 s{sTB}, s{sXCD}, 2
    s_add_u32 s{sTB}, s{sTB}, s{sT2}
    s_and_b32 s{sDB}, s{sI}, 7""")
    if M2: k(f"""s_lshr_b32 s{sT2}, s{sXCD}, 1
    s_lshl_b32 s{sTB}, s{sT2}, 3
    s_lshr_b32 s{sT2}, s{sI}, 2
    s_add_u32 s{sTB}, s{sTB}, s{sT2}
    s_and_b32 s{sT2}, s{sXCD}, 1
    s_lshl_b32 s{sT2}, s{sT2}, 2
    s_and_b32 s{sDB}, s{sI}, 3
    s_add_u32 s{sDB}, s{sDB}, s{sT2}""")
    k(f"""s_lshl_b32 s{sT2}, s{sMT}, 4
    s_add_u32 s{sT2}, s{sT2}, s{sFT}
    s_lshl_b32 s{sT2}, s{sT2}, 7
    s_add_u32 s{sT2}, s{sT2}, {FH}
    s_cmp_ge_u32 s{sI}, 30
    s_cselect_b32 s{sFH}, {FH+15*128}, s{sT2}
    s_cselect_b32 s{sT2}, {hex(OOB)}, s{sT2}
    s_lshl_b32 s{sFY}, s{sP}, 7
    s_add_u32 s{sFY}, s{sFY}, {FY}
    s_cmp_eq_u32 s{sWV}, 0
    s_cselect_b32 s{sC1}, s{sT2}, {hex(OOB)}
    s_cselect_b32 s{sC2}, s{sFY}, {hex(OOB)}
    s_mov_b32 s{sONE}, 1
    s_and_b32 s{sLA}, s2, 3
    s_lshl_b32 s{sLA}, s{sLA}, 6""")
    k(f"""s_mul_i32 s{sT2}, s{sWV}, {LNS}
    s_add_u32 s{sT2}, s{sT2}, {LNB}
    v_mul_u32_u24 v9, 320, v3
    v_lshl_add_u32 v9, v2, 5, v9
    v_lshl_add_u32 v9, v4, 3, v9
    v_add_u32 v{aTR}, s{sT2}, v9
    s_mul_i32 s{sT2}, s{sWV}, 640
    s_add_u32 s{sT2}, s{sT2}, {LNB}
    v_mul_u32_u24 v9, {LNS}, v2
    v_lshl_add_u32 v9, v7, 4, v9
    v_add_u32 v{aWR}, s{sT2}, v9
    s_lshl_b32 s{sT2}, s{sRB}, 6
    s_lshl_b32 s{sT3}, s{sWV}, 4
    s_add_u32 s{sT2}, s{sT2}, s{sT3}
    s_add_u32 s{sT2}, s{sT2}, {STATS}
    v_lshl_add_u32 v9, v6, 3, s{sT2}
    v_cmp_eq_u32 vcc, 0, v5
    v_mov_b32 v18, {hex(OOB)}
    s_lshl_b32 s{sT2}, s{sRB}, 13
    s_lshl_b32 s{sT3}, s{sWV}, 11
    v_cndmask_b32 v{aST}, v18, v9, vcc
    s_add_u32 s{sT2}, s{sT2}, s{sT3}
    v_lshl_add_u32 v{aXN}, v1, 4, s{sT2}
    v_writelane_b32 v{aST}, s{sC1}, 1""")
    if not YP: k(f"v_writelane_b32 v{aST}, s{sC2}, 2")
    k(f"""s_mul_i32 s{sT2}, s{sWV}, {TBS}
    s_add_u32 s{sPB}, s{sT2}, {PX}
    s_waitcnt lgkmcnt(0)
    s_lshl_b32 s{sT2}, s{sT1}, 4
    s_lshr_b32 s{sLD}, s{sLD}, s{sT2}
    s_lshl_b32 s{sLD}, s{sLD}, 16
    s_lshr_b32 s{sDK}, s{sDK}, s{sT2}
    s_lshl_b32 s{sDK}, s{sDK}, 16
    s_cmp_eq_u32 s{sT0}, 0
    s_cselect_b32 s{sDK}, s{sDK}, 0""")
    for r in (AZ,AZ+1,AZ+2,AZ+3): k(f"v_accvgpr_write_b32 a{r}, 0")
    if YP and YPS!=-2:
        for r in range(AP,AP+4): k(f"v_accvgpr_write_b32 a{r}, -1")
    k(f"""v_lshlrev_b32 v9, 3, v0
    s_mov_b32 s{sDL}, {EXB}
    v_sub_u32 v18, 2047, v9
    s_mov_b32 s{sCNT}, {656+0x4280+EXB}
    v_cvt_f32_i32 v18, v18
    v_sub_u32 v19, {2047+0x4280+EXB}, v9
    v_min_i32 v19, {138+0x4280+EXB}, v19""")
    for i in range(0,11,2):
        k(f"v_subrev_f32 v24, {float(i)}, v18" if i in(0,2,4) else f"v_subrev_f32 v24, {hex(f2b(float(i)))}, v18")
        k(f"v_subrev_f32 v25, 1.0, v24\nv_cvt_pk_bf16_f32 v24, v24, v25")
        for h in range(2):
            if i+h>10: break
            k(f"""v_subrev_u32 v26, {i+h}, v19
            v_add_u32_sdwa v25, s{sDL}, v24 dst_sel:DWORD dst_unused:UNUSED_PAD src0_sel:DWORD src1_sel:WORD_{h}
            v_med3_i32 v25, v25, v26, s{sCNT}
            v_lshrrev_b32 v26, 5, v25
            v_add_lshl_u32 v{EX+i+h}, v25, v26, 2""")
    k(f"""v_lshrrev_b32 v9, 2, v7
    v_lshl_add_u32 v9, v7, 3, v9
    v_lshl_add_u32 v9, v8, 2, v9
    v_mul_u32_u24 v27, 132, v6
    v_add_lshl_u32 v9, v9, v27, 2
    v_add_u32 v{PA0}, s{sPB}, v9
    v_sub_u32 v9, 2, v6
    v_lshlrev_b32 v9, v9, v7
    v_lshl_add_u32 v27, v6, 1, 3
    v_lshrrev_b32 v27, v27, v7
    v_mul_u32_u24 v28, 66, v2
    v_add3_u32 v9, v9, v27, v28
    s_add_u32 s{sDL}, s{sPB}, 1056
    v_lshl_add_u32 v{PA1}, v9, 2, s{sDL}
    v_mul_u32_u24 v27, 124, v6
    v_add3_u32 v{PA2}, v{PA1}, v27, 8
    v_add_lshl_u32 v9, v28, v7, 2
    s_add_u32 s{sDL}, s{sPB}, 2112
    v_add_u32 v{PA3}, s{sDL}, v9
    s_sub_u32 s{sDL}, s{sPB}, {PX-KC}
    v_lshl_add_u32 v{TW}, v1, 4, s{sDL}
    v_lshl_add_u32 v9, v2, 3, v3
    v_lshlrev_b32 v9, 4, v9
    v_lshrrev_b32 v27, 1, v4
    v_mul_u32_u24 v27, 1088, v27
    v_and_b32 v28, 1, v4
    v_lshl_add_u32 v9, v28, 3, v9
    v_add3_u32 v{TR}, v9, v27, s{sDL}
    v_and_b32 v9, 7, v1
    v_mul_u32_u24 v9, {KCS}, v9
    v_lshlrev_b32 v27, 1, v1
    v_and_b32 v27, 16, v27
    v_add_u32 v9, {KC+4096}, v9
    v_add_u32 v{KZ}, v9, v27""")
    sH0_=sDL
    def late_blocks():
        B=[]
        def blk(t):
            L=[]
            for x in t.split("\n"):
                x=x.strip()
                if not x: continue
                if x.startswith('s_cselect') : L[-1]+="\n"+x
                else: L.append(x)
            B.append(L)
        t=f"""s_mul_i32 s{sT2}, s{sFT}, 6
        s_mul_i32 s{sT3}, s{sT1}, 3
        s_add_u32 s{sT2}, s{sT2}, s{sT3}
        s_lshl_b32 s{sT3}, s{sT2}, 7
        s_add_u32 s{sT3}, s{sT3}, {CS}
        v_lshl_add_u32 v9, v1, 2, s{sT3}
        v_lshl_or_b32 v{CSA}, v6, 31, v9
        """
        for j in range(3):
            t+=f"""s_add_u32 s{sT3}, s{sT2}, {j}
            s_cmp_lt_u32 s{sT3}, 86
            s_cselect_b32 s{sH0}, 0, {hex(OOB)}
            s_lshl_b32 s{sT3}, s{sT3}, 10
            s_or_b32 s{sT3}, s{sT3}, s{sH0}
            v_lshl_add_u32 v{HS+j}, v1, 4, s{sT3}
            """
        t+=f"""s_lshl_b32 s{sT2}, s{sMT}, 1
        s_add_u32 s{sT2}, s{sT2}, s{sT0}
        s_lshl_b32 s{sT3}, s{sT2}, 9
        s_add_u32 s{sT3}, s{sT3}, {STATS}
        v_lshl_add_u32 v{ST}, v5, 3, s{sT3}
        s_mul_i32 s{sH0}, s{sT2}, {2*88064}
        s_add_u32 s{sH0}, s{sH0}, {HB}
        s_add_u32 s{sH1}, s{sH0}, 88064
        v_lshlrev_b32 v{LNP}, 6, v4
        """
        for r in (EA+1,EA+3,EA+5,EB+1,EB+3): t+=f"v_accvgpr_write_b32 a{r}, 0\n"
        blk(t)
        blk(f"""v_lshrrev_b32 v9, 1, v0
        v_and_b32 v192, 1, v0
        s_lshl_b32 s{sT2}, s{sP}, 5
        v_lshl_add_u32 v198, v192, 4, s{sT2}
        v_lshl_add_u32 v{UL}, v9, 13, v198
        v_mul_u32_u24 v192, {US}, v192
        v_lshl_add_u32 v192, v9, 4, v192
        v_add_u32 v{UW}, {UO+480}, v192
        v_min_u32 v9, 29, v5
        v_mul_u32_u24 v192, {US}, v6
        v_lshl_add_u32 v192, v9, 4, v192
        v_add_u32 v{UZ}, {UO}, v192
        s_mov_b32 s{sUQ}, 0x100000""")
        blk(f"""v_lshlrev_b32 v9, 2, v8
        v_xor_b32 v9, v9, v1
        v_and_b32 v9, 7, v9
        v_lshlrev_b32 v9, 4, v9
        v_lshrrev_b32 v192, 3, v1
        v_lshl_add_u32 v9, v192, 10, v9
        s_lshl_b32 s{sT2}, s{sDB}, 7
        v_add_u32 v{WDV}, s{sT2}, v9
        v_add_u32 v{WDV+1}, 7168, v{WDV}
        v_lshl_add_u32 v9, v6, 2, v3
        v_lshlrev_b32 v9, 7, v9
        v_lshrrev_b32 v192, 1, v3
        v_xor_b32 v192, s{sT1}, v192
        v_lshl_add_u32 v9, v192, 6, v9
        v_lshl_add_u32 v9, v8, 5, v9
        v_lshl_add_u32 v9, v4, 3, v9
        s_mul_i32 s{sAW}, s{sWV}, {AWS}
        s_mul_i32 s{sCWB}, s{sWV}, {CWS}
        s_add_u32 s{sCWB}, s{sCWB}, {CW}
        v_add_u32 v{TA}, s{sAW}, v9
        v_xor_b32 v{TA+1}, 64, v{TA}
        v_add_u32 v{TC}, s{sCWB}, v9
        v_xor_b32 v{TC+1}, 64, v{TC}""")
        t=f"""s_mul_i32 s{sT2}, s{sWV}, 22
        s_cmp_eq_u32 s{sWV}, 3
        s_cselect_b32 s{sT2}, 65, s{sT2}
        s_sub_u32 s{sT3}, 22, s{sT1}
        """
        if ROT2:
            t+=f"""s_and_b32 s{sCNT}, s{sI}, {3 if M2 else 7}
            s_mul_i32 s{sCNT}, s{sCNT}, {RB if M2 else RA}
            s_lshr_b32 s{sDL}, s{sI}, {2 if M2 else 3}
            s_mul_i32 s{sDL}, s{sDL}, {RA if M2 else RB}
            s_add_u32 s{sCNT}, s{sCNT}, s{sDL}
            v_add_u32 v9, s{sCNT}, v1
            """
        else: t+="v_mov_b32 v9, v1\n"
        for _ in range(3): t+=f"v_subrev_u32 v192, s{sT3}, v9\nv_min_u32 v9, v9, v192\n"
        t+=f"v_add_u32 v9, s{sT2}, v9\nv_lshlrev_b32 v192, 14, v9\n"
        if WT6:
            t+=f"v_min_u32 v10, {WT6-1}, v2\ns_add_u32 s{sCNT}, s{sCNT}, {WT0}\nv_add_u32 v10, s{sCNT}, v10\n"
            for _ in range(2): t+=f"v_subrev_u32 v9, s{sT3}, v10\nv_min_u32 v10, v10, v9\n"
            t+=f"v_add_u32 v10, s{sT2}, v10\nv_lshl_add_u32 v10, v10, 4, v7\ns_lshl_b32 s{sCNT}, s{sDB}, 7\nv_lshl_add_u32 v10, v10, 10, s{sCNT}\n"
        else: t+="s_nop 0\n"
        for j in range(22):
            jj=j
            if QM: jj={21-QM:21,21:21-QM}.get(j,j)
            t+=f"v_readlane_b32 s{4+j}, v192, {jj}\n"
        blk(t)
        blk(f"""s_mul_i32 s{sT2}, s{sT1}, {4*KCS}
        s_lshl_b32 s{sT3}, s{sT0}, 8
        s_sub_u32 s{sT2}, s{sT2}, s{sT3}
        s_add_u32 s{sT2}, s{sT2}, {KC+4056-3776}
        v_mul_u32_u24 v9, {KCS}, v4
        v_lshl_add_u32 v9, v2, 4, v9
        v_lshlrev_b32 v192, 3, v3
        v_sub_u32 v9, v9, v192
        v_add_u32 v{CA}, s{sT2}, v9
        s_mul_i32 s{sT2}, s{sT1}, {US}
        s_sub_u32 s{sT2}, s{sT2}, s{sT3}
        s_add_u32 s{sT2}, s{sT2}, {UO+256}
        v_lshlrev_b32 v9, 4, v2
        v_lshl_add_u32 v9, v7, 5, v9
        v_add_u32 v{CB}, s{sT2}, v9""")
        blk(f"""s_lshl_b32 s{sT2}, s{sTB}, 1
        s_add_u32 s{sT2}, s{sT2}, s{sT0}
        s_mul_i32 s{sT3}, s{sT2}, 88064
        s_add_u32 s{sT3}, s{sT3}, {HB}
        v_lshl_add_u32 v{HL}, v1, 4, s{sT3}
        s_xor_b32 s{sT3}, s{sT2}, 1
        s_mul_i32 s{sT3}, s{sT3}, 88064
        s_add_u32 s{sT3}, s{sT3}, {HB}
        v_lshl_add_u32 v{HL+1}, v1, 4, s{sT3}
        s_lshl_b32 s{sT3}, s{sT2}, 5
        v_add_u32 v9, s{sT3}, v5
        v_lshlrev_b32 v192, 3, v9
        v_add_u32 v{RS}, {STATS+4}, v192
        s_lshl_b32 s{sT3}, s{sDB}, 1
        s_add_u32 s{sT3}, s{sT3}, s{sT1}
        s_lshl_b32 s{sYQ}, s{sT3}, 6
        v_lshlrev_b32 v9, 10, v9
        v_lshl_add_u32 v9, v6, 4, v9
        v_add_u32 v{XO}, s{sYQ}, v9
        s_lshl_b32 s{sYQ}, s{sT3}, 17
        s_lshl_b32 s{sT2}, s{sT2}, 6
        s_add_u32 s{sT2}, s{sT2}, s{sYQ}
        s_add_u32 s{sT2}, s{sT2}, {YB}
        v_lshrrev_b32 v9, 2, v1
        v_lshlrev_b32 v9, 12, v9
        v_lshl_add_u32 v9, v4, 4, v9
        v_add_u32 v{YL}, s{sT2}, v9
        s_mov_b32 s{sYQ}, 0x10000
        s_lshl_b32 s{sT2}, s{sWV}, 11
        s_add_u32 s{sT2}, s{sT2}, {KC}
        v_lshl_add_u32 v{YW}, v1, 4, s{sT2}
        v_lshl_add_u32 v9, v6, 2, v3
        v_lshlrev_b32 v9, 6, v9
        v_lshl_add_u32 v9, v8, 5, v9
        v_lshl_add_u32 v9, v4, 3, v9
        v_add_u32 v{YR}, s{sT2}, v9
        s_lshl_b32 s{sT3}, s{sT3}, 11
        s_add_u32 s{sT3}, s{sT3}, {FY}
        v_lshl_add_u32 v{FYP}, v7, 7, s{sT3}
        s_lshr_b32 s{sT2}, s{sTB}, 1
        s_lshl_b32 s{sT2}, s{sT2}, 11
        s_add_u32 s{sT2}, s{sT2}, {FH}
        {"v_min_u32 v9, 14, v7" if not HFW else f"s_mul_i32 s{sT3}, s{sWV}, 7"+chr(10)+f"s_lshr_b32 s{sT3}, s{sT3}, 1"+chr(10)+f"s_add_u32 s{sH0_}, s{sT0}, 3"+chr(10)+f"v_min_u32 v9, s{sH0_}, v7"+chr(10)+f"v_add_u32 v9, s{sT3}, v9"}
        v_lshl_add_u32 v{FHP}, v9, 7, s{sT2}
        v_lshlrev_b32 v{EXW}, 4, v1""")
        return B
    for b in late_blocks()[:NE]: run(b)
    def late(): return sum(late_blocks()[NE:],[])
    k.dq=[]
    if probe&1: k.stamp('ad0')
    if not D0K: run(D0R); D0R=[]
    k.stamp('addr')
    CEI=[]
    def kgen():
        def sp(t): return [x.strip() for x in t.split("\n") if x.strip()]
        q1,q8,q128=172,174,176
        p=PAR; pr=lambda x:f"v[{x}:{x+1}]"
        S=sp(f"""v_mov_b32 v60, s{sLD}
        v_mul_f32 v60, 0x3fb8aa3b, v60
        v_exp_f32 v60, v60
        s_nop 0
        v_cvt_pk_bf16_f32 v60, v60, v60
        v_and_b32 v60, s{sMSK}, v60""")
        def cearly():
            if not CE: return
            L=k.lab("CE"); k(f"s_cmp_lt_u32 s{sI}, 30\ns_cbranch_scc1 {L}")
            n=len(k.vq); run(dma_list(SS,"dx")[5:]+nextk); del k.vq[n:]; CEI.append(n)
            k(f"s_add_u32 s{sMG}, s{sMG}, {SS}\n{L}:")
        S.append(lambda: (k.w(v="par"),k.stamp('par'),run(D0R),cearly()))
        S+=sp(f"""v_pk_mul_f32 {pr(p)}, {pr(p)}, v[60:61] op_sel_hi:[1,0]
        v_pk_mul_f32 {pr(p+2)}, {pr(p+2)}, v[60:61] op_sel_hi:[1,0]
        v_mul_f32 v{p}, 0x3fb8aa3b, v{p}
        v_mul_f32 v{p+1}, 0.15915494, v{p+1}
        v_mul_f32 v180, 0x41000000, v{p}
        v_mul_f32 v181, 0x41000000, v{p+1}
        v_mul_f32 v182, 0x43000000, v{p}
        v_mul_f32 v183, 0x43000000, v{p+1}
        v_exp_f32 v180, v180
        v_exp_f32 v178, v{p}
        v_exp_f32 v182, v182
        v_fract_f32 v181, v181
        v_fract_f32 v179, v{p+1}
        v_fract_f32 v183, v183""")
        def cmul(L,T,d,x,y):
            L+=[f"v_pk_mul_f32 {pr(T)}, {pr(x)}, {pr(y)} op_sel:[0,0] op_sel_hi:[0,1]",
                f"v_pk_fma_f32 {pr(d)}, {pr(x)}, {pr(y)}, {pr(T)} op_sel:[1,1,0] op_sel_hi:[1,0,1] neg_lo:[1,0,0]"]
        cmul(S,64,60,p+4,p+2)
        for j in (1,0,2): S+=sp(f"v_cos_f32 v{172+2*j}, v{179+2*j}\nv_sin_f32 v{173+2*j}, v{179+2*j}")
        for j in (1,0,2): S.append(f"v_pk_mul_f32 {pr(172+2*j)}, {pr(172+2*j)}, {pr(178+2*j)} op_sel_hi:[1,0]")
        def pack(L,t,e,x,y):
            n='-' if t==0 else ''
            re,im=(TB+16*t+(e>>1),TB+16*t+8+(e>>1)) if t<3 else ((TB+48+(e>>1),TB+52+(e>>1)) if e<8 else (TB+56,TB+58))
            o=lambda z,j: (z[j] if isinstance(z,tuple) else f"{n if j else ''}v{z+j}")
            L+=[f"v_cvt_pk_bf16_f32 v{re}, {o(x,0)}, {o(y,0)}",f"v_cvt_pk_bf16_f32 v{im}, {o(x,1)}, {o(y,1)}"]
        A=[];X0,X1,T=60,62,64
        for b in range(0,16,2):
            if b: cmul(A,T,X0,X1,q8)
            cmul(A,T,X1,X0,q8); pack(A,0,b,X0,X1)
        A.append(('T',0))
        B=[];X0,X1,T=66,68,70
        qp={1:q1}
        pack(B,1,0,("1.0","0"),q1)
        for x in range(2,8):
            qp[x]=178+2*(x-2); cmul(B,T,qp[x],qp[x-1],q1)
            if x&1: pack(B,1,x-1,qp[x-1],qp[x])
        cmul(B,T,X1,q128,q1); pack(B,1,8,q128,X1)
        for x in (2,4,6): cmul(B,T,X0,q128,qp[x]); cmul(B,T,X1,q128,qp[x+1]); pack(B,1,8+x,X0,X1)
        B.append(('T',1))
        C=[];C0,X0,X1,T=72,74,76,78
        D=[];D0,D1,TD=80,82,84
        cmul(C,T,C0,q128,q128)
        cmul(D,TD,D0,q128,q128); cmul(D,TD,D0,D0,D0); cmul(D,TD,D1,D0,D0)
        for x in (2,3):
            if x==3: cmul(C,T,C0,C0,q128)
            cmul(C,T,X1,C0,qp[2]); pack(C,2,4*(x-2),C0,X1)
            cmul(C,T,X0,C0,qp[4]); cmul(C,T,X1,C0,qp[6]); pack(C,2,4*(x-2)+2,X0,X1)
        for x in range(4,8):
            cmul(C,T,C0,C0,q128); cmul(C,T,X1,C0,qp[4]); pack(C,2,8+2*(x-4),C0,X1)
        C.append(('T',2))
        for x in range(0,8,2):
            if x: cmul(D,TD,D1,D0,q128)
            cmul(D,TD,D0,D1,q128); pack(D,3,x,D1,D0)
        cmul(D,TD,D1,D0,q128); pack(D,3,8,D1,("0","0"))
        D.append(('T',3))
        def rr(a,b):
            o=[];a=list(a);b=list(b);na,nb=len(a),len(b)
            while a or b:
                if a and (not b or len(a)*nb>=len(b)*na): o.append(a.pop(0))
                else: o.append(b.pop(0))
            return o
        S+=rr(A,B)+rr(C,D)
        S+=sp(f"v_mov_b32 v{PACC}, 0\nv_mov_b32 v{PACC+1}, 0\nv_mov_b32 v{PACC+2}, 0\nv_mov_b32 v{PACC+3}, 0\nv_writelane_b32 v{PACC}, s{sDK}, 0")
        return S
    def tabio(t):
        L=[]
        R=[TB+16*t+4*j for j in range(4)] if t<3 else [TB+48,TB+56,TB+52,TB+58]
        for j in range(4):
            if t==3 and j&1 and T3B: L.append(('r',lambda r=R[j],j=j: k.ds(f"ds_write_b32 v{TW}, v{r} offset:{1088*j}","tw")))
            else: L.append(('w',lambda r=R[j],j=j: k.ds(f"ds_write_b128 v{TW}, {vr(r,4)} offset:{1088*j}","tw")))
        for st in range(4):
            for h in range(2): L.append(('r',lambda t=t,st=st,h=h: k.ds(f"ds_read_b64_tr_b16 {ar(KF+16*t+4*st+2*h,2)}, v{TR} offset:{(st&1)*2176+(st>>1)*512+64*h}",f"kf{t}")))
        return L
    def pmf(T):
        return [f"v_mfma_f32_16x16x32_bf16 {vr(PACC+4*T,4)}, {ar(KF+16*(T+1)+4*st,4)}, {ar(KF+4*st,4)}, {vr(PACC+4*T,4) if (st or T==0) else '0'}" for st in range(4)]
    def pwr(T):
        if T==0: k.ds(f"ds_write2_b32 v{PA0}, v{PACC}, v{PACC+1} offset0:0 offset1:1"); k.ds(f"ds_write2_b32 v{PA0}, v{PACC+2}, v{PACC+3} offset0:2 offset1:3")
        if T==1: k.ds(f"ds_write2_b32 v{PA1}, v{PACC+4}, v{PACC+5} offset0:0 offset1:1"); k.ds(f"ds_write2_b32 v{PA2}, v{PACC+6}, v{PACC+7} offset0:0 offset1:1")
        if T==2: k.ds(f"ds_write2_b32 v{PA3}, v{PACC+8}, v{PACC+9} offset0:0 offset1:16"); k.ds(f"ds_write2_b32 v{PA3}, v{PACC+10}, v{PACC+11} offset0:33 offset1:49")
    LN=[lambda: (k.w(v="row"),k.stamp('kg'))]
    def ln(t): LN.extend(x.strip() for x in t.split("\n") if x.strip())
    for j in range(8): ln(f"v_lshlrev_b32 v{20+2*j}, 16, v{ROW+j}\nv_and_b32 v{21+2*j}, s{sMSK}, v{ROW+j}")
    def red2(m):
        LN.append(('M',m))
        ln("""s_nop 1
        v_permlane32_swap_b32 v40, v41
        v_add_f32 v40, v40, v41
        v_mov_b32 v41, v40
        s_nop 1
        v_permlane16_swap_b32 v40, v41
        v_add_f32 v40, v40, v41""")
        for r in(8,4,2,1): ln(f"s_nop 1\nv_add_f32_dpp v40, v40, v40 row_ror:{r} row_mask:0xf bank_mask:0xf")
        ln("v_mul_f32 v40, 0x3b000000, v40")
    for b,d in((20,40),(28,41)):
        ln(f"""v_pk_add_f32 v[36:37], v[{b}:{b+1}], v[{b+2}:{b+3}]
        v_pk_add_f32 v[38:39], v[{b+4}:{b+5}], v[{b+6}:{b+7}]
        v_pk_add_f32 v[36:37], v[36:37], v[38:39]
        v_add_f32 v{d}, v36, v37""")
    red2(0)
    ln(f"""v_mov_b32 v42, v40
    v_mov_b32 v43, v40
    v_cvt_pk_bf16_f32 v{LST}, -v40, -v40
    s_nop 0
    v_permlane32_swap_b32 v42, v43""")
    for h,(b,d) in enumerate(((20,40),(28,41))):
        for j in range(4):
            ln(f"v_pk_add_f32 v[38:39], v[{b+2*j}:{b+2*j+1}], v[42:43] op_sel:[0,{h}] op_sel_hi:[1,{h}] neg_lo:[0,1] neg_hi:[0,1]")
            ln("v_pk_mul_f32 v[36:37], v[38:39], v[38:39]" if j==0 else "v_pk_fma_f32 v[36:37], v[38:39], v[38:39], v[36:37]")
        ln(f"v_add_f32 v{d}, v36, v37")
    red2(1)
    LN.append(('M',2))
    ln(f"""v_cvt_pk_bf16_f32 v40, v40, v40
    v_and_b32 v40, s{sMSK}, v40
    v_add_f32 v40, 0x3727c5ac, v40
    v_cvt_pk_bf16_f32 v40, v40, v40
    v_and_b32 v40, s{sMSK}, v40
    v_sqrt_f32 v40, v40
    v_and_b32 v41, s{sMSK}, v{LST}
    v_cvt_pk_bf16_f32 v40, v40, v40
    v_and_b32 v40, s{sMSK}, v40
    v_rcp_f32 v46, v40
    s_nop 0
    v_mul_f32 v47, v41, v46
    v_mul_f32 v{LST+1}, v46, v46
    v_mov_b32 v48, v46
    v_mov_b32 v49, v47
    s_nop 1
    v_permlane32_swap_b32 v46, v48
    v_permlane32_swap_b32 v47, v49""")
    LN.append(('M',3))
    for h,b in enumerate((20,28)):
        P=f"v[{46+2*h}:{47+2*h}]"
        for j in range(4):
            ln(f"v_pk_fma_f32 v[{b+2*j}:{b+2*j+1}], v[{b+2*j}:{b+2*j+1}], {P}, {P} op_sel:[0,0,1] op_sel_hi:[1,0,1]")
            ln(f"v_cvt_pk_bf16_f32 v{ROW+4*h+j}, v{b+2*j}, v{b+2*j+1}")
        LN.append(lambda h=h: k.ds(f"ds_write_b128 v{aWR}, {vr(ROW+4*h,4)} offset:{320*h}"))
    LN.append(('M',4))
    D1=dma_list(SS,"d1")+nextk
    if XP&16:
        for i in range(10,-1,-1): k.w(v=i); k.stamp(f'w{i}')
    if XP&32:
        i=0
        for f in D1:
            run([f])
            if callable(f): k.stamp(f'i{i}'); i+=1
        for i in range(10,-1,-1): k.w(v=i); k.stamp(f'w{i}')
        D1=[]
    IO=[]; IOL=[]; lastw=-99; n=0; nt=0
    def icount(): return sum(1 for l in k.L if not l.endswith(':') and not l.strip().startswith(';'))
    def cost(l):
        l=l.strip()
        if l.endswith(':') or l.startswith(';') or not l: return 0
        if l.startswith('ds_write_b128'): return 50
        if l.startswith('ds_'): return 12
        if l.split()[0][:5] in('v_exp','v_sin','v_cos','v_rcp','v_sqr','v_log'): return 8
        if l.startswith('s_nop'): return 4 if int(l.split()[1])<4 else 8
        return 4
    clk=None; nx=D1C; l0=len(k.L)
    DL=[int(x) for x in D1L.split('_')] if D1L else []
    if DL: nx=DL.pop(0)
    for f in kgen()+LN:
        if isinstance(f,tuple):
            if f[0]=='T':
                (IO if nt<IOP else IOL).extend(tabio(f[1])); nt+=1
            continue
        run([f]); n+=1
        if clk is None and callable(f): clk=0; l0=len(k.L)
        if IO:
            if IO[0][0]=='r': run([IO.pop(0)[1]])
            elif n-lastw>=TWK: run([IO.pop(0)[1]]); lastw=n
        if D1P:
            if clk is not None:
                clk+=sum(cost(l) for l in k.L[l0:]); l0=len(k.L)
                if clk>=nx and D1:
                    while D1 and not callable(D1[0]): run([D1.pop(0)])
                    if D1: run([D1.pop(0)])
                    nx=(DL.pop(0) if DL else nx) if D1L else nx+D1P
        elif n>=D1S and (n-D1S)%D1E==D1E-1 and D1:
            g=D1.pop(0); run([g])
            if not callable(g) and D1: run([D1.pop(0)])
    print("prologue cost after par",clk,"d1 left",len(D1))
    run([x[1] for x in IO])
    run(D1)
    def ptail(F=[]):
        fin={}; F=list(F)
        for T in range(3):
            k.w(d=min(k.nd("kf0"),k.nd(f"kf{T+1}")))
            for m in pmf(T):
                k(m); fin[T]=icount()
                if F:
                    f=F.pop(0); run([f])
                    if not callable(f) and F: run([F.pop(0)])
        run(F)
        for T in range(3):
            d=8-(icount()-fin[T])
            if d>0: k(f"s_nop {d-1}")
            pwr(T)
    def ptail_items():
        L=[]; fin={}
        for T in range(3):
            for i,m in enumerate(pmf(T)):
                L.append(lambda T=T,i=i,m=m: (k.w(d=min(k.nd("kf0"),k.nd(f"kf{T+1}"))) if i==0 else 0, k(m), fin.__setitem__(T,icount())))
        def pw(T):
            d=8-(icount()-fin[T])
            if d>0: k(f"s_nop {d-1}")
            pwr(T)
        if PTS==2:
            def blk():
                k.w(d=min(k.nd(f"kf{t}") for t in range(4)))
                for st in range(4):
                    for T in range(3): k(pmf(T)[st]); fin[T]=icount()
            return [blk,"s_nop 0","s_nop 0",lambda:pw(0),"s_nop 0",lambda:pw(1),"s_nop 0",lambda:pw(2)]
        return L[:8]+[lambda:pw(0)]+L[8:]+[lambda:pw(1),"s_nop 0",lambda:pw(2)]
    k.stamp('ln')
    CSL=k.lab("CS"); MRG=k.lab("MRG")
    k(f"s_cmp_ge_u32 s{sI}, 30\ns_cbranch_scc1 {CSL}")
    vq_cs=list(k.vq)
    if CE: vq_cs=vq_cs[:CEI[0]]+["d1"]*6+["d2" if x=="d1" else x for x in vq_cs[CEI[0]:]]
    pass; dq_cs=list(k.dq); nst_cs=k.nst; IOL_cs=list(IOL)
    def lntr():
        return [lambda q=q,h=h: k.ds(f"ds_read_b64_tr_b16 {ar(LTR+4*q+2*h,2)}, v{aTR} offset:{128*q+1280*h}",f"lt{q}") for q in range(2) for h in range(2)]
    def poison(): return [lambda j=j: k.vm(f"buffer_store_dwordx4 {ar(AP,4)}, v{YS}, {srd(SW)}, 0 offen offset:{1024*j} sc1","lnst") for j in range(2)]
    def lnst(yp=1):
        L=[f"v_writelane_b32 v{LST}, 0, 1"]
        if not YP: L+=[f"v_writelane_b32 v{LST}, 0, 2"]
        L+=[lambda: k.vm(f"buffer_store_dwordx2 {vr(LST,2)}, v{aST}, {srd(SW)}, 0 offen sc1","lnst")]
        if YP and yp: L+=poison()
        for q in range(2): L.append(lambda q=q:(k.w(d=f"lt{q}"),k.vm(f"buffer_store_dwordx4 {ar(LTR+4*q,4)}, v{aXN}, {srd(SW)}, 0 offen offset:{1024*q} sc1","lnst")))
        return L
    def lnatomic():
        L=k.lab(); k(f"s_cmp_lg_u32 s{sWV}, 0\ns_cbranch_scc1 {L}\ns_atomic_add s{sONE}, s[{SB}:{SB+1}], s{sLA}\n{L}:"); k.smem=1
    def exrd(c): return [lambda i=i: k.ds(f"ds_read2st64_b32 {vr(112+24*c+2*i,2)}, v{EX+i} offset0:{PO[2*c]} offset1:{PO[2*c+1]}",f"ex{c}_{i}") for i in range(11)]
    def exva(c):
        L=[]
        for i in range(11):
            t=f"v_add_f32 v{112+24*c+2*i}, v{112+24*c+2*i}, v{113+24*c+2*i}"
            L.append((lambda i=i,t=t:(k.w(d=f"ex{c}_{min(i+3,10)}"),k(t))) if i in(0,4,8) else t)
        for s in range(4):
            for j in range(4):
                i=112+24*c+2*(3-s+2*j)
                L.append(f"v_cvt_pk_bf16_f32 v{KX+16*c+4*s+j}, v{i}, v{i+2}")
        return L
    def kcw():
        return [lambda r=r: k.ds(f"ds_write_b128 v{KCW}, {vr(KX+4*r,4)} offset:{r*KCS}","kcw") for r in range(8)]+[lambda: k.ds(f"ds_write_b128 v{KZ}, {ar(AZ,4)}","kcw")]
    ACC=16; FS=(176,196,216,236)
    base=[0]
    def rd(slot,st,f,what,tag="fr"):
        o=slot*SS-base[0]; assert 0<=o<=SS
        if what[0]=='b':
            e=what[1]; return [lambda: k.ds(f"ds_read_b128 {ar(FS[f]+12+4*e,4)}, v{XR+st} offset:{o+4096*e}",tag)]
        u=what[1]; return [lambda h=h: k.ds(f"ds_read_b64_tr_b16 {ar(FS[f]+4*u+2*h,2)}, v{WR} offset:{o+3072*st+768*h+32*u}",tag) for h in range(2)]
    def dummy():
        if getattr(k,'smem',0): k.ds(f"ds_read_u8 v{JNK}, v1","dum")
    def reads(slot,st,f):
        return rd(slot,st,f,('b',0))+rd(slot,st,f,('a',0))+rd(slot,st,f,('b',1))+rd(slot,st,f,('a',1))+rd(slot,st,f,('a',2))+[dummy]
    def mf1(f,b,zero=False):
        u,e=b>>1,b&1
        return f"v_mfma_f32_32x32x16_bf16 {vr(ACC+16*b,16)}, {ar(FS[f]+4*u,4)}, {ar(FS[f]+12+4*e,4)}, {'0' if zero else vr(ACC+16*b,16)}"
    def mf(f,zero=False): return [mf1(f,b,zero) for b in range(6)]
    def mix(a,b):
        o=[];a=list(a);b=list(b)
        while a or b:
            if a:o.append(a.pop(0))
            if a:o.append(a.pop(0))
            if b:o.append(b.pop(0))
        return o
    def adv(delta): return [f"v_add_u32 v{r}, {delta}, v{r}" for r in(XR,WR,XR+1,XR+2,XR+3)]
    side=[]; acc=[0]
    def wv(mfs,fl,per):
        fl=list(fl)
        for i,m in enumerate(mfs):
            run([m])
            n=per[i] if isinstance(per,(list,tuple)) else per
            for _ in range(n):
                if fl: run([fl.pop(0)])
            acc[0]+=NS
            while acc[0]>=10:
                acc[0]-=10
                if side: run([side.pop(0)])
        run(fl)
    def poll(tag,reg,addr,sr,exp):
        ok=k.lab("OK"); rt=k.lab("RT")
        k.w(v=tag)
        cmp="gt" if exp==64 else "ne"
        k(f"v_cmp_{cmp}_u32 vcc, {exp}, v{reg}\ns_cbranch_vccnz {rt}\n{ok}:")
        lp=k.lab("RL"); sl_=SLP if exp==64 else SLH
        k.tail.append(f"""{rt}:
        s_movk_i32 s{sRING}, 4000
        {lp}:
        {'s_sleep %d'%sl_ if sl_ else ''}
        buffer_load_dword v{reg}, v{addr}, {srd(sr)}, 0 offen sc1
        s_waitcnt vmcnt(0)
        v_cmp_{cmp}_u32 vcc, {exp}, v{reg}
        s_cbranch_vccz {ok}
        s_sub_u32 s{sRING}, s{sRING}, 1
        s_cmp_lg_u32 s{sRING}, 0
        s_cbranch_scc1 {lp}
        s_branch {ok}""")
    LNX=64; FLX=4
    def sat(so): k(f"s_atomic_add s{sONE}, s[{SW}:{SW+1}], s{so}"); k.smem=1
    lnpoll=lambda: k.vm(f"buffer_load_dword v{PL}, v{LNP}, {srd(SB)}, 0 offen sc1","lnp")
    def uloads():
        return [lambda q=q: k.vm(f"buffer_load_dwordx4 {ar(UR+4*q,4)}, v{UL}, {srd(SW)}, {'s%d'%sUQ if q else 0} offen{'' if NSC&1 else ' sc1'}","u") for q in range(2)]
    def wd_loc(j):
        if j<4: return ('C',2048*j)
        if j<9: return ('A',2048*(j-4))
        if j<14: return ('A',BW+2048*(j-9))
        if j<18: return ('C',2048*(j-14))
        return ('A',2048*(j-18))
    def wd_dma(j):
        r,o=wd_loc(j); b=sCWB if r=='C' else sAW
        return [f"s_add_u32 m0, s{b}, {o}" if o else f"s_mov_b32 m0, s{b}"]+[lambda h=h: k.vm(f"buffer_load_dwordx4 v{WDV+h}, {srd(SD)}, s{4+j} offen offset:{1024*h} lds",f"wd{j}") for h in range(2)]
    def wd_tr(j):
        r,o=wd_loc(j); b=TC if r=='C' else TA
        return [lambda e=e,h=h: k.ds(f"ds_read_b64_tr_b16 {ar(8*j+4*e+2*h,2)}, v{b+e} offset:{o+1024*h}",f"wt{j}") for e in range(2) for h in range(2)]
    def uwrite():
        L=[lambda: k.ds(f"ds_write_b128 v{UZ}, {ar(AZ,4)}","uw")]
        L+=[lambda q=q: (k.w(v="u"),k.ds(f"ds_write_b128 v{UW}, {ar(UR+4*q,4)} offset:{2048*q}","uw")) for q in range(2)]
        return L
    sl=[lambda e=e: k.vm(f"buffer_load_dword a{EB+2*e}, v{ST}, {srd(SW)}, 0 offen offset:{256*e} sc1","st") for e in range(2)]
    cl=[lambda j=j: k.vm(f"buffer_load_dword a{EA+2*j}, v{CSA}, {srd(SW)}, 0 offen offset:{128*j} sc1","cs") for j in range(3)]
    def cscheck():
        k.w(v="cs")
        ok=k.lab("OK"); rt=k.lab("RT"); lp=k.lab("RL")
        chk=f"v_accvgpr_read_b32 v9, a{EA}\nv_accvgpr_read_b32 v10, a{EA+2}\nv_accvgpr_read_b32 v11, a{EA+4}\nv_max3_u32 v9, v9, v10, v11\nv_cmp_eq_u32 vcc, -1, v9"
        k(f"{chk}\ns_cbranch_vccnz {rt}\n{ok}:")
        k.tail.append(f"""{rt}:
        s_movk_i32 s{sRING}, 4000
        {lp}:
        buffer_load_dword a{EA}, v{CSA}, {srd(SW)}, 0 offen sc1
        buffer_load_dword a{EA+2}, v{CSA}, {srd(SW)}, 0 offen offset:128 sc1
        buffer_load_dword a{EA+4}, v{CSA}, {srd(SW)}, 0 offen offset:256 sc1
        s_waitcnt vmcnt(0)
        {chk}
        s_cbranch_vccz {ok}
        s_sub_u32 s{sRING}, s{sRING}, 1
        s_cmp_lg_u32 s{sRING}, 0
        s_cbranch_scc1 {lp}
        s_branch {ok}""")
    if probe&1: k.w(v="d0"); k.stamp('d0')
    k.w(v="d0",d=0); k("s_barrier")
    if XP&64:
        for i in range(9,-1,-1): k.w(v=i); k.stamp(f'w{i}')
    run(reads(0,0,0)); run(lntr())
    k.stamp('s0')
    KW=[]
    WT=[int(c) for c in str(WDT) if c.isdigit()] if WDT!=-1 else []
    NT=-(-92//max(len(WT),1))
    def touch(s):
        L=[]
        if s==WT[0]: L.append(f"""s_lshl_b32 s{sC1}, s{sI}, 2
            s_add_u32 s{sC1}, s{sC1}, s{sWV}
            s_mul_i32 s{sC1}, s{sC1}, {NT*len(WT)*128}
            v_min_u32 v10, {NT-1}, v1
            v_lshl_add_u32 v10, v10, 7, s{sC1}""")
        else: L.append(f"v_add_u32 v10, {NT*128}, v10")
        L.append(lambda: k.vm(f"buffer_load_dword v11, v10, {srd(SD)}, 0 offen","tch"))
        return L
    cur=[0]
    tch6=lambda: k.vm(f"buffer_load_dword v{JNK}, v10, {srd(SD)}, 0 offen","tch")
    for s in range(7):
        slot=s%3; cur[0]=s
        D=dma_list(((s+2)%3)*SS,f"d{s+2}") if s<6 else []
        X=[[],[],[]]; per=[3,3,3]
        if s<6: X=[D[0:5],D[5:9],D[9:13]+(nextk if s<5 else [])]
        if s==1 and DE:
            print("d2 left for stage 1:",sum(callable(x) for x in DE)); Z=DE+X[0]+X[1]+X[2]; n3_=len(Z)//3
            X=[Z[:n3_],Z[n3_:2*n3_],Z[2*n3_:]]
        if s==1:
            LB=late_blocks(); LB[:NE]=[[]]*NE
            EXP=exrd(0)+exrd(1)[:3]+mix(exva(0),exrd(1)[3:])+exva(1)
            if PTS:
                P=[x for x in ptail_items()]; Q=LB[0]+LB[1]+LB[2]+LB[3]
                side+=Q[:PTG]; Q=Q[PTG:]
                while P:
                    x=P.pop(0)
                    if x!="s_nop 0" or PTS==1: side.append(x)
                    if Q: side.append(Q.pop(0))
                np_=len(side); side+=Q; n1=n3=len(side); bpos=len(side)
                side+=[lambda: (_ for _ in ()).throw(AssertionError("expansion too early")) if cur[0]<2 else 0]+EXP; n2=len(side)
            else:
                side+=LB[0]+LB[1]; n1=len(side)
                side+=EXP; n2=len(side)
                side+=LB[2]+LB[3]; n3=len(side)
            side+=LB[4]+LB[5]; nside=len(side)
        def flush(n):
            c=0
            while len(side)>nside-n: run([side.pop(0)]); c+=1
            if c: print("flushed",c,"at stage",s)
        if s==LPS: flush(n1)
        if s==3 and KCB==0: flush(n2)
        if s==6: flush(n3)
        if s>=3 and KW:
            for j in range(3):
                if KW: X[j]=X[j]+[KW.pop(0)]
        if s==LPS: X[0]=[lnpoll]+X[0]
        if s==LPS+1 and D5L and s<6: X=[[],X[0],X[1]+X[2]]
        if s==CLS and CLS!=LPS: X[0]=cl+X[0]
        if s in WT: X[2]=X[2]+touch(s)
        if s and s==LSP: X[2]=X[2]+lnst(YPS==-1)
        if s and s==YPS: X[2]=X[2]+poison()
        if s==6:
            W=sum((wd_dma(j) for j in range(NPRE)),[])
            if WT6: W=W+[tch6] if WTP==0 else [tch6]+W
            X=[[X[0]+W[:3],W[3:9],W[9:]],[X[0],W[:6],W[6:]],[X[0],W[:3],W[3:]],[X[0],[],W],[X[0]+W[:3],W[3:6],W[6:]]][W6S]
        if s==0:
            F=[reads(0,1,1),reads(0,2,0),reads(0,3,1)]; g=0; LS=lnst(YPS==-1) if LSP==0 else []; lw=-9
            DE=[]
            if D2P:
                DE=D+nextk; D=[]
                if not LSG: D=LS; LS=[]
            d2t=[D2G]
            if D2L: D2Q=[int(x) for x in D2L.split('_')]; d2t=[D2Q.pop(0)]
            def d2w(g):
                while DE and g>=d2t[0]:
                    while DE and not callable(DE[0]): run([DE.pop(0)])
                    if DE: run([DE.pop(0)])
                    while DE and not any(callable(x) for x in DE): run([DE.pop(0)])
                    if D2L: d2t[0]=D2Q.pop(0) if D2Q else d2t[0]
                    else: d2t[0]+=D2P/10
            for st in range(3):
                k.w(d="fr")
                for i,m in enumerate(mf(st&1,st==0)):
                    k(m); n=0
                    while F[st] and n<2: run([F[st].pop(0)]); n+=1
                    if IOL and IOL[0][0]=='w':
                        if g-lw>=W0E: run([IOL.pop(0)[1]]); lw=g
                    else:
                        while IOL and IOL[0][0]=='r' and n<4: run([IOL.pop(0)[1]]); n+=1
                    if LSG:
                        if g>=LSG-1 and LS: run([LS.pop(0)])
                    elif st>=1 and LS and n<3: run([LS.pop(0)])
                    d2w(g)
                    g+=1
                run(F[st])
            run([x[1] for x in IOL]); run(LS)
            if probe&1: k.stamp('io')
            if PTS==0:
                if LSG:
                    F=[]
                    for i in range(12): F.append(lambda i=i: d2w(18+i*PTW/120))
                    ptail(F); g0_=18+PTW/10
                else: ptail(DE+D if D2P else D+nextk); DE=[]
                D=[]
            elif not LSG: run(DE); DE=[]
            else: g0_=18
            if KCB==0: KW=kcw()
            if probe&1: k.stamp('d2')
        else:
            k.w(d="fr"); wv(mf(0),mix(reads(slot,1,1),X[0]),per[0])
            k.w(d="fr"); wv(mf(1),mix(reads(slot,2,0),X[1]),per[1])
            k.w(d="fr"); wv(mf(0),mix(reads(slot,3,1),X[2]),per[2])
        ns=(s+1)%3; A=[]
        if ns==2: A=adv(SS); base[0]=SS
        if ns==0: A=adv(-SS); base[0]=0
        wt=f"d{s+1}"
        ex=[]
        if s==LPS: ex=[lambda: poll("lnp",PL,LNP,SB,LNX)]+sl+(cl if CLS==LPS else [])+uloads()
        bar=[lambda wt=wt:(k.w(v=wt),k("s_barrier"))]
        if s==LAS:
            bar.append(lnatomic); bar[0]=lambda wt=wt:(k.w(v=min(k.nv(wt),k.nv('lnst'))),k('s_barrier'))
            assert LAS>=max(LSP,YPS)
        if s==1 and PTS: flush(np_)
        if s==min(PTS,1): k.w(d=0)
        else: k.w(d="fr")
        if s==0 and PTS: ex=D
        if s==6: flush(nside)
        if s==LAS+3: k.smem=0
        M3=mf(1)
        if s==0 and DE: M3=[(lambda i=i,m=m: (k(m),d2w(g0_+i))) for i,m in enumerate(M3)]
        wv(M3,bar+A[:2]+reads(ns,0,0)+A[2:]+ex,[len(bar),5,5,3,2,5])
        k.stamp(f's{s+1}')
    R=[]
    for wh in (('b',0),('a',0),('b',1),('a',1),('a',2)):
        for st in (1,2,3): R+=rd(1,st,st,wh,f"f{wh[0]}{wh[1]}")
    mx=[f"v_mfma_f32_32x32x8_bf16 {vr(ACC+16*b,16)}, {ar(EA+2*(b>>1),2)}, {ar(EB+2*(b&1),2)}, {vr(ACC+16*b,16)}" for b in range(6)]
    def hepi(b):
        a=ACC+16*b; u,e=b>>1,b&1
        L=[f"v_mul_f32 v{a+r}, v{a+r}, v{a+8+r}" for r in range(8)]
        L+=[f"v_cvt_pk_bf16_f32 v{a+8+j}, v{a+2*j}, v{a+2*j+1}" for j in range(4)]
        L.append(lambda: k.vm(f"buffer_store_dwordx4 {vr(a+8,4)}, v{HS+u}, {srd(SW)}, s{sH0+e} offen sc1","h"))
        return L
    WA=sum((wd_dma(j) for j in range(NPRE,NPRE+NA7)),[]); nwd=NPRE+NA7
    k.w(d="fr"); wv(mf(0),mix(R[:18],WA[:G7])+[cscheck],[4,4,4,4,4,9])
    LQ=mix(R[18:],WA[G7:])+uwrite(); nR=len(LQ)-3
    need={0:"fa0",1:"fb1",2:"fa1",4:"fa2"}
    HQ=[]; fin={}; g=6
    def gap(nh,nl):
        nonlocal nR
        n=0
        while HQ and n<nh and icount()-fin[HQ[0][0]]>=12: run([HQ.pop(0)[1]]); n+=1
        n=0
        while LQ and n<nl and (nR>0 or g>=TWS): run([LQ.pop(0)]); n+=1; nR-=1
    for m in mx: k(m); gap(0,4 if nR>0 else 1); g+=1
    for b in range(6):
        if b in need: k.w(d=need[b])
        for st in (1,2,3):
            k(mf1(st,b))
            if st==3: fin[b]=icount(); HQ+=[(b,f) for f in hepi(b)]
            gap(NH,4 if nR>0 else (g&1)); g+=1
    k.stamp('g1')
    while HQ or LQ:
        n0=icount(); gap(NH,NL)
        if icount()==n0: k("s_nop 0")
    if KCB==2: k.stamp('hepi'); run(kcw())
    k(f"{MRG}:"); nst_mrg=k.nst
    k.w(d=0); k("s_barrier")
    k.stamp('exp')
    CS0A,CS0B=('a',176),('a',208); CS1A,CS1B=('v',16),('v',48); CACC=112
    def rg(t,o,n): return (ar if t[0]=='a' else vr)(t[1]+o,n)
    def conv_reads(rho):
        RA,RB=((CS0A,CS0B),(CS1A,CS1B))[rho&1]
        L=[]
        for i in range(8):
            L.append(lambda i=i: k.ds(f"ds_read_b128 {rg(RB,4*i,4)}, v{CB} offset:{192-64*rho+512*i}",f"cv{rho}"))
            for h in range(2): L.append(lambda i=i,h=h: k.ds(f"ds_read_b64 {rg(RA,4*i+2*h,2)}, v{CA} offset:{3776-512*i-64*rho+8*h}",f"cv{rho}" if (rho or h==0) else f"cv0_{i}"))
        return L
    def conv_mf(rho):
        RA,RB=((CS0A,CS0B),(CS1A,CS1B))[rho&1]
        L=[]
        for s in range(8):
            for i in range(s+1):
                I=s
                c="0" if (rho==0 and i==0) else vr(CACC+4*I,4)
                L.append(f"v_mfma_f32_16x16x32_bf16 {vr(CACC+4*I,4)}, {rg(RA,4*i,4)}, {rg(RB,4*(I-i),4)}, {c}")
        return L
    st_=lambda n: [lambda: k.stamp(n)] if probe&2 else []
    def trs(js):
        L=[]
        for j in js:
            T=wd_tr(j); L+=[lambda j=j,f=T[0]: (k.w(v=f"wd{j}"),f())]+T[1:]
        return L
    def dm(j):
        D=wd_dma(j)
        if j>=14: return [lambda: (k(D[0]),k.w(d=f"wt{j-14}") if f"wt{j-14}" in k.dq else 0)]+D[1:]
        return D
    def dms(a,b): return sum((dm(j) for j in range(max(a,nwd),b)),[])
    HSL=[('v',144+8*i) for i in range(6)]+[('a',240),('a',248)]+[('a',176+8*i) for i in range(8)]
    HSL=HSL[:DEPTH+1]
    def hload(j):
        r=HSL[j%(DEPTH+1)]
        return [lambda: (k(f"s_lshr_b32 s{sT0}, s{4+j}, 4"),k.vm(f"buffer_load_dwordx4 {rg(r,0,4)}, v{HL}, {srd(SW)}, s{sT0} offen{'' if NSC&2 else ' sc1'}",f"h{j}")),
                lambda: k.vm(f"buffer_load_dwordx4 {rg(r,4,4)}, v{HL+1}, {srd(SW)}, s{sT0} offen{'' if NSC&2 else ' sc1'}",f"h{j}")]
    hflag=st_('hw')+[lambda: (k.w(v="h"),sat(sFH))]+st_('hack')
    hpl=[lambda: k.vm(f"buffer_load_dword v100, v{FHP}, {srd(SW)}, 0 offen sc1","hp")]
    xl=[lambda: k.vm(f"buffer_load_dwordx4 v[104:107], v{XO}, {srd(SX)}, 0 offen","x"),
        lambda: k.vm(f"buffer_load_dwordx4 v[108:111], v{XO}, {srd(SX)}, 0 offen offset:32","x"),
        lambda: k.vm(f"buffer_load_dword v103, v{RS}, {srd(SW)}, 0 offen sc1","x")]
    hchk=st_('prep')+[lambda: poll("hp",100,FHP,SW,FLX)]+st_('hpok')+sum((hload(j) for j in range(DEPTH)),[])
    CR=conv_reads(0); run(CR[:15])
    M=[]
    for rho in range(4):
        m=conv_mf(rho)
        if rho==0:
            i0=0
            for s in range(8): m[i0]=(lambda s=s,t=m[i0]: (k.w(d=f"cv0_{s}"),k(t))); i0+=s+1
        else: m[0]=(lambda rho=rho,t=m[0]: (run(st_(f'r{rho-1}')),k.w(d=f"cv{rho}"),k(t),k("s_barrier" if rho==3 else "")))
        M+=m
    SC=eval(SCH.replace('_',',')) if isinstance(SCH,str) else None
    g0,g1,g2,g3,g4,g5,g6=SC or (0,20,44,60,64,80,20)
    n0=nwd+3
    if not VP: PL_=[(0,CR[15:]+conv_reads(1)),(36,conv_reads(2)),(72,conv_reads(3)),
         (g0,dms(0,n0)),(g1,trs(range(0,NPRE))),(HFG,hflag),(g2,dms(n0,14)+xl),(g3,dms(14,18)),(g4,trs(range(NPRE,TRG))+dms(18,22)),(HPG-g6,hpl),(HPG,hchk)]
    else:
        PL_=[(0,CR[15:]+conv_reads(1)),(36,conv_reads(2)),(72,conv_reads(3)),(g0,dms(0,n0)),(g1,trs(range(0,nwd))),(HFG,hflag)]
        tg={j:g1+2*j for j in range(nwd)}
        for j in range(nwd,n0): tg[j]=HFG+T1+2*(j-nwd); PL_.append((tg[j],trs([j])))
        for j in range(n0,n0+NE6):
            PL_.append((GE6+3*(j-n0),dm(j)))
            if j<TRG: tg[j]=HFG+T1+2*(j-nwd); PL_.append((tg[j],trs([j])))
        n0+=NE6
        t=HFG+1.0
        for j in range(n0,NWC):
            if j>=14: t=max(t,tg[j-14]+3)
            D=dm(j); PL_.append((int(t),D[:2])); st=1 if j<n0+NB else VP/10
            PL_.append((int(t+st),D[2:]))
            if j<TRG: tg[j]=int(t+st)+TL; PL_.append((tg[j],trs([j])))
            t+=2*st
        print("wd sched end",t,tg)
        PL_+=[(HPG-HPD,hpl),(HPG,hchk[:-2*DEPTH])]
        t=HPG+1.0
        for f in hchk[-2*DEPTH:]+xl: PL_.append((int(t),[f])); t+=HP/10
    PL_=[(a+(0.5 if a%36==0 and i>2 else 0),b) for i,(a,b) in enumerate(PL_)]
    PL_=sorted([(a,list(b)) for a,b in PL_],key=lambda x:x[0])
    for g,m in enumerate(M):
        run([m]); n=3 if g<4 else 2
        if g%36==35: n=99
        for a,L in PL_:
            while a<=g and L and n>0 and not (g%36==35 and a%36): run([L.pop(0)]); n-=1
    LEFT=sum((L for a,L in PL_),[])
    run(LEFT[:NX0]); LEFT=LEFT[NX0:]; LX1=LEFT[:NX1]; LEFT=LEFT[NX1:]; print("left",len(LX1),len(LEFT))
    k.stamp('conv'); k.smem=0
    H1=k.lab("H1"); HE=k.lab("HE")
    k(f"""s_lshl_b32 s{sT1}, s{sWV}, 12
    s_add_u32 s{sT1}, s{sT1}, {KC+8192}
    v_add_u32 v96, s{sT1}, v{EXW}
    s_xor_b32 s{sT2}, s{sWV}, 1
    s_lshl_b32 s{sT2}, s{sT2}, 12
    s_add_u32 s{sT2}, s{sT2}, {KC+8192}
    v_add_u32 v97, s{sT2}, v{EXW}
    s_bitcmp1_b32 s{sWV}, 0
    s_cbranch_scc1 {H1}""")
    for hh in range(2):
        snd=CACC+16*(1-hh); own=CACC+16*hh
        if hh==0: k("s_nop 1")
        for j in range(4): k(f"ds_write_b128 v96, {vr(snd+4*j,4)} offset:{1024*j}")
        nq=len(k.vq); run(LX1)
        if hh==0: del k.vq[nq:]
        k("s_waitcnt lgkmcnt(0)\ns_barrier")
        for j in range(4): k(f"ds_read_b128 {vr(80+4*j,4)}, v97 offset:{1024*j}")
        for j in range(4):
            k(f"s_waitcnt lgkmcnt({3-j})")
            k(f"v_pk_add_f32 {vr(80+4*j,2)}, {vr(80+4*j,2)}, {vr(own+4*j,2)}\nv_pk_add_f32 {vr(82+4*j,2)}, {vr(82+4*j,2)}, {vr(own+4*j+2,2)}")
        if hh==0: k(f"s_branch {HE}\n{H1}:")
    k(f"{HE}:"); k.dq=[]
    for j in range(4): k(f"v_cvt_pk_bf16_f32 v{112+2*j}, v{80+4*j}, v{81+4*j}\nv_cvt_pk_bf16_f32 v{113+2*j}, v{82+4*j}, v{83+4*j}")
    k("s_nop 0")
    for j in range(2):
        k(f"v_permlane16_swap_b32 v{112+4*j}, v{114+4*j}\nv_permlane16_swap_b32 v{113+4*j}, v{115+4*j}")
    for j in range(2): k.vm(f"buffer_store_dwordx4 {vr(112+4*j,4)}, v{YS}, {srd(SW)}, 0 offen offset:{1024*j} sc1","y")
    run(st_('yst')); run(LEFT)
    k.stamp('xchg')
    A2=16
    def g2m(j,d,t):
        r=HSL[j%(DEPTH+1)]
        return f"v_mfma_f32_32x32x16_bf16 {vr(A2+16*(2*d+t),16)}, {ar(8*j+4*d,4)}, {rg(r,4*t,4)}, {'0' if j==0 else vr(A2+16*(2*d+t),16)}"
    def g2mf(j): return [g2m(j,d,t) for d,t in((1,1),(1,0),(0,1),(0,0))]
    yl=[lambda q=q: k.vm(f"buffer_load_dwordx4 {vr(112+4*q,4)}, v{YL}, {srd(SW)}, {'s%d'%sYQ if q else 0} offen sc1","yl") for q in range(2)]
    def ycheck():
        k.w(v="yl")
        if not YP: return
        ok=k.lab("OK"); rt=k.lab("RT"); lp=k.lab("RL")
        chk=f"v_max3_u32 v101, v112, v113, v114\nv_max3_u32 v102, v115, v116, v117\nv_max3_u32 v101, v101, v118, v119\nv_max_u32 v101, v101, v102\nv_cmp_eq_u32 vcc, -1, v101"
        k(f"{chk}\ns_cbranch_vccnz {rt}\n{ok}:")
        k.tail.append(f"""{rt}:
        s_movk_i32 s{sRING}, 4000
        {lp}:
        buffer_load_dwordx4 v[112:115], v{YL}, {srd(SW)}, 0 offen sc1
        buffer_load_dwordx4 v[116:119], v{YL}, {srd(SW)}, s{sYQ} offen sc1
        s_waitcnt vmcnt(0)
        {chk}
        s_cbranch_vccz {ok}
        s_sub_u32 s{sRING}, s{sRING}, 1
        s_cmp_lg_u32 s{sRING}, 0
        s_cbranch_scc1 {lp}
        s_branch {ok}""")
    RAD=[f"v_add_u32 v96, s{sAW}, v{EXW}",f"v_add_u32 v97, s{sCWB}, v{EXW}"]
    for x in (1,2,3):
        RAD.append(f"s_xor_b32 s{sT1}, s{sWV}, {x}")
        if x<3: RAD+=[f"s_mul_i32 s{sT1}, s{sT1}, {AWS}",f"s_add_u32 s{sT1}, s{sT1}, {4096*(x-1)}"]
        else: RAD+=[f"s_mul_i32 s{sT1}, s{sT1}, {CWS}",f"s_add_u32 s{sT1}, s{sT1}, {CW}"]
        RAD.append(f"v_add_u32 v{97+x}, s{sT1}, v{EXW}")
    XU=[]
    for j in range(8): XU+=[f"v_lshlrev_b32 v{80+2*j}, 16, v{104+j}",f"v_and_b32 v{81+2*j}, s{sMSK}, v{104+j}"]
    XU[0]=(lambda t=XU[0]: (k.w(v="x"),k(t)))
    SK=k.lab("SK"); OPT=21-QM
    waited=False
    for j in range(22-QM):
        fl=[]
        if VP and j>=WG0 and (j-WG0)%WGS==0 and NWC+(j-WG0)//WGS<22: fl+=dm(NWC+(j-WG0)//WGS)
        if j+DEPTH<22: fl+=hload(j+DEPTH)
        if not YP:
            if j==3: fl+=[lambda: (k.w(v="y"),sat(sFY))]
            if j==YLU-4: fl+=[lambda: k.vm(f"buffer_load_dword v134, v{FYP}, {srd(SW)}, 0 offen sc1","yp")]
            if j==YLU: fl+=[lambda: poll("yp",134,FYP,SW,FLX)]+yl
        elif j==YLU: fl+=yl
        if j==6: fl+=RAD
        if j in(8,9): fl+=XU[8*(j-8):8*(j-7)]
        TD=max(3,QM+1)
        if TRG<=j+TD<22: fl=trs([j+TD])+fl
        if j==0: fl=trs(range(TRG,TD))+fl
        if j==OPT:
            run(fl); fl=[]
            k(f"s_cmp_ge_u32 s{sWV}, 2\ns_cbranch_scc1 {SK}")
        if j>=TRG: k.w(v=f"h{j}",d=f"wt{j}")
        else: k.w(v=f"h{j}")
        weave(k,g2mf(j),fl,3)
        if j==OPT: k(f"{SK}:")
        if j in(0,4,10,16,17): run(st_(f'u{j}'))
    def rwr(x): return [lambda a=a: k.ds(f"ds_write_b128 v{97 if x==3 else 96}, {vr(A2+16*x+4*a,4)} offset:{1024*a+(4096 if x==2 else 0)}") for a in range(4)]
    yw=[lambda q=q: k.ds(f"ds_write_b128 v{YW}, {vr(112+4*q,4)} offset:{1024*q}") for q in range(2)]
    yt=[lambda a=a: k.ds(f"ds_read_b64_tr_b16 {vr(120+2*a,2)}, v{YR} offset:{512*a}","yt") for a in range(4)]
    if QM:
        js=list(range(22-QM,22))
        FQ=[]
        if YLU>=22-QM: FQ+=yl
        for x in (3,2,1,0):
            for i,j in enumerate(js):
                if x==3: k.w(v=f"h{j}",d=f"wt{j}")
                k(g2m(j,x>>1,x&1))
                if i==2 and x<3: FQ+=rwr(x+1)
                if FQ and (i>=2 or x==3): run([FQ.pop(0)])
        k.stamp('g2'); k.smem=0
        run(FQ); ycheck(); run(yw+yt)
    else:
        k.stamp('g2'); k.smem=0
        k("s_nop 8")
        for x in (3,2,1): run(rwr(x))
        ycheck(); run(yw+yt)
    k.w(d=0); k("s_barrier")
    for x in (1,2,3):
        for a in range(4): k.ds(f"ds_read_b128 {vr(144+16*(x-1)+4*a,4)}, v{97+x} offset:{1024*a}",f"rd{x}")
    for j in range(8): k(f"v_lshlrev_b32 v{32+2*j}, 16, v{120+j}\nv_and_b32 v{33+2*j}, s{sMSK}, v{120+j}")
    for x in (1,2,3):
        k.w(d=f"rd{x}")
        for j in range(8): k(f"v_pk_add_f32 {vr(A2+2*j,2)}, {vr(A2+2*j,2)}, {vr(144+16*(x-1)+2*j,2)}")
    for j in range(8): k(f"v_pk_fma_f32 {vr(A2+2*j,2)}, {vr(A2+2*j,2)}, v[102:103], {vr(32+2*j,2)} op_sel:[0,1,0] op_sel_hi:[1,1,1]")
    for a in(0,2):
        for r in range(4): k(f"v_permlane32_swap_b32 v{A2+4*a+r}, v{A2+4*a+4+r}")
    for j in range(8):
        k(f"v_pk_add_f32 {vr(A2+2*j,2)}, {vr(A2+2*j,2)}, {vr(80+2*j,2)}\nv_cvt_pk_bf16_f32 v{104+j}, v{A2+2*j}, v{A2+2*j+1}")
        if j%4==3: k.vm(f"buffer_store_dwordx4 {vr(104+j-3,4)}, v{XO}, {srd(SO)}, 0 offen offset:{32*(j//4)} {OSF.replace('_',' ')}","o")
    if prof:
        k.stamp('epi'); k("s_waitcnt vmcnt(0) lgkmcnt(0)"); k.stamp('drain'); k("s_waitcnt lgkmcnt(0)"); k.stamp(); k.stamp()
        k("; STAMPS "+" ".join(k.names[:-2]))
        k("s_memrealtime s[94:95]\ns_waitcnt lgkmcnt(0)\nv_writelane_b32 v199, s94, 62\nv_writelane_b32 v199, s96, 63")
        k(f"s_lshl_b32 s{sT0}, s2, 2\ns_add_u32 s{sT0}, s{sT0}, s{sWV}\ns_lshl_b32 s{sT0}, s{sT0}, 8\ns_add_u32 s{sT0}, s{sT0}, {PROF}\nv_lshl_add_u32 v2, v1, 2, s{sT0}")
        k(f"buffer_store_dword v199, v2, {srd(SW)}, 0 offen")
        if pace:
            L=k.lab(); LP=k.lab()
            k(f"""s_cmp_lg_u32 s{sWV}, 0
            s_cbranch_scc1 {L}
            s_cmp_lg_u32 s2, {pwg}
            s_cbranch_scc1 {L}""")
            if pace==1: k(f"s_mov_b32 s{sT0}, 6000")
            if pace==2: k(f"s_sub_u32 s{sT0}, s94, s96\ns_lshl_b32 s{sT0}, s{sT0}, 2")
            if pace==3: k(f"v_readlane_b32 s{sT0}, v199, {k.names.index(pidx)}\ns_sub_u32 s{sT0}, s{sT0}, s34\ns_lshr_b32 s{sT0}, s{sT0}, {psh}\ns_add_u32 s{sT0}, s{sT0}, 4000")
            if pace==4: k(f"v_readlane_b32 s{sT0}, v199, {k.names.index(pidx)}\nv_readlane_b32 s{sT1}, v199, {k.names.index(pidx2)}\ns_sub_u32 s{sT0}, s{sT0}, s{sT1}\ns_lshr_b32 s{sT0}, s{sT0}, {psh}\ns_add_u32 s{sT0}, s{sT0}, 4000")
            k(f"""s_min_u32 s{sT0}, s{sT0}, 30000
            s_mov_b32 s{sT2}, 100000
            {LP}:
            s_memrealtime s[94:95]
            s_waitcnt lgkmcnt(0)
            s_sub_u32 s{sT1}, s94, s96
            s_cmp_ge_u32 s{sT1}, s{sT0}
            s_cbranch_scc1 {L}
            s_sub_u32 s{sT2}, s{sT2}, 1
            s_cmp_lg_u32 s{sT2}, 0
            s_cbranch_scc1 {LP}
            {L}:""")
        if dbg:
            L=k.lab()
            k(f"""s_cmp_lg_u32 s{sWV}, 0
            s_cbranch_scc1 {L}
            s_and_b32 s{sT0}, s2, 0x18
            s_cmp_lg_u32 s{sT0}, 0
            s_cbranch_scc1 {L}
            s_sub_u32 s{sT0}, s94, s96
            v_writelane_b32 v199, s{sT0}, 2
            s_or_b32 s{sT0}, s94, 0x80000000
            s_not_b32 s{sT1}, s96
            s_or_b32 s{sT1}, s{sT1}, 0x80000000
            s_or_b32 s{sT2}, s96, 0x80000000
            v_mov_b32 v4, s{sT0}
            v_writelane_b32 v4, s{sT1}, 1
            v_writelane_b32 v4, s{sT2}, 2
            v_cmp_gt_u32 vcc, 3, v1
            v_lshlrev_b32 v6, 2, v1
            v_add_u32 v6, 52, v6
            v_mov_b32 v7, {hex(OOB)}
            v_cndmask_b32 v6, v7, v6, vcc
            buffer_atomic_umax v4, v6, {srd(SB)}, 0 offen sc1
            s_cmp_lg_u32 s2, {dbg-1}
            s_cbranch_scc1 {L}
            v_readlane_b32 s{sT0}, v199, 2
            v_readlane_b32 s{sT1}, v199, 14
            v_subrev_u32 v4, s34, v199
            s_sub_u32 s{sT1}, s{sT1}, s34
            v_writelane_b32 v4, s{sT0}, 2
            v_writelane_b32 v4, s{sT1}, 13
            v_cmp_gt_u32 vcc, 14, v1
            v_lshlrev_b32 v6, 2, v1
            v_add_u32 v6, -4, v6
            v_cndmask_b32 v6, v7, v6, vcc
            buffer_store_dword v4, v6, {srd(SB)}, 0 offen sc1
            {L}:""")
    k("s_endpgm")
    k(f"{CSL}:")
    k.vq=vq_cs; k.dq=dq_cs; k.smem=0; k.nst=nst_cs; k.ptags=()
    def cst(n):
        if k.nst<nst_mrg: k.stamp(n)
    if not CSN:
        run([x[1] for x in IOL_cs]); ptail()
        k("s_waitcnt lgkmcnt(0)\ns_barrier"); cst('pt')
        run(lntr())
        k(f"""s_mul_i32 s{sT2}, s{sFT}, 768
        s_add_u32 s{sT2}, s{sT2}, {CS}
        s_cmp_eq_u32 s{sWV}, 3
        s_cselect_b32 s{sT2}, {hex(OOB)}, s{sT2}
        v_lshl_add_u32 v{CSA}, v0, 2, s{sT2}
        v_mov_b32 v19, -1
        s_mov_b32 s{sC1}, {SS}
        s_mov_b32 s{sC2}, {-2*SS}""")
        k.vm(f"buffer_store_dword v19, v{CSA}, {srd(SW)}, 0 offen sc1","lnst")
        run(lnst(YPS!=-2))
        k(f"""s_mul_i32 s{sT0}, s{sWV}, 3072
        s_lshr_b32 s{sT1}, s{sWV}, 1
        s_mul_i32 s{sT1}, s{sT1}, 96
        s_sub_u32 s{sT0}, s{sT0}, s{sT1}
        v_add_u32 v{WR}, s{sT0}, v{WR}
        v_mov_b32 v112, 0x3f803f80
        v_mov_b32 v113, v112
        v_mov_b32 v114, v112
        v_mov_b32 v115, v112
        s_mov_b32 s{sRING}, {2*SS}
        s_mov_b32 s{sCNT}, 0""")
        for r in range(16,112): k(f"v_mov_b32 v{r}, 0")
        def csdma():
            D=dma_list(f"s{sRING}","c")[5:]
            for f in D: f() if callable(f) else (k(f),k("s_nop 0"))
            for f in nextk: k(f)
        csdma()
        cst('pre'); CL=k.lab("CL"); CN=k.lab("CN"); CA_=k.lab("CN")
        k.w(v="d0"); k(f"s_branch {CA_}")
        k(f"{CL}:\ns_waitcnt vmcnt(12)\ns_cmp_lt_u32 s{sCNT}, 6\ns_cbranch_scc1 {CN}\ns_waitcnt vmcnt(0)\n{CN}:")
        k(f"s_cmp_lg_u32 s{sCNT}, 1\ns_cbranch_scc1 {CA_}\ns_barrier"); lnatomic(); k(f"{CA_}:")
        for u in range(6):
            for h in range(2): k(f"ds_read_b64_tr_b16 {vr(116+4*u+2*h,2)}, v{WR} offset:{768*h+32*u}")
        k(f"ds_read_u8 v{JNK}, v1")
        CN2=k.lab("CN")
        k(f"""s_add_u32 s{sRING}, s{sRING}, s{sC1}
        s_cmp_eq_u32 s{sRING}, {3*SS}
        s_cselect_b32 s{sRING}, 0, s{sRING}
        s_cmp_eq_u32 s{sRING}, {2*SS}
        s_cselect_b32 s{sDL}, s{sC2}, s{sC1}
        v_add_u32 v{WR}, s{sDL}, v{WR}
        s_waitcnt lgkmcnt(1)
        s_cmp_ge_u32 s{sCNT}, 5
        s_cbranch_scc1 {CN2}""")
        csdma()
        k(f"{CN2}:")
        for u in range(6): k(f"v_mfma_f32_32x32x16_bf16 {vr(16+16*u,16)}, v[112:115], {vr(116+4*u,4)}, {vr(16+16*u,16)}")
        k(f"s_add_u32 s{sCNT}, s{sCNT}, 1\ns_cmp_lt_u32 s{sCNT}, 8\ns_cbranch_scc1 {CL}")
        cst('loop')
        k(f"""s_mul_i32 s{sT0}, s{sWV}, 768
        s_add_u32 s{sT0}, s{sT0}, {PT}
        v_lshl_add_u32 v140, v5, 2, s{sT0}
        v_min_u32 v141, 191, v0
        v_lshlrev_b32 v141, 2, v141
        v_add_u32 v141, {PT}, v141
        s_nop 7""")
        for u in range(6): k(f"ds_write_b32 v140, v{16+16*u} offset:{128*u}")
        k("s_waitcnt lgkmcnt(0)\ns_barrier")
        for j in range(4): k(f"ds_read_b32 v{144+j}, v141 offset:{768*j}")
        k(f"""s_waitcnt lgkmcnt(0)
        v_add_f32 v144, v144, v145
        v_add_f32 v146, v146, v147
        v_add_f32 v144, v144, v146
        v_cvt_pk_bf16_f32 v145, v144, v144
        v_and_b32 v145, s{sMSK}, v145
        v_sub_f32 v146, v144, v145
        v_cvt_pk_bf16_f32 v145, v145, v146
        buffer_store_dword v145, v{CSA}, {srd(SW)}, 0 offen sc1
        s_and_b32 s{sT0}, s{sWV}, 1
        s_lshr_b32 s{sT1}, s{sWV}, 1""")
        k.vq=[]; k.dq=[]; k.smem=0; cst('cs')
        if CST:
            k(f"""s_lshl_b32 s{sT2}, s{sFT}, 2
            s_add_u32 s{sT2}, s{sT2}, s{sWV}
            s_mul_i32 s{sT2}, s{sT2}, {22016}
            v_lshl_add_u32 v140, v1, {CST}, s{sT2}""")
            for j in range(-(-22016//(64<<CST))):
                if j: k(f"v_add_u32 v140, {64<<CST}, v140")
                k.vm(f"buffer_load_dword v{16+j}, v140, {srd(SD)}, 0 offen","tch")
        run(exrd(0)+exrd(1)+exva(0)+exva(1))
        k("s_waitcnt lgkmcnt(0)\ns_barrier")
        cst('ex'); run(kcw()); cst('kc')
        run(late()); cst('late')
        k("s_nop 4")
        lnpoll(); poll("lnp",PL,LNP,SB,LNX)
        cst('poll'); run(uloads())
        for j in range(nwd): run(wd_dma(j))
        run(uwrite())
        cst('uw')
        k(f"s_waitcnt vmcnt(0) lgkmcnt(0)")
        while prof and k.nst<nst_mrg: cst('x')
        k(f"s_branch {MRG}")
    else:
        k.autod=1; ON=96; CF=176
        if CE: k(f"s_sub_u32 s{sMG}, s{sMG}, {SS}")
        def csdma(i):
            if CE: return
            run(dma_list((i%3)*SS,f"d{i}")[5:])
            if i<7: run(nextk)
        if CSL_>=0: csdma(2)
        k(f"""s_mul_i32 s{sT2}, s{sFT}, 768
        s_add_u32 s{sT2}, s{sT2}, {CS}
        s_cmp_eq_u32 s{sWV}, 3
        s_cselect_b32 s{sT2}, {hex(OOB)}, s{sT2}
        v_lshl_add_u32 v{CSA}, v0, 2, s{sT2}
        s_mul_i32 s{sT2}, s{sWV}, 3072
        s_mul_i32 s{sT3}, s{sT1}, 96
        s_sub_u32 s{sT2}, s{sT2}, s{sT3}
        v_add_u32 v{WR}, s{sT2}, v{WR}
        v_mov_b32 v9, 0x3f803f80
        v_add_u32 v{XR}, {SS}, v{WR}
        v_add_u32 v{XR+1}, {2*SS}, v{WR}""")
        for r in range(4): k(f"v_accvgpr_write_b32 a{ON+r}, v9")
        k(f"v_mov_b32 v11, -1")
        k.w(d=0); k("s_barrier")
        run(lntr())
        if CSL_<0:
            if CSL_==-2: csdma(2)
            k.vm(f"buffer_store_dword v11, v{CSA}, {srd(SW)}, 0 offen sc1","lnst"); run(lnst(YPS!=-2))
            if CSL_==-1: csdma(2)
        bar=lambda:(k.w(d=0),k("s_barrier"))
        P=ptail_items() if PTS==2 else [ptail]
        FQ=[x[1] for x in IOL_cs]+[t for t in P if t!="s_nop 0"]+[bar]+exrd(0)+exrd(1)[:3]+mix(exva(0),exrd(1)[3:])+exva(1)+[bar]+kcw()+late()
        def ct2():
            L=[f"""s_and_b32 s{sC1}, s{sI}, 1
            s_lshl_b32 s{sC1}, s{sC1}, 2
            v_add_u32 v12, s{sC1}, v2
            v_mul_u32_u24 v13, 3, v12
            v_lshlrev_b32 v12, 7, v12
            v_lshl_add_u32 v12, v7, 10, v12
            s_mul_i32 s{sC1}, s{sWV}, 22
            s_cmp_eq_u32 s{sWV}, 3
            s_cselect_b32 s{sC1}, 65, s{sC1}
            s_lshl_b32 s{sC1}, s{sC1}, 14
            v_add_u32 v12, s{sC1}, v12
            s_lshr_b32 s{sC1}, s{sWV}, 1
            s_sub_u32 s{sC1}, 22, s{sC1}"""]
            for u in str(CT2).split('_'):
                L.append(f"v_add_u32 v14, {u}, v13\nv_subrev_u32 v15, s{sC1}, v14\nv_min_u32 v14, v14, v15\nv_subrev_u32 v15, s{sC1}, v14\nv_min_u32 v14, v14, v15\nv_lshl_add_u32 v14, v14, 14, v12")
                L.append(lambda: k.vm(f"buffer_load_dword v{JNK}, v14, {srd(SD)}, 0 offen","tch"))
            return L
        def it(i,W=[]):
            k.w(v=f"d{i}")
            for u in range(6):
                for h in range(2): k.ds(f"ds_read_b64_tr_b16 {ar(CF+4*u+2*h,2)}, v{(WR,XR,XR+1)[i%3]} offset:{768*h+32*u}","cf")
            k.w(d="cf")
            D=(dma_list((i%3)*SS,f"d{i+3}")[5:]+(nextk if i<4 else [])) if i<5 else []
            weave(k,[f"v_mfma_f32_32x32x16_bf16 {vr(16+16*u,16)}, {ar(ON,4)}, {ar(CF+4*u,4)}, {vr(16+16*u,16) if i else '0'}" for u in range(6)],D,2)
            run(W); l0=len(k.L)
            while FQ and i<7 and sum(cost(l) for l in k.L[l0:])<(CSB if i else CSB0): run([FQ.pop(0)])
            cst(f'i{i}')
        for i in range(8):
            W=[]
            if i==CSL_: W=[lambda: k.vm(f"buffer_store_dword v11, v{CSA}, {srd(SW)}, 0 offen sc1","lnst")]+lnst(YPS!=-2)
            if i==CSA_: W=[lambda:(k.w(v="lnst"),k("s_barrier")),lnatomic]
            it(i,W)
        k.smem=0
        k(f"""s_mul_i32 s{sC1}, s{sWV}, 768
        s_add_u32 s{sC1}, s{sC1}, {PT}
        s_nop 4
        v_lshl_add_u32 v17, v5, 2, s{sC1}
        v_min_u32 v18, 191, v0
        v_lshlrev_b32 v18, 2, v18
        v_add_u32 v18, {PT}, v18
        s_nop 1""")
        for u in range(6): k(f"ds_write_b32 v17, v{16+16*u} offset:{128*u}")
        k("s_waitcnt lgkmcnt(0)\ns_barrier")
        for j in range(4): k(f"ds_read_b32 v{20+j}, v18 offset:{768*j}")
        k(f"""s_waitcnt lgkmcnt(0)
        v_add_f32 v20, v20, v21
        v_add_f32 v22, v22, v23
        v_add_f32 v20, v20, v22
        v_cvt_pk_bf16_f32 v21, v20, v20
        v_and_b32 v21, s{sMSK}, v21
        v_sub_f32 v22, v20, v21
        v_cvt_pk_bf16_f32 v21, v21, v22
        buffer_store_dword v21, v{CSA}, {srd(SW)}, 0 offen sc1""")
        k.vq=[]; cst('cs'); print("cs filler left",len(FQ))
        if CST:
            k(f"""s_lshl_b32 s{sC1}, s{sFT}, 2
            s_add_u32 s{sC1}, s{sC1}, s{sWV}
            s_mul_i32 s{sC1}, s{sC1}, {22016}
            v_lshl_add_u32 v24, v1, {CST}, s{sC1}""")
            for j in range(min(CSJ,-(-22016//(64<<CST)))):
                if j: k(f"v_add_u32 v24, {64<<CST}, v24")
                k.vm(f"buffer_load_dword v{25+j}, v24, {srd(SD)}, 0 offen","tch")
        if CT2: run(ct2()); cst('ct2')
        run(FQ); cst('fq')
        lnpoll(); poll("lnp",PL,LNP,SB,LNX)
        cst('poll'); k("s_barrier"); run(uloads())
        if WT6 and WTP: tch6()
        for j in range(nwd): run(wd_dma(j))
        if WT6 and not WTP: tch6()
        run(uwrite())
        k(f"v_mov_b32 v9, {hex(OOB)}")
        for j in range(6): k.vm(f"buffer_load_dword v10, v9, {srd(SW)}, 0 offen","h")
        cst('uw')
        while prof and k.nst<nst_mrg: cst('x')
        k(f"s_branch {MRG}")
    for t in k.tail: k(t)
    k(f"{END}:")
    return k
import struct
def f2b(x): return struct.unpack('<I',struct.pack('<f',x))[0]
if __name__=='__main__':
    out=sys.argv[1]; opts=dict(a.split('=') for a in sys.argv[2:])
    opts={a:(int(b) if b.lstrip('-').isdigit() else b) for a,b in opts.items()}
    k=gen(**opts)
    hdr="".join(l for l in open('cdna_kernels/'+NAME[:-7]+'.s.ref') if l.startswith(';') and '@launch' not in l)
    txt=module([k],[(None,256,256,163840)],hdr)
    open(out,'w').write(txt)
    print("hazards:",haz.check(txt.split('\n')))
```

```python
import sys
sys.path.insert(0,'w')
from gl import *
import haz
NAME="parallel_sum__ssm_conv_s4__glu_gated_bilinear__prompt_kernel"
XNB=0; STATS=0x200000; FH=0x210000; FY=0x218000; PROF=0x220000; HB=0x400000; YB=0xA00000; CS=0xC00000; WSEND=CS+86*128
SS=41216; WG_O=16384; WU_D=12320
TAB=82432; TABW=16416; KC=123648; KCS=4160; PT=156928; PTS=3088
UO=119040; US=37888; CW=82432; CWS=8192; AWS=10240; BW=41216
OOB=0x80000000
PX=132*937; PO=(0,17,34,51); EXB=32*937-0x4280; TBS=4352; LNS=2560; LNB=KC+4*TBS
O7=['04123567','12530467','23061457','30127456']
OROT=['01234567','23456701','45670123','67012345']
class G(K):
    def __init__(s,*a,**kw):
        super().__init__(*a,**kw); s.vq=[]; s.dq=[]; s.tail=[]; s.nst=0; s.names=['start']
    def vm(s,t,tag=None):
        if t.endswith(' lds') and ' m0,' in s.L[-1]: s("s_nop 0")
        pb=tag in getattr(s,'ptags',()) and s.prof
        if pb: s.stamp('<'+tag)
        s(t); s.vq.append(tag)
        if pb: s.stamp('>')
    def ds(s,t,tag=None): s(t); s.dq.append(tag)
    def nv(s,tag):
        i=max(j for j,x in enumerate(s.vq) if x==tag); return min(len(s.vq)-1-i,63)
    def nd(s,tag):
        i=max(j for j,x in enumerate(s.dq) if x==tag); return min(len(s.dq)-1-i,15)
    def w(s,v=None,d=None):
        o=[]
        if v is not None: o.append(f"vmcnt({s.nv(v) if isinstance(v,str) else v})")
        if d is not None:
            n=s.nd(d) if isinstance(d,str) else d
            if getattr(s,'smem',0) and n==0:
                if getattr(s,'autod',0): s.ds(f"ds_read_u8 v{JNK}, v1","dum"); n=1
                else: print("SMEM region: lgkmcnt(0) at line",len(s.L),d)
            o.append(f"lgkmcnt({n})")
        s("s_waitcnt "+" ".join(o))
    def stamp(s,name=''):
        if s.prof:
            n=s.nst; R=(90,92,98,100); a=R[n&3]
            s(f"s_memtime s[{a}:{a+1}]")
            if n>=2: s(f"v_writelane_b32 v199, s{R[(n-2)&3]}, {n-1}")
            elif n==0: s("v_writelane_b32 v199, s34, 0")
            s.names.append(name); s.nst+=1
def vr(a,n): return f"v[{a}:{a+n-1}]" if n>1 else f"v{a}"
def ar(a,n): return f"a[{a}:{a+n-1}]" if n>1 else f"a{a}"
def weave(k,mf,fl,per,start=0):
    fl=list(fl)
    for i,m in enumerate(mf):
        k(m)
        if i>=start:
            n=per[i] if isinstance(per,(list,tuple)) else per
            for _ in range(n):
                if fl:
                    f=fl.pop(0); f() if callable(f) else k(f)
    for f in fl: f() if callable(f) else k(f)

SX,SG,SU,SD,SW,SO,SB=36,40,44,48,52,56,60
sXCD,sI,sWV,sP,sFT,sMT,sRB,sLD,sDK=64,65,66,67,68,69,70,71,72
sKS,sOX,sOW,sMX,sMG,sRING,sDL,sCNT,sC1,sC2=73,74,75,76,77,78,79,80,81,82
sH0,sH1,sMSK,sONE,sAW,sCWB,sT0,sT1,sT2,sT3=83,84,85,86,87,88,26,27,28,29
sUQ=30; sYQ=31; sTB=32; sDB=33; sORD=89; sFH=94; sFY=95; sPB=70; sLA=64
def srd(d): return f"s[{d}:{d+3}]"
XD=200; WD=204; XR=207; WR=211; KCW=212; EX=213
CA=224; CB=225; WDV=226; TA=228; TC=230; HL=232; HS=234; UL=237; UW=238; UZ=239; ST=240; CSA=241
XO=242; RS=243; YL=244; YW=245; YR=246; YS=247; EXW=248; FHP=249; FYP=250; TW=251; TR=252; LNP=253; KZ=254; PA0=255
PA1=193; PA2=194; PA3=195; KX=160; TB=112; PACC=172; PAR=184; JNK=196; PL=197
LTR=88; LST=12; aXN=14; aST=15; aTR=10; aWR=11; ROW=50
EA=144; EB=150; UR=156; AZ=164; AP=168; KF=24

def gen(prof=False, ORD='rot', ROT2=True, DEPTH=8, dbg=0, pace=0, pidx=14, psh=3, pwg=0, PF=2, pidx2=None, OSF='', NS=20, LNPOS=0, NPRE=4, D1E=10, NH=4, NL=2, TWS=8, SCH=0, probe=0, PARP=0, TWK=12, NA7=0, NE=2, D1S=200, KCB=2, YP=1, PP='0_1_2', HFG=40, HPG=120, YLU=17, QM=0, WDT='12345', G7=0, XP=0, IOP=2, LPS=4, CLS=5, WDN=2, W0E=2, EXS=1, LAS=1, D5L=1, TRG=9, T3B=1, D1P=0, D1C=130, D2P=0, D2G=0, LSP=0, YPS=-1, NSC=0, SLP=0, SLH=0, HFW=0, VP=0, T1=12, TL=36, NB=3, NWC=22, HP=15, XW=0, PT_='', PB=0, PTS=0, LSG=0, D0L=0, D0K=0, CST=0, PTW=60, D1L='', D2L='', PTG=0, CSN=0, XOB=0, WPX=0, CSJ=9, CSB=250, CSB0=500, CSL_=0, CSA_=2, WT6=0, WTP=0, WT0=3, CT2='', CTI=8, M2=0, RA=3, RB=5, CE=0, W6S=0, NX0=99, NX1=0, HPD=20, NE6=0, GE6=30, WG0=0, WGS=1, K60=3, K61=3, NX2=0, QS=1, HSC='', WSC='', XIT=-1):
    k=G(NAME,vgpr=256,agpr=256,sgpr=102); k.prof=prof; k.pst=90; k.autod=1; k.ptags=str(PT_).split('_')
    END=k.lab("END")
    if prof: k("s_memtime s[34:35]\ns_memrealtime s[96:97]")
    k(f"s_cmp_ge_u32 s2, 0x100\ns_cbranch_scc1 {END}")
    k("s_load_dwordx16 s[4:19], s[0:1], 0\ns_load_dwordx2 s[20:21], s[0:1], 64")
    PC=k.lab("PC")
    if PF==1:
        k(f'''s_getpc_b64 s[22:23]
        {PC}:
        v_lshlrev_b32 v2, 7, v0
        v_mov_b32 v5, s23
        v_min_u32 v2, {END}-{PC}, v2
        v_add_co_u32 v4, vcc, s22, v2
        v_addc_co_u32 v5, vcc, 0, v5, vcc
        global_load_dword v{JNK}, v[4:5], off''')
    if PF==2:
        k(f'''s_getpc_b64 s[22:23]
        {PC}:
        s_lshl_b32 s3, s2, 2
        v_lshrrev_b32 v2, 3, v0
        s_and_b32 s3, s3, 0xe0
        v_mov_b32 v5, s23
        v_add_lshl_u32 v2, v2, s3, 7
        v_min_u32 v2, {END}-{PC}, v2
        v_add_co_u32 v4, vcc, s22, v2
        v_addc_co_u32 v5, vcc, 0, v5, vcc
        global_load_dword v{JNK}, v[4:5], off''')
    for d,o in((SX,0),(SG,80),(SU,88),(SD,96),(SO,104),(SB,112),(SW,120)): k(f"s_load_dwordx2 s[{d}:{d+1}], s[0:1], {o}")
    for d,n in((SX,0x200000),(SG,512*2752),(SU,512*2752),(SD,1376*1024),(SO,0x200000),(SB,256),(SW,WSEND)):
        k(f"s_mov_b32 s{d+2}, {hex(n)}\ns_mov_b32 s{d+3}, 0x00020000")
    k(f"""v_lshrrev_b32 v2, 6, v0
    v_and_b32 v1, 63, v0
    v_readfirstlane_b32 s{sWV}, v2
    s_and_b32 s{sXCD}, s2, 7
    s_lshr_b32 s{sI}, s2, 3
    s_lshl_b32 s{sP}, s{sXCD}, 5
    s_add_u32 s{sP}, s{sP}, s{sI}
    s_and_b32 s{sT0}, s{sXCD}, 1
    s_lshr_b32 s{sT1}, s{sXCD}, 1
    s_lshl_b32 s{sRB}, s{sT0}, 7
    s_lshl_b32 s{sT2}, s{sT1}, 5
    s_add_u32 s{sRB}, s{sRB}, s{sT2}
    s_add_u32 s{sRB}, s{sRB}, s{sI}
    s_mul_i32 s{sT2}, s{sT1}, 30
    s_add_u32 s{sT2}, s{sT2}, s{sI}
    s_lshr_b32 s{sFT}, s{sT2}, 3
    s_and_b32 s{sT2}, s{sT2}, 7
    s_lshl_b32 s{sMT}, s{sT0}, 3
    s_add_u32 s{sMT}, s{sMT}, s{sT2}
    s_lshl_b32 s{sT1}, s{sT1}, 2
    s_lshl_b32 s{sT0}, s{sT0}, 1
    s_add_u32 s{sT1}, s{sT1}, s{sT0}
    s_add_u32 s{sT1}, s{sT1}, s{sI}
    s_sub_u32 s{sT1}, s{sT1}, 30
    s_cmp_ge_u32 s{sI}, 30
    s_cselect_b32 s{sFT}, s{sT1}, s{sFT}
    s_mov_b32 s{sMSK}, 0xffff0000""")
    k(f"""s_lshl_b32 s{sT0}, s{sRB}, 13
    s_lshl_b32 s{sT1}, s{sWV}, 11
    s_add_u32 s{sT0}, s{sT0}, s{sT1}
    v_lshl_add_u32 v3, v1, 4, s{sT0}
    s_lshl_b32 s{sT0}, s{sP}, 9
    v_lshl_add_u32 v198, v0, 1, s{sT0}""")
    for j in range(6): k(f"v_mov_b32 v{PAR+j}, 0")
    k(f"""s_lshl_b32 s{sT0}, s{sMT}, 17
    s_lshl_b32 s{sT1}, s{sWV}, 15
    s_add_u32 s{sT0}, s{sT0}, s{sT1}
    {f"s_cmp_ge_u32 s{sI}, 30"+chr(10)+f"s_cselect_b32 s{sT0}, {hex(OOB)}, s{sT0}" if XOB else ""}
    v_lshrrev_b32 v5, 3, v1
    v_lshl_add_u32 v5, v5, 10, s{sT0}
    v_lshrrev_b32 v6, 4, v1
    v_xor_b32 v7, v1, v6
    v_and_b32 v7, 7, v7
    v_lshl_add_u32 v{XD}, v7, 4, v5
    v_xor_b32 v5, 64, v{XD}
    v_add_u32 v{XD+1}, 7168, v5
    v_add_u32 v{XD+2}, 14336, v{XD}
    v_add_u32 v{XD+3}, 21504, v5
    s_mul_i32 s{sT0}, s{sFT}, 192
    s_mul_i32 s{sT1}, s{sWV}, {16*2752}""")
    for q in range(3):
        k(f"""v_add_u32 v5, {64*q}, v1
        v_mul_u32_u24 v7, 5462, v5
        v_lshrrev_b32 v7, 16, v7
        v_mul_u32_u24 v8, 12, v7
        v_sub_u32 v8, v5, v8
        v_lshl_add_u32 v8, v8, 4, s{sT0}
        v_min_u32 v8, 2736, v8
        v_mul_u32_u24 v7, 2752, v7
        v_add3_u32 v{WD+q}, v7, v8, s{sT1}""")
        if q: k(f"v_subrev_u32 v{WD+q}, {1024*q}, v{WD+q}")
    O={'o7':O7,'rot':OROT}.get(ORD) or str(ORD).zfill(8).split('_')
    pk=lambda o: hex(sum(int(ch,16)<<(4*j) for j,ch in enumerate(o)))
    k(f"s_add_u32 s{sT0}, s{sMT}, s{sFT}")
    if len(O)==3: k(f"s_mul_i32 s{sT1}, s{sT0}, 11\ns_lshr_b32 s{sT1}, s{sT1}, 5\ns_mul_i32 s{sT1}, s{sT1}, 3\ns_sub_u32 s{sT0}, s{sT0}, s{sT1}")
    else: k(f"s_and_b32 s{sT0}, s{sT0}, {len(O)-1}")
    k(f"s_mov_b32 s{sORD}, {pk(O[0])}")
    for g in range(1,len(O)): k(f"s_cmp_eq_u32 s{sT0}, {g}\ns_cselect_b32 s{sORD}, {pk(O[g])}, s{sORD}")
    k(f"s_and_b32 s{sKS}, s{sORD}, 7")
    k(f"""s_lshl_b32 s{sMX}, s{sWV}, 12
    s_mul_i32 s{sMG}, s{sWV}, 3072
    s_add_u32 s{sMG}, s{sMG}, {WG_O}
    s_lshl_b32 s{sOX}, s{sKS}, 7
    s_mul_i32 s{sOW}, s{sKS}, {64*2752}
    s_lshl_b32 s{sT0}, s{sP}, 2""")
    k.stamp('pre')
    k("s_waitcnt lgkmcnt(0)")
    k.stamp('karg')
    k(f"s_load_dword s{sLD}, s[18:19], s{sT0}\ns_load_dword s{sDK}, s[20:21], s{sT0}")
    def rowl():
        k.vm(f"buffer_load_dwordx4 {vr(ROW,4)}, v3, {srd(SX)}, 0 offen","row")
        k.vm(f"buffer_load_dwordx4 {vr(ROW+4,4)}, v3, {srd(SX)}, 0 offen offset:1024","row")
    def parl():
        for j in range(6): k.vm(f"global_load_short_d16_hi v{PAR+j}, v198, s[{6+2*j}:{7+2*j}]","par")
    if PB<2: rowl()
    if PARP==0: parl()
    if PB==3: k("s_barrier")
    if PB>=2: rowl()
    if YPS==-2:
        k(f"""s_lshl_b32 s{sT2}, s{sP}, 13
        s_lshl_b32 s{sT3}, s{sWV}, 11
        s_add_u32 s{sT2}, s{sT2}, s{sT3}
        s_add_u32 s{sT2}, s{sT2}, {YB}
        v_lshl_add_u32 v9, v1, 4, s{sT2}""")
        for r in range(16,20): k(f"v_mov_b32 v{r}, -1")
        for j in range(2): k.vm(f"buffer_store_dwordx4 v[16:19], v9, {srd(SW)}, 0 offen offset:{1024*j} sc1","psn")
    if PB in(1,2): k("s_barrier")
    def dma_list(ring,tag):
        L=[]
        if isinstance(ring,int):
            a=lambda s: f"s_add_u32 m0, s{s}, {ring}" if ring else f"s_mov_b32 m0, s{s}"
        else: a=lambda s: f"s_add_u32 m0, s{s}, {ring}"
        L.append(a(sMX))
        for q in range(4): L.append(lambda q=q: k.vm(f"buffer_load_dwordx4 v{XD+q}, {srd(SX)}, s{sOX} offen offset:{1024*q} lds",tag))
        L.append(a(sMG))
        for q in range(3): L.append(lambda q=q: k.vm(f"buffer_load_dwordx4 v{WD+q}, {srd(SG)}, s{sOW} offen offset:{1024*q} lds",tag))
        L.append(f"s_add_u32 m0, m0, {WU_D}")
        for q in range(3): L.append(lambda q=q: k.vm(f"buffer_load_dwordx4 v{WD+q}, {srd(SU)}, s{sOW} offen offset:{1024*q} lds",tag))
        return L
    nextk=[f"s_lshr_b32 s{sORD}, s{sORD}, 4",f"s_and_b32 s{sKS}, s{sORD}, 7",f"s_lshl_b32 s{sOX}, s{sKS}, 7",f"s_mul_i32 s{sOW}, s{sKS}, {64*2752}"]
    D0R=[]
    def issue_d0():
        L=dma_list(0,"d0")+nextk; n=0
        while L:
            if n>=10-D0L and D0L and callable(L[0]): break
            f=L.pop(0)
            if callable(f): f(); n+=1
            else: k(f)
        D0R.extend(L)
    if not XP&1: issue_d0()
    if PARP==1: parl()
    k.stamp('dma0')
    def run(L):
        for f in L: f() if callable(f) else k(f)
    k(f"""v_lshrrev_b32 v2, 4, v1
    v_bfe_u32 v3, v1, 2, 2
    v_and_b32 v4, 3, v1
    v_and_b32 v5, 31, v1
    v_lshrrev_b32 v6, 5, v1
    v_and_b32 v7, 15, v1
    s_and_b32 s{sT0}, s{sWV}, 1
    s_lshr_b32 s{sT1}, s{sWV}, 1""")
    k(f"""v_bfe_u32 v8, v1, 1, 3
    v_xor_b32 v8, v8, v6
    v_lshlrev_b32 v8, 4, v8
    v_lshl_add_u32 v8, v5, 7, v8
    s_lshl_b32 s{sT2}, s{sT0}, 13
    v_add_u32 v{XR}, s{sT2}, v8
    v_xor_b32 v{XR+1}, 32, v{XR}
    v_xor_b32 v{XR+2}, 64, v{XR}
    v_xor_b32 v{XR+3}, 0x60, v{XR}""")
    k(f"""v_and_b32 v8, 1, v2
    v_mul_u32_u24 v9, {WU_D}, v8
    v_lshl_add_u32 v18, v6, 3, v3
    v_mul_u32_u24 v18, 192, v18
    v_add_u32 v9, v9, v18
    v_lshl_add_u32 v9, v4, 3, v9
    s_mul_i32 s{sT2}, s{sT1}, 96
    s_add_u32 s{sT2}, s{sT2}, {WG_O}
    v_add_u32 v{WR}, s{sT2}, v9""")
    k(f"v_lshlrev_b32 v9, 4, v0\nv_add_u32 v{KCW}, {KC}, v9")
    k(f"""s_lshl_b32 s{sT2}, s{sP}, 1
    s_add_u32 s{sT2}, s{sT2}, s{sT1}
    s_lshl_b32 s{sT2}, s{sT2}, 12
    s_lshl_b32 s{sT3}, s{sT0}, 11
    s_add_u32 s{sT2}, s{sT2}, s{sT3}
    s_add_u32 s{sT2}, s{sT2}, {YB}
    v_lshlrev_b32 v9, 9, v8
    v_lshl_add_u32 v9, v7, 5, v9
    v_lshl_add_u32 v9, v6, 4, v9
    v_add_u32 v{YS}, s{sT2}, v9""")
    k(f"""s_lshr_b32 s{sT2}, s{sI}, 3
    s_lshl_b32 s{sTB}, s{sXCD}, 2
    s_add_u32 s{sTB}, s{sTB}, s{sT2}
    s_and_b32 s{sDB}, s{sI}, 7""")
    if M2: k(f"""s_lshr_b32 s{sT2}, s{sXCD}, 1
    s_lshl_b32 s{sTB}, s{sT2}, 3
    s_lshr_b32 s{sT2}, s{sI}, 2
    s_add_u32 s{sTB}, s{sTB}, s{sT2}
    s_and_b32 s{sT2}, s{sXCD}, 1
    s_lshl_b32 s{sT2}, s{sT2}, 2
    s_and_b32 s{sDB}, s{sI}, 3
    s_add_u32 s{sDB}, s{sDB}, s{sT2}""")
    k(f"""s_lshl_b32 s{sT2}, s{sMT}, 4
    s_add_u32 s{sT2}, s{sT2}, s{sFT}
    s_lshl_b32 s{sT2}, s{sT2}, 7
    s_add_u32 s{sT2}, s{sT2}, {FH}
    s_cmp_ge_u32 s{sI}, 30
    s_cselect_b32 s{sFH}, {FH+15*128}, s{sT2}
    s_cselect_b32 s{sT2}, {hex(OOB)}, s{sT2}
    s_lshl_b32 s{sFY}, s{sP}, 7
    s_add_u32 s{sFY}, s{sFY}, {FY}
    s_cmp_eq_u32 s{sWV}, 0
    s_cselect_b32 s{sC1}, s{sT2}, {hex(OOB)}
    s_cselect_b32 s{sC2}, s{sFY}, {hex(OOB)}
    s_mov_b32 s{sONE}, 1
    s_and_b32 s{sLA}, s2, 3
    s_lshl_b32 s{sLA}, s{sLA}, 6""")
    k(f"""s_mul_i32 s{sT2}, s{sWV}, {LNS}
    s_add_u32 s{sT2}, s{sT2}, {LNB}
    v_mul_u32_u24 v9, 320, v3
    v_lshl_add_u32 v9, v2, 5, v9
    v_lshl_add_u32 v9, v4, 3, v9
    v_add_u32 v{aTR}, s{sT2}, v9
    s_mul_i32 s{sT2}, s{sWV}, 640
    s_add_u32 s{sT2}, s{sT2}, {LNB}
    v_mul_u32_u24 v9, {LNS}, v2
    v_lshl_add_u32 v9, v7, 4, v9
    v_add_u32 v{aWR}, s{sT2}, v9
    s_lshl_b32 s{sT2}, s{sRB}, 6
    s_lshl_b32 s{sT3}, s{sWV}, 4
    s_add_u32 s{sT2}, s{sT2}, s{sT3}
    s_add_u32 s{sT2}, s{sT2}, {STATS}
    v_lshl_add_u32 v9, v6, 3, s{sT2}
    v_cmp_eq_u32 vcc, 0, v5
    v_mov_b32 v18, {hex(OOB)}
    s_lshl_b32 s{sT2}, s{sRB}, 13
    s_lshl_b32 s{sT3}, s{sWV}, 11
    v_cndmask_b32 v{aST}, v18, v9, vcc
    s_add_u32 s{sT2}, s{sT2}, s{sT3}
    v_lshl_add_u32 v{aXN}, v1, 4, s{sT2}
    v_writelane_b32 v{aST}, s{sC1}, 1""")
    if not YP: k(f"v_writelane_b32 v{aST}, s{sC2}, 2")
    k(f"""s_mul_i32 s{sT2}, s{sWV}, {TBS}
    s_add_u32 s{sPB}, s{sT2}, {PX}
    s_waitcnt lgkmcnt(0)
    s_lshl_b32 s{sT2}, s{sT1}, 4
    s_lshr_b32 s{sLD}, s{sLD}, s{sT2}
    s_lshl_b32 s{sLD}, s{sLD}, 16
    s_lshr_b32 s{sDK}, s{sDK}, s{sT2}
    s_lshl_b32 s{sDK}, s{sDK}, 16
    s_cmp_eq_u32 s{sT0}, 0
    s_cselect_b32 s{sDK}, s{sDK}, 0""")
    for r in (AZ,AZ+1,AZ+2,AZ+3): k(f"v_accvgpr_write_b32 a{r}, 0")
    if YP and YPS!=-2:
        for r in range(AP,AP+4): k(f"v_accvgpr_write_b32 a{r}, -1")
    k(f"""v_lshlrev_b32 v9, 3, v0
    s_mov_b32 s{sDL}, {EXB}
    v_sub_u32 v18, 2047, v9
    s_mov_b32 s{sCNT}, {656+0x4280+EXB}
    v_cvt_f32_i32 v18, v18
    v_sub_u32 v19, {2047+0x4280+EXB}, v9
    v_min_i32 v19, {138+0x4280+EXB}, v19""")
    for i in range(0,11,2):
        k(f"v_subrev_f32 v24, {float(i)}, v18" if i in(0,2,4) else f"v_subrev_f32 v24, {hex(f2b(float(i)))}, v18")
        k(f"v_subrev_f32 v25, 1.0, v24\nv_cvt_pk_bf16_f32 v24, v24, v25")
        for h in range(2):
            if i+h>10: break
            k(f"""v_subrev_u32 v26, {i+h}, v19
            v_add_u32_sdwa v25, s{sDL}, v24 dst_sel:DWORD dst_unused:UNUSED_PAD src0_sel:DWORD src1_sel:WORD_{h}
            v_med3_i32 v25, v25, v26, s{sCNT}
            v_lshrrev_b32 v26, 5, v25
            v_add_lshl_u32 v{EX+i+h}, v25, v26, 2""")
    k(f"""v_lshrrev_b32 v9, 2, v7
    v_lshl_add_u32 v9, v7, 3, v9
    v_lshl_add_u32 v9, v8, 2, v9
    v_mul_u32_u24 v27, 132, v6
    v_add_lshl_u32 v9, v9, v27, 2
    v_add_u32 v{PA0}, s{sPB}, v9
    v_sub_u32 v9, 2, v6
    v_lshlrev_b32 v9, v9, v7
    v_lshl_add_u32 v27, v6, 1, 3
    v_lshrrev_b32 v27, v27, v7
    v_mul_u32_u24 v28, 66, v2
    v_add3_u32 v9, v9, v27, v28
    s_add_u32 s{sDL}, s{sPB}, 1056
    v_lshl_add_u32 v{PA1}, v9, 2, s{sDL}
    v_mul_u32_u24 v27, 124, v6
    v_add3_u32 v{PA2}, v{PA1}, v27, 8
    v_add_lshl_u32 v9, v28, v7, 2
    s_add_u32 s{sDL}, s{sPB}, 2112
    v_add_u32 v{PA3}, s{sDL}, v9
    s_sub_u32 s{sDL}, s{sPB}, {PX-KC}
    v_lshl_add_u32 v{TW}, v1, 4, s{sDL}
    v_lshl_add_u32 v9, v2, 3, v3
    v_lshlrev_b32 v9, 4, v9
    v_lshrrev_b32 v27, 1, v4
    v_mul_u32_u24 v27, 1088, v27
    v_and_b32 v28, 1, v4
    v_lshl_add_u32 v9, v28, 3, v9
    v_add3_u32 v{TR}, v9, v27, s{sDL}
    v_and_b32 v9, 7, v1
    v_mul_u32_u24 v9, {KCS}, v9
    v_lshlrev_b32 v27, 1, v1
    v_and_b32 v27, 16, v27
    v_add_u32 v9, {KC+4096}, v9
    v_add_u32 v{KZ}, v9, v27""")
    sH0_=sDL
    def late_blocks():
        B=[]
        def blk(t):
            L=[]
            for x in t.split("\n"):
                x=x.strip()
                if not x: continue
                if x.startswith('s_cselect') : L[-1]+="\n"+x
                else: L.append(x)
            B.append(L)
        t=f"""s_mul_i32 s{sT2}, s{sFT}, 6
        s_mul_i32 s{sT3}, s{sT1}, 3
        s_add_u32 s{sT2}, s{sT2}, s{sT3}
        s_lshl_b32 s{sT3}, s{sT2}, 7
        s_add_u32 s{sT3}, s{sT3}, {CS}
        v_lshl_add_u32 v9, v1, 2, s{sT3}
        v_lshl_or_b32 v{CSA}, v6, 31, v9
        """
        for j in range(3):
            t+=f"""s_add_u32 s{sT3}, s{sT2}, {j}
            s_cmp_lt_u32 s{sT3}, 86
            s_cselect_b32 s{sH0}, 0, {hex(OOB)}
            s_lshl_b32 s{sT3}, s{sT3}, 10
            s_or_b32 s{sT3}, s{sT3}, s{sH0}
            v_lshl_add_u32 v{HS+j}, v1, 4, s{sT3}
            """
        t+=f"""s_lshl_b32 s{sT2}, s{sMT}, 1
        s_add_u32 s{sT2}, s{sT2}, s{sT0}
        s_lshl_b32 s{sT3}, s{sT2}, 9
        s_add_u32 s{sT3}, s{sT3}, {STATS}
        v_lshl_add_u32 v{ST}, v5, 3, s{sT3}
        s_mul_i32 s{sH0}, s{sT2}, {2*88064}
        s_add_u32 s{sH0}, s{sH0}, {HB}
        s_add_u32 s{sH1}, s{sH0}, 88064
        v_lshlrev_b32 v{LNP}, 6, v4
        """
        for r in (EA+1,EA+3,EA+5,EB+1,EB+3): t+=f"v_accvgpr_write_b32 a{r}, 0\n"
        blk(t)
        blk(f"""v_lshrrev_b32 v9, 1, v0
        v_and_b32 v192, 1, v0
        s_lshl_b32 s{sT2}, s{sP}, 5
        v_lshl_add_u32 v198, v192, 4, s{sT2}
        v_lshl_add_u32 v{UL}, v9, 13, v198
        v_mul_u32_u24 v192, {US}, v192
        v_lshl_add_u32 v192, v9, 4, v192
        v_add_u32 v{UW}, {UO+480}, v192
        v_min_u32 v9, 29, v5
        v_mul_u32_u24 v192, {US}, v6
        v_lshl_add_u32 v192, v9, 4, v192
        v_add_u32 v{UZ}, {UO}, v192
        s_mov_b32 s{sUQ}, 0x100000""")
        blk(f"""v_lshlrev_b32 v9, 2, v8
        v_xor_b32 v9, v9, v1
        v_and_b32 v9, 7, v9
        v_lshlrev_b32 v9, 4, v9
        v_lshrrev_b32 v192, 3, v1
        v_lshl_add_u32 v9, v192, 10, v9
        s_lshl_b32 s{sT2}, s{sDB}, 7
        v_add_u32 v{WDV}, s{sT2}, v9
        v_add_u32 v{WDV+1}, 7168, v{WDV}
        v_lshl_add_u32 v9, v6, 2, v3
        v_lshlrev_b32 v9, 7, v9
        v_lshrrev_b32 v192, 1, v3
        v_xor_b32 v192, s{sT1}, v192
        v_lshl_add_u32 v9, v192, 6, v9
        v_lshl_add_u32 v9, v8, 5, v9
        v_lshl_add_u32 v9, v4, 3, v9
        s_mul_i32 s{sAW}, s{sWV}, {AWS}
        s_mul_i32 s{sCWB}, s{sWV}, {CWS}
        s_add_u32 s{sCWB}, s{sCWB}, {CW}
        v_add_u32 v{TA}, s{sAW}, v9
        v_xor_b32 v{TA+1}, 64, v{TA}
        v_add_u32 v{TC}, s{sCWB}, v9
        v_xor_b32 v{TC+1}, 64, v{TC}""")
        t=f"""s_mul_i32 s{sT2}, s{sWV}, 22
        s_cmp_eq_u32 s{sWV}, 3
        s_cselect_b32 s{sT2}, 65, s{sT2}
        s_sub_u32 s{sT3}, 22, s{sT1}
        """
        if ROT2:
            t+=f"""s_and_b32 s{sCNT}, s{sI}, {3 if M2 else 7}
            s_mul_i32 s{sCNT}, s{sCNT}, {RB if M2 else RA}
            s_lshr_b32 s{sDL}, s{sI}, {2 if M2 else 3}
            s_mul_i32 s{sDL}, s{sDL}, {RA if M2 else RB}
            s_add_u32 s{sCNT}, s{sCNT}, s{sDL}
            v_add_u32 v9, s{sCNT}, v1
            """
        else: t+="v_mov_b32 v9, v1\n"
        for _ in range(3): t+=f"v_subrev_u32 v192, s{sT3}, v9\nv_min_u32 v9, v9, v192\n"
        t+=f"v_add_u32 v9, s{sT2}, v9\nv_lshlrev_b32 v192, 14, v9\n"
        if WT6:
            t+=f"v_min_u32 v10, {WT6-1}, v2\ns_add_u32 s{sCNT}, s{sCNT}, {WT0}\nv_add_u32 v10, s{sCNT}, v10\n"
            for _ in range(2): t+=f"v_subrev_u32 v9, s{sT3}, v10\nv_min_u32 v10, v10, v9\n"
            t+=f"v_add_u32 v10, s{sT2}, v10\nv_lshl_add_u32 v10, v10, 4, v7\ns_lshl_b32 s{sCNT}, s{sDB}, 7\nv_lshl_add_u32 v10, v10, 10, s{sCNT}\n"
        else: t+="s_nop 0\n"
        for j in range(22):
            jj=j
            if QM: jj={21-QM:21,21:21-QM}.get(j,j)
            t+=f"v_readlane_b32 s{4+j}, v192, {jj}\n"
        blk(t)
        blk(f"""s_mul_i32 s{sT2}, s{sT1}, {4*KCS}
        s_lshl_b32 s{sT3}, s{sT0}, 8
        s_sub_u32 s{sT2}, s{sT2}, s{sT3}
        s_add_u32 s{sT2}, s{sT2}, {KC+4056-3776}
        v_mul_u32_u24 v9, {KCS}, v4
        v_lshl_add_u32 v9, v2, 4, v9
        v_lshlrev_b32 v192, 3, v3
        v_sub_u32 v9, v9, v192
        v_add_u32 v{CA}, s{sT2}, v9
        s_mul_i32 s{sT2}, s{sT1}, {US}
        s_sub_u32 s{sT2}, s{sT2}, s{sT3}
        s_add_u32 s{sT2}, s{sT2}, {UO+256}
        v_lshlrev_b32 v9, 4, v2
        v_lshl_add_u32 v9, v7, 5, v9
        v_add_u32 v{CB}, s{sT2}, v9""")
        blk(f"""s_lshl_b32 s{sT2}, s{sTB}, 1
        s_add_u32 s{sT2}, s{sT2}, s{sT0}
        s_mul_i32 s{sT3}, s{sT2}, 88064
        s_add_u32 s{sT3}, s{sT3}, {HB}
        v_lshl_add_u32 v{HL}, v1, 4, s{sT3}
        s_xor_b32 s{sT3}, s{sT2}, 1
        s_mul_i32 s{sT3}, s{sT3}, 88064
        s_add_u32 s{sT3}, s{sT3}, {HB}
        v_lshl_add_u32 v{HL+1}, v1, 4, s{sT3}
        s_lshl_b32 s{sT3}, s{sT2}, 5
        v_add_u32 v9, s{sT3}, v5
        v_lshlrev_b32 v192, 3, v9
        v_add_u32 v{RS}, {STATS+4}, v192
        s_lshl_b32 s{sT3}, s{sDB}, 1
        s_add_u32 s{sT3}, s{sT3}, s{sT1}
        s_lshl_b32 s{sYQ}, s{sT3}, 6
        v_lshlrev_b32 v9, 10, v9
        v_lshl_add_u32 v9, v6, 4, v9
        v_add_u32 v{XO}, s{sYQ}, v9
        s_lshl_b32 s{sYQ}, s{sT3}, 17
        s_lshl_b32 s{sT2}, s{sT2}, 6
        s_add_u32 s{sT2}, s{sT2}, s{sYQ}
        s_add_u32 s{sT2}, s{sT2}, {YB}
        v_lshrrev_b32 v9, 2, v1
        v_lshlrev_b32 v9, 12, v9
        v_lshl_add_u32 v9, v4, 4, v9
        v_add_u32 v{YL}, s{sT2}, v9
        s_mov_b32 s{sYQ}, 0x10000
        s_lshl_b32 s{sT2}, s{sWV}, 11
        s_add_u32 s{sT2}, s{sT2}, {KC}
        v_lshl_add_u32 v{YW}, v1, 4, s{sT2}
        v_lshl_add_u32 v9, v6, 2, v3
        v_lshlrev_b32 v9, 6, v9
        v_lshl_add_u32 v9, v8, 5, v9
        v_lshl_add_u32 v9, v4, 3, v9
        v_add_u32 v{YR}, s{sT2}, v9
        s_lshl_b32 s{sT3}, s{sT3}, 11
        s_add_u32 s{sT3}, s{sT3}, {FY}
        v_lshl_add_u32 v{FYP}, v7, 7, s{sT3}
        s_lshr_b32 s{sT2}, s{sTB}, 1
        s_lshl_b32 s{sT2}, s{sT2}, 11
        s_add_u32 s{sT2}, s{sT2}, {FH}
        {"v_min_u32 v9, 14, v7" if not HFW else f"s_mul_i32 s{sT3}, s{sWV}, 7"+chr(10)+f"s_lshr_b32 s{sT3}, s{sT3}, 1"+chr(10)+f"s_add_u32 s{sH0_}, s{sT0}, 3"+chr(10)+f"v_min_u32 v9, s{sH0_}, v7"+chr(10)+f"v_add_u32 v9, s{sT3}, v9"}
        v_lshl_add_u32 v{FHP}, v9, 7, s{sT2}
        v_lshlrev_b32 v{EXW}, 4, v1""")
        return B
    for b in late_blocks()[:NE]: run(b)
    def late(): return sum(late_blocks()[NE:],[])
    k.dq=[]
    if probe&1: k.stamp('ad0')
    if not D0K: run(D0R); D0R=[]
    k.stamp('addr')
    CEI=[]
    def kgen():
        def sp(t): return [x.strip() for x in t.split("\n") if x.strip()]
        q1,q8,q128=172,174,176
        p=PAR; pr=lambda x:f"v[{x}:{x+1}]"
        S=sp(f"""v_mov_b32 v60, s{sLD}
        v_mul_f32 v60, 0x3fb8aa3b, v60
        v_exp_f32 v60, v60
        s_nop 0
        v_cvt_pk_bf16_f32 v60, v60, v60
        v_and_b32 v60, s{sMSK}, v60""")
        def cearly():
            if not CE: return
            L=k.lab("CE"); k(f"s_cmp_lt_u32 s{sI}, 30\ns_cbranch_scc1 {L}")
            n=len(k.vq); run(dma_list(SS,"dx")[5:]+nextk); del k.vq[n:]; CEI.append(n)
            k(f"s_add_u32 s{sMG}, s{sMG}, {SS}\n{L}:")
        S.append(lambda: (k.w(v="par"),k.stamp('par'),run(D0R),cearly()))
        S+=sp(f"""v_pk_mul_f32 {pr(p)}, {pr(p)}, v[60:61] op_sel_hi:[1,0]
        v_pk_mul_f32 {pr(p+2)}, {pr(p+2)}, v[60:61] op_sel_hi:[1,0]
        v_mul_f32 v{p}, 0x3fb8aa3b, v{p}
        v_mul_f32 v{p+1}, 0.15915494, v{p+1}
        v_mul_f32 v180, 0x41000000, v{p}
        v_mul_f32 v181, 0x41000000, v{p+1}
        v_mul_f32 v182, 0x43000000, v{p}
        v_mul_f32 v183, 0x43000000, v{p+1}
        v_exp_f32 v180, v180
        v_exp_f32 v178, v{p}
        v_exp_f32 v182, v182
        v_fract_f32 v181, v181
        v_fract_f32 v179, v{p+1}
        v_fract_f32 v183, v183""")
        def cmul(L,T,d,x,y):
            L+=[f"v_pk_mul_f32 {pr(T)}, {pr(x)}, {pr(y)} op_sel:[0,0] op_sel_hi:[0,1]",
                f"v_pk_fma_f32 {pr(d)}, {pr(x)}, {pr(y)}, {pr(T)} op_sel:[1,1,0] op_sel_hi:[1,0,1] neg_lo:[1,0,0]"]
        cmul(S,64,60,p+4,p+2)
        for j in (1,0,2): S+=sp(f"v_cos_f32 v{172+2*j}, v{179+2*j}\nv_sin_f32 v{173+2*j}, v{179+2*j}")
        for j in (1,0,2): S.append(f"v_pk_mul_f32 {pr(172+2*j)}, {pr(172+2*j)}, {pr(178+2*j)} op_sel_hi:[1,0]")
        def pack(L,t,e,x,y):
            n='-' if t==0 else ''
            re,im=(TB+16*t+(e>>1),TB+16*t+8+(e>>1)) if t<3 else ((TB+48+(e>>1),TB+52+(e>>1)) if e<8 else (TB+56,TB+58))
            o=lambda z,j: (z[j] if isinstance(z,tuple) else f"{n if j else ''}v{z+j}")
            L+=[f"v_cvt_pk_bf16_f32 v{re}, {o(x,0)}, {o(y,0)}",f"v_cvt_pk_bf16_f32 v{im}, {o(x,1)}, {o(y,1)}"]
        A=[];X0,X1,T=60,62,64
        for b in range(0,16,2):
            if b: cmul(A,T,X0,X1,q8)
            cmul(A,T,X1,X0,q8); pack(A,0,b,X0,X1)
        A.append(('T',0))
        B=[];X0,X1,T=66,68,70
        qp={1:q1}
        pack(B,1,0,("1.0","0"),q1)
        for x in range(2,8):
            qp[x]=178+2*(x-2); cmul(B,T,qp[x],qp[x-1],q1)
            if x&1: pack(B,1,x-1,qp[x-1],qp[x])
        cmul(B,T,X1,q128,q1); pack(B,1,8,q128,X1)
        for x in (2,4,6): cmul(B,T,X0,q128,qp[x]); cmul(B,T,X1,q128,qp[x+1]); pack(B,1,8+x,X0,X1)
        B.append(('T',1))
        C=[];C0,X0,X1,T=72,74,76,78
        D=[];D0,D1,TD=80,82,84
        cmul(C,T,C0,q128,q128)
        cmul(D,TD,D0,q128,q128); cmul(D,TD,D0,D0,D0); cmul(D,TD,D1,D0,D0)
        for x in (2,3):
            if x==3: cmul(C,T,C0,C0,q128)
            cmul(C,T,X1,C0,qp[2]); pack(C,2,4*(x-2),C0,X1)
            cmul(C,T,X0,C0,qp[4]); cmul(C,T,X1,C0,qp[6]); pack(C,2,4*(x-2)+2,X0,X1)
        for x in range(4,8):
            cmul(C,T,C0,C0,q128); cmul(C,T,X1,C0,qp[4]); pack(C,2,8+2*(x-4),C0,X1)
        C.append(('T',2))
        for x in range(0,8,2):
            if x: cmul(D,TD,D1,D0,q128)
            cmul(D,TD,D0,D1,q128); pack(D,3,x,D1,D0)
        cmul(D,TD,D1,D0,q128); pack(D,3,8,D1,("0","0"))
        D.append(('T',3))
        def rr(a,b):
            o=[];a=list(a);b=list(b);na,nb=len(a),len(b)
            while a or b:
                if a and (not b or len(a)*nb>=len(b)*na): o.append(a.pop(0))
                else: o.append(b.pop(0))
            return o
        S+=rr(A,B)+rr(C,D)
        S+=sp(f"v_mov_b32 v{PACC}, 0\nv_mov_b32 v{PACC+1}, 0\nv_mov_b32 v{PACC+2}, 0\nv_mov_b32 v{PACC+3}, 0\nv_writelane_b32 v{PACC}, s{sDK}, 0")
        return S
    def tabio(t):
        L=[]
        R=[TB+16*t+4*j for j in range(4)] if t<3 else [TB+48,TB+56,TB+52,TB+58]
        for j in range(4):
            if t==3 and j&1 and T3B: L.append(('r',lambda r=R[j],j=j: k.ds(f"ds_write_b32 v{TW}, v{r} offset:{1088*j}","tw")))
            else: L.append(('w',lambda r=R[j],j=j: k.ds(f"ds_write_b128 v{TW}, {vr(r,4)} offset:{1088*j}","tw")))
        for st in range(4):
            for h in range(2): L.append(('r',lambda t=t,st=st,h=h: k.ds(f"ds_read_b64_tr_b16 {ar(KF+16*t+4*st+2*h,2)}, v{TR} offset:{(st&1)*2176+(st>>1)*512+64*h}",f"kf{t}")))
        return L
    def pmf(T):
        return [f"v_mfma_f32_16x16x32_bf16 {vr(PACC+4*T,4)}, {ar(KF+16*(T+1)+4*st,4)}, {ar(KF+4*st,4)}, {vr(PACC+4*T,4) if (st or T==0) else '0'}" for st in range(4)]
    def pwr(T):
        if T==0: k.ds(f"ds_write2_b32 v{PA0}, v{PACC}, v{PACC+1} offset0:0 offset1:1"); k.ds(f"ds_write2_b32 v{PA0}, v{PACC+2}, v{PACC+3} offset0:2 offset1:3")
        if T==1: k.ds(f"ds_write2_b32 v{PA1}, v{PACC+4}, v{PACC+5} offset0:0 offset1:1"); k.ds(f"ds_write2_b32 v{PA2}, v{PACC+6}, v{PACC+7} offset0:0 offset1:1")
        if T==2: k.ds(f"ds_write2_b32 v{PA3}, v{PACC+8}, v{PACC+9} offset0:0 offset1:16"); k.ds(f"ds_write2_b32 v{PA3}, v{PACC+10}, v{PACC+11} offset0:33 offset1:49")
    LN=[lambda: (k.w(v="row"),k.stamp('kg'))]
    def ln(t): LN.extend(x.strip() for x in t.split("\n") if x.strip())
    for j in range(8): ln(f"v_lshlrev_b32 v{20+2*j}, 16, v{ROW+j}\nv_and_b32 v{21+2*j}, s{sMSK}, v{ROW+j}")
    def red2(m):
        LN.append(('M',m))
        ln("""s_nop 1
        v_permlane32_swap_b32 v40, v41
        v_add_f32 v40, v40, v41
        v_mov_b32 v41, v40
        s_nop 1
        v_permlane16_swap_b32 v40, v41
        v_add_f32 v40, v40, v41""")
        for r in(8,4,2,1): ln(f"s_nop 1\nv_add_f32_dpp v40, v40, v40 row_ror:{r} row_mask:0xf bank_mask:0xf")
        ln("v_mul_f32 v40, 0x3b000000, v40")
    for b,d in((20,40),(28,41)):
        ln(f"""v_pk_add_f32 v[36:37], v[{b}:{b+1}], v[{b+2}:{b+3}]
        v_pk_add_f32 v[38:39], v[{b+4}:{b+5}], v[{b+6}:{b+7}]
        v_pk_add_f32 v[36:37], v[36:37], v[38:39]
        v_add_f32 v{d}, v36, v37""")
    red2(0)
    ln(f"""v_mov_b32 v42, v40
    v_mov_b32 v43, v40
    v_cvt_pk_bf16_f32 v{LST}, -v40, -v40
    s_nop 0
    v_permlane32_swap_b32 v42, v43""")
    for h,(b,d) in enumerate(((20,40),(28,41))):
        for j in range(4):
            ln(f"v_pk_add_f32 v[38:39], v[{b+2*j}:{b+2*j+1}], v[42:43] op_sel:[0,{h}] op_sel_hi:[1,{h}] neg_lo:[0,1] neg_hi:[0,1]")
            ln("v_pk_mul_f32 v[36:37], v[38:39], v[38:39]" if j==0 else "v_pk_fma_f32 v[36:37], v[38:39], v[38:39], v[36:37]")
        ln(f"v_add_f32 v{d}, v36, v37")
    red2(1)
    LN.append(('M',2))
    ln(f"""v_cvt_pk_bf16_f32 v40, v40, v40
    v_and_b32 v40, s{sMSK}, v40
    v_add_f32 v40, 0x3727c5ac, v40
    v_cvt_pk_bf16_f32 v40, v40, v40
    v_and_b32 v40, s{sMSK}, v40
    v_sqrt_f32 v40, v40
    v_and_b32 v41, s{sMSK}, v{LST}
    v_cvt_pk_bf16_f32 v40, v40, v40
    v_and_b32 v40, s{sMSK}, v40
    v_rcp_f32 v46, v40
    s_nop 0
    v_mul_f32 v47, v41, v46
    v_mul_f32 v{LST+1}, v46, v46
    v_mov_b32 v48, v46
    v_mov_b32 v49, v47
    s_nop 1
    v_permlane32_swap_b32 v46, v48
    v_permlane32_swap_b32 v47, v49""")
    LN.append(('M',3))
    for h,b in enumerate((20,28)):
        P=f"v[{46+2*h}:{47+2*h}]"
        for j in range(4):
            ln(f"v_pk_fma_f32 v[{b+2*j}:{b+2*j+1}], v[{b+2*j}:{b+2*j+1}], {P}, {P} op_sel:[0,0,1] op_sel_hi:[1,0,1]")
            ln(f"v_cvt_pk_bf16_f32 v{ROW+4*h+j}, v{b+2*j}, v{b+2*j+1}")
        LN.append(lambda h=h: k.ds(f"ds_write_b128 v{aWR}, {vr(ROW+4*h,4)} offset:{320*h}"))
    LN.append(('M',4))
    D1=dma_list(SS,"d1")+nextk
    if XP&16:
        for i in range(10,-1,-1): k.w(v=i); k.stamp(f'w{i}')
    if XP&32:
        i=0
        for f in D1:
            run([f])
            if callable(f): k.stamp(f'i{i}'); i+=1
        for i in range(10,-1,-1): k.w(v=i); k.stamp(f'w{i}')
        D1=[]
    IO=[]; IOL=[]; lastw=-99; n=0; nt=0
    def icount(): return sum(1 for l in k.L if not l.endswith(':') and not l.strip().startswith(';'))
    def cost(l):
        l=l.strip()
        if l.endswith(':') or l.startswith(';') or not l: return 0
        if l.startswith('ds_write_b128'): return 50
        if l.startswith('ds_'): return 12
        if l.split()[0][:5] in('v_exp','v_sin','v_cos','v_rcp','v_sqr','v_log'): return 8
        if l.startswith('s_nop'): return 4 if int(l.split()[1])<4 else 8
        return 4
    clk=None; nx=D1C; l0=len(k.L)
    DL=[int(x) for x in D1L.split('_')] if D1L else []
    if DL: nx=DL.pop(0)
    for f in kgen()+LN:
        if isinstance(f,tuple):
            if f[0]=='T':
                (IO if nt<IOP else IOL).extend(tabio(f[1])); nt+=1
            continue
        run([f]); n+=1
        if clk is None and callable(f): clk=0; l0=len(k.L)
        if IO:
            if IO[0][0]=='r': run([IO.pop(0)[1]])
            elif n-lastw>=TWK: run([IO.pop(0)[1]]); lastw=n
        if D1P:
            if clk is not None:
                clk+=sum(cost(l) for l in k.L[l0:]); l0=len(k.L)
                if clk>=nx and D1:
                    while D1 and not callable(D1[0]): run([D1.pop(0)])
                    if D1: run([D1.pop(0)])
                    nx=(DL.pop(0) if DL else nx) if D1L else nx+D1P
        elif n>=D1S and (n-D1S)%D1E==D1E-1 and D1:
            g=D1.pop(0); run([g])
            if not callable(g) and D1: run([D1.pop(0)])
    print("prologue cost after par",clk,"d1 left",len(D1))
    run([x[1] for x in IO])
    run(D1)
    def ptail(F=[]):
        fin={}; F=list(F)
        for T in range(3):
            k.w(d=min(k.nd("kf0"),k.nd(f"kf{T+1}")))
            for m in pmf(T):
                k(m); fin[T]=icount()
                if F:
                    f=F.pop(0); run([f])
                    if not callable(f) and F: run([F.pop(0)])
        run(F)
        for T in range(3):
            d=8-(icount()-fin[T])
            if d>0: k(f"s_nop {d-1}")
            pwr(T)
    def ptail_items():
        L=[]; fin={}
        for T in range(3):
            for i,m in enumerate(pmf(T)):
                L.append(lambda T=T,i=i,m=m: (k.w(d=min(k.nd("kf0"),k.nd(f"kf{T+1}"))) if i==0 else 0, k(m), fin.__setitem__(T,icount())))
        def pw(T):
            d=8-(icount()-fin[T])
            if d>0: k(f"s_nop {d-1}")
            pwr(T)
        if PTS==2:
            def blk():
                k.w(d=min(k.nd(f"kf{t}") for t in range(4)))
                for st in range(4):
                    for T in range(3): k(pmf(T)[st]); fin[T]=icount()
            return [blk,"s_nop 0","s_nop 0",lambda:pw(0),"s_nop 0",lambda:pw(1),"s_nop 0",lambda:pw(2)]
        return L[:8]+[lambda:pw(0)]+L[8:]+[lambda:pw(1),"s_nop 0",lambda:pw(2)]
    k.stamp('ln')
    CSL=k.lab("CS"); MRG=k.lab("MRG")
    k(f"s_cmp_ge_u32 s{sI}, 30\ns_cbranch_scc1 {CSL}")
    vq_cs=list(k.vq)
    if CE: vq_cs=vq_cs[:CEI[0]]+["d1"]*6+["d2" if x=="d1" else x for x in vq_cs[CEI[0]:]]
    pass; dq_cs=list(k.dq); nst_cs=k.nst; IOL_cs=list(IOL)
    def lntr():
        return [lambda q=q,h=h: k.ds(f"ds_read_b64_tr_b16 {ar(LTR+4*q+2*h,2)}, v{aTR} offset:{128*q+1280*h}",f"lt{q}") for q in range(2) for h in range(2)]
    def poison(): return [lambda j=j: k.vm(f"buffer_store_dwordx4 {ar(AP,4)}, v{YS}, {srd(SW)}, 0 offen offset:{1024*j} sc1","lnst") for j in range(2)]
    def lnst(yp=1):
        L=[f"v_writelane_b32 v{LST}, 0, 1"]
        if not YP: L+=[f"v_writelane_b32 v{LST}, 0, 2"]
        L+=[lambda: k.vm(f"buffer_store_dwordx2 {vr(LST,2)}, v{aST}, {srd(SW)}, 0 offen sc1","lnst")]
        if YP and yp: L+=poison()
        for q in range(2): L.append(lambda q=q:(k.w(d=f"lt{q}"),k.vm(f"buffer_store_dwordx4 {ar(LTR+4*q,4)}, v{aXN}, {srd(SW)}, 0 offen offset:{1024*q} sc1","lnst")))
        return L
    def lnatomic():
        L=k.lab(); k(f"s_cmp_lg_u32 s{sWV}, 0\ns_cbranch_scc1 {L}\ns_atomic_add s{sONE}, s[{SB}:{SB+1}], s{sLA}\n{L}:"); k.smem=1
    def exrd(c): return [lambda i=i: k.ds(f"ds_read2st64_b32 {vr(112+24*c+2*i,2)}, v{EX+i} offset0:{PO[2*c]} offset1:{PO[2*c+1]}",f"ex{c}_{i}") for i in range(11)]
    def exva(c):
        L=[]
        for i in range(11):
            t=f"v_add_f32 v{112+24*c+2*i}, v{112+24*c+2*i}, v{113+24*c+2*i}"
            L.append((lambda i=i,t=t:(k.w(d=f"ex{c}_{min(i+3,10)}"),k(t))) if i in(0,4,8) else t)
        for s in range(4):
            for j in range(4):
                i=112+24*c+2*(3-s+2*j)
                L.append(f"v_cvt_pk_bf16_f32 v{KX+16*c+4*s+j}, v{i}, v{i+2}")
        return L
    def kcw():
        return [lambda r=r: k.ds(f"ds_write_b128 v{KCW}, {vr(KX+4*r,4)} offset:{r*KCS}","kcw") for r in range(8)]+[lambda: k.ds(f"ds_write_b128 v{KZ}, {ar(AZ,4)}","kcw")]
    ACC=16; FS=(176,196,216,236)
    base=[0]
    def rd(slot,st,f,what,tag="fr"):
        o=slot*SS-base[0]; assert 0<=o<=SS
        if what[0]=='b':
            e=what[1]; return [lambda: k.ds(f"ds_read_b128 {ar(FS[f]+12+4*e,4)}, v{XR+st} offset:{o+4096*e}",tag)]
        u=what[1]; return [lambda h=h: k.ds(f"ds_read_b64_tr_b16 {ar(FS[f]+4*u+2*h,2)}, v{WR} offset:{o+3072*st+768*h+32*u}",tag) for h in range(2)]
    def dummy():
        if getattr(k,'smem',0): k.ds(f"ds_read_u8 v{JNK}, v1","dum")
    def reads(slot,st,f):
        return rd(slot,st,f,('b',0))+rd(slot,st,f,('a',0))+rd(slot,st,f,('b',1))+rd(slot,st,f,('a',1))+rd(slot,st,f,('a',2))+[dummy]
    def mf1(f,b,zero=False):
        u,e=b>>1,b&1
        return f"v_mfma_f32_32x32x16_bf16 {vr(ACC+16*b,16)}, {ar(FS[f]+4*u,4)}, {ar(FS[f]+12+4*e,4)}, {'0' if zero else vr(ACC+16*b,16)}"
    def mf(f,zero=False): return [mf1(f,b,zero) for b in range(6)]
    def mix(a,b):
        o=[];a=list(a);b=list(b)
        while a or b:
            if a:o.append(a.pop(0))
            if a:o.append(a.pop(0))
            if b:o.append(b.pop(0))
        return o
    def adv(delta): return [f"v_add_u32 v{r}, {delta}, v{r}" for r in(XR,WR,XR+1,XR+2,XR+3)]
    side=[]; acc=[0]
    def wv(mfs,fl,per):
        fl=list(fl)
        for i,m in enumerate(mfs):
            run([m])
            n=per[i] if isinstance(per,(list,tuple)) else per
            for _ in range(n):
                if fl: run([fl.pop(0)])
            acc[0]+=NS
            while acc[0]>=10:
                acc[0]-=10
                if side: run([side.pop(0)])
        run(fl)
    def poll(tag,reg,addr,sr,exp):
        ok=k.lab("OK"); rt=k.lab("RT")
        k.w(v=tag)
        cmp="gt" if exp==64 else "ne"
        k(f"v_cmp_{cmp}_u32 vcc, {exp}, v{reg}\ns_cbranch_vccnz {rt}\n{ok}:")
        lp=k.lab("RL"); sl_=SLP if exp==64 else SLH
        k.tail.append(f"""{rt}:
        s_movk_i32 s{sRING}, 4000
        {lp}:
        {'s_sleep %d'%sl_ if sl_ else ''}
        buffer_load_dword v{reg}, v{addr}, {srd(sr)}, 0 offen sc1
        s_waitcnt vmcnt(0)
        v_cmp_{cmp}_u32 vcc, {exp}, v{reg}
        s_cbranch_vccz {ok}
        s_sub_u32 s{sRING}, s{sRING}, 1
        s_cmp_lg_u32 s{sRING}, 0
        s_cbranch_scc1 {lp}
        s_branch {ok}""")
    LNX=64; FLX=4
    def sat(so): k(f"s_atomic_add s{sONE}, s[{SW}:{SW+1}], s{so}"); k.smem=1
    lnpoll=lambda: k.vm(f"buffer_load_dword v{PL}, v{LNP}, {srd(SB)}, 0 offen sc1","lnp")
    def uloads():
        return [lambda q=q: k.vm(f"buffer_load_dwordx4 {ar(UR+4*q,4)}, v{UL}, {srd(SW)}, {'s%d'%sUQ if q else 0} offen{'' if NSC&1 else ' sc1'}","u") for q in range(2)]
    def wd_loc(j):
        if j<4: return ('C',2048*j)
        if j<9: return ('A',2048*(j-4))
        if j<14: return ('A',BW+2048*(j-9))
        if j<18: return ('C',2048*(j-14))
        return ('A',2048*(j-18))
    def wd_dma(j):
        r,o=wd_loc(j); b=sCWB if r=='C' else sAW
        return [f"s_add_u32 m0, s{b}, {o}" if o else f"s_mov_b32 m0, s{b}"]+[lambda h=h: k.vm(f"buffer_load_dwordx4 v{WDV+h}, {srd(SD)}, s{4+j} offen offset:{1024*h} lds",f"wd{j}") for h in range(2)]
    def wd_tr(j):
        r,o=wd_loc(j); b=TC if r=='C' else TA
        return [lambda e=e,h=h: k.ds(f"ds_read_b64_tr_b16 {ar(8*j+4*e+2*h,2)}, v{b+e} offset:{o+1024*h}",f"wt{j}") for e in range(2) for h in range(2)]
    def uwrite():
        L=[lambda: k.ds(f"ds_write_b128 v{UZ}, {ar(AZ,4)}","uw")]
        L+=[lambda q=q: (k.w(v="u"),k.ds(f"ds_write_b128 v{UW}, {ar(UR+4*q,4)} offset:{2048*q}","uw")) for q in range(2)]
        return L
    sl=[lambda e=e: k.vm(f"buffer_load_dword a{EB+2*e}, v{ST}, {srd(SW)}, 0 offen offset:{256*e} sc1","st") for e in range(2)]
    cl=[lambda j=j: k.vm(f"buffer_load_dword a{EA+2*j}, v{CSA}, {srd(SW)}, 0 offen offset:{128*j} sc1","cs") for j in range(3)]
    def cscheck():
        k.w(v="cs")
        ok=k.lab("OK"); rt=k.lab("RT"); lp=k.lab("RL")
        chk=f"v_accvgpr_read_b32 v9, a{EA}\nv_accvgpr_read_b32 v10, a{EA+2}\nv_accvgpr_read_b32 v11, a{EA+4}\nv_max3_u32 v9, v9, v10, v11\nv_cmp_eq_u32 vcc, -1, v9"
        k(f"{chk}\ns_cbranch_vccnz {rt}\n{ok}:")
        k.tail.append(f"""{rt}:
        s_movk_i32 s{sRING}, 4000
        {lp}:
        buffer_load_dword a{EA}, v{CSA}, {srd(SW)}, 0 offen sc1
        buffer_load_dword a{EA+2}, v{CSA}, {srd(SW)}, 0 offen offset:128 sc1
        buffer_load_dword a{EA+4}, v{CSA}, {srd(SW)}, 0 offen offset:256 sc1
        s_waitcnt vmcnt(0)
        {chk}
        s_cbranch_vccz {ok}
        s_sub_u32 s{sRING}, s{sRING}, 1
        s_cmp_lg_u32 s{sRING}, 0
        s_cbranch_scc1 {lp}
        s_branch {ok}""")
    if probe&1: k.w(v="d0"); k.stamp('d0')
    k.w(v="d0",d=0); k("s_barrier")
    if XP&64:
        for i in range(9,-1,-1): k.w(v=i); k.stamp(f'w{i}')
    run(reads(0,0,0)); run(lntr())
    k.stamp('s0')
    KW=[]
    WT=[int(c) for c in str(WDT) if c.isdigit()] if WDT!=-1 else []
    NT=-(-92//max(len(WT),1))
    def touch(s):
        L=[]
        if s==WT[0]: L.append(f"""s_lshl_b32 s{sC1}, s{sI}, 2
            s_add_u32 s{sC1}, s{sC1}, s{sWV}
            s_mul_i32 s{sC1}, s{sC1}, {NT*len(WT)*128}
            v_min_u32 v10, {NT-1}, v1
            v_lshl_add_u32 v10, v10, 7, s{sC1}""")
        else: L.append(f"v_add_u32 v10, {NT*128}, v10")
        L.append(lambda: k.vm(f"buffer_load_dword v11, v10, {srd(SD)}, 0 offen","tch"))
        return L
    cur=[0]
    tch6=lambda: k.vm(f"buffer_load_dword v{JNK}, v10, {srd(SD)}, 0 offen","tch")
    for s in range(7):
        slot=s%3; cur[0]=s
        D=dma_list(((s+2)%3)*SS,f"d{s+2}") if s<6 else []
        X=[[],[],[]]; per=[3,3,3]
        if s<6: X=[D[0:5],D[5:9],D[9:13]+(nextk if s<5 else [])]
        if s==1 and DE:
            print("d2 left for stage 1:",sum(callable(x) for x in DE)); Z=DE+X[0]+X[1]+X[2]; n3_=len(Z)//3
            X=[Z[:n3_],Z[n3_:2*n3_],Z[2*n3_:]]
        if s==1:
            LB=late_blocks(); LB[:NE]=[[]]*NE
            EXP=exrd(0)+exrd(1)[:3]+mix(exva(0),exrd(1)[3:])+exva(1)
            if PTS:
                P=[x for x in ptail_items()]; Q=LB[0]+LB[1]+LB[2]+LB[3]
                side+=Q[:PTG]; Q=Q[PTG:]
                while P:
                    x=P.pop(0)
                    if x!="s_nop 0" or PTS==1: side.append(x)
                    if Q: side.append(Q.pop(0))
                np_=len(side); side+=Q; n1=n3=len(side); bpos=len(side)
                side+=[lambda: (_ for _ in ()).throw(AssertionError("expansion too early")) if cur[0]<2 else 0]+EXP; n2=len(side)
            else:
                side+=LB[0]+LB[1]; n1=len(side)
                side+=EXP; n2=len(side)
                side+=LB[2]+LB[3]; n3=len(side)
            side+=LB[4]+LB[5]; nside=len(side)
        def flush(n):
            c=0
            while len(side)>nside-n: run([side.pop(0)]); c+=1
            if c: print("flushed",c,"at stage",s)
        if s==LPS: flush(n1)
        if s==3 and KCB==0: flush(n2)
        if s==6: flush(n3)
        if s>=3 and KW:
            for j in range(3):
                if KW: X[j]=X[j]+[KW.pop(0)]
        if s==LPS: X[0]=[lnpoll]+X[0]
        if s==LPS+1 and D5L and s<6: X=[[],X[0],X[1]+X[2]]
        if s==CLS and CLS!=LPS: X[0]=cl+X[0]
        if s in WT: X[2]=X[2]+touch(s)
        if s and s==LSP: X[2]=X[2]+lnst(YPS==-1)
        if s and s==YPS: X[2]=X[2]+poison()
        if s==6:
            W=sum((wd_dma(j) for j in range(NPRE)),[])
            if WT6: W=W+[tch6] if WTP==0 else [tch6]+W
            X=[[X[0]+W[:3],W[3:9],W[9:]],[X[0],W[:6],W[6:]],[X[0],W[:3],W[3:]],[X[0],[],W],[X[0]+W[:3],W[3:6],W[6:]]][W6S]
            if KCB==3:
                KR=kcw(); X=[X[0]+KR[:K60],KR[K60:K60+K61]+X[1],X[2]]; KR=KR[K60+K61:]
        if s==0:
            F=[reads(0,1,1),reads(0,2,0),reads(0,3,1)]; g=0; LS=lnst(YPS==-1) if LSP==0 else []; lw=-9
            DE=[]
            if D2P:
                DE=D+nextk; D=[]
                if not LSG: D=LS; LS=[]
            d2t=[D2G]
            if D2L: D2Q=[int(x) for x in D2L.split('_')]; d2t=[D2Q.pop(0)]
            def d2w(g):
                while DE and g>=d2t[0]:
                    while DE and not callable(DE[0]): run([DE.pop(0)])
                    if DE: run([DE.pop(0)])
                    while DE and not any(callable(x) for x in DE): run([DE.pop(0)])
                    if D2L: d2t[0]=D2Q.pop(0) if D2Q else d2t[0]
                    else: d2t[0]+=D2P/10
            for st in range(3):
                k.w(d="fr")
                for i,m in enumerate(mf(st&1,st==0)):
                    k(m); n=0
                    while F[st] and n<2: run([F[st].pop(0)]); n+=1
                    if IOL and IOL[0][0]=='w':
                        if g-lw>=W0E: run([IOL.pop(0)[1]]); lw=g
                    else:
                        while IOL and IOL[0][0]=='r' and n<4: run([IOL.pop(0)[1]]); n+=1
                    if LSG:
                        if g>=LSG-1 and LS: run([LS.pop(0)])
                    elif st>=1 and LS and n<3: run([LS.pop(0)])
                    d2w(g)
                    g+=1
                run(F[st])
            run([x[1] for x in IOL]); run(LS)
            if probe&1: k.stamp('io')
            if PTS==0:
                if LSG:
                    F=[]
                    for i in range(12): F.append(lambda i=i: d2w(18+i*PTW/120))
                    ptail(F); g0_=18+PTW/10
                else: ptail(DE+D if D2P else D+nextk); DE=[]
                D=[]
            elif not LSG: run(DE); DE=[]
            else: g0_=18
            if KCB==0: KW=kcw()
            if probe&1: k.stamp('d2')
        else:
            k.w(d="fr"); wv(mf(0),mix(reads(slot,1,1),X[0]),per[0])
            k.w(d="fr"); wv(mf(1),mix(reads(slot,2,0),X[1]),per[1])
            k.w(d="fr"); wv(mf(0),mix(reads(slot,3,1),X[2]),per[2])
        ns=(s+1)%3; A=[]
        if ns==2: A=adv(SS); base[0]=SS
        if ns==0: A=adv(-SS); base[0]=0
        wt=f"d{s+1}"
        ex=[]
        if s==LPS: ex=[lambda: poll("lnp",PL,LNP,SB,LNX)]+sl+(cl if CLS==LPS else [])+uloads()
        bar=[lambda wt=wt:(k.w(v=wt),k("s_barrier"))]
        if s==LAS:
            bar.append(lnatomic); bar[0]=lambda wt=wt:(k.w(v=min(k.nv(wt),k.nv('lnst'))),k('s_barrier'))
            assert LAS>=max(LSP,YPS)
        if s==1 and PTS: flush(np_)
        if s==min(PTS,1): k.w(d=0)
        else: k.w(d="fr")
        if s==0 and PTS: ex=D
        if s==6: flush(nside)
        if s==LAS+3: k.smem=0
        M3=mf(1)
        if s==0 and DE: M3=[(lambda i=i,m=m: (k(m),d2w(g0_+i))) for i,m in enumerate(M3)]
        wv(M3,bar+A[:2]+reads(ns,0,0)+A[2:]+ex,[len(bar),5,5,3,2,5])
        k.stamp(f's{s+1}')
    R=[]
    for wh in (('b',0),('a',0),('b',1),('a',1),('a',2)):
        for st in (1,2,3): R+=rd(1,st,st,wh,f"f{wh[0]}{wh[1]}")
    mx=[f"v_mfma_f32_32x32x8_bf16 {vr(ACC+16*b,16)}, {ar(EA+2*(b>>1),2)}, {ar(EB+2*(b&1),2)}, {vr(ACC+16*b,16)}" for b in range(6)]
    def hepi(b):
        a=ACC+16*b; u,e=b>>1,b&1
        L=[f"v_mul_f32 v{a+r}, v{a+r}, v{a+8+r}" for r in range(8)]
        L+=[f"v_cvt_pk_bf16_f32 v{a+8+j}, v{a+2*j}, v{a+2*j+1}" for j in range(4)]
        L.append(lambda: k.vm(f"buffer_store_dwordx4 {vr(a+8,4)}, v{HS+u}, {srd(SW)}, s{sH0+e} offen sc1","h"))
        return L
    WA=sum((wd_dma(j) for j in range(NPRE,NPRE+NA7)),[]); nwd=NPRE+NA7
    k.w(d="fr"); wv(mf(0),mix(R[:18],WA[:G7])+[cscheck],[4,4,4,4,4,9])
    LQ=mix(R[18:],WA[G7:])+uwrite(); nR=len(LQ)-3
    if KCB==3: LQ+=KR
    need={0:"fa0",1:"fb1",2:"fa1",4:"fa2"}
    HQ=[]; fin={}; g=6
    def gap(nh,nl):
        nonlocal nR
        n=0
        while HQ and n<nh and icount()-fin[HQ[0][0]]>=12: run([HQ.pop(0)[1]]); n+=1
        n=0
        while LQ and n<nl and (nR>0 or g>=TWS): run([LQ.pop(0)]); n+=1; nR-=1
    for m in mx: k(m); gap(0,4 if nR>0 else 1); g+=1
    for b in range(6):
        if b in need: k.w(d=need[b])
        for st in (1,2,3):
            k(mf1(st,b))
            if st==3: fin[b]=icount(); HQ+=[(b,f) for f in hepi(b)]
            gap(NH,4 if nR>0 else (g&1)); g+=1
    k.stamp('g1')
    while HQ or LQ:
        n0=icount(); gap(NH,NL)
        if icount()==n0: k("s_nop 0")
    if KCB==2: k.stamp('hepi'); run(kcw())
    k(f"{MRG}:"); nst_mrg=k.nst
    k.w(d=0); k("s_barrier")
    k.stamp('exp')
    CS0A,CS0B=('a',176),('a',208); CS1A,CS1B=('v',16),('v',48); CACC=112
    def rg(t,o,n): return (ar if t[0]=='a' else vr)(t[1]+o,n)
    def conv_reads(rho):
        RA,RB=((CS0A,CS0B),(CS1A,CS1B))[rho&1]
        L=[]
        for i in range(8):
            L.append(lambda i=i: k.ds(f"ds_read_b128 {rg(RB,4*i,4)}, v{CB} offset:{192-64*rho+512*i}",f"cv{rho}"))
            for h in range(2): L.append(lambda i=i,h=h: k.ds(f"ds_read_b64 {rg(RA,4*i+2*h,2)}, v{CA} offset:{3776-512*i-64*rho+8*h}",f"cv{rho}" if (rho or h==0) else f"cv0_{i}"))
        return L
    def conv_mf(rho):
        RA,RB=((CS0A,CS0B),(CS1A,CS1B))[rho&1]
        L=[]
        for s in range(8):
            for i in range(s+1):
                I=s
                c="0" if (rho==0 and i==0) else vr(CACC+4*I,4)
                L.append(f"v_mfma_f32_16x16x32_bf16 {vr(CACC+4*I,4)}, {rg(RA,4*i,4)}, {rg(RB,4*(I-i),4)}, {c}")
        return L
    st_=lambda n: [lambda: k.stamp(n)] if probe&2 else []
    def trs(js):
        L=[]
        for j in js:
            T=wd_tr(j); L+=[lambda j=j,f=T[0]: (k.w(v=f"wd{j}"),f())]+T[1:]
        return L
    def dm(j):
        D=wd_dma(j)
        if j>=14: return [lambda: (k(D[0]),k.w(d=f"wt{j-14}") if f"wt{j-14}" in k.dq else 0)]+D[1:]
        return D
    def dms(a,b): return sum((dm(j) for j in range(max(a,nwd),b)),[])
    HSL=[('v',144+8*i) for i in range(6)]+[('a',240),('a',248)]+[('a',176+8*i) for i in range(8)]
    HSL=HSL[:DEPTH+1]
    def hload(j):
        r=HSL[j%(DEPTH+1)]
        return [lambda: (k(f"s_lshr_b32 s{sT0}, s{4+j}, 4"),k.vm(f"buffer_load_dwordx4 {rg(r,0,4)}, v{HL}, {srd(SW)}, s{sT0} offen{'' if NSC&2 else ' sc1'}",f"h{j}")),
                lambda: k.vm(f"buffer_load_dwordx4 {rg(r,4,4)}, v{HL+1}, {srd(SW)}, s{sT0} offen{'' if NSC&2 else ' sc1'}",f"h{j}")]
    hflag=st_('hw')+[lambda: (k.w(v="h"),sat(sFH))]+st_('hack')
    hpl=[lambda: k.vm(f"buffer_load_dword v100, v{FHP}, {srd(SW)}, 0 offen sc1","hp")]
    xl=[lambda: k.vm(f"buffer_load_dwordx4 v[104:107], v{XO}, {srd(SX)}, 0 offen","x"),
        lambda: k.vm(f"buffer_load_dwordx4 v[108:111], v{XO}, {srd(SX)}, 0 offen offset:32","x"),
        lambda: k.vm(f"buffer_load_dword v103, v{RS}, {srd(SW)}, 0 offen sc1","x")]
    hchk=st_('prep')+[lambda: poll("hp",100,FHP,SW,FLX)]+st_('hpok')+sum((hload(j) for j in range(DEPTH)),[])
    CR=conv_reads(0); run(CR[:15])
    M=[]
    for rho in range(4):
        m=conv_mf(rho)
        if rho==0:
            i0=0
            for s in range(8): m[i0]=(lambda s=s,t=m[i0]: (k.w(d=f"cv0_{s}"),k(t))); i0+=s+1
        else: m[0]=(lambda rho=rho,t=m[0]: (run(st_(f'r{rho-1}')),k.w(d=f"cv{rho}"),k(t),k("s_barrier" if rho==3 else "")))
        M+=m
    SC=eval(SCH.replace('_',',')) if isinstance(SCH,str) else None
    g0,g1,g2,g3,g4,g5,g6=SC or (0,20,44,60,64,80,20)
    n0=nwd+3
    if not VP: PL_=[(0,CR[15:]+conv_reads(1)),(36,conv_reads(2)),(72,conv_reads(3)),
         (g0,dms(0,n0)),(g1,trs(range(0,NPRE))),(HFG,hflag),(g2,dms(n0,14)+xl),(g3,dms(14,18)),(g4,trs(range(NPRE,TRG))+dms(18,22)),(HPG-g6,hpl),(HPG,hchk)]
    else:
        PL_=[(0,CR[15:]+conv_reads(1)),(36,conv_reads(2)),(72,conv_reads(3)),(g0,dms(0,n0)),(g1,trs(range(0,nwd))),(HFG,hflag)]
        tg={j:g1+2*j for j in range(nwd)}
        for j in range(nwd,n0): tg[j]=HFG+T1+2*(j-nwd); PL_.append((tg[j],trs([j])))
        for j in range(n0,n0+NE6):
            PL_.append((GE6+3*(j-n0),dm(j)))
            if j<TRG: tg[j]=HFG+T1+2*(j-nwd); PL_.append((tg[j],trs([j])))
        n0+=NE6
        t=HFG+1.0
        for j in range(n0,NWC):
            if j>=14: t=max(t,tg[j-14]+3)
            D=dm(j); PL_.append((int(t),D[:2])); st=1 if j<n0+NB else VP/10
            PL_.append((int(t+st),D[2:]))
            if j<TRG: tg[j]=int(t+st)+TL; PL_.append((tg[j],trs([j])))
            t+=2*st
        print("wd sched end",t,tg)
        PL_+=[(HPG-HPD,hpl),(HPG,hchk[:-2*DEPTH])]
        t=HPG+1.0
        for f in hchk[-2*DEPTH:]+(xl if XIT<0 else []): PL_.append((int(t),[f])); t+=HP/10
    PL_=[(a+(0.5 if a%36==0 and i>2 else 0),b) for i,(a,b) in enumerate(PL_)]
    PL_=sorted([(a,list(b)) for a,b in PL_],key=lambda x:x[0])
    for g,m in enumerate(M):
        run([m]); n=3 if g<4 else 2
        if g%36==35: n=99
        for a,L in PL_:
            while a<=g and L and n>0 and not (g%36==35 and a%36): run([L.pop(0)]); n-=1
    LEFT=sum((L for a,L in PL_),[])
    run(LEFT[:NX0]); LEFT=LEFT[NX0:]; LX1=LEFT[:NX1]; LEFT=LEFT[NX1:]; print("left",len(LX1),len(LEFT))
    k.stamp('conv'); k.smem=0
    H1=k.lab("H1"); HE=k.lab("HE")
    k(f"""s_lshl_b32 s{sT1}, s{sWV}, 12
    s_add_u32 s{sT1}, s{sT1}, {KC+8192}
    v_add_u32 v96, s{sT1}, v{EXW}
    s_xor_b32 s{sT2}, s{sWV}, 1
    s_lshl_b32 s{sT2}, s{sT2}, 12
    s_add_u32 s{sT2}, s{sT2}, {KC+8192}
    v_add_u32 v97, s{sT2}, v{EXW}
    s_bitcmp1_b32 s{sWV}, 0
    s_cbranch_scc1 {H1}""")
    for hh in range(2):
        snd=CACC+16*(1-hh); own=CACC+16*hh
        if hh==0: k("s_nop 1")
        for j in range(4): k(f"ds_write_b128 v96, {vr(snd+4*j,4)} offset:{1024*j}")
        nq=len(k.vq); run(LX1)
        if hh==0: del k.vq[nq:]
        k("s_waitcnt lgkmcnt(0)\ns_barrier")
        for j in range(4): k(f"ds_read_b128 {vr(80+4*j,4)}, v97 offset:{1024*j}")
        for j in range(4):
            k(f"s_waitcnt lgkmcnt({3-j})")
            k(f"v_pk_add_f32 {vr(80+4*j,2)}, {vr(80+4*j,2)}, {vr(own+4*j,2)}\nv_pk_add_f32 {vr(82+4*j,2)}, {vr(82+4*j,2)}, {vr(own+4*j+2,2)}")
        if hh==0: k(f"s_branch {HE}\n{H1}:")
    k(f"{HE}:"); k.dq=[]
    for j in range(4): k(f"v_cvt_pk_bf16_f32 v{112+2*j}, v{80+4*j}, v{81+4*j}\nv_cvt_pk_bf16_f32 v{113+2*j}, v{82+4*j}, v{83+4*j}")
    k("s_nop 0")
    for j in range(2):
        k(f"v_permlane16_swap_b32 v{112+4*j}, v{114+4*j}\nv_permlane16_swap_b32 v{113+4*j}, v{115+4*j}")
    run(LEFT[:NX2]); LEFT=LEFT[NX2:]
    for j in range(2): k.vm(f"buffer_store_dwordx4 {vr(112+4*j,4)}, v{YS}, {srd(SW)}, 0 offen offset:{1024*j} sc1","y")
    run(st_('yst')); run(LEFT)
    k.stamp('xchg')
    A2=16
    def g2m(j,d,t):
        r=HSL[j%(DEPTH+1)]
        return f"v_mfma_f32_32x32x16_bf16 {vr(A2+16*(2*d+t),16)}, {ar(8*j+4*d,4)}, {rg(r,4*t,4)}, {'0' if j==0 else vr(A2+16*(2*d+t),16)}"
    def g2mf(j): return [g2m(j,d,t) for d,t in((1,1),(1,0),(0,1),(0,0))]
    yl=[lambda q=q: k.vm(f"buffer_load_dwordx4 {vr(112+4*q,4)}, v{YL}, {srd(SW)}, {'s%d'%sYQ if q else 0} offen sc1","yl") for q in range(2)]
    def ycheck():
        k.w(v="yl")
        if not YP: return
        ok=k.lab("OK"); rt=k.lab("RT"); lp=k.lab("RL")
        chk=f"v_max3_u32 v101, v112, v113, v114\nv_max3_u32 v102, v115, v116, v117\nv_max3_u32 v101, v101, v118, v119\nv_max_u32 v101, v101, v102\nv_cmp_eq_u32 vcc, -1, v101"
        k(f"{chk}\ns_cbranch_vccnz {rt}\n{ok}:")
        k.tail.append(f"""{rt}:
        s_movk_i32 s{sRING}, 4000
        {lp}:
        buffer_load_dwordx4 v[112:115], v{YL}, {srd(SW)}, 0 offen sc1
        buffer_load_dwordx4 v[116:119], v{YL}, {srd(SW)}, s{sYQ} offen sc1
        s_waitcnt vmcnt(0)
        {chk}
        s_cbranch_vccz {ok}
        s_sub_u32 s{sRING}, s{sRING}, 1
        s_cmp_lg_u32 s{sRING}, 0
        s_cbranch_scc1 {lp}
        s_branch {ok}""")
    RAD=[f"v_add_u32 v96, s{sAW}, v{EXW}",f"v_add_u32 v97, s{sCWB}, v{EXW}"]
    for x in (1,2,3):
        RAD.append(f"s_xor_b32 s{sT1}, s{sWV}, {x}")
        if x<3: RAD+=[f"s_mul_i32 s{sT1}, s{sT1}, {AWS}",f"s_add_u32 s{sT1}, s{sT1}, {4096*(x-1)}"]
        else: RAD+=[f"s_mul_i32 s{sT1}, s{sT1}, {CWS}",f"s_add_u32 s{sT1}, s{sT1}, {CW}"]
        RAD.append(f"v_add_u32 v{97+x}, s{sT1}, v{EXW}")
    XU=[]
    for j in range(8): XU+=[f"v_lshlrev_b32 v{80+2*j}, 16, v{104+j}",f"v_and_b32 v{81+2*j}, s{sMSK}, v{104+j}"]
    XU[0]=(lambda t=XU[0]: (k.w(v="x"),k(t)))
    HS_=[int(x) for x in str(HSC).split('_')] if HSC else []
    assert not HSC or (len(HS_)==22-DEPTH and all(t>=i for i,t in enumerate(HS_)))
    SK=k.lab("SK"); OPT=21-QM
    waited=False
    for j in range(22-QM):
        fl=[]
        if WSC: fl+=sum((dm(NWC+i) for i,t in enumerate(str(WSC).split('_')) if int(t)==j),[])
        elif VP and j>=WG0 and (j-WG0)%WGS==0 and NWC+(j-WG0)//WGS<22: fl+=dm(NWC+(j-WG0)//WGS)
        if HSC: fl+=sum((hload(DEPTH+i) for i,t in enumerate(HS_) if t==j),[])
        elif j+DEPTH<22: fl+=hload(j+DEPTH)
        if not YP:
            if j==3: fl+=[lambda: (k.w(v="y"),sat(sFY))]
            if j==YLU-4: fl+=[lambda: k.vm(f"buffer_load_dword v134, v{FYP}, {srd(SW)}, 0 offen sc1","yp")]
            if j==YLU: fl+=[lambda: poll("yp",134,FYP,SW,FLX)]+yl
        elif j==YLU: fl+=yl
        if j==6: fl+=RAD
        if XIT<0 and j in(8,9): fl+=XU[8*(j-8):8*(j-7)]
        if XIT>=0 and j==XIT: fl+=xl[:2]
        if XIT>=0 and j==XIT+1: fl+=xl[2:]
        TD=max(3,QM+1)
        if TRG<=j+TD<22: fl=trs([j+TD])+fl
        if j==0: fl=trs(range(TRG,TD))+fl
        if j==OPT:
            run(fl); fl=[]
            k(f"s_cmp_ge_u32 s{sWV}, 2\ns_cbranch_scc1 {SK}")
        if j>=TRG: k.w(v=f"h{j}",d=f"wt{j}")
        else: k.w(v=f"h{j}")
        weave(k,g2mf(j),fl,3)
        if j==OPT: k(f"{SK}:")
        if j in(0,4,10,16,17): run(st_(f'u{j}'))
    def rwr(x): return [lambda a=a: k.ds(f"ds_write_b128 v{97 if x==3 else 96}, {vr(A2+16*x+4*a,4)} offset:{1024*a+(4096 if x==2 else 0)}") for a in range(4)]
    yw=[lambda q=q: k.ds(f"ds_write_b128 v{YW}, {vr(112+4*q,4)} offset:{1024*q}") for q in range(2)]
    yt=[lambda a=a: k.ds(f"ds_read_b64_tr_b16 {vr(120+2*a,2)}, v{YR} offset:{512*a}","yt") for a in range(4)]
    if QM:
        js=list(range(22-QM,22))
        FQ=[]
        if YLU>=22-QM: FQ+=yl
        for x in (3,2,1,0):
            for i,j in enumerate(js):
                if x==3: k.w(v=f"h{j}",d=f"wt{j}")
                k(g2m(j,x>>1,x&1))
                if QS:
                    if i==1 and x<3: FQ+=rwr(x+1)
                    if FQ and (i&1 or x==3): run([FQ.pop(0)])
                    continue
                if i==2 and x<3: FQ+=rwr(x+1)
                if FQ and (i>=2 or x==3): run([FQ.pop(0)])
        k.stamp('g2'); k.smem=0
        run(FQ); ycheck(); run(yw+yt)
    else:
        k.stamp('g2'); k.smem=0
        k("s_nop 8")
        for x in (3,2,1): run(rwr(x))
        ycheck(); run(yw+yt)
    if XIT>=0: run(XU)
    k.w(d=0); k("s_barrier")
    for x in (1,2,3):
        for a in range(4): k.ds(f"ds_read_b128 {vr(144+16*(x-1)+4*a,4)}, v{97+x} offset:{1024*a}",f"rd{x}")
    for j in range(8): k(f"v_lshlrev_b32 v{32+2*j}, 16, v{120+j}\nv_and_b32 v{33+2*j}, s{sMSK}, v{120+j}")
    for x in (1,2,3):
        k.w(d=f"rd{x}")
        for j in range(8): k(f"v_pk_add_f32 {vr(A2+2*j,2)}, {vr(A2+2*j,2)}, {vr(144+16*(x-1)+2*j,2)}")
    for j in range(8): k(f"v_pk_fma_f32 {vr(A2+2*j,2)}, {vr(A2+2*j,2)}, v[102:103], {vr(32+2*j,2)} op_sel:[0,1,0] op_sel_hi:[1,1,1]")
    for a in(0,2):
        for r in range(4): k(f"v_permlane32_swap_b32 v{A2+4*a+r}, v{A2+4*a+4+r}")
    for j in range(8):
        k(f"v_pk_add_f32 {vr(A2+2*j,2)}, {vr(A2+2*j,2)}, {vr(80+2*j,2)}\nv_cvt_pk_bf16_f32 v{104+j}, v{A2+2*j}, v{A2+2*j+1}")
        if j%4==3: k.vm(f"buffer_store_dwordx4 {vr(104+j-3,4)}, v{XO}, {srd(SO)}, 0 offen offset:{32*(j//4)} {OSF.replace('_',' ')}","o")
    if prof:
        k.stamp('epi'); k("s_waitcnt vmcnt(0) lgkmcnt(0)"); k.stamp('drain'); k("s_waitcnt lgkmcnt(0)"); k.stamp(); k.stamp()
        k("; STAMPS "+" ".join(k.names[:-2]))
        k("s_memrealtime s[94:95]\ns_waitcnt lgkmcnt(0)\nv_writelane_b32 v199, s94, 62\nv_writelane_b32 v199, s96, 63")
        k(f"s_lshl_b32 s{sT0}, s2, 2\ns_add_u32 s{sT0}, s{sT0}, s{sWV}\ns_lshl_b32 s{sT0}, s{sT0}, 8\ns_add_u32 s{sT0}, s{sT0}, {PROF}\nv_lshl_add_u32 v2, v1, 2, s{sT0}")
        k(f"buffer_store_dword v199, v2, {srd(SW)}, 0 offen")
        if pace:
            L=k.lab(); LP=k.lab()
            k(f"""s_cmp_lg_u32 s{sWV}, 0
            s_cbranch_scc1 {L}
            s_cmp_lg_u32 s2, {pwg}
            s_cbranch_scc1 {L}""")
            if pace==1: k(f"s_mov_b32 s{sT0}, 6000")
            if pace==2: k(f"s_sub_u32 s{sT0}, s94, s96\ns_lshl_b32 s{sT0}, s{sT0}, 2")
            if pace==3: k(f"v_readlane_b32 s{sT0}, v199, {k.names.index(pidx)}\ns_sub_u32 s{sT0}, s{sT0}, s34\ns_lshr_b32 s{sT0}, s{sT0}, {psh}\ns_add_u32 s{sT0}, s{sT0}, 4000")
            if pace==4: k(f"v_readlane_b32 s{sT0}, v199, {k.names.index(pidx)}\nv_readlane_b32 s{sT1}, v199, {k.names.index(pidx2)}\ns_sub_u32 s{sT0}, s{sT0}, s{sT1}\ns_lshr_b32 s{sT0}, s{sT0}, {psh}\ns_add_u32 s{sT0}, s{sT0}, 4000")
            k(f"""s_min_u32 s{sT0}, s{sT0}, 30000
            s_mov_b32 s{sT2}, 100000
            {LP}:
            s_memrealtime s[94:95]
            s_waitcnt lgkmcnt(0)
            s_sub_u32 s{sT1}, s94, s96
            s_cmp_ge_u32 s{sT1}, s{sT0}
            s_cbranch_scc1 {L}
            s_sub_u32 s{sT2}, s{sT2}, 1
            s_cmp_lg_u32 s{sT2}, 0
            s_cbranch_scc1 {LP}
            {L}:""")
        if dbg:
            L=k.lab()
            k(f"""s_cmp_lg_u32 s{sWV}, 0
            s_cbranch_scc1 {L}
            s_and_b32 s{sT0}, s2, 0x18
            s_cmp_lg_u32 s{sT0}, 0
            s_cbranch_scc1 {L}
            s_sub_u32 s{sT0}, s94, s96
            v_writelane_b32 v199, s{sT0}, 2
            s_or_b32 s{sT0}, s94, 0x80000000
            s_not_b32 s{sT1}, s96
            s_or_b32 s{sT1}, s{sT1}, 0x80000000
            s_or_b32 s{sT2}, s96, 0x80000000
            v_mov_b32 v4, s{sT0}
            v_writelane_b32 v4, s{sT1}, 1
            v_writelane_b32 v4, s{sT2}, 2
            v_cmp_gt_u32 vcc, 3, v1
            v_lshlrev_b32 v6, 2, v1
            v_add_u32 v6, 52, v6
            v_mov_b32 v7, {hex(OOB)}
            v_cndmask_b32 v6, v7, v6, vcc
            buffer_atomic_umax v4, v6, {srd(SB)}, 0 offen sc1
            s_cmp_lg_u32 s2, {dbg-1}
            s_cbranch_scc1 {L}
            v_readlane_b32 s{sT0}, v199, 2
            v_readlane_b32 s{sT1}, v199, 14
            v_subrev_u32 v4, s34, v199
            s_sub_u32 s{sT1}, s{sT1}, s34
            v_writelane_b32 v4, s{sT0}, 2
            v_writelane_b32 v4, s{sT1}, 13
            v_cmp_gt_u32 vcc, 14, v1
            v_lshlrev_b32 v6, 2, v1
            v_add_u32 v6, -4, v6
            v_cndmask_b32 v6, v7, v6, vcc
            buffer_store_dword v4, v6, {srd(SB)}, 0 offen sc1
            {L}:""")
    k("s_endpgm")
    k(f"{CSL}:")
    k.vq=vq_cs; k.dq=dq_cs; k.smem=0; k.nst=nst_cs; k.ptags=()
    def cst(n):
        if k.nst<nst_mrg: k.stamp(n)
    if not CSN:
        run([x[1] for x in IOL_cs]); ptail()
        k("s_waitcnt lgkmcnt(0)\ns_barrier"); cst('pt')
        run(lntr())
        k(f"""s_mul_i32 s{sT2}, s{sFT}, 768
        s_add_u32 s{sT2}, s{sT2}, {CS}
        s_cmp_eq_u32 s{sWV}, 3
        s_cselect_b32 s{sT2}, {hex(OOB)}, s{sT2}
        v_lshl_add_u32 v{CSA}, v0, 2, s{sT2}
        v_mov_b32 v19, -1
        s_mov_b32 s{sC1}, {SS}
        s_mov_b32 s{sC2}, {-2*SS}""")
        k.vm(f"buffer_store_dword v19, v{CSA}, {srd(SW)}, 0 offen sc1","lnst")
        run(lnst(YPS!=-2))
        k(f"""s_mul_i32 s{sT0}, s{sWV}, 3072
        s_lshr_b32 s{sT1}, s{sWV}, 1
        s_mul_i32 s{sT1}, s{sT1}, 96
        s_sub_u32 s{sT0}, s{sT0}, s{sT1}
        v_add_u32 v{WR}, s{sT0}, v{WR}
        v_mov_b32 v112, 0x3f803f80
        v_mov_b32 v113, v112
        v_mov_b32 v114, v112
        v_mov_b32 v115, v112
        s_mov_b32 s{sRING}, {2*SS}
        s_mov_b32 s{sCNT}, 0""")
        for r in range(16,112): k(f"v_mov_b32 v{r}, 0")
        def csdma():
            D=dma_list(f"s{sRING}","c")[5:]
            for f in D: f() if callable(f) else (k(f),k("s_nop 0"))
            for f in nextk: k(f)
        csdma()
        cst('pre'); CL=k.lab("CL"); CN=k.lab("CN"); CA_=k.lab("CN")
        k.w(v="d0"); k(f"s_branch {CA_}")
        k(f"{CL}:\ns_waitcnt vmcnt(12)\ns_cmp_lt_u32 s{sCNT}, 6\ns_cbranch_scc1 {CN}\ns_waitcnt vmcnt(0)\n{CN}:")
        k(f"s_cmp_lg_u32 s{sCNT}, 1\ns_cbranch_scc1 {CA_}\ns_barrier"); lnatomic(); k(f"{CA_}:")
        for u in range(6):
            for h in range(2): k(f"ds_read_b64_tr_b16 {vr(116+4*u+2*h,2)}, v{WR} offset:{768*h+32*u}")
        k(f"ds_read_u8 v{JNK}, v1")
        CN2=k.lab("CN")
        k(f"""s_add_u32 s{sRING}, s{sRING}, s{sC1}
        s_cmp_eq_u32 s{sRING}, {3*SS}
        s_cselect_b32 s{sRING}, 0, s{sRING}
        s_cmp_eq_u32 s{sRING}, {2*SS}
        s_cselect_b32 s{sDL}, s{sC2}, s{sC1}
        v_add_u32 v{WR}, s{sDL}, v{WR}
        s_waitcnt lgkmcnt(1)
        s_cmp_ge_u32 s{sCNT}, 5
        s_cbranch_scc1 {CN2}""")
        csdma()
        k(f"{CN2}:")
        for u in range(6): k(f"v_mfma_f32_32x32x16_bf16 {vr(16+16*u,16)}, v[112:115], {vr(116+4*u,4)}, {vr(16+16*u,16)}")
        k(f"s_add_u32 s{sCNT}, s{sCNT}, 1\ns_cmp_lt_u32 s{sCNT}, 8\ns_cbranch_scc1 {CL}")
        cst('loop')
        k(f"""s_mul_i32 s{sT0}, s{sWV}, 768
        s_add_u32 s{sT0}, s{sT0}, {PT}
        v_lshl_add_u32 v140, v5, 2, s{sT0}
        v_min_u32 v141, 191, v0
        v_lshlrev_b32 v141, 2, v141
        v_add_u32 v141, {PT}, v141
        s_nop 7""")
        for u in range(6): k(f"ds_write_b32 v140, v{16+16*u} offset:{128*u}")
        k("s_waitcnt lgkmcnt(0)\ns_barrier")
        for j in range(4): k(f"ds_read_b32 v{144+j}, v141 offset:{768*j}")
        k(f"""s_waitcnt lgkmcnt(0)
        v_add_f32 v144, v144, v145
        v_add_f32 v146, v146, v147
        v_add_f32 v144, v144, v146
        v_cvt_pk_bf16_f32 v145, v144, v144
        v_and_b32 v145, s{sMSK}, v145
        v_sub_f32 v146, v144, v145
        v_cvt_pk_bf16_f32 v145, v145, v146
        buffer_store_dword v145, v{CSA}, {srd(SW)}, 0 offen sc1
        s_and_b32 s{sT0}, s{sWV}, 1
        s_lshr_b32 s{sT1}, s{sWV}, 1""")
        k.vq=[]; k.dq=[]; k.smem=0; cst('cs')
        if CST:
            k(f"""s_lshl_b32 s{sT2}, s{sFT}, 2
            s_add_u32 s{sT2}, s{sT2}, s{sWV}
            s_mul_i32 s{sT2}, s{sT2}, {22016}
            v_lshl_add_u32 v140, v1, {CST}, s{sT2}""")
            for j in range(-(-22016//(64<<CST))):
                if j: k(f"v_add_u32 v140, {64<<CST}, v140")
                k.vm(f"buffer_load_dword v{16+j}, v140, {srd(SD)}, 0 offen","tch")
        run(exrd(0)+exrd(1)+exva(0)+exva(1))
        k("s_waitcnt lgkmcnt(0)\ns_barrier")
        cst('ex'); run(kcw()); cst('kc')
        run(late()); cst('late')
        k("s_nop 4")
        lnpoll(); poll("lnp",PL,LNP,SB,LNX)
        cst('poll'); run(uloads())
        for j in range(nwd): run(wd_dma(j))
        run(uwrite())
        cst('uw')
        k(f"s_waitcnt vmcnt(0) lgkmcnt(0)")
        while prof and k.nst<nst_mrg: cst('x')
        k(f"s_branch {MRG}")
    else:
        k.autod=1; ON=96; CF=176
        if CE: k(f"s_sub_u32 s{sMG}, s{sMG}, {SS}")
        def csdma(i):
            if CE: return
            run(dma_list((i%3)*SS,f"d{i}")[5:])
            if i<7: run(nextk)
        if CSL_>=0: csdma(2)
        k(f"""s_mul_i32 s{sT2}, s{sFT}, 768
        s_add_u32 s{sT2}, s{sT2}, {CS}
        s_cmp_eq_u32 s{sWV}, 3
        s_cselect_b32 s{sT2}, {hex(OOB)}, s{sT2}
        v_lshl_add_u32 v{CSA}, v0, 2, s{sT2}
        s_mul_i32 s{sT2}, s{sWV}, 3072
        s_mul_i32 s{sT3}, s{sT1}, 96
        s_sub_u32 s{sT2}, s{sT2}, s{sT3}
        v_add_u32 v{WR}, s{sT2}, v{WR}
        v_mov_b32 v9, 0x3f803f80
        v_add_u32 v{XR}, {SS}, v{WR}
        v_add_u32 v{XR+1}, {2*SS}, v{WR}""")
        for r in range(4): k(f"v_accvgpr_write_b32 a{ON+r}, v9")
        k(f"v_mov_b32 v11, -1")
        k.w(d=0); k("s_barrier")
        run(lntr())
        if CSL_<0:
            if CSL_==-2: csdma(2)
            k.vm(f"buffer_store_dword v11, v{CSA}, {srd(SW)}, 0 offen sc1","lnst"); run(lnst(YPS!=-2))
            if CSL_==-1: csdma(2)
        bar=lambda:(k.w(d=0),k("s_barrier"))
        P=ptail_items() if PTS==2 else [ptail]
        FQ=[x[1] for x in IOL_cs]+[t for t in P if t!="s_nop 0"]+[bar]+exrd(0)+exrd(1)[:3]+mix(exva(0),exrd(1)[3:])+exva(1)+[bar]+kcw()+late()
        def ct2():
            L=[f"""s_and_b32 s{sC1}, s{sI}, 1
            s_lshl_b32 s{sC1}, s{sC1}, 2
            v_add_u32 v12, s{sC1}, v2
            v_mul_u32_u24 v13, 3, v12
            v_lshlrev_b32 v12, 7, v12
            v_lshl_add_u32 v12, v7, 10, v12
            s_mul_i32 s{sC1}, s{sWV}, 22
            s_cmp_eq_u32 s{sWV}, 3
            s_cselect_b32 s{sC1}, 65, s{sC1}
            s_lshl_b32 s{sC1}, s{sC1}, 14
            v_add_u32 v12, s{sC1}, v12
            s_lshr_b32 s{sC1}, s{sWV}, 1
            s_sub_u32 s{sC1}, 22, s{sC1}"""]
            for u in str(CT2).split('_'):
                L.append(f"v_add_u32 v14, {u}, v13\nv_subrev_u32 v15, s{sC1}, v14\nv_min_u32 v14, v14, v15\nv_subrev_u32 v15, s{sC1}, v14\nv_min_u32 v14, v14, v15\nv_lshl_add_u32 v14, v14, 14, v12")
                L.append(lambda: k.vm(f"buffer_load_dword v{JNK}, v14, {srd(SD)}, 0 offen","tch"))
            return L
        def it(i,W=[]):
            k.w(v=f"d{i}")
            for u in range(6):
                for h in range(2): k.ds(f"ds_read_b64_tr_b16 {ar(CF+4*u+2*h,2)}, v{(WR,XR,XR+1)[i%3]} offset:{768*h+32*u}","cf")
            k.w(d="cf")
            D=(dma_list((i%3)*SS,f"d{i+3}")[5:]+(nextk if i<4 else [])) if i<5 else []
            weave(k,[f"v_mfma_f32_32x32x16_bf16 {vr(16+16*u,16)}, {ar(ON,4)}, {ar(CF+4*u,4)}, {vr(16+16*u,16) if i else '0'}" for u in range(6)],D,2)
            run(W); l0=len(k.L)
            while FQ and i<7 and sum(cost(l) for l in k.L[l0:])<(CSB if i else CSB0): run([FQ.pop(0)])
            cst(f'i{i}')
        for i in range(8):
            W=[]
            if i==CSL_: W=[lambda: k.vm(f"buffer_store_dword v11, v{CSA}, {srd(SW)}, 0 offen sc1","lnst")]+lnst(YPS!=-2)
            if i==CSA_: W=[lambda:(k.w(v="lnst"),k("s_barrier")),lnatomic]
            it(i,W)
        k.smem=0
        k(f"""s_mul_i32 s{sC1}, s{sWV}, 768
        s_add_u32 s{sC1}, s{sC1}, {PT}
        s_nop 4
        v_lshl_add_u32 v17, v5, 2, s{sC1}
        v_min_u32 v18, 191, v0
        v_lshlrev_b32 v18, 2, v18
        v_add_u32 v18, {PT}, v18
        s_nop 1""")
        for u in range(6): k(f"ds_write_b32 v17, v{16+16*u} offset:{128*u}")
        k("s_waitcnt lgkmcnt(0)\ns_barrier")
        for j in range(4): k(f"ds_read_b32 v{20+j}, v18 offset:{768*j}")
        k(f"""s_waitcnt lgkmcnt(0)
        v_add_f32 v20, v20, v21
        v_add_f32 v22, v22, v23
        v_add_f32 v20, v20, v22
        v_cvt_pk_bf16_f32 v21, v20, v20
        v_and_b32 v21, s{sMSK}, v21
        v_sub_f32 v22, v20, v21
        v_cvt_pk_bf16_f32 v21, v21, v22
        buffer_store_dword v21, v{CSA}, {srd(SW)}, 0 offen sc1""")
        k.vq=[]; cst('cs'); print("cs filler left",len(FQ))
        if CST:
            k(f"""s_lshl_b32 s{sC1}, s{sFT}, 2
            s_add_u32 s{sC1}, s{sC1}, s{sWV}
            s_mul_i32 s{sC1}, s{sC1}, {22016}
            v_lshl_add_u32 v24, v1, {CST}, s{sC1}""")
            for j in range(min(CSJ,-(-22016//(64<<CST)))):
                if j: k(f"v_add_u32 v24, {64<<CST}, v24")
                k.vm(f"buffer_load_dword v{25+j}, v24, {srd(SD)}, 0 offen","tch")
        if CT2: run(ct2()); cst('ct2')
        run(FQ); cst('fq')
        lnpoll(); poll("lnp",PL,LNP,SB,LNX)
        cst('poll'); k("s_barrier"); run(uloads())
        if WT6 and WTP: tch6()
        for j in range(nwd): run(wd_dma(j))
        if WT6 and not WTP: tch6()
        run(uwrite())
        k(f"v_mov_b32 v9, {hex(OOB)}")
        for j in range(6): k.vm(f"buffer_load_dword v10, v9, {srd(SW)}, 0 offen","h")
        cst('uw')
        while prof and k.nst<nst_mrg: cst('x')
        k(f"s_branch {MRG}")
    for t in k.tail: k(t)
    k(f"{END}:")
    return k
import struct
def f2b(x): return struct.unpack('<I',struct.pack('<f',x))[0]
if __name__=='__main__':
    out=sys.argv[1]; opts=dict(a.split('=') for a in sys.argv[2:])
    opts={a:(int(b) if b.lstrip('-').isdigit() else b) for a,b in opts.items()}
    k=gen(**opts)
    hdr="".join(l for l in open('cdna_kernels/'+NAME[:-7]+'.s.ref') if l.startswith(';') and '@launch' not in l)
    txt=module([k],[(None,256,256,163840)],hdr)
    open(out,'w').write(txt)
    print("hazards:",haz.check(txt.split('\n')))
```

```python
import sys
sys.path.insert(0,'w')
from gl import *
import haz
NAME="parallel_sum__ssm_conv_s4__glu_gated_bilinear__prompt_kernel"
XNB=0; STATS=0x200000; FH=0x210000; FY=0x218000; PROF=0x220000; HB=0x400000; YB=0xA00000; CS=0xC00000; WSEND=CS+86*128
SS=41216; WG_O=16384; WU_D=12320
TAB=82432; TABW=16416; KC=123648; KCS=4160; PT=156928; PTS=3088
UO=119040; US=37888; CW=82432; CWS=8192; AWS=10240; BW=41216
OOB=0x80000000
PX=132*937; PO=(0,17,34,51); EXB=32*937-0x4280; TBS=4352; LNS=2560; LNB=KC+4*TBS
O7=['04123567','12530467','23061457','30127456']
OROT=['01234567','23456701','45670123','67012345']
class G(K):
    def __init__(s,*a,**kw):
        super().__init__(*a,**kw); s.vq=[]; s.dq=[]; s.tail=[]; s.nst=0; s.names=['start']
    def vm(s,t,tag=None):
        if t.endswith(' lds') and ' m0,' in s.L[-1]: s("s_nop 0")
        pb=tag in getattr(s,'ptags',()) and s.prof
        if pb: s.stamp('<'+tag)
        s(t); s.vq.append(tag)
        if pb: s.stamp('>')
    def ds(s,t,tag=None): s(t); s.dq.append(tag)
    def nv(s,tag):
        i=max(j for j,x in enumerate(s.vq) if x==tag); return min(len(s.vq)-1-i,63)
    def nd(s,tag):
        i=max(j for j,x in enumerate(s.dq) if x==tag); return min(len(s.dq)-1-i,15)
    def w(s,v=None,d=None):
        o=[]
        if v is not None: o.append(f"vmcnt({s.nv(v) if isinstance(v,str) else v})")
        if d is not None:
            n=s.nd(d) if isinstance(d,str) else d
            if getattr(s,'smem',0) and n==0:
                if getattr(s,'autod',0): s.ds(f"ds_read_u8 v{JNK}, v1","dum"); n=1
                else: print("SMEM region: lgkmcnt(0) at line",len(s.L),d)
            o.append(f"lgkmcnt({n})")
        s("s_waitcnt "+" ".join(o))
    def stamp(s,name=''):
        if s.prof:
            n=s.nst; R=(90,92,98,100); a=R[n&3]
            s(f"s_memtime s[{a}:{a+1}]")
            if n>=2: s(f"v_writelane_b32 v199, s{R[(n-2)&3]}, {n-1}")
            elif n==0: s("v_writelane_b32 v199, s34, 0")
            s.names.append(name); s.nst+=1
def vr(a,n): return f"v[{a}:{a+n-1}]" if n>1 else f"v{a}"
def ar(a,n): return f"a[{a}:{a+n-1}]" if n>1 else f"a{a}"
def weave(k,mf,fl,per,start=0):
    fl=list(fl)
    for i,m in enumerate(mf):
        k(m)
        if i>=start:
            n=per[i] if isinstance(per,(list,tuple)) else per
            for _ in range(n):
                if fl:
                    f=fl.pop(0); f() if callable(f) else k(f)
    for f in fl: f() if callable(f) else k(f)

SX,SG,SU,SD,SW,SO,SB=36,40,44,48,52,56,60
sXCD,sI,sWV,sP,sFT,sMT,sRB,sLD,sDK=64,65,66,67,68,69,70,71,72
sKS,sOX,sOW,sMX,sMG,sRING,sDL,sCNT,sC1,sC2=73,74,75,76,77,78,79,80,81,82
sH0,sH1,sMSK,sONE,sAW,sCWB,sT0,sT1,sT2,sT3=83,84,85,86,87,88,26,27,28,29
sUQ=30; sYQ=31; sTB=32; sDB=33; sORD=89; sFH=94; sFY=95; sPB=70; sLA=64
def srd(d): return f"s[{d}:{d+3}]"
XD=200; WD=204; XR=207; WR=211; KCW=212; EX=213
CA=224; CB=225; WDV=226; TA=228; TC=230; HL=232; HS=234; UL=237; UW=238; UZ=239; ST=240; CSA=241
XO=242; RS=243; YL=244; YW=245; YR=246; YS=247; EXW=248; FHP=249; FYP=250; TW=251; TR=252; LNP=253; KZ=254; PA0=255
PA1=193; PA2=194; PA3=195; KX=160; TB=112; PACC=172; PAR=184; JNK=196; PL=197
LTR=88; LST=12; aXN=14; aST=15; aTR=10; aWR=11; ROW=50
EA=144; EB=150; UR=156; AZ=164; AP=168; KF=24

def gen(prof=False, ORD='rot', ROT2=True, DEPTH=8, dbg=0, pace=0, pidx=14, psh=3, pwg=0, PF=2, pidx2=None, OSF='', NS=20, LNPOS=0, NPRE=4, D1E=10, NH=4, NL=2, TWS=8, SCH=0, probe=0, PARP=0, TWK=12, NA7=0, NE=2, D1S=200, KCB=2, YP=1, PP='0_1_2', HFG=40, HPG=120, YLU=17, QM=0, WDT='12345', G7=0, XP=0, IOP=2, LPS=4, CLS=5, WDN=2, W0E=2, EXS=1, LAS=1, D5L=1, TRG=9, T3B=1, D1P=0, D1C=130, D2P=0, D2G=0, LSP=0, YPS=-1, NSC=0, SLP=0, SLH=0, HFW=0, VP=0, T1=12, TL=36, NB=3, NWC=22, HP=15, XW=0, PT_='', PB=0, PTS=0, LSG=0, D0L=0, D0K=0, CST=0, PTW=60, D1L='', D2L='', PTG=0, CSN=0, XOB=0, WPX=0, CSJ=9, CSB=250, CSB0=500, CSL_=0, CSA_=2, WT6=0, WTP=0, WT0=3, CT2='', CTI=8, M2=0, RA=3, RB=5, CE=0, W6S=0, NX0=99, NX1=0, HPD=20, NE6=0, GE6=30, WG0=0, WGS=1, K60=3, K61=3, NX2=0, QS=1, HSC='', WSC='', XIT=-1, CLP=0, LBD=0, YSI=-1):
    k=G(NAME,vgpr=256,agpr=256,sgpr=102); k.prof=prof; k.pst=90; k.autod=1; k.ptags=str(PT_).split('_')
    END=k.lab("END")
    if prof: k("s_memtime s[34:35]\ns_memrealtime s[96:97]")
    k(f"s_cmp_ge_u32 s2, 0x100\ns_cbranch_scc1 {END}")
    k("s_load_dwordx16 s[4:19], s[0:1], 0\ns_load_dwordx2 s[20:21], s[0:1], 64")
    PC=k.lab("PC")
    if PF==1:
        k(f'''s_getpc_b64 s[22:23]
        {PC}:
        v_lshlrev_b32 v2, 7, v0
        v_mov_b32 v5, s23
        v_min_u32 v2, {END}-{PC}, v2
        v_add_co_u32 v4, vcc, s22, v2
        v_addc_co_u32 v5, vcc, 0, v5, vcc
        global_load_dword v{JNK}, v[4:5], off''')
    if PF==2:
        k(f'''s_getpc_b64 s[22:23]
        {PC}:
        s_lshl_b32 s3, s2, 2
        v_lshrrev_b32 v2, 3, v0
        s_and_b32 s3, s3, 0xe0
        v_mov_b32 v5, s23
        v_add_lshl_u32 v2, v2, s3, 7
        v_min_u32 v2, {END}-{PC}, v2
        v_add_co_u32 v4, vcc, s22, v2
        v_addc_co_u32 v5, vcc, 0, v5, vcc
        global_load_dword v{JNK}, v[4:5], off''')
    for d,o in((SX,0),(SG,80),(SU,88),(SD,96),(SO,104),(SB,112),(SW,120)): k(f"s_load_dwordx2 s[{d}:{d+1}], s[0:1], {o}")
    for d,n in((SX,0x200000),(SG,512*2752),(SU,512*2752),(SD,1376*1024),(SO,0x200000),(SB,256),(SW,WSEND)):
        k(f"s_mov_b32 s{d+2}, {hex(n)}\ns_mov_b32 s{d+3}, 0x00020000")
    k(f"""v_lshrrev_b32 v2, 6, v0
    v_and_b32 v1, 63, v0
    v_readfirstlane_b32 s{sWV}, v2
    s_and_b32 s{sXCD}, s2, 7
    s_lshr_b32 s{sI}, s2, 3
    s_lshl_b32 s{sP}, s{sXCD}, 5
    s_add_u32 s{sP}, s{sP}, s{sI}
    s_and_b32 s{sT0}, s{sXCD}, 1
    s_lshr_b32 s{sT1}, s{sXCD}, 1
    s_lshl_b32 s{sRB}, s{sT0}, 7
    s_lshl_b32 s{sT2}, s{sT1}, 5
    s_add_u32 s{sRB}, s{sRB}, s{sT2}
    s_add_u32 s{sRB}, s{sRB}, s{sI}
    s_mul_i32 s{sT2}, s{sT1}, 30
    s_add_u32 s{sT2}, s{sT2}, s{sI}
    s_lshr_b32 s{sFT}, s{sT2}, 3
    s_and_b32 s{sT2}, s{sT2}, 7
    s_lshl_b32 s{sMT}, s{sT0}, 3
    s_add_u32 s{sMT}, s{sMT}, s{sT2}
    s_lshl_b32 s{sT1}, s{sT1}, 2
    s_lshl_b32 s{sT0}, s{sT0}, 1
    s_add_u32 s{sT1}, s{sT1}, s{sT0}
    s_add_u32 s{sT1}, s{sT1}, s{sI}
    s_sub_u32 s{sT1}, s{sT1}, 30
    s_cmp_ge_u32 s{sI}, 30
    s_cselect_b32 s{sFT}, s{sT1}, s{sFT}
    s_mov_b32 s{sMSK}, 0xffff0000""")
    k(f"""s_lshl_b32 s{sT0}, s{sRB}, 13
    s_lshl_b32 s{sT1}, s{sWV}, 11
    s_add_u32 s{sT0}, s{sT0}, s{sT1}
    v_lshl_add_u32 v3, v1, 4, s{sT0}
    s_lshl_b32 s{sT0}, s{sP}, 9
    v_lshl_add_u32 v198, v0, 1, s{sT0}""")
    for j in range(6): k(f"v_mov_b32 v{PAR+j}, 0")
    k(f"""s_lshl_b32 s{sT0}, s{sMT}, 17
    s_lshl_b32 s{sT1}, s{sWV}, 15
    s_add_u32 s{sT0}, s{sT0}, s{sT1}
    {f"s_cmp_ge_u32 s{sI}, 30"+chr(10)+f"s_cselect_b32 s{sT0}, {hex(OOB)}, s{sT0}" if XOB else ""}
    v_lshrrev_b32 v5, 3, v1
    v_lshl_add_u32 v5, v5, 10, s{sT0}
    v_lshrrev_b32 v6, 4, v1
    v_xor_b32 v7, v1, v6
    v_and_b32 v7, 7, v7
    v_lshl_add_u32 v{XD}, v7, 4, v5
    v_xor_b32 v5, 64, v{XD}
    v_add_u32 v{XD+1}, 7168, v5
    v_add_u32 v{XD+2}, 14336, v{XD}
    v_add_u32 v{XD+3}, 21504, v5
    s_mul_i32 s{sT0}, s{sFT}, 192
    s_mul_i32 s{sT1}, s{sWV}, {16*2752}
    {f"s_and_b32 s{sT2}, s{sFT}, 1" if WPX else ""}""")
    for q in range(3):
        k(f"""v_add_u32 v5, {64*q}, v1
        v_mul_u32_u24 v7, 5462, v5
        v_lshrrev_b32 v7, 16, v7
        v_mul_u32_u24 v8, 12, v7
        v_sub_u32 v8, v5, v8
        v_lshl_add_u32 v8, v8, 4, s{sT0}
        v_min_u32 v8, 2736, v8
        {f"v_xor_b32 v7, s{sT2}, v7" if WPX else ""}
        v_mul_u32_u24 v7, 2752, v7
        v_add3_u32 v{WD+q}, v7, v8, s{sT1}""")
        if q: k(f"v_subrev_u32 v{WD+q}, {1024*q}, v{WD+q}")
    O={'o7':O7,'rot':OROT}.get(ORD) or str(ORD).zfill(8).split('_')
    pk=lambda o: hex(sum(int(ch,16)<<(4*j) for j,ch in enumerate(o)))
    k(f"s_add_u32 s{sT0}, s{sMT}, s{sFT}")
    if len(O)==3: k(f"s_mul_i32 s{sT1}, s{sT0}, 11\ns_lshr_b32 s{sT1}, s{sT1}, 5\ns_mul_i32 s{sT1}, s{sT1}, 3\ns_sub_u32 s{sT0}, s{sT0}, s{sT1}")
    else: k(f"s_and_b32 s{sT0}, s{sT0}, {len(O)-1}")
    k(f"s_mov_b32 s{sORD}, {pk(O[0])}")
    for g in range(1,len(O)): k(f"s_cmp_eq_u32 s{sT0}, {g}\ns_cselect_b32 s{sORD}, {pk(O[g])}, s{sORD}")
    k(f"s_and_b32 s{sKS}, s{sORD}, 7")
    k(f"""s_lshl_b32 s{sMX}, s{sWV}, 12
    s_mul_i32 s{sMG}, s{sWV}, 3072
    s_add_u32 s{sMG}, s{sMG}, {WG_O}
    s_lshl_b32 s{sOX}, s{sKS}, 7
    s_mul_i32 s{sOW}, s{sKS}, {64*2752}
    s_lshl_b32 s{sT0}, s{sP}, 2""")
    k.stamp('pre')
    k("s_waitcnt lgkmcnt(0)")
    k.stamp('karg')
    k(f"s_load_dword s{sLD}, s[18:19], s{sT0}\ns_load_dword s{sDK}, s[20:21], s{sT0}")
    def rowl():
        k.vm(f"buffer_load_dwordx4 {vr(ROW,4)}, v3, {srd(SX)}, 0 offen","row")
        k.vm(f"buffer_load_dwordx4 {vr(ROW+4,4)}, v3, {srd(SX)}, 0 offen offset:1024","row")
    def parl():
        for j in range(6): k.vm(f"global_load_short_d16_hi v{PAR+j}, v198, s[{6+2*j}:{7+2*j}]","par")
    if PB<2: rowl()
    if PARP==0: parl()
    if PB==3: k("s_barrier")
    if PB>=2: rowl()
    if YPS==-2:
        k(f"""s_lshl_b32 s{sT2}, s{sP}, 13
        s_lshl_b32 s{sT3}, s{sWV}, 11
        s_add_u32 s{sT2}, s{sT2}, s{sT3}
        s_add_u32 s{sT2}, s{sT2}, {YB}
        v_lshl_add_u32 v9, v1, 4, s{sT2}""")
        for r in range(16,20): k(f"v_mov_b32 v{r}, -1")
        for j in range(2): k.vm(f"buffer_store_dwordx4 v[16:19], v9, {srd(SW)}, 0 offen offset:{1024*j} sc1","psn")
    if PB in(1,2): k("s_barrier")
    def dma_list(ring,tag):
        L=[]
        if isinstance(ring,int):
            a=lambda s: f"s_add_u32 m0, s{s}, {ring}" if ring else f"s_mov_b32 m0, s{s}"
        else: a=lambda s: f"s_add_u32 m0, s{s}, {ring}"
        L.append(a(sMX))
        for q in range(4): L.append(lambda q=q: k.vm(f"buffer_load_dwordx4 v{XD+q}, {srd(SX)}, s{sOX} offen offset:{1024*q} lds",tag))
        L.append(a(sMG))
        for q in range(3): L.append(lambda q=q: k.vm(f"buffer_load_dwordx4 v{WD+q}, {srd(SG)}, s{sOW} offen offset:{1024*q} lds",tag))
        L.append(f"s_add_u32 m0, m0, {WU_D}")
        for q in range(3): L.append(lambda q=q: k.vm(f"buffer_load_dwordx4 v{WD+q}, {srd(SU)}, s{sOW} offen offset:{1024*q} lds",tag))
        return L
    nextk=[f"s_lshr_b32 s{sORD}, s{sORD}, 4",f"s_and_b32 s{sKS}, s{sORD}, 7",f"s_lshl_b32 s{sOX}, s{sKS}, 7",f"s_mul_i32 s{sOW}, s{sKS}, {64*2752}"]
    D0R=[]
    def issue_d0():
        L=dma_list(0,"d0")+nextk; n=0
        while L:
            if n>=10-D0L and D0L and callable(L[0]): break
            f=L.pop(0)
            if callable(f): f(); n+=1
            else: k(f)
        D0R.extend(L)
    if not XP&1: issue_d0()
    if PARP==1: parl()
    k.stamp('dma0')
    def run(L):
        for f in L: f() if callable(f) else k(f)
    k(f"""v_lshrrev_b32 v2, 4, v1
    v_bfe_u32 v3, v1, 2, 2
    v_and_b32 v4, 3, v1
    v_and_b32 v5, 31, v1
    v_lshrrev_b32 v6, 5, v1
    v_and_b32 v7, 15, v1
    s_and_b32 s{sT0}, s{sWV}, 1
    s_lshr_b32 s{sT1}, s{sWV}, 1""")
    k(f"""v_bfe_u32 v8, v1, 1, 3
    v_xor_b32 v8, v8, v6
    v_lshlrev_b32 v8, 4, v8
    v_lshl_add_u32 v8, v5, 7, v8
    s_lshl_b32 s{sT2}, s{sT0}, 13
    v_add_u32 v{XR}, s{sT2}, v8
    v_xor_b32 v{XR+1}, 32, v{XR}
    v_xor_b32 v{XR+2}, 64, v{XR}
    v_xor_b32 v{XR+3}, 0x60, v{XR}""")
    k(f"""v_and_b32 v8, 1, v2
    v_mul_u32_u24 v9, {WU_D}, v8
    v_lshl_add_u32 v18, v6, 3, v3
    {f"s_and_b32 s{sT2}, s{sFT}, 1"+chr(10)+f"v_xor_b32 v18, s{sT2}, v18" if WPX else ""}
    v_mul_u32_u24 v18, 192, v18
    v_add_u32 v9, v9, v18
    v_lshl_add_u32 v9, v4, 3, v9
    s_mul_i32 s{sT2}, s{sT1}, 96
    s_add_u32 s{sT2}, s{sT2}, {WG_O}
    v_add_u32 v{WR}, s{sT2}, v9""")
    k(f"v_lshlrev_b32 v9, 4, v0\nv_add_u32 v{KCW}, {KC}, v9")
    k(f"""s_lshl_b32 s{sT2}, s{sP}, 1
    s_add_u32 s{sT2}, s{sT2}, s{sT1}
    s_lshl_b32 s{sT2}, s{sT2}, 12
    s_lshl_b32 s{sT3}, s{sT0}, 11
    s_add_u32 s{sT2}, s{sT2}, s{sT3}
    s_add_u32 s{sT2}, s{sT2}, {YB}
    v_lshlrev_b32 v9, 9, v8
    v_lshl_add_u32 v9, v7, 5, v9
    v_lshl_add_u32 v9, v6, 4, v9
    v_add_u32 v{YS}, s{sT2}, v9""")
    k(f"""s_lshr_b32 s{sT2}, s{sI}, 3
    s_lshl_b32 s{sTB}, s{sXCD}, 2
    s_add_u32 s{sTB}, s{sTB}, s{sT2}
    s_and_b32 s{sDB}, s{sI}, 7""")
    if M2: k(f"""s_lshr_b32 s{sT2}, s{sXCD}, 1
    s_lshl_b32 s{sTB}, s{sT2}, 3
    s_lshr_b32 s{sT2}, s{sI}, 2
    s_add_u32 s{sTB}, s{sTB}, s{sT2}
    s_and_b32 s{sT2}, s{sXCD}, 1
    s_lshl_b32 s{sT2}, s{sT2}, 2
    s_and_b32 s{sDB}, s{sI}, 3
    s_add_u32 s{sDB}, s{sDB}, s{sT2}""")
    k(f"""s_lshl_b32 s{sT2}, s{sMT}, 4
    s_add_u32 s{sT2}, s{sT2}, s{sFT}
    s_lshl_b32 s{sT2}, s{sT2}, 7
    s_add_u32 s{sT2}, s{sT2}, {FH}
    s_cmp_ge_u32 s{sI}, 30
    s_cselect_b32 s{sFH}, {FH+15*128}, s{sT2}
    s_cselect_b32 s{sT2}, {hex(OOB)}, s{sT2}
    s_lshl_b32 s{sFY}, s{sP}, 7
    s_add_u32 s{sFY}, s{sFY}, {FY}
    s_cmp_eq_u32 s{sWV}, 0
    s_cselect_b32 s{sC1}, s{sT2}, {hex(OOB)}
    s_cselect_b32 s{sC2}, s{sFY}, {hex(OOB)}
    s_mov_b32 s{sONE}, 1
    s_and_b32 s{sLA}, s2, 3
    s_lshl_b32 s{sLA}, s{sLA}, 6""")
    k(f"""s_mul_i32 s{sT2}, s{sWV}, {LNS}
    s_add_u32 s{sT2}, s{sT2}, {LNB}
    v_mul_u32_u24 v9, 320, v3
    v_lshl_add_u32 v9, v2, 5, v9
    v_lshl_add_u32 v9, v4, 3, v9
    v_add_u32 v{aTR}, s{sT2}, v9
    s_mul_i32 s{sT2}, s{sWV}, 640
    s_add_u32 s{sT2}, s{sT2}, {LNB}
    v_mul_u32_u24 v9, {LNS}, v2
    v_lshl_add_u32 v9, v7, 4, v9
    v_add_u32 v{aWR}, s{sT2}, v9
    s_lshl_b32 s{sT2}, s{sRB}, 6
    s_lshl_b32 s{sT3}, s{sWV}, 4
    s_add_u32 s{sT2}, s{sT2}, s{sT3}
    s_add_u32 s{sT2}, s{sT2}, {STATS}
    v_lshl_add_u32 v9, v6, 3, s{sT2}
    v_cmp_eq_u32 vcc, 0, v5
    v_mov_b32 v18, {hex(OOB)}
    s_lshl_b32 s{sT2}, s{sRB}, 13
    s_lshl_b32 s{sT3}, s{sWV}, 11
    v_cndmask_b32 v{aST}, v18, v9, vcc
    s_add_u32 s{sT2}, s{sT2}, s{sT3}
    v_lshl_add_u32 v{aXN}, v1, 4, s{sT2}
    v_writelane_b32 v{aST}, s{sC1}, 1""")
    if not YP: k(f"v_writelane_b32 v{aST}, s{sC2}, 2")
    k(f"""s_mul_i32 s{sT2}, s{sWV}, {TBS}
    s_add_u32 s{sPB}, s{sT2}, {PX}
    s_waitcnt lgkmcnt(0)
    s_lshl_b32 s{sT2}, s{sT1}, 4
    s_lshr_b32 s{sLD}, s{sLD}, s{sT2}
    s_lshl_b32 s{sLD}, s{sLD}, 16
    s_lshr_b32 s{sDK}, s{sDK}, s{sT2}
    s_lshl_b32 s{sDK}, s{sDK}, 16
    s_cmp_eq_u32 s{sT0}, 0
    s_cselect_b32 s{sDK}, s{sDK}, 0""")
    for r in (AZ,AZ+1,AZ+2,AZ+3): k(f"v_accvgpr_write_b32 a{r}, 0")
    if YP and YPS!=-2:
        for r in range(AP,AP+4): k(f"v_accvgpr_write_b32 a{r}, -1")
    k(f"""v_lshlrev_b32 v9, 3, v0
    s_mov_b32 s{sDL}, {EXB}
    v_sub_u32 v18, 2047, v9
    s_mov_b32 s{sCNT}, {656+0x4280+EXB}
    v_cvt_f32_i32 v18, v18
    v_sub_u32 v19, {2047+0x4280+EXB}, v9
    v_min_i32 v19, {138+0x4280+EXB}, v19""")
    for i in range(0,11,2):
        k(f"v_subrev_f32 v24, {float(i)}, v18" if i in(0,2,4) else f"v_subrev_f32 v24, {hex(f2b(float(i)))}, v18")
        k(f"v_subrev_f32 v25, 1.0, v24\nv_cvt_pk_bf16_f32 v24, v24, v25")
        for h in range(2):
            if i+h>10: break
            k(f"""v_subrev_u32 v26, {i+h}, v19
            v_add_u32_sdwa v25, s{sDL}, v24 dst_sel:DWORD dst_unused:UNUSED_PAD src0_sel:DWORD src1_sel:WORD_{h}
            v_med3_i32 v25, v25, v26, s{sCNT}
            v_lshrrev_b32 v26, 5, v25
            v_add_lshl_u32 v{EX+i+h}, v25, v26, 2""")
    k(f"""v_lshrrev_b32 v9, 2, v7
    v_lshl_add_u32 v9, v7, 3, v9
    v_lshl_add_u32 v9, v8, 2, v9
    v_mul_u32_u24 v27, 132, v6
    v_add_lshl_u32 v9, v9, v27, 2
    v_add_u32 v{PA0}, s{sPB}, v9
    v_sub_u32 v9, 2, v6
    v_lshlrev_b32 v9, v9, v7
    v_lshl_add_u32 v27, v6, 1, 3
    v_lshrrev_b32 v27, v27, v7
    v_mul_u32_u24 v28, 66, v2
    v_add3_u32 v9, v9, v27, v28
    s_add_u32 s{sDL}, s{sPB}, 1056
    v_lshl_add_u32 v{PA1}, v9, 2, s{sDL}
    v_mul_u32_u24 v27, 124, v6
    v_add3_u32 v{PA2}, v{PA1}, v27, 8
    v_add_lshl_u32 v9, v28, v7, 2
    s_add_u32 s{sDL}, s{sPB}, 2112
    v_add_u32 v{PA3}, s{sDL}, v9
    s_sub_u32 s{sDL}, s{sPB}, {PX-KC}
    v_lshl_add_u32 v{TW}, v1, 4, s{sDL}
    v_lshl_add_u32 v9, v2, 3, v3
    v_lshlrev_b32 v9, 4, v9
    v_lshrrev_b32 v27, 1, v4
    v_mul_u32_u24 v27, 1088, v27
    v_and_b32 v28, 1, v4
    v_lshl_add_u32 v9, v28, 3, v9
    v_add3_u32 v{TR}, v9, v27, s{sDL}
    v_and_b32 v9, 7, v1
    v_mul_u32_u24 v9, {KCS}, v9
    v_lshlrev_b32 v27, 1, v1
    v_and_b32 v27, 16, v27
    v_add_u32 v9, {KC+4096}, v9
    v_add_u32 v{KZ}, v9, v27""")
    sH0_=sDL
    def late_blocks():
        B=[]
        def blk(t):
            L=[]
            for x in t.split("\n"):
                x=x.strip()
                if not x: continue
                if x.startswith('s_cselect') : L[-1]+="\n"+x
                else: L.append(x)
            B.append(L)
        t=f"""s_mul_i32 s{sT2}, s{sFT}, 6
        s_mul_i32 s{sT3}, s{sT1}, 3
        s_add_u32 s{sT2}, s{sT2}, s{sT3}
        s_lshl_b32 s{sT3}, s{sT2}, 7
        s_add_u32 s{sT3}, s{sT3}, {CS}
        v_lshl_add_u32 v9, v1, 2, s{sT3}
        v_lshl_or_b32 v{CSA}, v6, 31, v9
        """
        for j in range(3):
            t+=f"""s_add_u32 s{sT3}, s{sT2}, {j}
            s_cmp_lt_u32 s{sT3}, 86
            s_cselect_b32 s{sH0}, 0, {hex(OOB)}
            s_lshl_b32 s{sT3}, s{sT3}, 10
            s_or_b32 s{sT3}, s{sT3}, s{sH0}
            v_lshl_add_u32 v{HS+j}, v1, 4, s{sT3}
            """
        t+=f"""s_lshl_b32 s{sT2}, s{sMT}, 1
        s_add_u32 s{sT2}, s{sT2}, s{sT0}
        s_lshl_b32 s{sT3}, s{sT2}, 9
        s_add_u32 s{sT3}, s{sT3}, {STATS}
        v_lshl_add_u32 v{ST}, v5, 3, s{sT3}
        s_mul_i32 s{sH0}, s{sT2}, {2*88064}
        s_add_u32 s{sH0}, s{sH0}, {HB}
        s_add_u32 s{sH1}, s{sH0}, 88064
        v_lshlrev_b32 v{LNP}, 6, v4
        """
        for r in (EA+1,EA+3,EA+5,EB+1,EB+3): t+=f"v_accvgpr_write_b32 a{r}, 0\n"
        blk(t)
        blk(f"""v_lshrrev_b32 v9, 1, v0
        v_and_b32 v192, 1, v0
        s_lshl_b32 s{sT2}, s{sP}, 5
        v_lshl_add_u32 v198, v192, 4, s{sT2}
        v_lshl_add_u32 v{UL}, v9, 13, v198
        v_mul_u32_u24 v192, {US}, v192
        v_lshl_add_u32 v192, v9, 4, v192
        v_add_u32 v{UW}, {UO+480}, v192
        v_min_u32 v9, 29, v5
        v_mul_u32_u24 v192, {US}, v6
        v_lshl_add_u32 v192, v9, 4, v192
        v_add_u32 v{UZ}, {UO}, v192
        s_mov_b32 s{sUQ}, 0x100000""")
        blk(f"""v_lshlrev_b32 v9, 2, v8
        v_xor_b32 v9, v9, v1
        v_and_b32 v9, 7, v9
        v_lshlrev_b32 v9, 4, v9
        v_lshrrev_b32 v192, 3, v1
        v_lshl_add_u32 v9, v192, 10, v9
        s_lshl_b32 s{sT2}, s{sDB}, 7
        v_add_u32 v{WDV}, s{sT2}, v9
        v_add_u32 v{WDV+1}, 7168, v{WDV}
        v_lshl_add_u32 v9, v6, 2, v3
        v_lshlrev_b32 v9, 7, v9
        v_lshrrev_b32 v192, 1, v3
        v_xor_b32 v192, s{sT1}, v192
        v_lshl_add_u32 v9, v192, 6, v9
        v_lshl_add_u32 v9, v8, 5, v9
        v_lshl_add_u32 v9, v4, 3, v9
        s_mul_i32 s{sAW}, s{sWV}, {AWS}
        s_mul_i32 s{sCWB}, s{sWV}, {CWS}
        s_add_u32 s{sCWB}, s{sCWB}, {CW}
        v_add_u32 v{TA}, s{sAW}, v9
        v_xor_b32 v{TA+1}, 64, v{TA}
        v_add_u32 v{TC}, s{sCWB}, v9
        v_xor_b32 v{TC+1}, 64, v{TC}""")
        t=f"""s_mul_i32 s{sT2}, s{sWV}, 22
        s_cmp_eq_u32 s{sWV}, 3
        s_cselect_b32 s{sT2}, 65, s{sT2}
        s_sub_u32 s{sT3}, 22, s{sT1}
        """
        if ROT2:
            t+=f"""s_and_b32 s{sCNT}, s{sI}, {3 if M2 else 7}
            s_mul_i32 s{sCNT}, s{sCNT}, {RB if M2 else RA}
            s_lshr_b32 s{sDL}, s{sI}, {2 if M2 else 3}
            s_mul_i32 s{sDL}, s{sDL}, {RA if M2 else RB}
            s_add_u32 s{sCNT}, s{sCNT}, s{sDL}
            v_add_u32 v9, s{sCNT}, v1
            """
        else: t+="v_mov_b32 v9, v1\n"
        for _ in range(3): t+=f"v_subrev_u32 v192, s{sT3}, v9\nv_min_u32 v9, v9, v192\n"
        t+=f"v_add_u32 v9, s{sT2}, v9\nv_lshlrev_b32 v192, 14, v9\n"
        if WT6:
            t+=f"v_min_u32 v10, {WT6-1}, v2\ns_add_u32 s{sCNT}, s{sCNT}, {WT0}\nv_add_u32 v10, s{sCNT}, v10\n"
            for _ in range(2): t+=f"v_subrev_u32 v9, s{sT3}, v10\nv_min_u32 v10, v10, v9\n"
            t+=f"v_add_u32 v10, s{sT2}, v10\nv_lshl_add_u32 v10, v10, 4, v7\ns_lshl_b32 s{sCNT}, s{sDB}, 7\nv_lshl_add_u32 v10, v10, 10, s{sCNT}\n"
        else: t+="s_nop 0\n"
        for j in range(22):
            jj=j
            if QM: jj={21-QM:21,21:21-QM}.get(j,j)
            t+=f"v_readlane_b32 s{4+j}, v192, {jj}\n"
        blk(t)
        blk(f"""s_mul_i32 s{sT2}, s{sT1}, {4*KCS}
        s_lshl_b32 s{sT3}, s{sT0}, 8
        s_sub_u32 s{sT2}, s{sT2}, s{sT3}
        s_add_u32 s{sT2}, s{sT2}, {KC+4056-3776}
        v_mul_u32_u24 v9, {KCS}, v4
        v_lshl_add_u32 v9, v2, 4, v9
        v_lshlrev_b32 v192, 3, v3
        v_sub_u32 v9, v9, v192
        v_add_u32 v{CA}, s{sT2}, v9
        s_mul_i32 s{sT2}, s{sT1}, {US}
        s_sub_u32 s{sT2}, s{sT2}, s{sT3}
        s_add_u32 s{sT2}, s{sT2}, {UO+256}
        v_lshlrev_b32 v9, 4, v2
        v_lshl_add_u32 v9, v7, 5, v9
        v_add_u32 v{CB}, s{sT2}, v9""")
        blk(f"""s_lshl_b32 s{sT2}, s{sTB}, 1
        s_add_u32 s{sT2}, s{sT2}, s{sT0}
        s_mul_i32 s{sT3}, s{sT2}, 88064
        s_add_u32 s{sT3}, s{sT3}, {HB}
        v_lshl_add_u32 v{HL}, v1, 4, s{sT3}
        s_xor_b32 s{sT3}, s{sT2}, 1
        s_mul_i32 s{sT3}, s{sT3}, 88064
        s_add_u32 s{sT3}, s{sT3}, {HB}
        v_lshl_add_u32 v{HL+1}, v1, 4, s{sT3}
        s_lshl_b32 s{sT3}, s{sT2}, 5
        v_add_u32 v9, s{sT3}, v5
        v_lshlrev_b32 v192, 3, v9
        v_add_u32 v{RS}, {STATS+4}, v192
        s_lshl_b32 s{sT3}, s{sDB}, 1
        s_add_u32 s{sT3}, s{sT3}, s{sT1}
        s_lshl_b32 s{sYQ}, s{sT3}, 6
        v_lshlrev_b32 v9, 10, v9
        v_lshl_add_u32 v9, v6, 4, v9
        v_add_u32 v{XO}, s{sYQ}, v9
        s_lshl_b32 s{sYQ}, s{sT3}, 17
        s_lshl_b32 s{sT2}, s{sT2}, 6
        s_add_u32 s{sT2}, s{sT2}, s{sYQ}
        s_add_u32 s{sT2}, s{sT2}, {YB}
        v_lshrrev_b32 v9, 2, v1
        v_lshlrev_b32 v9, 12, v9
        v_lshl_add_u32 v9, v4, 4, v9
        v_add_u32 v{YL}, s{sT2}, v9
        s_mov_b32 s{sYQ}, 0x10000
        s_lshl_b32 s{sT2}, s{sWV}, 11
        s_add_u32 s{sT2}, s{sT2}, {KC}
        v_lshl_add_u32 v{YW}, v1, 4, s{sT2}
        v_lshl_add_u32 v9, v6, 2, v3
        v_lshlrev_b32 v9, 6, v9
        v_lshl_add_u32 v9, v8, 5, v9
        v_lshl_add_u32 v9, v4, 3, v9
        v_add_u32 v{YR}, s{sT2}, v9
        s_lshl_b32 s{sT3}, s{sT3}, 11
        s_add_u32 s{sT3}, s{sT3}, {FY}
        v_lshl_add_u32 v{FYP}, v7, 7, s{sT3}
        s_lshr_b32 s{sT2}, s{sTB}, 1
        s_lshl_b32 s{sT2}, s{sT2}, 11
        s_add_u32 s{sT2}, s{sT2}, {FH}
        {"v_min_u32 v9, 14, v7" if not HFW else f"s_mul_i32 s{sT3}, s{sWV}, 7"+chr(10)+f"s_lshr_b32 s{sT3}, s{sT3}, 1"+chr(10)+f"s_add_u32 s{sH0_}, s{sT0}, 3"+chr(10)+f"v_min_u32 v9, s{sH0_}, v7"+chr(10)+f"v_add_u32 v9, s{sT3}, v9"}
        v_lshl_add_u32 v{FHP}, v9, 7, s{sT2}
        v_lshlrev_b32 v{EXW}, 4, v1""")
        return B
    for b in late_blocks()[:NE]: run(b)
    def late(): return sum(late_blocks()[NE:],[])
    k.dq=[]
    if probe&1: k.stamp('ad0')
    if not D0K: run(D0R); D0R=[]
    k.stamp('addr')
    CEI=[]
    def kgen():
        def sp(t): return [x.strip() for x in t.split("\n") if x.strip()]
        q1,q8,q128=172,174,176
        p=PAR; pr=lambda x:f"v[{x}:{x+1}]"
        S=sp(f"""v_mov_b32 v60, s{sLD}
        v_mul_f32 v60, 0x3fb8aa3b, v60
        v_exp_f32 v60, v60
        s_nop 0
        v_cvt_pk_bf16_f32 v60, v60, v60
        v_and_b32 v60, s{sMSK}, v60""")
        def cearly():
            if not CE: return
            L=k.lab("CE"); k(f"s_cmp_lt_u32 s{sI}, 30\ns_cbranch_scc1 {L}")
            n=len(k.vq); run(dma_list(SS,"dx")[5:]+nextk); del k.vq[n:]; CEI.append(n)
            k(f"s_add_u32 s{sMG}, s{sMG}, {SS}\n{L}:")
        S.append(lambda: (k.w(v="par"),k.stamp('par'),run(D0R),cearly()))
        S+=sp(f"""v_pk_mul_f32 {pr(p)}, {pr(p)}, v[60:61] op_sel_hi:[1,0]
        v_pk_mul_f32 {pr(p+2)}, {pr(p+2)}, v[60:61] op_sel_hi:[1,0]
        v_mul_f32 v{p}, 0x3fb8aa3b, v{p}
        v_mul_f32 v{p+1}, 0.15915494, v{p+1}
        v_mul_f32 v180, 0x41000000, v{p}
        v_mul_f32 v181, 0x41000000, v{p+1}
        v_mul_f32 v182, 0x43000000, v{p}
        v_mul_f32 v183, 0x43000000, v{p+1}
        v_exp_f32 v180, v180
        v_exp_f32 v178, v{p}
        v_exp_f32 v182, v182
        v_fract_f32 v181, v181
        v_fract_f32 v179, v{p+1}
        v_fract_f32 v183, v183""")
        def cmul(L,T,d,x,y):
            L+=[f"v_pk_mul_f32 {pr(T)}, {pr(x)}, {pr(y)} op_sel:[0,0] op_sel_hi:[0,1]",
                f"v_pk_fma_f32 {pr(d)}, {pr(x)}, {pr(y)}, {pr(T)} op_sel:[1,1,0] op_sel_hi:[1,0,1] neg_lo:[1,0,0]"]
        cmul(S,64,60,p+4,p+2)
        for j in (1,0,2): S+=sp(f"v_cos_f32 v{172+2*j}, v{179+2*j}\nv_sin_f32 v{173+2*j}, v{179+2*j}")
        for j in (1,0,2): S.append(f"v_pk_mul_f32 {pr(172+2*j)}, {pr(172+2*j)}, {pr(178+2*j)} op_sel_hi:[1,0]")
        def pack(L,t,e,x,y):
            n='-' if t==0 else ''
            re,im=(TB+16*t+(e>>1),TB+16*t+8+(e>>1)) if t<3 else ((TB+48+(e>>1),TB+52+(e>>1)) if e<8 else (TB+56,TB+58))
            o=lambda z,j: (z[j] if isinstance(z,tuple) else f"{n if j else ''}v{z+j}")
            L+=[f"v_cvt_pk_bf16_f32 v{re}, {o(x,0)}, {o(y,0)}",f"v_cvt_pk_bf16_f32 v{im}, {o(x,1)}, {o(y,1)}"]
        A=[];X0,X1,T=60,62,64
        for b in range(0,16,2):
            if b: cmul(A,T,X0,X1,q8)
            cmul(A,T,X1,X0,q8); pack(A,0,b,X0,X1)
        A.append(('T',0))
        B=[];X0,X1,T=66,68,70
        qp={1:q1}
        pack(B,1,0,("1.0","0"),q1)
        for x in range(2,8):
            qp[x]=178+2*(x-2); cmul(B,T,qp[x],qp[x-1],q1)
            if x&1: pack(B,1,x-1,qp[x-1],qp[x])
        cmul(B,T,X1,q128,q1); pack(B,1,8,q128,X1)
        for x in (2,4,6): cmul(B,T,X0,q128,qp[x]); cmul(B,T,X1,q128,qp[x+1]); pack(B,1,8+x,X0,X1)
        B.append(('T',1))
        C=[];C0,X0,X1,T=72,74,76,78
        D=[];D0,D1,TD=80,82,84
        cmul(C,T,C0,q128,q128)
        cmul(D,TD,D0,q128,q128); cmul(D,TD,D0,D0,D0); cmul(D,TD,D1,D0,D0)
        for x in (2,3):
            if x==3: cmul(C,T,C0,C0,q128)
            cmul(C,T,X1,C0,qp[2]); pack(C,2,4*(x-2),C0,X1)
            cmul(C,T,X0,C0,qp[4]); cmul(C,T,X1,C0,qp[6]); pack(C,2,4*(x-2)+2,X0,X1)
        for x in range(4,8):
            cmul(C,T,C0,C0,q128); cmul(C,T,X1,C0,qp[4]); pack(C,2,8+2*(x-4),C0,X1)
        C.append(('T',2))
        for x in range(0,8,2):
            if x: cmul(D,TD,D1,D0,q128)
            cmul(D,TD,D0,D1,q128); pack(D,3,x,D1,D0)
        cmul(D,TD,D1,D0,q128); pack(D,3,8,D1,("0","0"))
        D.append(('T',3))
        def rr(a,b):
            o=[];a=list(a);b=list(b);na,nb=len(a),len(b)
            while a or b:
                if a and (not b or len(a)*nb>=len(b)*na): o.append(a.pop(0))
                else: o.append(b.pop(0))
            return o
        S+=rr(A,B)+rr(C,D)
        S+=sp(f"v_mov_b32 v{PACC}, 0\nv_mov_b32 v{PACC+1}, 0\nv_mov_b32 v{PACC+2}, 0\nv_mov_b32 v{PACC+3}, 0\nv_writelane_b32 v{PACC}, s{sDK}, 0")
        return S
    def tabio(t):
        L=[]
        R=[TB+16*t+4*j for j in range(4)] if t<3 else [TB+48,TB+56,TB+52,TB+58]
        for j in range(4):
            if t==3 and j&1 and T3B: L.append(('r',lambda r=R[j],j=j: k.ds(f"ds_write_b32 v{TW}, v{r} offset:{1088*j}","tw")))
            else: L.append(('w',lambda r=R[j],j=j: k.ds(f"ds_write_b128 v{TW}, {vr(r,4)} offset:{1088*j}","tw")))
        for st in range(4):
            for h in range(2): L.append(('r',lambda t=t,st=st,h=h: k.ds(f"ds_read_b64_tr_b16 {ar(KF+16*t+4*st+2*h,2)}, v{TR} offset:{(st&1)*2176+(st>>1)*512+64*h}",f"kf{t}")))
        return L
    def pmf(T):
        return [f"v_mfma_f32_16x16x32_bf16 {vr(PACC+4*T,4)}, {ar(KF+16*(T+1)+4*st,4)}, {ar(KF+4*st,4)}, {vr(PACC+4*T,4) if (st or T==0) else '0'}" for st in range(4)]
    def pwr(T):
        if T==0: k.ds(f"ds_write2_b32 v{PA0}, v{PACC}, v{PACC+1} offset0:0 offset1:1"); k.ds(f"ds_write2_b32 v{PA0}, v{PACC+2}, v{PACC+3} offset0:2 offset1:3")
        if T==1: k.ds(f"ds_write2_b32 v{PA1}, v{PACC+4}, v{PACC+5} offset0:0 offset1:1"); k.ds(f"ds_write2_b32 v{PA2}, v{PACC+6}, v{PACC+7} offset0:0 offset1:1")
        if T==2: k.ds(f"ds_write2_b32 v{PA3}, v{PACC+8}, v{PACC+9} offset0:0 offset1:16"); k.ds(f"ds_write2_b32 v{PA3}, v{PACC+10}, v{PACC+11} offset0:33 offset1:49")
    LN=[lambda: (k.w(v="row"),k.stamp('kg'))]
    def ln(t): LN.extend(x.strip() for x in t.split("\n") if x.strip())
    for j in range(8): ln(f"v_lshlrev_b32 v{20+2*j}, 16, v{ROW+j}\nv_and_b32 v{21+2*j}, s{sMSK}, v{ROW+j}")
    def red2(m):
        LN.append(('M',m))
        ln("""s_nop 1
        v_permlane32_swap_b32 v40, v41
        v_add_f32 v40, v40, v41
        v_mov_b32 v41, v40
        s_nop 1
        v_permlane16_swap_b32 v40, v41
        v_add_f32 v40, v40, v41""")
        for r in(8,4,2,1): ln(f"s_nop 1\nv_add_f32_dpp v40, v40, v40 row_ror:{r} row_mask:0xf bank_mask:0xf")
        ln("v_mul_f32 v40, 0x3b000000, v40")
    for b,d in((20,40),(28,41)):
        ln(f"""v_pk_add_f32 v[36:37], v[{b}:{b+1}], v[{b+2}:{b+3}]
        v_pk_add_f32 v[38:39], v[{b+4}:{b+5}], v[{b+6}:{b+7}]
        v_pk_add_f32 v[36:37], v[36:37], v[38:39]
        v_add_f32 v{d}, v36, v37""")
    red2(0)
    ln(f"""v_mov_b32 v42, v40
    v_mov_b32 v43, v40
    v_cvt_pk_bf16_f32 v{LST}, -v40, -v40
    s_nop 0
    v_permlane32_swap_b32 v42, v43""")
    for h,(b,d) in enumerate(((20,40),(28,41))):
        for j in range(4):
            ln(f"v_pk_add_f32 v[38:39], v[{b+2*j}:{b+2*j+1}], v[42:43] op_sel:[0,{h}] op_sel_hi:[1,{h}] neg_lo:[0,1] neg_hi:[0,1]")
            ln("v_pk_mul_f32 v[36:37], v[38:39], v[38:39]" if j==0 else "v_pk_fma_f32 v[36:37], v[38:39], v[38:39], v[36:37]")
        ln(f"v_add_f32 v{d}, v36, v37")
    red2(1)
    LN.append(('M',2))
    ln(f"""v_cvt_pk_bf16_f32 v40, v40, v40
    v_and_b32 v40, s{sMSK}, v40
    v_add_f32 v40, 0x3727c5ac, v40
    v_cvt_pk_bf16_f32 v40, v40, v40
    v_and_b32 v40, s{sMSK}, v40
    v_sqrt_f32 v40, v40
    v_and_b32 v41, s{sMSK}, v{LST}
    v_cvt_pk_bf16_f32 v40, v40, v40
    v_and_b32 v40, s{sMSK}, v40
    v_rcp_f32 v46, v40
    s_nop 0
    v_mul_f32 v47, v41, v46
    v_mul_f32 v{LST+1}, v46, v46
    v_mov_b32 v48, v46
    v_mov_b32 v49, v47
    s_nop 1
    v_permlane32_swap_b32 v46, v48
    v_permlane32_swap_b32 v47, v49""")
    LN.append(('M',3))
    for h,b in enumerate((20,28)):
        P=f"v[{46+2*h}:{47+2*h}]"
        for j in range(4):
            ln(f"v_pk_fma_f32 v[{b+2*j}:{b+2*j+1}], v[{b+2*j}:{b+2*j+1}], {P}, {P} op_sel:[0,0,1] op_sel_hi:[1,0,1]")
            ln(f"v_cvt_pk_bf16_f32 v{ROW+4*h+j}, v{b+2*j}, v{b+2*j+1}")
        LN.append(lambda h=h: k.ds(f"ds_write_b128 v{aWR}, {vr(ROW+4*h,4)} offset:{320*h}"))
    LN.append(('M',4))
    D1=dma_list(SS,"d1")+nextk
    if XP&16:
        for i in range(10,-1,-1): k.w(v=i); k.stamp(f'w{i}')
    if XP&32:
        i=0
        for f in D1:
            run([f])
            if callable(f): k.stamp(f'i{i}'); i+=1
        for i in range(10,-1,-1): k.w(v=i); k.stamp(f'w{i}')
        D1=[]
    IO=[]; IOL=[]; lastw=-99; n=0; nt=0
    def icount(): return sum(1 for l in k.L if not l.endswith(':') and not l.strip().startswith(';'))
    def cost(l):
        l=l.strip()
        if l.endswith(':') or l.startswith(';') or not l: return 0
        if l.startswith('ds_write_b128'): return 50
        if l.startswith('ds_'): return 12
        if l.split()[0][:5] in('v_exp','v_sin','v_cos','v_rcp','v_sqr','v_log'): return 8
        if l.startswith('s_nop'): return 4 if int(l.split()[1])<4 else 8
        return 4
    clk=None; nx=D1C; l0=len(k.L)
    DL=[int(x) for x in D1L.split('_')] if D1L else []
    if DL: nx=DL.pop(0)
    for f in kgen()+LN:
        if isinstance(f,tuple):
            if f[0]=='T':
                (IO if nt<IOP else IOL).extend(tabio(f[1])); nt+=1
            continue
        run([f]); n+=1
        if clk is None and callable(f): clk=0; l0=len(k.L)
        if IO:
            if IO[0][0]=='r': run([IO.pop(0)[1]])
            elif n-lastw>=TWK: run([IO.pop(0)[1]]); lastw=n
        if D1P:
            if clk is not None:
                clk+=sum(cost(l) for l in k.L[l0:]); l0=len(k.L)
                if clk>=nx and D1:
                    while D1 and not callable(D1[0]): run([D1.pop(0)])
                    if D1: run([D1.pop(0)])
                    nx=(DL.pop(0) if DL else nx) if D1L else nx+D1P
        elif n>=D1S and (n-D1S)%D1E==D1E-1 and D1:
            g=D1.pop(0); run([g])
            if not callable(g) and D1: run([D1.pop(0)])
    print("prologue cost after par",clk,"d1 left",len(D1))
    run([x[1] for x in IO])
    run(D1)
    def ptail(F=[]):
        fin={}; F=list(F)
        for T in range(3):
            k.w(d=min(k.nd("kf0"),k.nd(f"kf{T+1}")))
            for m in pmf(T):
                k(m); fin[T]=icount()
                if F:
                    f=F.pop(0); run([f])
                    if not callable(f) and F: run([F.pop(0)])
        run(F)
        for T in range(3):
            d=8-(icount()-fin[T])
            if d>0: k(f"s_nop {d-1}")
            pwr(T)
    def ptail_items():
        L=[]; fin={}
        for T in range(3):
            for i,m in enumerate(pmf(T)):
                L.append(lambda T=T,i=i,m=m: (k.w(d=min(k.nd("kf0"),k.nd(f"kf{T+1}"))) if i==0 else 0, k(m), fin.__setitem__(T,icount())))
        def pw(T):
            d=8-(icount()-fin[T])
            if d>0: k(f"s_nop {d-1}")
            pwr(T)
        if PTS==2:
            def blk():
                k.w(d=min(k.nd(f"kf{t}") for t in range(4)))
                for st in range(4):
                    for T in range(3): k(pmf(T)[st]); fin[T]=icount()
            return [blk,"s_nop 0","s_nop 0",lambda:pw(0),"s_nop 0",lambda:pw(1),"s_nop 0",lambda:pw(2)]
        return L[:8]+[lambda:pw(0)]+L[8:]+[lambda:pw(1),"s_nop 0",lambda:pw(2)]
    k.stamp('ln')
    CSL=k.lab("CS"); MRG=k.lab("MRG")
    k(f"s_cmp_ge_u32 s{sI}, 30\ns_cbranch_scc1 {CSL}")
    vq_cs=list(k.vq)
    if CE: vq_cs=vq_cs[:CEI[0]]+["d1"]*6+["d2" if x=="d1" else x for x in vq_cs[CEI[0]:]]
    pass; dq_cs=list(k.dq); nst_cs=k.nst; IOL_cs=list(IOL)
    def lntr():
        return [lambda q=q,h=h: k.ds(f"ds_read_b64_tr_b16 {ar(LTR+4*q+2*h,2)}, v{aTR} offset:{128*q+1280*h}",f"lt{q}") for q in range(2) for h in range(2)]
    def poison(): return [lambda j=j: k.vm(f"buffer_store_dwordx4 {ar(AP,4)}, v{YS}, {srd(SW)}, 0 offen offset:{1024*j} sc1","lnst") for j in range(2)]
    def lnst(yp=1):
        L=[f"v_writelane_b32 v{LST}, 0, 1"]
        if not YP: L+=[f"v_writelane_b32 v{LST}, 0, 2"]
        L+=[lambda: k.vm(f"buffer_store_dwordx2 {vr(LST,2)}, v{aST}, {srd(SW)}, 0 offen sc1","lnst")]
        if YP and yp: L+=poison()
        for q in range(2): L.append(lambda q=q:(k.w(d=f"lt{q}"),k.vm(f"buffer_store_dwordx4 {ar(LTR+4*q,4)}, v{aXN}, {srd(SW)}, 0 offen offset:{1024*q} sc1","lnst")))
        return L
    def lnatomic():
        L=k.lab(); k(f"s_cmp_lg_u32 s{sWV}, 0\ns_cbranch_scc1 {L}\ns_atomic_add s{sONE}, s[{SB}:{SB+1}], s{sLA}\n{L}:"); k.smem=1
    def exrd(c): return [lambda i=i: k.ds(f"ds_read2st64_b32 {vr(112+24*c+2*i,2)}, v{EX+i} offset0:{PO[2*c]} offset1:{PO[2*c+1]}",f"ex{c}_{i}") for i in range(11)]
    def exva(c):
        L=[]
        for i in range(11):
            t=f"v_add_f32 v{112+24*c+2*i}, v{112+24*c+2*i}, v{113+24*c+2*i}"
            L.append((lambda i=i,t=t:(k.w(d=f"ex{c}_{min(i+3,10)}"),k(t))) if i in(0,4,8) else t)
        for s in range(4):
            for j in range(4):
                i=112+24*c+2*(3-s+2*j)
                L.append(f"v_cvt_pk_bf16_f32 v{KX+16*c+4*s+j}, v{i}, v{i+2}")
        return L
    def kcw():
        return [lambda r=r: k.ds(f"ds_write_b128 v{KCW}, {vr(KX+4*r,4)} offset:{r*KCS}","kcw") for r in range(8)]+[lambda: k.ds(f"ds_write_b128 v{KZ}, {ar(AZ,4)}","kcw")]
    ACC=16; FS=(176,196,216,236)
    base=[0]
    def rd(slot,st,f,what,tag="fr"):
        o=slot*SS-base[0]; assert 0<=o<=SS
        if what[0]=='b':
            e=what[1]; return [lambda: k.ds(f"ds_read_b128 {ar(FS[f]+12+4*e,4)}, v{XR+st} offset:{o+4096*e}",tag)]
        u=what[1]; return [lambda h=h: k.ds(f"ds_read_b64_tr_b16 {ar(FS[f]+4*u+2*h,2)}, v{WR} offset:{o+3072*st+768*h+32*u}",tag) for h in range(2)]
    def dummy():
        if getattr(k,'smem',0): k.ds(f"ds_read_u8 v{JNK}, v1","dum")
    def reads(slot,st,f):
        return rd(slot,st,f,('b',0))+rd(slot,st,f,('a',0))+rd(slot,st,f,('b',1))+rd(slot,st,f,('a',1))+rd(slot,st,f,('a',2))+[dummy]
    def mf1(f,b,zero=False):
        u,e=b>>1,b&1
        return f"v_mfma_f32_32x32x16_bf16 {vr(ACC+16*b,16)}, {ar(FS[f]+4*u,4)}, {ar(FS[f]+12+4*e,4)}, {'0' if zero else vr(ACC+16*b,16)}"
    def mf(f,zero=False): return [mf1(f,b,zero) for b in range(6)]
    def mix(a,b):
        o=[];a=list(a);b=list(b)
        while a or b:
            if a:o.append(a.pop(0))
            if a:o.append(a.pop(0))
            if b:o.append(b.pop(0))
        return o
    def adv(delta): return [f"v_add_u32 v{r}, {delta}, v{r}" for r in(XR,WR,XR+1,XR+2,XR+3)]
    side=[]; acc=[0]
    def wv(mfs,fl,per):
        fl=list(fl)
        for i,m in enumerate(mfs):
            run([m])
            n=per[i] if isinstance(per,(list,tuple)) else per
            for _ in range(n):
                if fl: run([fl.pop(0)])
            acc[0]+=NS
            while acc[0]>=10:
                acc[0]-=10
                if side: run([side.pop(0)])
        run(fl)
    def poll(tag,reg,addr,sr,exp):
        ok=k.lab("OK"); rt=k.lab("RT")
        k.w(v=tag)
        cmp="gt" if exp==64 else "ne"
        k(f"v_cmp_{cmp}_u32 vcc, {exp}, v{reg}\ns_cbranch_vccnz {rt}\n{ok}:")
        lp=k.lab("RL"); sl_=SLP if exp==64 else SLH
        k.tail.append(f"""{rt}:
        s_movk_i32 s{sRING}, 4000
        {lp}:
        {'s_sleep %d'%sl_ if sl_ else ''}
        buffer_load_dword v{reg}, v{addr}, {srd(sr)}, 0 offen sc1
        s_waitcnt vmcnt(0)
        v_cmp_{cmp}_u32 vcc, {exp}, v{reg}
        s_cbranch_vccz {ok}
        s_sub_u32 s{sRING}, s{sRING}, 1
        s_cmp_lg_u32 s{sRING}, 0
        s_cbranch_scc1 {lp}
        s_branch {ok}""")
    LNX=64; FLX=4
    def sat(so): k(f"s_atomic_add s{sONE}, s[{SW}:{SW+1}], s{so}"); k.smem=1
    lnpoll=lambda: k.vm(f"buffer_load_dword v{PL}, v{LNP}, {srd(SB)}, 0 offen sc1","lnp")
    def uloads():
        return [lambda q=q: k.vm(f"buffer_load_dwordx4 {ar(UR+4*q,4)}, v{UL}, {srd(SW)}, {'s%d'%sUQ if q else 0} offen{'' if NSC&1 else ' sc1'}","u") for q in range(2)]
    def wd_loc(j):
        if j<4: return ('C',2048*j)
        if j<9: return ('A',2048*(j-4))
        if j<14: return ('A',BW+2048*(j-9))
        if j<18: return ('C',2048*(j-14))
        return ('A',2048*(j-18))
    def wd_dma(j):
        r,o=wd_loc(j); b=sCWB if r=='C' else sAW
        return [f"s_add_u32 m0, s{b}, {o}" if o else f"s_mov_b32 m0, s{b}"]+[lambda h=h: k.vm(f"buffer_load_dwordx4 v{WDV+h}, {srd(SD)}, s{4+j} offen offset:{1024*h} lds",f"wd{j}") for h in range(2)]
    def wd_tr(j):
        r,o=wd_loc(j); b=TC if r=='C' else TA
        return [lambda e=e,h=h: k.ds(f"ds_read_b64_tr_b16 {ar(8*j+4*e+2*h,2)}, v{b+e} offset:{o+1024*h}",f"wt{j}") for e in range(2) for h in range(2)]
    def uwrite():
        L=[lambda: k.ds(f"ds_write_b128 v{UZ}, {ar(AZ,4)}","uw")]
        L+=[lambda q=q: (k.w(v="u"),k.ds(f"ds_write_b128 v{UW}, {ar(UR+4*q,4)} offset:{2048*q}","uw")) for q in range(2)]
        return L
    sl=[lambda e=e: k.vm(f"buffer_load_dword a{EB+2*e}, v{ST}, {srd(SW)}, 0 offen offset:{256*e} sc1","st") for e in range(2)]
    cl=[lambda j=j: k.vm(f"buffer_load_dword a{EA+2*j}, v{CSA}, {srd(SW)}, 0 offen offset:{128*j} sc1","cs") for j in range(3)]
    def cscheck():
        k.w(v="cs")
        ok=k.lab("OK"); rt=k.lab("RT"); lp=k.lab("RL")
        chk=f"v_accvgpr_read_b32 v9, a{EA}\nv_accvgpr_read_b32 v10, a{EA+2}\nv_accvgpr_read_b32 v11, a{EA+4}\nv_max3_u32 v9, v9, v10, v11\nv_cmp_eq_u32 vcc, -1, v9"
        k(f"{chk}\ns_cbranch_vccnz {rt}\n{ok}:")
        k.tail.append(f"""{rt}:
        s_movk_i32 s{sRING}, 4000
        {lp}:
        buffer_load_dword a{EA}, v{CSA}, {srd(SW)}, 0 offen sc1
        buffer_load_dword a{EA+2}, v{CSA}, {srd(SW)}, 0 offen offset:128 sc1
        buffer_load_dword a{EA+4}, v{CSA}, {srd(SW)}, 0 offen offset:256 sc1
        s_waitcnt vmcnt(0)
        {chk}
        s_cbranch_vccz {ok}
        s_sub_u32 s{sRING}, s{sRING}, 1
        s_cmp_lg_u32 s{sRING}, 0
        s_cbranch_scc1 {lp}
        s_branch {ok}""")
    if probe&1: k.w(v="d0"); k.stamp('d0')
    k.w(v="d0",d=0); k("s_barrier")
    if XP&64:
        for i in range(9,-1,-1): k.w(v=i); k.stamp(f'w{i}')
    run(reads(0,0,0)); run(lntr())
    k.stamp('s0')
    KW=[]
    WT=[int(c) for c in str(WDT) if c.isdigit()] if WDT!=-1 else []
    NT=-(-92//max(len(WT),1))
    def touch(s):
        L=[]
        if s==WT[0]: L.append(f"""s_lshl_b32 s{sC1}, s{sI}, 2
            s_add_u32 s{sC1}, s{sC1}, s{sWV}
            s_mul_i32 s{sC1}, s{sC1}, {NT*len(WT)*128}
            v_min_u32 v10, {NT-1}, v1
            v_lshl_add_u32 v10, v10, 7, s{sC1}""")
        else: L.append(f"v_add_u32 v10, {NT*128}, v10")
        L.append(lambda: k.vm(f"buffer_load_dword v11, v10, {srd(SD)}, 0 offen","tch"))
        return L
    cur=[0]
    tch6=lambda: k.vm(f"buffer_load_dword v{JNK}, v10, {srd(SD)}, 0 offen","tch")
    for s in range(7):
        slot=s%3; cur[0]=s
        D=dma_list(((s+2)%3)*SS,f"d{s+2}") if s<6 else []
        X=[[],[],[]]; per=[3,3,3]
        if s<6: X=[D[0:5],D[5:9],D[9:13]+(nextk if s<5 else [])]
        if s==1 and DE:
            print("d2 left for stage 1:",sum(callable(x) for x in DE)); Z=DE+X[0]+X[1]+X[2]; n3_=len(Z)//3
            X=[Z[:n3_],Z[n3_:2*n3_],Z[2*n3_:]]
        if s==1:
            LB=late_blocks(); LB[:NE]=[[]]*NE
            EXP=exrd(0)+exrd(1)[:3]+mix(exva(0),exrd(1)[3:])+exva(1)
            if PTS:
                P=[x for x in ptail_items()]; Q=LB[0]+LB[1]+LB[2]+LB[3]
                side+=Q[:PTG]; Q=Q[PTG:]
                while P:
                    x=P.pop(0)
                    if x!="s_nop 0" or PTS==1: side.append(x)
                    if Q: side.append(Q.pop(0))
                np_=len(side); side+=Q; n1=n3=len(side); bpos=len(side)
                side+=[lambda: (_ for _ in ()).throw(AssertionError("expansion too early")) if cur[0]<2 else 0]+EXP; n2=len(side)
            else:
                side+=LB[0]+LB[1]; n1=len(side)
                side+=EXP; n2=len(side)
                side+=LB[2]+LB[3]; n3=len(side)
            if LBD<2: side+=LB[4]+LB[5]
            nside=len(side)
        def flush(n):
            c=0
            while len(side)>nside-n: run([side.pop(0)]); c+=1
            if c: print("flushed",c,"at stage",s)
        if s==LPS: flush(n1)
        if s==3 and KCB==0: flush(n2)
        if s==6: flush(n3)
        if s>=3 and KW:
            for j in range(3):
                if KW: X[j]=X[j]+[KW.pop(0)]
        if s==LPS: X[0]=[lnpoll]+X[0]
        if s==LPS+1 and D5L and s<6: X=[[],X[0],X[1]+X[2]]
        if s==CLS and CLS!=LPS and not CLP: X[0]=cl+X[0]
        if s in WT: X[2]=X[2]+touch(s)
        if s and s==LSP: X[2]=X[2]+lnst(YPS==-1)
        if s and s==YPS: X[2]=X[2]+poison()
        if s==6:
            W=sum((wd_dma(j) for j in range(NPRE)),[])
            if WT6: W=W+[tch6] if WTP==0 else [tch6]+W
            X=[[X[0]+W[:3],W[3:9],W[9:]],[X[0],W[:6],W[6:]],[X[0],W[:3],W[3:]],[X[0],[],W],[X[0]+W[:3],W[3:6],W[6:]],[X[0],W[:3],W[3:6]],[X[0],[],W[:5]]][W6S]
            W6R=[[],[],[],[],[],W[6:],W[5:]][W6S]
            if KCB==3:
                KR=kcw(); X=[X[0]+KR[:K60],KR[K60:K60+K61]+X[1],X[2]]; KR=KR[K60+K61:]
            if CLS==6 and CLP==1: X[1]=cl+X[1]
            if CLS==6 and CLP==2: X[1]=X[1]+cl
            if CLS==6 and CLP==3: X[2]=cl+X[2]
        if s==0:
            F=[reads(0,1,1),reads(0,2,0),reads(0,3,1)]; g=0; LS=lnst(YPS==-1) if LSP==0 else []; lw=-9
            DE=[]
            if D2P:
                DE=D+nextk; D=[]
                if not LSG: D=LS; LS=[]
            d2t=[D2G]
            if D2L: D2Q=[int(x) for x in D2L.split('_')]; d2t=[D2Q.pop(0)]
            def d2w(g):
                while DE and g>=d2t[0]:
                    while DE and not callable(DE[0]): run([DE.pop(0)])
                    if DE: run([DE.pop(0)])
                    while DE and not any(callable(x) for x in DE): run([DE.pop(0)])
                    if D2L: d2t[0]=D2Q.pop(0) if D2Q else d2t[0]
                    else: d2t[0]+=D2P/10
            for st in range(3):
                k.w(d="fr")
                for i,m in enumerate(mf(st&1,st==0)):
                    k(m); n=0
                    while F[st] and n<2: run([F[st].pop(0)]); n+=1
                    if IOL and IOL[0][0]=='w':
                        if g-lw>=W0E: run([IOL.pop(0)[1]]); lw=g
                    else:
                        while IOL and IOL[0][0]=='r' and n<4: run([IOL.pop(0)[1]]); n+=1
                    if LSG:
                        if g>=LSG-1 and LS: run([LS.pop(0)])
                    elif st>=1 and LS and n<3: run([LS.pop(0)])
                    d2w(g)
                    g+=1
                run(F[st])
            run([x[1] for x in IOL]); run(LS)
            if probe&1: k.stamp('io')
            if PTS==0:
                if LSG:
                    F=[]
                    for i in range(12): F.append(lambda i=i: d2w(18+i*PTW/120))
                    ptail(F); g0_=18+PTW/10
                else: ptail(DE+D if D2P else D+nextk); DE=[]
                D=[]
            elif not LSG: run(DE); DE=[]
            else: g0_=18
            if KCB==0: KW=kcw()
            if probe&1: k.stamp('d2')
        else:
            k.w(d="fr"); wv(mf(0),mix(reads(slot,1,1),X[0]),per[0])
            if probe&4 and s>=5: k.stamp('a')
            k.w(d="fr"); wv(mf(1),mix(reads(slot,2,0),X[1]),per[1])
            if probe&4 and s>=5: k.stamp('b')
            k.w(d="fr"); wv(mf(0),mix(reads(slot,3,1),X[2]),per[2])
        if probe&4 and s>=5: k.stamp('c')
        ns=(s+1)%3; A=[]
        if ns==2: A=adv(SS); base[0]=SS
        if ns==0: A=adv(-SS); base[0]=0
        wt=f"d{s+1}"
        ex=[]
        if s==LPS: ex=[lambda: poll("lnp",PL,LNP,SB,LNX)]+sl+(cl if CLS==LPS else [])+uloads()
        bar=[lambda wt=wt:(k.w(v=wt),k("s_barrier"))]
        if s==LAS:
            bar.append(lnatomic); bar[0]=lambda wt=wt:(k.w(v=min(k.nv(wt),k.nv('lnst'))),k('s_barrier'))
            assert LAS>=max(LSP,YPS)
        if s==1 and PTS: flush(np_)
        if s==min(PTS,1): k.w(d=0)
        else: k.w(d="fr")
        if s==0 and PTS: ex=D
        if s==6:
            ex=ex+W6R
            if LBD: LBL=list(side); del side[:]; print("deferred",len(LBL))
            else: flush(nside)
        if s==LAS+3: k.smem=0
        M3=mf(1)
        if s==0 and DE: M3=[(lambda i=i,m=m: (k(m),d2w(g0_+i))) for i,m in enumerate(M3)]
        wv(M3,bar+A[:2]+reads(ns,0,0)+A[2:]+ex,[len(bar),5,5,3,2,5])
        k.stamp(f's{s+1}')
    R=[]
    for wh in (('b',0),('a',0),('b',1),('a',1),('a',2)):
        for st in (1,2,3): R+=rd(1,st,st,wh,f"f{wh[0]}{wh[1]}")
    mx=[f"v_mfma_f32_32x32x8_bf16 {vr(ACC+16*b,16)}, {ar(EA+2*(b>>1),2)}, {ar(EB+2*(b&1),2)}, {vr(ACC+16*b,16)}" for b in range(6)]
    def hepi(b):
        a=ACC+16*b; u,e=b>>1,b&1
        L=[f"v_mul_f32 v{a+r}, v{a+r}, v{a+8+r}" for r in range(8)]
        L+=[f"v_cvt_pk_bf16_f32 v{a+8+j}, v{a+2*j}, v{a+2*j+1}" for j in range(4)]
        L.append(lambda: k.vm(f"buffer_store_dwordx4 {vr(a+8,4)}, v{HS+u}, {srd(SW)}, s{sH0+e} offen sc1","h"))
        return L
    WA=sum((wd_dma(j) for j in range(NPRE,NPRE+NA7)),[]); nwd=NPRE+NA7
    s4=lambda n: (k.stamp(n) if probe&4 else 0)
    k.w(d="fr"); wv(mf(0),mix(R[:18],WA[:G7])+[lambda: s4('c<'),cscheck,lambda: s4('c>')],[4,4,4,4,4,9])
    LQ=mix(R[18:],WA[G7:])+uwrite(); nR=len(LQ)-3
    if KCB==3: LQ+=KR
    need={0:"fa0",1:"fb1",2:"fa1",4:"fa2"}
    HQ=[]; fin={}; g=6
    def gap(nh,nl):
        nonlocal nR
        n=0
        while HQ and n<nh and icount()-fin[HQ[0][0]]>=12: run([HQ.pop(0)[1]]); n+=1
        n=0
        while LQ and n<nl and (nR>0 or g>=TWS): run([LQ.pop(0)]); n+=1; nR-=1
    for m in mx: k(m); gap(0,4 if nR>0 else 1); g+=1
    for b in range(6):
        s4(f't{b}')
        if b in need: k.w(d=need[b])
        for st in (1,2,3):
            k(mf1(st,b))
            if st==3: fin[b]=icount(); HQ+=[(b,f) for f in hepi(b)]
            gap(NH,4 if nR>0 else (g&1)); g+=1
    k.stamp('g1')
    while HQ or LQ:
        if not HQ: g=999
        n0=icount(); gap(NH,NL)
        if icount()==n0: k("s_nop 0")
    if KCB==2:
        k.stamp('hepi'); KL=kcw()
        if LBD:
            if LBD==2: LBL+=LB[4]+LB[5]
            n=-(-len(LBL)//9)
            for i,f in enumerate(KL): run([f]+LBL[n*i:n*i+n])
        else: run(KL)
    k(f"{MRG}:"); nst_mrg=k.nst
    k.w(d=0); k("s_barrier")
    k.stamp('exp')
    CS0A,CS0B=('a',176),('a',208); CS1A,CS1B=('v',16),('v',48); CACC=112
    def rg(t,o,n): return (ar if t[0]=='a' else vr)(t[1]+o,n)
    def conv_reads(rho):
        RA,RB=((CS0A,CS0B),(CS1A,CS1B))[rho&1]
        L=[]
        for i in range(8):
            L.append(lambda i=i: k.ds(f"ds_read_b128 {rg(RB,4*i,4)}, v{CB} offset:{192-64*rho+512*i}",f"cv{rho}"))
            for h in range(2): L.append(lambda i=i,h=h: k.ds(f"ds_read_b64 {rg(RA,4*i+2*h,2)}, v{CA} offset:{3776-512*i-64*rho+8*h}",f"cv{rho}" if (rho or h==0) else f"cv0_{i}"))
        return L
    def conv_mf(rho):
        RA,RB=((CS0A,CS0B),(CS1A,CS1B))[rho&1]
        L=[]
        for s in range(8):
            for i in range(s+1):
                I=s
                c="0" if (rho==0 and i==0) else vr(CACC+4*I,4)
                L.append(f"v_mfma_f32_16x16x32_bf16 {vr(CACC+4*I,4)}, {rg(RA,4*i,4)}, {rg(RB,4*(I-i),4)}, {c}")
        return L
    st_=lambda n: [lambda: k.stamp(n)] if probe&2 else []
    def trs(js):
        L=[]
        for j in js:
            T=wd_tr(j); L+=[lambda j=j,f=T[0]: (k.w(v=f"wd{j}"),f())]+T[1:]
        return L
    def dm(j):
        D=wd_dma(j)
        if j>=14: return [lambda: (k(D[0]),k.w(d=f"wt{j-14}") if f"wt{j-14}" in k.dq else 0)]+D[1:]
        return D
    def dms(a,b): return sum((dm(j) for j in range(max(a,nwd),b)),[])
    HSL=[('v',144+8*i) for i in range(6)]+[('a',240),('a',248)]+[('a',176+8*i) for i in range(8)]
    HSL=HSL[:DEPTH+1]
    def hload(j):
        r=HSL[j%(DEPTH+1)]
        return [lambda: (k(f"s_lshr_b32 s{sT0}, s{4+j}, 4"),k.vm(f"buffer_load_dwordx4 {rg(r,0,4)}, v{HL}, {srd(SW)}, s{sT0} offen{'' if NSC&2 else ' sc1'}",f"h{j}")),
                lambda: k.vm(f"buffer_load_dwordx4 {rg(r,4,4)}, v{HL+1}, {srd(SW)}, s{sT0} offen{'' if NSC&2 else ' sc1'}",f"h{j}")]
    hflag=st_('hw')+[lambda: (k.w(v="h"),sat(sFH))]+st_('hack')
    hpl=[lambda: k.vm(f"buffer_load_dword v100, v{FHP}, {srd(SW)}, 0 offen sc1","hp")]
    xl=[lambda: k.vm(f"buffer_load_dwordx4 v[104:107], v{XO}, {srd(SX)}, 0 offen","x"),
        lambda: k.vm(f"buffer_load_dwordx4 v[108:111], v{XO}, {srd(SX)}, 0 offen offset:32","x"),
        lambda: k.vm(f"buffer_load_dword v103, v{RS}, {srd(SW)}, 0 offen sc1","x")]
    hchk=st_('prep')+[lambda: poll("hp",100,FHP,SW,FLX)]+st_('hpok')+sum((hload(j) for j in range(DEPTH)),[])
    CR=conv_reads(0); run(CR[:15])
    M=[]
    for rho in range(4):
        m=conv_mf(rho)
        if rho==0:
            i0=0
            for s in range(8): m[i0]=(lambda s=s,t=m[i0]: (k.w(d=f"cv0_{s}"),k(t))); i0+=s+1
        else: m[0]=(lambda rho=rho,t=m[0]: (run(st_(f'r{rho-1}')),k.w(d=f"cv{rho}"),k(t),k("s_barrier" if rho==3 else "")))
        M+=m
    SC=eval(SCH.replace('_',',')) if isinstance(SCH,str) else None
    g0,g1,g2,g3,g4,g5,g6=SC or (0,20,44,60,64,80,20)
    n0=nwd+3
    if not VP: PL_=[(0,CR[15:]+conv_reads(1)),(36,conv_reads(2)),(72,conv_reads(3)),
         (g0,dms(0,n0)),(g1,trs(range(0,NPRE))),(HFG,hflag),(g2,dms(n0,14)+xl),(g3,dms(14,18)),(g4,trs(range(NPRE,TRG))+dms(18,22)),(HPG-g6,hpl),(HPG,hchk)]
    else:
        PL_=[(0,CR[15:]+conv_reads(1)),(36,conv_reads(2)),(72,conv_reads(3)),(g0,dms(0,n0)),(g1,trs(range(0,nwd))),(HFG,hflag)]
        tg={j:g1+2*j for j in range(nwd)}
        for j in range(nwd,n0): tg[j]=HFG+T1+2*(j-nwd); PL_.append((tg[j],trs([j])))
        for j in range(n0,n0+NE6):
            PL_.append((GE6+3*(j-n0),dm(j)))
            if j<TRG: tg[j]=HFG+T1+2*(j-nwd); PL_.append((tg[j],trs([j])))
        n0+=NE6
        t=HFG+1.0
        for j in range(n0,NWC):
            if j>=14: t=max(t,tg[j-14]+3)
            D=dm(j); PL_.append((int(t),D[:2])); st=1 if j<n0+NB else VP/10
            PL_.append((int(t+st),D[2:]))
            if j<TRG: tg[j]=int(t+st)+TL; PL_.append((tg[j],trs([j])))
            t+=2*st
        print("wd sched end",t,tg)
        PL_+=[(HPG-HPD,hpl),(HPG,hchk[:-2*DEPTH])]
        t=HPG+1.0
        for f in hchk[-2*DEPTH:]+(xl if XIT<0 else []): PL_.append((int(t),[f])); t+=HP/10
    PL_=[(a+(0.5 if a%36==0 and i>2 else 0),b) for i,(a,b) in enumerate(PL_)]
    PL_=sorted([(a,list(b)) for a,b in PL_],key=lambda x:x[0])
    for g,m in enumerate(M):
        run([m]); n=3 if g<4 else 2
        if g%36==35: n=99
        for a,L in PL_:
            while a<=g and L and n>0 and not (g%36==35 and a%36): run([L.pop(0)]); n-=1
    LEFT=sum((L for a,L in PL_),[])
    run(LEFT[:NX0]); LEFT=LEFT[NX0:]; LX1=LEFT[:NX1]; LEFT=LEFT[NX1:]; print("left",len(LX1),len(LEFT))
    k.stamp('conv'); k.smem=0
    H1=k.lab("H1"); HE=k.lab("HE")
    k(f"""s_lshl_b32 s{sT1}, s{sWV}, 12
    s_add_u32 s{sT1}, s{sT1}, {KC+8192}
    v_add_u32 v96, s{sT1}, v{EXW}
    s_xor_b32 s{sT2}, s{sWV}, 1
    s_lshl_b32 s{sT2}, s{sT2}, 12
    s_add_u32 s{sT2}, s{sT2}, {KC+8192}
    v_add_u32 v97, s{sT2}, v{EXW}
    s_bitcmp1_b32 s{sWV}, 0
    s_cbranch_scc1 {H1}""")
    for hh in range(2):
        snd=CACC+16*(1-hh); own=CACC+16*hh
        if hh==0: k("s_nop 1")
        for j in range(4): k(f"ds_write_b128 v96, {vr(snd+4*j,4)} offset:{1024*j}")
        nq=len(k.vq); run(LX1)
        if hh==0: del k.vq[nq:]
        k("s_waitcnt lgkmcnt(0)\ns_barrier")
        for j in range(4): k(f"ds_read_b128 {vr(80+4*j,4)}, v97 offset:{1024*j}")
        for j in range(4):
            k(f"s_waitcnt lgkmcnt({3-j})")
            k(f"v_pk_add_f32 {vr(80+4*j,2)}, {vr(80+4*j,2)}, {vr(own+4*j,2)}\nv_pk_add_f32 {vr(82+4*j,2)}, {vr(82+4*j,2)}, {vr(own+4*j+2,2)}")
        if hh==0: k(f"s_branch {HE}\n{H1}:")
    k(f"{HE}:"); k.dq=[]
    for j in range(4): k(f"v_cvt_pk_bf16_f32 v{112+2*j}, v{80+4*j}, v{81+4*j}\nv_cvt_pk_bf16_f32 v{113+2*j}, v{82+4*j}, v{83+4*j}")
    k("s_nop 0")
    for j in range(2):
        k(f"v_permlane16_swap_b32 v{112+4*j}, v{114+4*j}\nv_permlane16_swap_b32 v{113+4*j}, v{115+4*j}")
    run(LEFT[:NX2]); LEFT=LEFT[NX2:]
    yst=[lambda j=j: k.vm(f"buffer_store_dwordx4 {vr(112+4*j,4)}, v{YS}, {srd(SW)}, 0 offen offset:{1024*j} sc1","y") for j in range(2)]
    if YSI<0: run(yst)
    run(st_('yst')); run(LEFT)
    k.stamp('xchg')
    A2=16
    def g2m(j,d,t):
        r=HSL[j%(DEPTH+1)]
        return f"v_mfma_f32_32x32x16_bf16 {vr(A2+16*(2*d+t),16)}, {ar(8*j+4*d,4)}, {rg(r,4*t,4)}, {'0' if j==0 else vr(A2+16*(2*d+t),16)}"
    def g2mf(j): return [g2m(j,d,t) for d,t in((1,1),(1,0),(0,1),(0,0))]
    yl=[lambda q=q: k.vm(f"buffer_load_dwordx4 {vr(112+4*q,4)}, v{YL}, {srd(SW)}, {'s%d'%sYQ if q else 0} offen sc1","yl") for q in range(2)]
    def ycheck():
        k.w(v="yl")
        if not YP: return
        ok=k.lab("OK"); rt=k.lab("RT"); lp=k.lab("RL")
        chk=f"v_max3_u32 v101, v112, v113, v114\nv_max3_u32 v102, v115, v116, v117\nv_max3_u32 v101, v101, v118, v119\nv_max_u32 v101, v101, v102\nv_cmp_eq_u32 vcc, -1, v101"
        k(f"{chk}\ns_cbranch_vccnz {rt}\n{ok}:")
        k.tail.append(f"""{rt}:
        s_movk_i32 s{sRING}, 4000
        {lp}:
        buffer_load_dwordx4 v[112:115], v{YL}, {srd(SW)}, 0 offen sc1
        buffer_load_dwordx4 v[116:119], v{YL}, {srd(SW)}, s{sYQ} offen sc1
        s_waitcnt vmcnt(0)
        {chk}
        s_cbranch_vccz {ok}
        s_sub_u32 s{sRING}, s{sRING}, 1
        s_cmp_lg_u32 s{sRING}, 0
        s_cbranch_scc1 {lp}
        s_branch {ok}""")
    RAD=[f"v_add_u32 v96, s{sAW}, v{EXW}",f"v_add_u32 v97, s{sCWB}, v{EXW}"]
    for x in (1,2,3):
        RAD.append(f"s_xor_b32 s{sT1}, s{sWV}, {x}")
        if x<3: RAD+=[f"s_mul_i32 s{sT1}, s{sT1}, {AWS}",f"s_add_u32 s{sT1}, s{sT1}, {4096*(x-1)}"]
        else: RAD+=[f"s_mul_i32 s{sT1}, s{sT1}, {CWS}",f"s_add_u32 s{sT1}, s{sT1}, {CW}"]
        RAD.append(f"v_add_u32 v{97+x}, s{sT1}, v{EXW}")
    XU=[]
    for j in range(8): XU+=[f"v_lshlrev_b32 v{80+2*j}, 16, v{104+j}",f"v_and_b32 v{81+2*j}, s{sMSK}, v{104+j}"]
    XU[0]=(lambda t=XU[0]: (k.w(v="x"),k(t)))
    HS_=[int(x) for x in str(HSC).split('_')] if HSC else []
    assert not HSC or (len(HS_)==22-DEPTH and all(t>=i for i,t in enumerate(HS_)))
    SK=k.lab("SK"); OPT=21-QM
    waited=False
    for j in range(22-QM):
        fl=[]
        if WSC: fl+=sum((dm(NWC+i) for i,t in enumerate(str(WSC).split('_')) if int(t)==j),[])
        elif VP and j>=WG0 and (j-WG0)%WGS==0 and NWC+(j-WG0)//WGS<22: fl+=dm(NWC+(j-WG0)//WGS)
        if HSC: fl+=sum((hload(DEPTH+i) for i,t in enumerate(HS_) if t==j),[])
        elif j+DEPTH<22: fl+=hload(j+DEPTH)
        if not YP:
            if j==3: fl+=[lambda: (k.w(v="y"),sat(sFY))]
            if j==YLU-4: fl+=[lambda: k.vm(f"buffer_load_dword v134, v{FYP}, {srd(SW)}, 0 offen sc1","yp")]
            if j==YLU: fl+=[lambda: poll("yp",134,FYP,SW,FLX)]+yl
        elif j==YLU: fl+=yl
        if j==YSI: fl+=yst[:1]
        if j==YSI+1 and YSI>=0: fl+=yst[1:]
        if j==6: fl+=RAD
        if XIT<0 and j in(8,9): fl+=XU[8*(j-8):8*(j-7)]
        if XIT>=0 and j==XIT: fl+=xl[:2]
        if XIT>=0 and j==XIT+1: fl+=xl[2:]
        TD=max(3,QM+1)
        if TRG<=j+TD<22: fl=trs([j+TD])+fl
        if j==0: fl=trs(range(TRG,TD))+fl
        if j==OPT:
            run(fl); fl=[]
            k(f"s_cmp_ge_u32 s{sWV}, 2\ns_cbranch_scc1 {SK}")
        if j>=TRG: k.w(v=f"h{j}",d=f"wt{j}")
        else: k.w(v=f"h{j}")
        weave(k,g2mf(j),fl,3)
        if j==OPT: k(f"{SK}:")
        if j in(0,4,10,16,17): run(st_(f'u{j}'))
    def rwr(x): return [lambda a=a: k.ds(f"ds_write_b128 v{97 if x==3 else 96}, {vr(A2+16*x+4*a,4)} offset:{1024*a+(4096 if x==2 else 0)}") for a in range(4)]
    yw=[lambda q=q: k.ds(f"ds_write_b128 v{YW}, {vr(112+4*q,4)} offset:{1024*q}") for q in range(2)]
    yt=[lambda a=a: k.ds(f"ds_read_b64_tr_b16 {vr(120+2*a,2)}, v{YR} offset:{512*a}","yt") for a in range(4)]
    if QM:
        js=list(range(22-QM,22))
        FQ=[]
        if YLU>=22-QM: FQ+=yl
        for x in (3,2,1,0):
            for i,j in enumerate(js):
                if x==3: k.w(v=f"h{j}",d=f"wt{j}")
                k(g2m(j,x>>1,x&1))
                if QS:
                    if i==1 and x<3: FQ+=rwr(x+1)
                    if FQ and (i&1 or x==3): run([FQ.pop(0)])
                    continue
                if i==2 and x<3: FQ+=rwr(x+1)
                if FQ and (i>=2 or x==3): run([FQ.pop(0)])
        k.stamp('g2'); k.smem=0
        run(FQ); ycheck(); run(yw+yt)
    else:
        k.stamp('g2'); k.smem=0
        k("s_nop 8")
        for x in (3,2,1): run(rwr(x))
        ycheck(); run(yw+yt)
    if XIT>=0: run(XU)
    k.w(d=0); k("s_barrier")
    for x in (1,2,3):
        for a in range(4): k.ds(f"ds_read_b128 {vr(144+16*(x-1)+4*a,4)}, v{97+x} offset:{1024*a}",f"rd{x}")
    for j in range(8): k(f"v_lshlrev_b32 v{32+2*j}, 16, v{120+j}\nv_and_b32 v{33+2*j}, s{sMSK}, v{120+j}")
    for x in (1,2,3):
        k.w(d=f"rd{x}")
        for j in range(8): k(f"v_pk_add_f32 {vr(A2+2*j,2)}, {vr(A2+2*j,2)}, {vr(144+16*(x-1)+2*j,2)}")
    for j in range(8): k(f"v_pk_fma_f32 {vr(A2+2*j,2)}, {vr(A2+2*j,2)}, v[102:103], {vr(32+2*j,2)} op_sel:[0,1,0] op_sel_hi:[1,1,1]")
    for a in(0,2):
        for r in range(4): k(f"v_permlane32_swap_b32 v{A2+4*a+r}, v{A2+4*a+4+r}")
    for j in range(8):
        k(f"v_pk_add_f32 {vr(A2+2*j,2)}, {vr(A2+2*j,2)}, {vr(80+2*j,2)}\nv_cvt_pk_bf16_f32 v{104+j}, v{A2+2*j}, v{A2+2*j+1}")
        if j%4==3: k.vm(f"buffer_store_dwordx4 {vr(104+j-3,4)}, v{XO}, {srd(SO)}, 0 offen offset:{32*(j//4)} {OSF.replace('_',' ')}","o")
    if prof:
        k.stamp('epi'); k("s_waitcnt vmcnt(0) lgkmcnt(0)"); k.stamp('drain'); k("s_waitcnt lgkmcnt(0)"); k.stamp(); k.stamp()
        k("; STAMPS "+" ".join(k.names[:-2]))
        k("s_memrealtime s[94:95]\ns_waitcnt lgkmcnt(0)\nv_writelane_b32 v199, s94, 62\nv_writelane_b32 v199, s96, 63")
        k(f"s_lshl_b32 s{sT0}, s2, 2\ns_add_u32 s{sT0}, s{sT0}, s{sWV}\ns_lshl_b32 s{sT0}, s{sT0}, 8\ns_add_u32 s{sT0}, s{sT0}, {PROF}\nv_lshl_add_u32 v2, v1, 2, s{sT0}")
        k(f"buffer_store_dword v199, v2, {srd(SW)}, 0 offen")
        if pace:
            L=k.lab(); LP=k.lab()
            k(f"""s_cmp_lg_u32 s{sWV}, 0
            s_cbranch_scc1 {L}
            s_cmp_lg_u32 s2, {pwg}
            s_cbranch_scc1 {L}""")
            if pace==1: k(f"s_mov_b32 s{sT0}, 6000")
            if pace==2: k(f"s_sub_u32 s{sT0}, s94, s96\ns_lshl_b32 s{sT0}, s{sT0}, 2")
            if pace==3: k(f"v_readlane_b32 s{sT0}, v199, {k.names.index(pidx)}\ns_sub_u32 s{sT0}, s{sT0}, s34\ns_lshr_b32 s{sT0}, s{sT0}, {psh}\ns_add_u32 s{sT0}, s{sT0}, 4000")
            if pace==4: k(f"v_readlane_b32 s{sT0}, v199, {k.names.index(pidx)}\nv_readlane_b32 s{sT1}, v199, {k.names.index(pidx2)}\ns_sub_u32 s{sT0}, s{sT0}, s{sT1}\ns_lshr_b32 s{sT0}, s{sT0}, {psh}\ns_add_u32 s{sT0}, s{sT0}, 4000")
            k(f"""s_min_u32 s{sT0}, s{sT0}, 30000
            s_mov_b32 s{sT2}, 100000
            {LP}:
            s_memrealtime s[94:95]
            s_waitcnt lgkmcnt(0)
            s_sub_u32 s{sT1}, s94, s96
            s_cmp_ge_u32 s{sT1}, s{sT0}
            s_cbranch_scc1 {L}
            s_sub_u32 s{sT2}, s{sT2}, 1
            s_cmp_lg_u32 s{sT2}, 0
            s_cbranch_scc1 {LP}
            {L}:""")
        if dbg:
            L=k.lab()
            k(f"""s_cmp_lg_u32 s{sWV}, 0
            s_cbranch_scc1 {L}
            s_and_b32 s{sT0}, s2, 0x18
            s_cmp_lg_u32 s{sT0}, 0
            s_cbranch_scc1 {L}
            s_sub_u32 s{sT0}, s94, s96
            v_writelane_b32 v199, s{sT0}, 2
            s_or_b32 s{sT0}, s94, 0x80000000
            s_not_b32 s{sT1}, s96
            s_or_b32 s{sT1}, s{sT1}, 0x80000000
            s_or_b32 s{sT2}, s96, 0x80000000
            v_mov_b32 v4, s{sT0}
            v_writelane_b32 v4, s{sT1}, 1
            v_writelane_b32 v4, s{sT2}, 2
            v_cmp_gt_u32 vcc, 3, v1
            v_lshlrev_b32 v6, 2, v1
            v_add_u32 v6, 52, v6
            v_mov_b32 v7, {hex(OOB)}
            v_cndmask_b32 v6, v7, v6, vcc
            buffer_atomic_umax v4, v6, {srd(SB)}, 0 offen sc1
            s_cmp_lg_u32 s2, {dbg-1}
            s_cbranch_scc1 {L}
            v_readlane_b32 s{sT0}, v199, 2
            v_readlane_b32 s{sT1}, v199, 14
            v_subrev_u32 v4, s34, v199
            s_sub_u32 s{sT1}, s{sT1}, s34
            v_writelane_b32 v4, s{sT0}, 2
            v_writelane_b32 v4, s{sT1}, 13
            v_cmp_gt_u32 vcc, 14, v1
            v_lshlrev_b32 v6, 2, v1
            v_add_u32 v6, -4, v6
            v_cndmask_b32 v6, v7, v6, vcc
            buffer_store_dword v4, v6, {srd(SB)}, 0 offen sc1
            {L}:""")
    k("s_endpgm")
    k(f"{CSL}:")
    k.vq=vq_cs; k.dq=dq_cs; k.smem=0; k.nst=nst_cs; k.ptags=()
    def cst(n):
        if k.nst<nst_mrg: k.stamp(n)
    if not CSN:
        run([x[1] for x in IOL_cs]); ptail()
        k("s_waitcnt lgkmcnt(0)\ns_barrier"); cst('pt')
        run(lntr())
        k(f"""s_mul_i32 s{sT2}, s{sFT}, 768
        s_add_u32 s{sT2}, s{sT2}, {CS}
        s_cmp_eq_u32 s{sWV}, 3
        s_cselect_b32 s{sT2}, {hex(OOB)}, s{sT2}
        v_lshl_add_u32 v{CSA}, v0, 2, s{sT2}
        v_mov_b32 v19, -1
        s_mov_b32 s{sC1}, {SS}
        s_mov_b32 s{sC2}, {-2*SS}""")
        k.vm(f"buffer_store_dword v19, v{CSA}, {srd(SW)}, 0 offen sc1","lnst")
        run(lnst(YPS!=-2))
        k(f"""s_mul_i32 s{sT0}, s{sWV}, 3072
        s_lshr_b32 s{sT1}, s{sWV}, 1
        s_mul_i32 s{sT1}, s{sT1}, 96
        s_sub_u32 s{sT0}, s{sT0}, s{sT1}
        v_add_u32 v{WR}, s{sT0}, v{WR}
        v_mov_b32 v112, 0x3f803f80
        v_mov_b32 v113, v112
        v_mov_b32 v114, v112
        v_mov_b32 v115, v112
        s_mov_b32 s{sRING}, {2*SS}
        s_mov_b32 s{sCNT}, 0""")
        for r in range(16,112): k(f"v_mov_b32 v{r}, 0")
        def csdma():
            D=dma_list(f"s{sRING}","c")[5:]
            for f in D: f() if callable(f) else (k(f),k("s_nop 0"))
            for f in nextk: k(f)
        csdma()
        cst('pre'); CL=k.lab("CL"); CN=k.lab("CN"); CA_=k.lab("CN")
        k.w(v="d0"); k(f"s_branch {CA_}")
        k(f"{CL}:\ns_waitcnt vmcnt(12)\ns_cmp_lt_u32 s{sCNT}, 6\ns_cbranch_scc1 {CN}\ns_waitcnt vmcnt(0)\n{CN}:")
        k(f"s_cmp_lg_u32 s{sCNT}, 1\ns_cbranch_scc1 {CA_}\ns_barrier"); lnatomic(); k(f"{CA_}:")
        for u in range(6):
            for h in range(2): k(f"ds_read_b64_tr_b16 {vr(116+4*u+2*h,2)}, v{WR} offset:{768*h+32*u}")
        k(f"ds_read_u8 v{JNK}, v1")
        CN2=k.lab("CN")
        k(f"""s_add_u32 s{sRING}, s{sRING}, s{sC1}
        s_cmp_eq_u32 s{sRING}, {3*SS}
        s_cselect_b32 s{sRING}, 0, s{sRING}
        s_cmp_eq_u32 s{sRING}, {2*SS}
        s_cselect_b32 s{sDL}, s{sC2}, s{sC1}
        v_add_u32 v{WR}, s{sDL}, v{WR}
        s_waitcnt lgkmcnt(1)
        s_cmp_ge_u32 s{sCNT}, 5
        s_cbranch_scc1 {CN2}""")
        csdma()
        k(f"{CN2}:")
        for u in range(6): k(f"v_mfma_f32_32x32x16_bf16 {vr(16+16*u,16)}, v[112:115], {vr(116+4*u,4)}, {vr(16+16*u,16)}")
        k(f"s_add_u32 s{sCNT}, s{sCNT}, 1\ns_cmp_lt_u32 s{sCNT}, 8\ns_cbranch_scc1 {CL}")
        cst('loop')
        k(f"""s_mul_i32 s{sT0}, s{sWV}, 768
        s_add_u32 s{sT0}, s{sT0}, {PT}
        v_lshl_add_u32 v140, v5, 2, s{sT0}
        v_min_u32 v141, 191, v0
        v_lshlrev_b32 v141, 2, v141
        v_add_u32 v141, {PT}, v141
        s_nop 7""")
        for u in range(6): k(f"ds_write_b32 v140, v{16+16*u} offset:{128*u}")
        k("s_waitcnt lgkmcnt(0)\ns_barrier")
        for j in range(4): k(f"ds_read_b32 v{144+j}, v141 offset:{768*j}")
        k(f"""s_waitcnt lgkmcnt(0)
        v_add_f32 v144, v144, v145
        v_add_f32 v146, v146, v147
        v_add_f32 v144, v144, v146
        v_cvt_pk_bf16_f32 v145, v144, v144
        v_and_b32 v145, s{sMSK}, v145
        v_sub_f32 v146, v144, v145
        v_cvt_pk_bf16_f32 v145, v145, v146
        buffer_store_dword v145, v{CSA}, {srd(SW)}, 0 offen sc1
        s_and_b32 s{sT0}, s{sWV}, 1
        s_lshr_b32 s{sT1}, s{sWV}, 1""")
        k.vq=[]; k.dq=[]; k.smem=0; cst('cs')
        if CST:
            k(f"""s_lshl_b32 s{sT2}, s{sFT}, 2
            s_add_u32 s{sT2}, s{sT2}, s{sWV}
            s_mul_i32 s{sT2}, s{sT2}, {22016}
            v_lshl_add_u32 v140, v1, {CST}, s{sT2}""")
            for j in range(-(-22016//(64<<CST))):
                if j: k(f"v_add_u32 v140, {64<<CST}, v140")
                k.vm(f"buffer_load_dword v{16+j}, v140, {srd(SD)}, 0 offen","tch")
        run(exrd(0)+exrd(1)+exva(0)+exva(1))
        k("s_waitcnt lgkmcnt(0)\ns_barrier")
        cst('ex'); run(kcw()); cst('kc')
        run(late()); cst('late')
        k("s_nop 4")
        lnpoll(); poll("lnp",PL,LNP,SB,LNX)
        cst('poll'); run(uloads())
        for j in range(nwd): run(wd_dma(j))
        run(uwrite())
        cst('uw')
        k(f"s_waitcnt vmcnt(0) lgkmcnt(0)")
        while prof and k.nst<nst_mrg: cst('x')
        k(f"s_branch {MRG}")
    else:
        k.autod=1; ON=96; CF=176
        if CE: k(f"s_sub_u32 s{sMG}, s{sMG}, {SS}")
        def csdma(i):
            if CE: return
            run(dma_list((i%3)*SS,f"d{i}")[5:])
            if i<7: run(nextk)
        if CSL_>=0: csdma(2)
        k(f"""s_mul_i32 s{sT2}, s{sFT}, 768
        s_add_u32 s{sT2}, s{sT2}, {CS}
        s_cmp_eq_u32 s{sWV}, 3
        s_cselect_b32 s{sT2}, {hex(OOB)}, s{sT2}
        v_lshl_add_u32 v{CSA}, v0, 2, s{sT2}
        s_mul_i32 s{sT2}, s{sWV}, 3072
        s_mul_i32 s{sT3}, s{sT1}, 96
        s_sub_u32 s{sT2}, s{sT2}, s{sT3}
        v_add_u32 v{WR}, s{sT2}, v{WR}
        v_mov_b32 v9, 0x3f803f80
        v_add_u32 v{XR}, {SS}, v{WR}
        v_add_u32 v{XR+1}, {2*SS}, v{WR}""")
        for r in range(4): k(f"v_accvgpr_write_b32 a{ON+r}, v9")
        k(f"v_mov_b32 v11, -1")
        k.w(d=0); k("s_barrier")
        run(lntr())
        if CSL_<0:
            if CSL_==-2: csdma(2)
            k.vm(f"buffer_store_dword v11, v{CSA}, {srd(SW)}, 0 offen sc1","lnst"); run(lnst(YPS!=-2))
            if CSL_==-1: csdma(2)
        bar=lambda:(k.w(d=0),k("s_barrier"))
        P=ptail_items() if PTS==2 else [ptail]
        FQ=[x[1] for x in IOL_cs]+[t for t in P if t!="s_nop 0"]+[bar]+exrd(0)+exrd(1)[:3]+mix(exva(0),exrd(1)[3:])+exva(1)+[bar]+kcw()+late()
        def ct2():
            L=[f"""s_and_b32 s{sC1}, s{sI}, 1
            s_lshl_b32 s{sC1}, s{sC1}, 2
            v_add_u32 v12, s{sC1}, v2
            v_mul_u32_u24 v13, 3, v12
            v_lshlrev_b32 v12, 7, v12
            v_lshl_add_u32 v12, v7, 10, v12
            s_mul_i32 s{sC1}, s{sWV}, 22
            s_cmp_eq_u32 s{sWV}, 3
            s_cselect_b32 s{sC1}, 65, s{sC1}
            s_lshl_b32 s{sC1}, s{sC1}, 14
            v_add_u32 v12, s{sC1}, v12
            s_lshr_b32 s{sC1}, s{sWV}, 1
            s_sub_u32 s{sC1}, 22, s{sC1}"""]
            for u in str(CT2).split('_'):
                L.append(f"v_add_u32 v14, {u}, v13\nv_subrev_u32 v15, s{sC1}, v14\nv_min_u32 v14, v14, v15\nv_subrev_u32 v15, s{sC1}, v14\nv_min_u32 v14, v14, v15\nv_lshl_add_u32 v14, v14, 14, v12")
                L.append(lambda: k.vm(f"buffer_load_dword v{JNK}, v14, {srd(SD)}, 0 offen","tch"))
            return L
        def it(i,W=[]):
            k.w(v=f"d{i}")
            for u in range(6):
                for h in range(2): k.ds(f"ds_read_b64_tr_b16 {ar(CF+4*u+2*h,2)}, v{(WR,XR,XR+1)[i%3]} offset:{768*h+32*u}","cf")
            k.w(d="cf")
            D=(dma_list((i%3)*SS,f"d{i+3}")[5:]+(nextk if i<4 else [])) if i<5 else []
            weave(k,[f"v_mfma_f32_32x32x16_bf16 {vr(16+16*u,16)}, {ar(ON,4)}, {ar(CF+4*u,4)}, {vr(16+16*u,16) if i else '0'}" for u in range(6)],D,2)
            run(W); l0=len(k.L)
            while FQ and i<7 and sum(cost(l) for l in k.L[l0:])<(CSB if i else CSB0): run([FQ.pop(0)])
            cst(f'i{i}')
        for i in range(8):
            W=[]
            if i==CSL_: W=[lambda: k.vm(f"buffer_store_dword v11, v{CSA}, {srd(SW)}, 0 offen sc1","lnst")]+lnst(YPS!=-2)
            if i==CSA_: W=[lambda:(k.w(v="lnst"),k("s_barrier")),lnatomic]
            it(i,W)
        k.smem=0
        k(f"""s_mul_i32 s{sC1}, s{sWV}, 768
        s_add_u32 s{sC1}, s{sC1}, {PT}
        s_nop 4
        v_lshl_add_u32 v17, v5, 2, s{sC1}
        v_min_u32 v18, 191, v0
        v_lshlrev_b32 v18, 2, v18
        v_add_u32 v18, {PT}, v18
        s_nop 1""")
        for u in range(6): k(f"ds_write_b32 v17, v{16+16*u} offset:{128*u}")
        k("s_waitcnt lgkmcnt(0)\ns_barrier")
        for j in range(4): k(f"ds_read_b32 v{20+j}, v18 offset:{768*j}")
        k(f"""s_waitcnt lgkmcnt(0)
        v_add_f32 v20, v20, v21
        v_add_f32 v22, v22, v23
        v_add_f32 v20, v20, v22
        v_cvt_pk_bf16_f32 v21, v20, v20
        v_and_b32 v21, s{sMSK}, v21
        v_sub_f32 v22, v20, v21
        v_cvt_pk_bf16_f32 v21, v21, v22
        buffer_store_dword v21, v{CSA}, {srd(SW)}, 0 offen sc1""")
        k.vq=[]; cst('cs'); print("cs filler left",len(FQ))
        if CST:
            k(f"""s_lshl_b32 s{sC1}, s{sFT}, 2
            s_add_u32 s{sC1}, s{sC1}, s{sWV}
            s_mul_i32 s{sC1}, s{sC1}, {22016}
            v_lshl_add_u32 v24, v1, {CST}, s{sC1}""")
            for j in range(min(CSJ,-(-22016//(64<<CST)))):
                if j: k(f"v_add_u32 v24, {64<<CST}, v24")
                k.vm(f"buffer_load_dword v{25+j}, v24, {srd(SD)}, 0 offen","tch")
        if CT2: run(ct2()); cst('ct2')
        run(FQ); cst('fq')
        lnpoll(); poll("lnp",PL,LNP,SB,LNX)
        cst('poll'); k("s_barrier"); run(uloads())
        if WT6 and WTP: tch6()
        for j in range(nwd): run(wd_dma(j))
        if WT6 and not WTP: tch6()
        run(uwrite())
        k(f"v_mov_b32 v9, {hex(OOB)}")
        for j in range(6): k.vm(f"buffer_load_dword v10, v9, {srd(SW)}, 0 offen","h")
        cst('uw')
        while prof and k.nst<nst_mrg: cst('x')
        k(f"s_branch {MRG}")
    for t in k.tail: k(t)
    k(f"{END}:")
    return k
import struct
def f2b(x): return struct.unpack('<I',struct.pack('<f',x))[0]
if __name__=='__main__':
    out=sys.argv[1]; opts=dict(a.split('=') for a in sys.argv[2:])
    opts={a:(int(b) if b.lstrip('-').isdigit() else b) for a,b in opts.items()}
    k=gen(**opts)
    hdr="".join(l for l in open('cdna_kernels/'+NAME[:-7]+'.s.ref') if l.startswith(';') and '@launch' not in l)
    txt=module([k],[(None,256,256,163840)],hdr)
    open(out,'w').write(txt)
    print("hazards:",haz.check(txt.split('\n')))
```

```python
import sys
sys.path.insert(0,'w')
from gl import *
import haz
NAME="parallel_sum__ssm_conv_s4__glu_gated_bilinear__prompt_kernel"
XNB=0; STATS=0x200000; FH=0x210000; FY=0x218000; PROF=0x220000; HB=0x400000; YB=0xA00000; CS=0xC00000; WSEND=CS+86*128
SS=41216; WG_O=16384; WU_D=12320
TAB=82432; TABW=16416; KC=123648; KCS=4160; PT=156928; PTS=3088
UO=119040; US=37888; CW=82432; CWS=8192; AWS=10240; BW=41216
OOB=0x80000000
PX=132*937; PO=(0,17,34,51); EXB=32*937-0x4280; TBS=4352; LNS=2560; LNB=KC+4*TBS
O7=['04123567','12530467','23061457','30127456']
OROT=['01234567','23456701','45670123','67012345']
class G(K):
    def __init__(s,*a,**kw):
        super().__init__(*a,**kw); s.vq=[]; s.dq=[]; s.tail=[]; s.nst=0; s.names=['start']
    def vm(s,t,tag=None):
        if t.endswith(' lds') and ' m0,' in s.L[-1]: s("s_nop 0")
        pb=tag in getattr(s,'ptags',()) and s.prof
        if pb: s.stamp('<'+tag)
        s(t); s.vq.append(tag)
        if pb: s.stamp('>')
    def ds(s,t,tag=None): s(t); s.dq.append(tag)
    def nv(s,tag):
        i=max(j for j,x in enumerate(s.vq) if x==tag); return min(len(s.vq)-1-i,63)
    def nd(s,tag):
        i=max(j for j,x in enumerate(s.dq) if x==tag); return min(len(s.dq)-1-i,15)
    def w(s,v=None,d=None):
        o=[]
        if v is not None: o.append(f"vmcnt({s.nv(v) if isinstance(v,str) else v})")
        if d is not None:
            n=s.nd(d) if isinstance(d,str) else d
            if getattr(s,'smem',0) and n==0:
                if getattr(s,'autod',0): s.ds(f"ds_read_u8 v{JNK}, v1","dum"); n=1
                else: print("SMEM region: lgkmcnt(0) at line",len(s.L),d)
            o.append(f"lgkmcnt({n})")
        s("s_waitcnt "+" ".join(o))
    def stamp(s,name=''):
        if s.prof:
            n=s.nst; R=(90,92,98,100); a=R[n&3]
            s(f"s_memtime s[{a}:{a+1}]")
            if n>=2: s(f"v_writelane_b32 v199, s{R[(n-2)&3]}, {n-1}")
            elif n==0: s("v_writelane_b32 v199, s34, 0")
            s.names.append(name); s.nst+=1
def vr(a,n): return f"v[{a}:{a+n-1}]" if n>1 else f"v{a}"
def ar(a,n): return f"a[{a}:{a+n-1}]" if n>1 else f"a{a}"
def weave(k,mf,fl,per,start=0):
    fl=list(fl)
    for i,m in enumerate(mf):
        k(m)
        if i>=start:
            n=per[i] if isinstance(per,(list,tuple)) else per
            for _ in range(n):
                if fl:
                    f=fl.pop(0); f() if callable(f) else k(f)
    for f in fl: f() if callable(f) else k(f)

SX,SG,SU,SD,SW,SO,SB=36,40,44,48,52,56,60
sXCD,sI,sWV,sP,sFT,sMT,sRB,sLD,sDK=64,65,66,67,68,69,70,71,72
sKS,sOX,sOW,sMX,sMG,sRING,sDL,sCNT,sC1,sC2=73,74,75,76,77,78,79,80,81,82
sH0,sH1,sMSK,sONE,sAW,sCWB,sT0,sT1,sT2,sT3=83,84,85,86,87,88,26,27,28,29
sUQ=30; sYQ=31; sTB=32; sDB=33; sORD=89; sFH=94; sFY=95; sPB=70; sLA=64
def srd(d): return f"s[{d}:{d+3}]"
XD=200; WD=204; XR=207; WR=211; KCW=212; EX=213
CA=224; CB=225; WDV=226; TA=228; TC=230; HL=232; HS=234; UL=237; UW=238; UZ=239; ST=240; CSA=241
XO=242; RS=243; YL=244; YW=245; YR=246; YS=247; EXW=248; FHP=249; FYP=250; TW=251; TR=252; LNP=253; KZ=254; PA0=255
PA1=193; PA2=194; PA3=195; KX=160; TB=112; PACC=172; PAR=184; JNK=196; PL=197
LTR=88; LST=12; aXN=14; aST=15; aTR=10; aWR=11; ROW=50
EA=144; EB=150; UR=156; AZ=164; AP=168; KF=24

def gen(prof=False, YE=-1, YV=4, XG=-1, YO=0, XUJ=-1, ORD='rot', ROT2=True, DEPTH=8, dbg=0, pace=0, pidx=14, psh=3, pwg=0, PF=2, pidx2=None, OSF='', NS=20, LNPOS=0, NPRE=4, D1E=10, NH=4, NL=2, TWS=8, SCH=0, probe=0, PARP=0, TWK=12, NA7=0, NE=2, D1S=200, KCB=2, YP=1, PP='0_1_2', HFG=40, HPG=120, YLU=17, QM=0, WDT='12345', G7=0, XP=0, IOP=2, LPS=4, CLS=5, WDN=2, W0E=2, EXS=1, LAS=1, D5L=1, TRG=9, T3B=1, D1P=0, D1C=130, D2P=0, D2G=0, LSP=0, YPS=-1, NSC=0, SLP=0, SLH=0, HFW=0, VP=0, T1=12, TL=36, NB=3, NWC=22, HP=15, XW=0, PT_='', PB=0, PTS=0, LSG=0, D0L=0, D0K=0, CST=0, PTW=60, D1L='', D2L='', PTG=0, CSN=0, XOB=0, WPX=0, CSJ=9, CSB=250, CSB0=500, CSL_=0, CSA_=2, WT6=0, WTP=0, WT0=3, CT2='', CTI=8, M2=0, RA=3, RB=5, CE=0, W6S=0, NX0=99, NX1=0, HPD=20, NE6=0, GE6=30, WG0=0, WGS=1, K60=3, K61=3, NX2=0, QS=1, HSC='', WSC='', XIT=-1, CLP=0, LBD=0, YSI=-1):
    k=G(NAME,vgpr=256,agpr=256,sgpr=102); k.prof=prof; k.pst=90; k.autod=1; k.ptags=str(PT_).split('_')
    END=k.lab("END")
    if prof: k("s_memtime s[34:35]\ns_memrealtime s[96:97]")
    k(f"s_cmp_ge_u32 s2, 0x100\ns_cbranch_scc1 {END}")
    k("s_load_dwordx16 s[4:19], s[0:1], 0\ns_load_dwordx2 s[20:21], s[0:1], 64")
    PC=k.lab("PC")
    if PF==1:
        k(f'''s_getpc_b64 s[22:23]
        {PC}:
        v_lshlrev_b32 v2, 7, v0
        v_mov_b32 v5, s23
        v_min_u32 v2, {END}-{PC}, v2
        v_add_co_u32 v4, vcc, s22, v2
        v_addc_co_u32 v5, vcc, 0, v5, vcc
        global_load_dword v{JNK}, v[4:5], off''')
    if PF==2:
        k(f'''s_getpc_b64 s[22:23]
        {PC}:
        s_lshl_b32 s3, s2, 2
        v_lshrrev_b32 v2, 3, v0
        s_and_b32 s3, s3, 0xe0
        v_mov_b32 v5, s23
        v_add_lshl_u32 v2, v2, s3, 7
        v_min_u32 v2, {END}-{PC}, v2
        v_add_co_u32 v4, vcc, s22, v2
        v_addc_co_u32 v5, vcc, 0, v5, vcc
        global_load_dword v{JNK}, v[4:5], off''')
    for d,o in((SX,0),(SG,80),(SU,88),(SD,96),(SO,104),(SB,112),(SW,120)): k(f"s_load_dwordx2 s[{d}:{d+1}], s[0:1], {o}")
    for d,n in((SX,0x200000),(SG,512*2752),(SU,512*2752),(SD,1376*1024),(SO,0x200000),(SB,256),(SW,WSEND)):
        k(f"s_mov_b32 s{d+2}, {hex(n)}\ns_mov_b32 s{d+3}, 0x00020000")
    k(f"""v_lshrrev_b32 v2, 6, v0
    v_and_b32 v1, 63, v0
    v_readfirstlane_b32 s{sWV}, v2
    s_and_b32 s{sXCD}, s2, 7
    s_lshr_b32 s{sI}, s2, 3
    s_lshl_b32 s{sP}, s{sXCD}, 5
    s_add_u32 s{sP}, s{sP}, s{sI}
    s_and_b32 s{sT0}, s{sXCD}, 1
    s_lshr_b32 s{sT1}, s{sXCD}, 1
    s_lshl_b32 s{sRB}, s{sT0}, 7
    s_lshl_b32 s{sT2}, s{sT1}, 5
    s_add_u32 s{sRB}, s{sRB}, s{sT2}
    s_add_u32 s{sRB}, s{sRB}, s{sI}
    s_mul_i32 s{sT2}, s{sT1}, 30
    s_add_u32 s{sT2}, s{sT2}, s{sI}
    s_lshr_b32 s{sFT}, s{sT2}, 3
    s_and_b32 s{sT2}, s{sT2}, 7
    s_lshl_b32 s{sMT}, s{sT0}, 3
    s_add_u32 s{sMT}, s{sMT}, s{sT2}
    s_lshl_b32 s{sT1}, s{sT1}, 2
    s_lshl_b32 s{sT0}, s{sT0}, 1
    s_add_u32 s{sT1}, s{sT1}, s{sT0}
    s_add_u32 s{sT1}, s{sT1}, s{sI}
    s_sub_u32 s{sT1}, s{sT1}, 30
    s_cmp_ge_u32 s{sI}, 30
    s_cselect_b32 s{sFT}, s{sT1}, s{sFT}
    s_mov_b32 s{sMSK}, 0xffff0000""")
    k(f"""s_lshl_b32 s{sT0}, s{sRB}, 13
    s_lshl_b32 s{sT1}, s{sWV}, 11
    s_add_u32 s{sT0}, s{sT0}, s{sT1}
    v_lshl_add_u32 v3, v1, 4, s{sT0}
    s_lshl_b32 s{sT0}, s{sP}, 9
    v_lshl_add_u32 v198, v0, 1, s{sT0}""")
    for j in range(6): k(f"v_mov_b32 v{PAR+j}, 0")
    k(f"""s_lshl_b32 s{sT0}, s{sMT}, 17
    s_lshl_b32 s{sT1}, s{sWV}, 15
    s_add_u32 s{sT0}, s{sT0}, s{sT1}
    {f"s_cmp_ge_u32 s{sI}, 30"+chr(10)+f"s_cselect_b32 s{sT0}, {hex(OOB)}, s{sT0}" if XOB else ""}
    v_lshrrev_b32 v5, 3, v1
    v_lshl_add_u32 v5, v5, 10, s{sT0}
    v_lshrrev_b32 v6, 4, v1
    v_xor_b32 v7, v1, v6
    v_and_b32 v7, 7, v7
    v_lshl_add_u32 v{XD}, v7, 4, v5
    v_xor_b32 v5, 64, v{XD}
    v_add_u32 v{XD+1}, 7168, v5
    v_add_u32 v{XD+2}, 14336, v{XD}
    v_add_u32 v{XD+3}, 21504, v5
    s_mul_i32 s{sT0}, s{sFT}, 192
    s_mul_i32 s{sT1}, s{sWV}, {16*2752}
    {f"s_and_b32 s{sT2}, s{sFT}, 1" if WPX else ""}""")
    for q in range(3):
        k(f"""v_add_u32 v5, {64*q}, v1
        v_mul_u32_u24 v7, 5462, v5
        v_lshrrev_b32 v7, 16, v7
        v_mul_u32_u24 v8, 12, v7
        v_sub_u32 v8, v5, v8
        v_lshl_add_u32 v8, v8, 4, s{sT0}
        v_min_u32 v8, 2736, v8
        {f"v_xor_b32 v7, s{sT2}, v7" if WPX else ""}
        v_mul_u32_u24 v7, 2752, v7
        v_add3_u32 v{WD+q}, v7, v8, s{sT1}""")
        if q: k(f"v_subrev_u32 v{WD+q}, {1024*q}, v{WD+q}")
    O={'o7':O7,'rot':OROT}.get(ORD) or str(ORD).zfill(8).split('_')
    pk=lambda o: hex(sum(int(ch,16)<<(4*j) for j,ch in enumerate(o)))
    k(f"s_add_u32 s{sT0}, s{sMT}, s{sFT}")
    if len(O)==3: k(f"s_mul_i32 s{sT1}, s{sT0}, 11\ns_lshr_b32 s{sT1}, s{sT1}, 5\ns_mul_i32 s{sT1}, s{sT1}, 3\ns_sub_u32 s{sT0}, s{sT0}, s{sT1}")
    else: k(f"s_and_b32 s{sT0}, s{sT0}, {len(O)-1}")
    k(f"s_mov_b32 s{sORD}, {pk(O[0])}")
    for g in range(1,len(O)): k(f"s_cmp_eq_u32 s{sT0}, {g}\ns_cselect_b32 s{sORD}, {pk(O[g])}, s{sORD}")
    k(f"s_and_b32 s{sKS}, s{sORD}, 7")
    k(f"""s_lshl_b32 s{sMX}, s{sWV}, 12
    s_mul_i32 s{sMG}, s{sWV}, 3072
    s_add_u32 s{sMG}, s{sMG}, {WG_O}
    s_lshl_b32 s{sOX}, s{sKS}, 7
    s_mul_i32 s{sOW}, s{sKS}, {64*2752}
    s_lshl_b32 s{sT0}, s{sP}, 2""")
    k.stamp('pre')
    k("s_waitcnt lgkmcnt(0)")
    k.stamp('karg')
    k(f"s_load_dword s{sLD}, s[18:19], s{sT0}\ns_load_dword s{sDK}, s[20:21], s{sT0}")
    def rowl():
        k.vm(f"buffer_load_dwordx4 {vr(ROW,4)}, v3, {srd(SX)}, 0 offen","row")
        k.vm(f"buffer_load_dwordx4 {vr(ROW+4,4)}, v3, {srd(SX)}, 0 offen offset:1024","row")
    def parl():
        for j in range(6): k.vm(f"global_load_short_d16_hi v{PAR+j}, v198, s[{6+2*j}:{7+2*j}]","par")
    if PB<2: rowl()
    if PARP==0: parl()
    if PB==3: k("s_barrier")
    if PB>=2: rowl()
    if YPS==-2:
        k(f"""s_lshl_b32 s{sT2}, s{sP}, 13
        s_lshl_b32 s{sT3}, s{sWV}, 11
        s_add_u32 s{sT2}, s{sT2}, s{sT3}
        s_add_u32 s{sT2}, s{sT2}, {YB}
        v_lshl_add_u32 v9, v1, 4, s{sT2}""")
        for r in range(16,20): k(f"v_mov_b32 v{r}, -1")
        for j in range(2): k.vm(f"buffer_store_dwordx4 v[16:19], v9, {srd(SW)}, 0 offen offset:{1024*j} sc1","psn")
    if PB in(1,2): k("s_barrier")
    def dma_list(ring,tag):
        L=[]
        if isinstance(ring,int):
            a=lambda s: f"s_add_u32 m0, s{s}, {ring}" if ring else f"s_mov_b32 m0, s{s}"
        else: a=lambda s: f"s_add_u32 m0, s{s}, {ring}"
        L.append(a(sMX))
        for q in range(4): L.append(lambda q=q: k.vm(f"buffer_load_dwordx4 v{XD+q}, {srd(SX)}, s{sOX} offen offset:{1024*q} lds",tag))
        L.append(a(sMG))
        for q in range(3): L.append(lambda q=q: k.vm(f"buffer_load_dwordx4 v{WD+q}, {srd(SG)}, s{sOW} offen offset:{1024*q} lds",tag))
        L.append(f"s_add_u32 m0, m0, {WU_D}")
        for q in range(3): L.append(lambda q=q: k.vm(f"buffer_load_dwordx4 v{WD+q}, {srd(SU)}, s{sOW} offen offset:{1024*q} lds",tag))
        return L
    nextk=[f"s_lshr_b32 s{sORD}, s{sORD}, 4",f"s_and_b32 s{sKS}, s{sORD}, 7",f"s_lshl_b32 s{sOX}, s{sKS}, 7",f"s_mul_i32 s{sOW}, s{sKS}, {64*2752}"]
    D0R=[]
    def issue_d0():
        L=dma_list(0,"d0")+nextk; n=0
        while L:
            if n>=10-D0L and D0L and callable(L[0]): break
            f=L.pop(0)
            if callable(f): f(); n+=1
            else: k(f)
        D0R.extend(L)
    if not XP&1: issue_d0()
    if PARP==1: parl()
    k.stamp('dma0')
    def run(L):
        for f in L: f() if callable(f) else k(f)
    k(f"""v_lshrrev_b32 v2, 4, v1
    v_bfe_u32 v3, v1, 2, 2
    v_and_b32 v4, 3, v1
    v_and_b32 v5, 31, v1
    v_lshrrev_b32 v6, 5, v1
    v_and_b32 v7, 15, v1
    s_and_b32 s{sT0}, s{sWV}, 1
    s_lshr_b32 s{sT1}, s{sWV}, 1""")
    k(f"""v_bfe_u32 v8, v1, 1, 3
    v_xor_b32 v8, v8, v6
    v_lshlrev_b32 v8, 4, v8
    v_lshl_add_u32 v8, v5, 7, v8
    s_lshl_b32 s{sT2}, s{sT0}, 13
    v_add_u32 v{XR}, s{sT2}, v8
    v_xor_b32 v{XR+1}, 32, v{XR}
    v_xor_b32 v{XR+2}, 64, v{XR}
    v_xor_b32 v{XR+3}, 0x60, v{XR}""")
    k(f"""v_and_b32 v8, 1, v2
    v_mul_u32_u24 v9, {WU_D}, v8
    v_lshl_add_u32 v18, v6, 3, v3
    {f"s_and_b32 s{sT2}, s{sFT}, 1"+chr(10)+f"v_xor_b32 v18, s{sT2}, v18" if WPX else ""}
    v_mul_u32_u24 v18, 192, v18
    v_add_u32 v9, v9, v18
    v_lshl_add_u32 v9, v4, 3, v9
    s_mul_i32 s{sT2}, s{sT1}, 96
    s_add_u32 s{sT2}, s{sT2}, {WG_O}
    v_add_u32 v{WR}, s{sT2}, v9""")
    k(f"v_lshlrev_b32 v9, 4, v0\nv_add_u32 v{KCW}, {KC}, v9")
    k(f"""s_lshl_b32 s{sT2}, s{sP}, 1
    s_add_u32 s{sT2}, s{sT2}, s{sT1}
    s_lshl_b32 s{sT2}, s{sT2}, 12
    s_lshl_b32 s{sT3}, s{sT0}, 11
    s_add_u32 s{sT2}, s{sT2}, s{sT3}
    s_add_u32 s{sT2}, s{sT2}, {YB}
    v_lshlrev_b32 v9, 9, v8
    v_lshl_add_u32 v9, v7, 5, v9
    v_lshl_add_u32 v9, v6, 4, v9
    v_add_u32 v{YS}, s{sT2}, v9""")
    k(f"""s_lshr_b32 s{sT2}, s{sI}, 3
    s_lshl_b32 s{sTB}, s{sXCD}, 2
    s_add_u32 s{sTB}, s{sTB}, s{sT2}
    s_and_b32 s{sDB}, s{sI}, 7""")
    if M2: k(f"""s_lshr_b32 s{sT2}, s{sXCD}, 1
    s_lshl_b32 s{sTB}, s{sT2}, 3
    s_lshr_b32 s{sT2}, s{sI}, 2
    s_add_u32 s{sTB}, s{sTB}, s{sT2}
    s_and_b32 s{sT2}, s{sXCD}, 1
    s_lshl_b32 s{sT2}, s{sT2}, 2
    s_and_b32 s{sDB}, s{sI}, 3
    s_add_u32 s{sDB}, s{sDB}, s{sT2}""")
    k(f"""s_lshl_b32 s{sT2}, s{sMT}, 4
    s_add_u32 s{sT2}, s{sT2}, s{sFT}
    s_lshl_b32 s{sT2}, s{sT2}, 7
    s_add_u32 s{sT2}, s{sT2}, {FH}
    s_cmp_ge_u32 s{sI}, 30
    s_cselect_b32 s{sFH}, {FH+15*128}, s{sT2}
    s_cselect_b32 s{sT2}, {hex(OOB)}, s{sT2}
    s_lshl_b32 s{sFY}, s{sP}, 7
    s_add_u32 s{sFY}, s{sFY}, {FY}
    s_cmp_eq_u32 s{sWV}, 0
    s_cselect_b32 s{sC1}, s{sT2}, {hex(OOB)}
    s_cselect_b32 s{sC2}, s{sFY}, {hex(OOB)}
    s_mov_b32 s{sONE}, 1
    s_and_b32 s{sLA}, s2, 3
    s_lshl_b32 s{sLA}, s{sLA}, 6""")
    k(f"""s_mul_i32 s{sT2}, s{sWV}, {LNS}
    s_add_u32 s{sT2}, s{sT2}, {LNB}
    v_mul_u32_u24 v9, 320, v3
    v_lshl_add_u32 v9, v2, 5, v9
    v_lshl_add_u32 v9, v4, 3, v9
    v_add_u32 v{aTR}, s{sT2}, v9
    s_mul_i32 s{sT2}, s{sWV}, 640
    s_add_u32 s{sT2}, s{sT2}, {LNB}
    v_mul_u32_u24 v9, {LNS}, v2
    v_lshl_add_u32 v9, v7, 4, v9
    v_add_u32 v{aWR}, s{sT2}, v9
    s_lshl_b32 s{sT2}, s{sRB}, 6
    s_lshl_b32 s{sT3}, s{sWV}, 4
    s_add_u32 s{sT2}, s{sT2}, s{sT3}
    s_add_u32 s{sT2}, s{sT2}, {STATS}
    v_lshl_add_u32 v9, v6, 3, s{sT2}
    v_cmp_eq_u32 vcc, 0, v5
    v_mov_b32 v18, {hex(OOB)}
    s_lshl_b32 s{sT2}, s{sRB}, 13
    s_lshl_b32 s{sT3}, s{sWV}, 11
    v_cndmask_b32 v{aST}, v18, v9, vcc
    s_add_u32 s{sT2}, s{sT2}, s{sT3}
    v_lshl_add_u32 v{aXN}, v1, 4, s{sT2}
    v_writelane_b32 v{aST}, s{sC1}, 1""")
    if not YP: k(f"v_writelane_b32 v{aST}, s{sC2}, 2")
    k(f"""s_mul_i32 s{sT2}, s{sWV}, {TBS}
    s_add_u32 s{sPB}, s{sT2}, {PX}
    s_waitcnt lgkmcnt(0)
    s_lshl_b32 s{sT2}, s{sT1}, 4
    s_lshr_b32 s{sLD}, s{sLD}, s{sT2}
    s_lshl_b32 s{sLD}, s{sLD}, 16
    s_lshr_b32 s{sDK}, s{sDK}, s{sT2}
    s_lshl_b32 s{sDK}, s{sDK}, 16
    s_cmp_eq_u32 s{sT0}, 0
    s_cselect_b32 s{sDK}, s{sDK}, 0""")
    for r in (AZ,AZ+1,AZ+2,AZ+3): k(f"v_accvgpr_write_b32 a{r}, 0")
    if YP and YPS!=-2:
        for r in range(AP,AP+4): k(f"v_accvgpr_write_b32 a{r}, -1")
    k(f"""v_lshlrev_b32 v9, 3, v0
    s_mov_b32 s{sDL}, {EXB}
    v_sub_u32 v18, 2047, v9
    s_mov_b32 s{sCNT}, {656+0x4280+EXB}
    v_cvt_f32_i32 v18, v18
    v_sub_u32 v19, {2047+0x4280+EXB}, v9
    v_min_i32 v19, {138+0x4280+EXB}, v19""")
    for i in range(0,11,2):
        k(f"v_subrev_f32 v24, {float(i)}, v18" if i in(0,2,4) else f"v_subrev_f32 v24, {hex(f2b(float(i)))}, v18")
        k(f"v_subrev_f32 v25, 1.0, v24\nv_cvt_pk_bf16_f32 v24, v24, v25")
        for h in range(2):
            if i+h>10: break
            k(f"""v_subrev_u32 v26, {i+h}, v19
            v_add_u32_sdwa v25, s{sDL}, v24 dst_sel:DWORD dst_unused:UNUSED_PAD src0_sel:DWORD src1_sel:WORD_{h}
            v_med3_i32 v25, v25, v26, s{sCNT}
            v_lshrrev_b32 v26, 5, v25
            v_add_lshl_u32 v{EX+i+h}, v25, v26, 2""")
    k(f"""v_lshrrev_b32 v9, 2, v7
    v_lshl_add_u32 v9, v7, 3, v9
    v_lshl_add_u32 v9, v8, 2, v9
    v_mul_u32_u24 v27, 132, v6
    v_add_lshl_u32 v9, v9, v27, 2
    v_add_u32 v{PA0}, s{sPB}, v9
    v_sub_u32 v9, 2, v6
    v_lshlrev_b32 v9, v9, v7
    v_lshl_add_u32 v27, v6, 1, 3
    v_lshrrev_b32 v27, v27, v7
    v_mul_u32_u24 v28, 66, v2
    v_add3_u32 v9, v9, v27, v28
    s_add_u32 s{sDL}, s{sPB}, 1056
    v_lshl_add_u32 v{PA1}, v9, 2, s{sDL}
    v_mul_u32_u24 v27, 124, v6
    v_add3_u32 v{PA2}, v{PA1}, v27, 8
    v_add_lshl_u32 v9, v28, v7, 2
    s_add_u32 s{sDL}, s{sPB}, 2112
    v_add_u32 v{PA3}, s{sDL}, v9
    s_sub_u32 s{sDL}, s{sPB}, {PX-KC}
    v_lshl_add_u32 v{TW}, v1, 4, s{sDL}
    v_lshl_add_u32 v9, v2, 3, v3
    v_lshlrev_b32 v9, 4, v9
    v_lshrrev_b32 v27, 1, v4
    v_mul_u32_u24 v27, 1088, v27
    v_and_b32 v28, 1, v4
    v_lshl_add_u32 v9, v28, 3, v9
    v_add3_u32 v{TR}, v9, v27, s{sDL}
    v_and_b32 v9, 7, v1
    v_mul_u32_u24 v9, {KCS}, v9
    v_lshlrev_b32 v27, 1, v1
    v_and_b32 v27, 16, v27
    v_add_u32 v9, {KC+4096}, v9
    v_add_u32 v{KZ}, v9, v27""")
    sH0_=sDL
    def late_blocks():
        B=[]
        def blk(t):
            L=[]
            for x in t.split("\n"):
                x=x.strip()
                if not x: continue
                if x.startswith('s_cselect') : L[-1]+="\n"+x
                else: L.append(x)
            B.append(L)
        t=f"""s_mul_i32 s{sT2}, s{sFT}, 6
        s_mul_i32 s{sT3}, s{sT1}, 3
        s_add_u32 s{sT2}, s{sT2}, s{sT3}
        s_lshl_b32 s{sT3}, s{sT2}, 7
        s_add_u32 s{sT3}, s{sT3}, {CS}
        v_lshl_add_u32 v9, v1, 2, s{sT3}
        v_lshl_or_b32 v{CSA}, v6, 31, v9
        """
        for j in range(3):
            t+=f"""s_add_u32 s{sT3}, s{sT2}, {j}
            s_cmp_lt_u32 s{sT3}, 86
            s_cselect_b32 s{sH0}, 0, {hex(OOB)}
            s_lshl_b32 s{sT3}, s{sT3}, 10
            s_or_b32 s{sT3}, s{sT3}, s{sH0}
            v_lshl_add_u32 v{HS+j}, v1, 4, s{sT3}
            """
        t+=f"""s_lshl_b32 s{sT2}, s{sMT}, 1
        s_add_u32 s{sT2}, s{sT2}, s{sT0}
        s_lshl_b32 s{sT3}, s{sT2}, 9
        s_add_u32 s{sT3}, s{sT3}, {STATS}
        v_lshl_add_u32 v{ST}, v5, 3, s{sT3}
        s_mul_i32 s{sH0}, s{sT2}, {2*88064}
        s_add_u32 s{sH0}, s{sH0}, {HB}
        s_add_u32 s{sH1}, s{sH0}, 88064
        v_lshlrev_b32 v{LNP}, 6, v4
        """
        for r in (EA+1,EA+3,EA+5,EB+1,EB+3): t+=f"v_accvgpr_write_b32 a{r}, 0\n"
        blk(t)
        blk(f"""v_lshrrev_b32 v9, 1, v0
        v_and_b32 v192, 1, v0
        s_lshl_b32 s{sT2}, s{sP}, 5
        v_lshl_add_u32 v198, v192, 4, s{sT2}
        v_lshl_add_u32 v{UL}, v9, 13, v198
        v_mul_u32_u24 v192, {US}, v192
        v_lshl_add_u32 v192, v9, 4, v192
        v_add_u32 v{UW}, {UO+480}, v192
        v_min_u32 v9, 29, v5
        v_mul_u32_u24 v192, {US}, v6
        v_lshl_add_u32 v192, v9, 4, v192
        v_add_u32 v{UZ}, {UO}, v192
        s_mov_b32 s{sUQ}, 0x100000""")
        blk(f"""v_lshlrev_b32 v9, 2, v8
        v_xor_b32 v9, v9, v1
        v_and_b32 v9, 7, v9
        v_lshlrev_b32 v9, 4, v9
        v_lshrrev_b32 v192, 3, v1
        v_lshl_add_u32 v9, v192, 10, v9
        s_lshl_b32 s{sT2}, s{sDB}, 7
        v_add_u32 v{WDV}, s{sT2}, v9
        v_add_u32 v{WDV+1}, 7168, v{WDV}
        v_lshl_add_u32 v9, v6, 2, v3
        v_lshlrev_b32 v9, 7, v9
        v_lshrrev_b32 v192, 1, v3
        v_xor_b32 v192, s{sT1}, v192
        v_lshl_add_u32 v9, v192, 6, v9
        v_lshl_add_u32 v9, v8, 5, v9
        v_lshl_add_u32 v9, v4, 3, v9
        s_mul_i32 s{sAW}, s{sWV}, {AWS}
        s_mul_i32 s{sCWB}, s{sWV}, {CWS}
        s_add_u32 s{sCWB}, s{sCWB}, {CW}
        v_add_u32 v{TA}, s{sAW}, v9
        v_xor_b32 v{TA+1}, 64, v{TA}
        v_add_u32 v{TC}, s{sCWB}, v9
        v_xor_b32 v{TC+1}, 64, v{TC}""")
        t=f"""s_mul_i32 s{sT2}, s{sWV}, 22
        s_cmp_eq_u32 s{sWV}, 3
        s_cselect_b32 s{sT2}, 65, s{sT2}
        s_sub_u32 s{sT3}, 22, s{sT1}
        """
        if ROT2:
            t+=f"""s_and_b32 s{sCNT}, s{sI}, {3 if M2 else 7}
            s_mul_i32 s{sCNT}, s{sCNT}, {RB if M2 else RA}
            s_lshr_b32 s{sDL}, s{sI}, {2 if M2 else 3}
            s_mul_i32 s{sDL}, s{sDL}, {RA if M2 else RB}
            s_add_u32 s{sCNT}, s{sCNT}, s{sDL}
            v_add_u32 v9, s{sCNT}, v1
            """
        else: t+="v_mov_b32 v9, v1\n"
        for _ in range(3): t+=f"v_subrev_u32 v192, s{sT3}, v9\nv_min_u32 v9, v9, v192\n"
        t+=f"v_add_u32 v9, s{sT2}, v9\nv_lshlrev_b32 v192, 14, v9\n"
        if WT6:
            t+=f"v_min_u32 v10, {WT6-1}, v2\ns_add_u32 s{sCNT}, s{sCNT}, {WT0}\nv_add_u32 v10, s{sCNT}, v10\n"
            for _ in range(2): t+=f"v_subrev_u32 v9, s{sT3}, v10\nv_min_u32 v10, v10, v9\n"
            t+=f"v_add_u32 v10, s{sT2}, v10\nv_lshl_add_u32 v10, v10, 4, v7\ns_lshl_b32 s{sCNT}, s{sDB}, 7\nv_lshl_add_u32 v10, v10, 10, s{sCNT}\n"
        else: t+="s_nop 0\n"
        for j in range(22):
            jj=j
            if QM: jj={21-QM:21,21:21-QM}.get(j,j)
            t+=f"v_readlane_b32 s{4+j}, v192, {jj}\n"
        blk(t)
        blk(f"""s_mul_i32 s{sT2}, s{sT1}, {4*KCS}
        s_lshl_b32 s{sT3}, s{sT0}, 8
        s_sub_u32 s{sT2}, s{sT2}, s{sT3}
        s_add_u32 s{sT2}, s{sT2}, {KC+4056-3776}
        v_mul_u32_u24 v9, {KCS}, v4
        v_lshl_add_u32 v9, v2, 4, v9
        v_lshlrev_b32 v192, 3, v3
        v_sub_u32 v9, v9, v192
        v_add_u32 v{CA}, s{sT2}, v9
        s_mul_i32 s{sT2}, s{sT1}, {US}
        s_sub_u32 s{sT2}, s{sT2}, s{sT3}
        s_add_u32 s{sT2}, s{sT2}, {UO+256}
        v_lshlrev_b32 v9, 4, v2
        v_lshl_add_u32 v9, v7, 5, v9
        v_add_u32 v{CB}, s{sT2}, v9""")
        blk(f"""s_lshl_b32 s{sT2}, s{sTB}, 1
        s_add_u32 s{sT2}, s{sT2}, s{sT0}
        s_mul_i32 s{sT3}, s{sT2}, 88064
        s_add_u32 s{sT3}, s{sT3}, {HB}
        v_lshl_add_u32 v{HL}, v1, 4, s{sT3}
        s_xor_b32 s{sT3}, s{sT2}, 1
        s_mul_i32 s{sT3}, s{sT3}, 88064
        s_add_u32 s{sT3}, s{sT3}, {HB}
        v_lshl_add_u32 v{HL+1}, v1, 4, s{sT3}
        s_lshl_b32 s{sT3}, s{sT2}, 5
        v_add_u32 v9, s{sT3}, v5
        v_lshlrev_b32 v192, 3, v9
        v_add_u32 v{RS}, {STATS+4}, v192
        s_lshl_b32 s{sT3}, s{sDB}, 1
        s_add_u32 s{sT3}, s{sT3}, s{sT1}
        s_lshl_b32 s{sYQ}, s{sT3}, 6
        v_lshlrev_b32 v9, 10, v9
        v_lshl_add_u32 v9, v6, 4, v9
        v_add_u32 v{XO}, s{sYQ}, v9
        s_lshl_b32 s{sYQ}, s{sT3}, 17
        s_lshl_b32 s{sT2}, s{sT2}, 6
        s_add_u32 s{sT2}, s{sT2}, s{sYQ}
        s_add_u32 s{sT2}, s{sT2}, {YB}
        v_lshrrev_b32 v9, 2, v1
        v_lshlrev_b32 v9, 12, v9
        v_lshl_add_u32 v9, v4, 4, v9
        v_add_u32 v{YL}, s{sT2}, v9
        s_mov_b32 s{sYQ}, 0x10000
        s_lshl_b32 s{sT2}, s{sWV}, 11
        s_add_u32 s{sT2}, s{sT2}, {KC}
        v_lshl_add_u32 v{YW}, v1, 4, s{sT2}
        v_lshl_add_u32 v9, v6, 2, v3
        v_lshlrev_b32 v9, 6, v9
        v_lshl_add_u32 v9, v8, 5, v9
        v_lshl_add_u32 v9, v4, 3, v9
        v_add_u32 v{YR}, s{sT2}, v9
        s_lshl_b32 s{sT3}, s{sT3}, 11
        s_add_u32 s{sT3}, s{sT3}, {FY}
        v_lshl_add_u32 v{FYP}, v7, 7, s{sT3}
        s_lshr_b32 s{sT2}, s{sTB}, 1
        s_lshl_b32 s{sT2}, s{sT2}, 11
        s_add_u32 s{sT2}, s{sT2}, {FH}
        {"v_min_u32 v9, 14, v7" if not HFW else f"s_mul_i32 s{sT3}, s{sWV}, 7"+chr(10)+f"s_lshr_b32 s{sT3}, s{sT3}, 1"+chr(10)+f"s_add_u32 s{sH0_}, s{sT0}, 3"+chr(10)+f"v_min_u32 v9, s{sH0_}, v7"+chr(10)+f"v_add_u32 v9, s{sT3}, v9"}
        v_lshl_add_u32 v{FHP}, v9, 7, s{sT2}
        v_lshlrev_b32 v{EXW}, 4, v1""")
        return B
    for b in late_blocks()[:NE]: run(b)
    def late(): return sum(late_blocks()[NE:],[])
    k.dq=[]
    if probe&1: k.stamp('ad0')
    if not D0K: run(D0R); D0R=[]
    k.stamp('addr')
    CEI=[]
    def kgen():
        def sp(t): return [x.strip() for x in t.split("\n") if x.strip()]
        q1,q8,q128=172,174,176
        p=PAR; pr=lambda x:f"v[{x}:{x+1}]"
        S=sp(f"""v_mov_b32 v60, s{sLD}
        v_mul_f32 v60, 0x3fb8aa3b, v60
        v_exp_f32 v60, v60
        s_nop 0
        v_cvt_pk_bf16_f32 v60, v60, v60
        v_and_b32 v60, s{sMSK}, v60""")
        def cearly():
            if not CE: return
            L=k.lab("CE"); k(f"s_cmp_lt_u32 s{sI}, 30\ns_cbranch_scc1 {L}")
            n=len(k.vq); run(dma_list(SS,"dx")[5:]+nextk); del k.vq[n:]; CEI.append(n)
            k(f"s_add_u32 s{sMG}, s{sMG}, {SS}\n{L}:")
        S.append(lambda: (k.w(v="par"),k.stamp('par'),run(D0R),cearly()))
        S+=sp(f"""v_pk_mul_f32 {pr(p)}, {pr(p)}, v[60:61] op_sel_hi:[1,0]
        v_pk_mul_f32 {pr(p+2)}, {pr(p+2)}, v[60:61] op_sel_hi:[1,0]
        v_mul_f32 v{p}, 0x3fb8aa3b, v{p}
        v_mul_f32 v{p+1}, 0.15915494, v{p+1}
        v_mul_f32 v180, 0x41000000, v{p}
        v_mul_f32 v181, 0x41000000, v{p+1}
        v_mul_f32 v182, 0x43000000, v{p}
        v_mul_f32 v183, 0x43000000, v{p+1}
        v_exp_f32 v180, v180
        v_exp_f32 v178, v{p}
        v_exp_f32 v182, v182
        v_fract_f32 v181, v181
        v_fract_f32 v179, v{p+1}
        v_fract_f32 v183, v183""")
        def cmul(L,T,d,x,y):
            L+=[f"v_pk_mul_f32 {pr(T)}, {pr(x)}, {pr(y)} op_sel:[0,0] op_sel_hi:[0,1]",
                f"v_pk_fma_f32 {pr(d)}, {pr(x)}, {pr(y)}, {pr(T)} op_sel:[1,1,0] op_sel_hi:[1,0,1] neg_lo:[1,0,0]"]
        cmul(S,64,60,p+4,p+2)
        for j in (1,0,2): S+=sp(f"v_cos_f32 v{172+2*j}, v{179+2*j}\nv_sin_f32 v{173+2*j}, v{179+2*j}")
        for j in (1,0,2): S.append(f"v_pk_mul_f32 {pr(172+2*j)}, {pr(172+2*j)}, {pr(178+2*j)} op_sel_hi:[1,0]")
        def pack(L,t,e,x,y):
            n='-' if t==0 else ''
            re,im=(TB+16*t+(e>>1),TB+16*t+8+(e>>1)) if t<3 else ((TB+48+(e>>1),TB+52+(e>>1)) if e<8 else (TB+56,TB+58))
            o=lambda z,j: (z[j] if isinstance(z,tuple) else f"{n if j else ''}v{z+j}")
            L+=[f"v_cvt_pk_bf16_f32 v{re}, {o(x,0)}, {o(y,0)}",f"v_cvt_pk_bf16_f32 v{im}, {o(x,1)}, {o(y,1)}"]
        A=[];X0,X1,T=60,62,64
        for b in range(0,16,2):
            if b: cmul(A,T,X0,X1,q8)
            cmul(A,T,X1,X0,q8); pack(A,0,b,X0,X1)
        A.append(('T',0))
        B=[];X0,X1,T=66,68,70
        qp={1:q1}
        pack(B,1,0,("1.0","0"),q1)
        for x in range(2,8):
            qp[x]=178+2*(x-2); cmul(B,T,qp[x],qp[x-1],q1)
            if x&1: pack(B,1,x-1,qp[x-1],qp[x])
        cmul(B,T,X1,q128,q1); pack(B,1,8,q128,X1)
        for x in (2,4,6): cmul(B,T,X0,q128,qp[x]); cmul(B,T,X1,q128,qp[x+1]); pack(B,1,8+x,X0,X1)
        B.append(('T',1))
        C=[];C0,X0,X1,T=72,74,76,78
        D=[];D0,D1,TD=80,82,84
        cmul(C,T,C0,q128,q128)
        cmul(D,TD,D0,q128,q128); cmul(D,TD,D0,D0,D0); cmul(D,TD,D1,D0,D0)
        for x in (2,3):
            if x==3: cmul(C,T,C0,C0,q128)
            cmul(C,T,X1,C0,qp[2]); pack(C,2,4*(x-2),C0,X1)
            cmul(C,T,X0,C0,qp[4]); cmul(C,T,X1,C0,qp[6]); pack(C,2,4*(x-2)+2,X0,X1)
        for x in range(4,8):
            cmul(C,T,C0,C0,q128); cmul(C,T,X1,C0,qp[4]); pack(C,2,8+2*(x-4),C0,X1)
        C.append(('T',2))
        for x in range(0,8,2):
            if x: cmul(D,TD,D1,D0,q128)
            cmul(D,TD,D0,D1,q128); pack(D,3,x,D1,D0)
        cmul(D,TD,D1,D0,q128); pack(D,3,8,D1,("0","0"))
        D.append(('T',3))
        def rr(a,b):
            o=[];a=list(a);b=list(b);na,nb=len(a),len(b)
            while a or b:
                if a and (not b or len(a)*nb>=len(b)*na): o.append(a.pop(0))
                else: o.append(b.pop(0))
            return o
        S+=rr(A,B)+rr(C,D)
        S+=sp(f"v_mov_b32 v{PACC}, 0\nv_mov_b32 v{PACC+1}, 0\nv_mov_b32 v{PACC+2}, 0\nv_mov_b32 v{PACC+3}, 0\nv_writelane_b32 v{PACC}, s{sDK}, 0")
        return S
    def tabio(t):
        L=[]
        R=[TB+16*t+4*j for j in range(4)] if t<3 else [TB+48,TB+56,TB+52,TB+58]
        for j in range(4):
            if t==3 and j&1 and T3B: L.append(('r',lambda r=R[j],j=j: k.ds(f"ds_write_b32 v{TW}, v{r} offset:{1088*j}","tw")))
            else: L.append(('w',lambda r=R[j],j=j: k.ds(f"ds_write_b128 v{TW}, {vr(r,4)} offset:{1088*j}","tw")))
        for st in range(4):
            for h in range(2): L.append(('r',lambda t=t,st=st,h=h: k.ds(f"ds_read_b64_tr_b16 {ar(KF+16*t+4*st+2*h,2)}, v{TR} offset:{(st&1)*2176+(st>>1)*512+64*h}",f"kf{t}")))
        return L
    def pmf(T):
        return [f"v_mfma_f32_16x16x32_bf16 {vr(PACC+4*T,4)}, {ar(KF+16*(T+1)+4*st,4)}, {ar(KF+4*st,4)}, {vr(PACC+4*T,4) if (st or T==0) else '0'}" for st in range(4)]
    def pwr(T):
        if T==0: k.ds(f"ds_write2_b32 v{PA0}, v{PACC}, v{PACC+1} offset0:0 offset1:1"); k.ds(f"ds_write2_b32 v{PA0}, v{PACC+2}, v{PACC+3} offset0:2 offset1:3")
        if T==1: k.ds(f"ds_write2_b32 v{PA1}, v{PACC+4}, v{PACC+5} offset0:0 offset1:1"); k.ds(f"ds_write2_b32 v{PA2}, v{PACC+6}, v{PACC+7} offset0:0 offset1:1")
        if T==2: k.ds(f"ds_write2_b32 v{PA3}, v{PACC+8}, v{PACC+9} offset0:0 offset1:16"); k.ds(f"ds_write2_b32 v{PA3}, v{PACC+10}, v{PACC+11} offset0:33 offset1:49")
    LN=[lambda: (k.w(v="row"),k.stamp('kg'))]
    def ln(t): LN.extend(x.strip() for x in t.split("\n") if x.strip())
    for j in range(8): ln(f"v_lshlrev_b32 v{20+2*j}, 16, v{ROW+j}\nv_and_b32 v{21+2*j}, s{sMSK}, v{ROW+j}")
    def red2(m):
        LN.append(('M',m))
        ln("""s_nop 1
        v_permlane32_swap_b32 v40, v41
        v_add_f32 v40, v40, v41
        v_mov_b32 v41, v40
        s_nop 1
        v_permlane16_swap_b32 v40, v41
        v_add_f32 v40, v40, v41""")
        for r in(8,4,2,1): ln(f"s_nop 1\nv_add_f32_dpp v40, v40, v40 row_ror:{r} row_mask:0xf bank_mask:0xf")
        ln("v_mul_f32 v40, 0x3b000000, v40")
    for b,d in((20,40),(28,41)):
        ln(f"""v_pk_add_f32 v[36:37], v[{b}:{b+1}], v[{b+2}:{b+3}]
        v_pk_add_f32 v[38:39], v[{b+4}:{b+5}], v[{b+6}:{b+7}]
        v_pk_add_f32 v[36:37], v[36:37], v[38:39]
        v_add_f32 v{d}, v36, v37""")
    red2(0)
    ln(f"""v_mov_b32 v42, v40
    v_mov_b32 v43, v40
    v_cvt_pk_bf16_f32 v{LST}, -v40, -v40
    s_nop 0
    v_permlane32_swap_b32 v42, v43""")
    for h,(b,d) in enumerate(((20,40),(28,41))):
        for j in range(4):
            ln(f"v_pk_add_f32 v[38:39], v[{b+2*j}:{b+2*j+1}], v[42:43] op_sel:[0,{h}] op_sel_hi:[1,{h}] neg_lo:[0,1] neg_hi:[0,1]")
            ln("v_pk_mul_f32 v[36:37], v[38:39], v[38:39]" if j==0 else "v_pk_fma_f32 v[36:37], v[38:39], v[38:39], v[36:37]")
        ln(f"v_add_f32 v{d}, v36, v37")
    red2(1)
    LN.append(('M',2))
    ln(f"""v_cvt_pk_bf16_f32 v40, v40, v40
    v_and_b32 v40, s{sMSK}, v40
    v_add_f32 v40, 0x3727c5ac, v40
    v_cvt_pk_bf16_f32 v40, v40, v40
    v_and_b32 v40, s{sMSK}, v40
    v_sqrt_f32 v40, v40
    v_and_b32 v41, s{sMSK}, v{LST}
    v_cvt_pk_bf16_f32 v40, v40, v40
    v_and_b32 v40, s{sMSK}, v40
    v_rcp_f32 v46, v40
    s_nop 0
    v_mul_f32 v47, v41, v46
    v_mul_f32 v{LST+1}, v46, v46
    v_mov_b32 v48, v46
    v_mov_b32 v49, v47
    s_nop 1
    v_permlane32_swap_b32 v46, v48
    v_permlane32_swap_b32 v47, v49""")
    LN.append(('M',3))
    for h,b in enumerate((20,28)):
        P=f"v[{46+2*h}:{47+2*h}]"
        for j in range(4):
            ln(f"v_pk_fma_f32 v[{b+2*j}:{b+2*j+1}], v[{b+2*j}:{b+2*j+1}], {P}, {P} op_sel:[0,0,1] op_sel_hi:[1,0,1]")
            ln(f"v_cvt_pk_bf16_f32 v{ROW+4*h+j}, v{b+2*j}, v{b+2*j+1}")
        LN.append(lambda h=h: k.ds(f"ds_write_b128 v{aWR}, {vr(ROW+4*h,4)} offset:{320*h}"))
    LN.append(('M',4))
    D1=dma_list(SS,"d1")+nextk
    if XP&16:
        for i in range(10,-1,-1): k.w(v=i); k.stamp(f'w{i}')
    if XP&32:
        i=0
        for f in D1:
            run([f])
            if callable(f): k.stamp(f'i{i}'); i+=1
        for i in range(10,-1,-1): k.w(v=i); k.stamp(f'w{i}')
        D1=[]
    IO=[]; IOL=[]; lastw=-99; n=0; nt=0
    def icount(): return sum(1 for l in k.L if not l.endswith(':') and not l.strip().startswith(';'))
    def cost(l):
        l=l.strip()
        if l.endswith(':') or l.startswith(';') or not l: return 0
        if l.startswith('ds_write_b128'): return 50
        if l.startswith('ds_'): return 12
        if l.split()[0][:5] in('v_exp','v_sin','v_cos','v_rcp','v_sqr','v_log'): return 8
        if l.startswith('s_nop'): return 4 if int(l.split()[1])<4 else 8
        return 4
    clk=None; nx=D1C; l0=len(k.L)
    DL=[int(x) for x in D1L.split('_')] if D1L else []
    if DL: nx=DL.pop(0)
    for f in kgen()+LN:
        if isinstance(f,tuple):
            if f[0]=='T':
                (IO if nt<IOP else IOL).extend(tabio(f[1])); nt+=1
            continue
        run([f]); n+=1
        if clk is None and callable(f): clk=0; l0=len(k.L)
        if IO:
            if IO[0][0]=='r': run([IO.pop(0)[1]])
            elif n-lastw>=TWK: run([IO.pop(0)[1]]); lastw=n
        if D1P:
            if clk is not None:
                clk+=sum(cost(l) for l in k.L[l0:]); l0=len(k.L)
                if clk>=nx and D1:
                    while D1 and not callable(D1[0]): run([D1.pop(0)])
                    if D1: run([D1.pop(0)])
                    nx=(DL.pop(0) if DL else nx) if D1L else nx+D1P
        elif n>=D1S and (n-D1S)%D1E==D1E-1 and D1:
            g=D1.pop(0); run([g])
            if not callable(g) and D1: run([D1.pop(0)])
    print("prologue cost after par",clk,"d1 left",len(D1))
    run([x[1] for x in IO])
    run(D1)
    def ptail(F=[]):
        fin={}; F=list(F)
        for T in range(3):
            k.w(d=min(k.nd("kf0"),k.nd(f"kf{T+1}")))
            for m in pmf(T):
                k(m); fin[T]=icount()
                if F:
                    f=F.pop(0); run([f])
                    if not callable(f) and F: run([F.pop(0)])
        run(F)
        for T in range(3):
            d=8-(icount()-fin[T])
            if d>0: k(f"s_nop {d-1}")
            pwr(T)
    def ptail_items():
        L=[]; fin={}
        for T in range(3):
            for i,m in enumerate(pmf(T)):
                L.append(lambda T=T,i=i,m=m: (k.w(d=min(k.nd("kf0"),k.nd(f"kf{T+1}"))) if i==0 else 0, k(m), fin.__setitem__(T,icount())))
        def pw(T):
            d=8-(icount()-fin[T])
            if d>0: k(f"s_nop {d-1}")
            pwr(T)
        if PTS==2:
            def blk():
                k.w(d=min(k.nd(f"kf{t}") for t in range(4)))
                for st in range(4):
                    for T in range(3): k(pmf(T)[st]); fin[T]=icount()
            return [blk,"s_nop 0","s_nop 0",lambda:pw(0),"s_nop 0",lambda:pw(1),"s_nop 0",lambda:pw(2)]
        return L[:8]+[lambda:pw(0)]+L[8:]+[lambda:pw(1),"s_nop 0",lambda:pw(2)]
    k.stamp('ln')
    CSL=k.lab("CS"); MRG=k.lab("MRG")
    k(f"s_cmp_ge_u32 s{sI}, 30\ns_cbranch_scc1 {CSL}")
    vq_cs=list(k.vq)
    if CE: vq_cs=vq_cs[:CEI[0]]+["d1"]*6+["d2" if x=="d1" else x for x in vq_cs[CEI[0]:]]
    pass; dq_cs=list(k.dq); nst_cs=k.nst; IOL_cs=list(IOL)
    def lntr():
        return [lambda q=q,h=h: k.ds(f"ds_read_b64_tr_b16 {ar(LTR+4*q+2*h,2)}, v{aTR} offset:{128*q+1280*h}",f"lt{q}") for q in range(2) for h in range(2)]
    def poison(): return [lambda j=j: k.vm(f"buffer_store_dwordx4 {ar(AP,4)}, v{YS}, {srd(SW)}, 0 offen offset:{1024*j} sc1","lnst") for j in range(2)]
    def lnst(yp=1):
        L=[f"v_writelane_b32 v{LST}, 0, 1"]
        if not YP: L+=[f"v_writelane_b32 v{LST}, 0, 2"]
        L+=[lambda: k.vm(f"buffer_store_dwordx2 {vr(LST,2)}, v{aST}, {srd(SW)}, 0 offen sc1","lnst")]
        if YP and yp: L+=poison()
        for q in range(2): L.append(lambda q=q:(k.w(d=f"lt{q}"),k.vm(f"buffer_store_dwordx4 {ar(LTR+4*q,4)}, v{aXN}, {srd(SW)}, 0 offen offset:{1024*q} sc1","lnst")))
        return L
    def lnatomic():
        L=k.lab(); k(f"s_cmp_lg_u32 s{sWV}, 0\ns_cbranch_scc1 {L}\ns_atomic_add s{sONE}, s[{SB}:{SB+1}], s{sLA}\n{L}:"); k.smem=1
    def exrd(c): return [lambda i=i: k.ds(f"ds_read2st64_b32 {vr(112+24*c+2*i,2)}, v{EX+i} offset0:{PO[2*c]} offset1:{PO[2*c+1]}",f"ex{c}_{i}") for i in range(11)]
    def exva(c):
        L=[]
        for i in range(11):
            t=f"v_add_f32 v{112+24*c+2*i}, v{112+24*c+2*i}, v{113+24*c+2*i}"
            L.append((lambda i=i,t=t:(k.w(d=f"ex{c}_{min(i+3,10)}"),k(t))) if i in(0,4,8) else t)
        for s in range(4):
            for j in range(4):
                i=112+24*c+2*(3-s+2*j)
                L.append(f"v_cvt_pk_bf16_f32 v{KX+16*c+4*s+j}, v{i}, v{i+2}")
        return L
    def kcw():
        return [lambda r=r: k.ds(f"ds_write_b128 v{KCW}, {vr(KX+4*r,4)} offset:{r*KCS}","kcw") for r in range(8)]+[lambda: k.ds(f"ds_write_b128 v{KZ}, {ar(AZ,4)}","kcw")]
    ACC=16; FS=(176,196,216,236)
    base=[0]
    def rd(slot,st,f,what,tag="fr"):
        o=slot*SS-base[0]; assert 0<=o<=SS
        if what[0]=='b':
            e=what[1]; return [lambda: k.ds(f"ds_read_b128 {ar(FS[f]+12+4*e,4)}, v{XR+st} offset:{o+4096*e}",tag)]
        u=what[1]; return [lambda h=h: k.ds(f"ds_read_b64_tr_b16 {ar(FS[f]+4*u+2*h,2)}, v{WR} offset:{o+3072*st+768*h+32*u}",tag) for h in range(2)]
    def dummy():
        if getattr(k,'smem',0): k.ds(f"ds_read_u8 v{JNK}, v1","dum")
    def reads(slot,st,f):
        return rd(slot,st,f,('b',0))+rd(slot,st,f,('a',0))+rd(slot,st,f,('b',1))+rd(slot,st,f,('a',1))+rd(slot,st,f,('a',2))+[dummy]
    def mf1(f,b,zero=False):
        u,e=b>>1,b&1
        return f"v_mfma_f32_32x32x16_bf16 {vr(ACC+16*b,16)}, {ar(FS[f]+4*u,4)}, {ar(FS[f]+12+4*e,4)}, {'0' if zero else vr(ACC+16*b,16)}"
    def mf(f,zero=False): return [mf1(f,b,zero) for b in range(6)]
    def mix(a,b):
        o=[];a=list(a);b=list(b)
        while a or b:
            if a:o.append(a.pop(0))
            if a:o.append(a.pop(0))
            if b:o.append(b.pop(0))
        return o
    def adv(delta): return [f"v_add_u32 v{r}, {delta}, v{r}" for r in(XR,WR,XR+1,XR+2,XR+3)]
    side=[]; acc=[0]
    def wv(mfs,fl,per):
        fl=list(fl)
        for i,m in enumerate(mfs):
            run([m])
            n=per[i] if isinstance(per,(list,tuple)) else per
            for _ in range(n):
                if fl: run([fl.pop(0)])
            acc[0]+=NS
            while acc[0]>=10:
                acc[0]-=10
                if side: run([side.pop(0)])
        run(fl)
    def poll(tag,reg,addr,sr,exp):
        ok=k.lab("OK"); rt=k.lab("RT")
        k.w(v=tag)
        cmp="gt" if exp==64 else "ne"
        k(f"v_cmp_{cmp}_u32 vcc, {exp}, v{reg}\ns_cbranch_vccnz {rt}\n{ok}:")
        lp=k.lab("RL"); sl_=SLP if exp==64 else SLH
        k.tail.append(f"""{rt}:
        s_movk_i32 s{sRING}, 4000
        {lp}:
        {'s_sleep %d'%sl_ if sl_ else ''}
        buffer_load_dword v{reg}, v{addr}, {srd(sr)}, 0 offen sc1
        s_waitcnt vmcnt(0)
        v_cmp_{cmp}_u32 vcc, {exp}, v{reg}
        s_cbranch_vccz {ok}
        s_sub_u32 s{sRING}, s{sRING}, 1
        s_cmp_lg_u32 s{sRING}, 0
        s_cbranch_scc1 {lp}
        s_branch {ok}""")
    LNX=64; FLX=4
    def sat(so): k(f"s_atomic_add s{sONE}, s[{SW}:{SW+1}], s{so}"); k.smem=1
    lnpoll=lambda: k.vm(f"buffer_load_dword v{PL}, v{LNP}, {srd(SB)}, 0 offen sc1","lnp")
    def uloads():
        return [lambda q=q: k.vm(f"buffer_load_dwordx4 {ar(UR+4*q,4)}, v{UL}, {srd(SW)}, {'s%d'%sUQ if q else 0} offen{'' if NSC&1 else ' sc1'}","u") for q in range(2)]
    def wd_loc(j):
        if j<4: return ('C',2048*j)
        if j<9: return ('A',2048*(j-4))
        if j<14: return ('A',BW+2048*(j-9))
        if j<18: return ('C',2048*(j-14))
        return ('A',2048*(j-18))
    def wd_dma(j):
        r,o=wd_loc(j); b=sCWB if r=='C' else sAW
        return [f"s_add_u32 m0, s{b}, {o}" if o else f"s_mov_b32 m0, s{b}"]+[lambda h=h: k.vm(f"buffer_load_dwordx4 v{WDV+h}, {srd(SD)}, s{4+j} offen offset:{1024*h} lds",f"wd{j}") for h in range(2)]
    def wd_tr(j):
        r,o=wd_loc(j); b=TC if r=='C' else TA
        return [lambda e=e,h=h: k.ds(f"ds_read_b64_tr_b16 {ar(8*j+4*e+2*h,2)}, v{b+e} offset:{o+1024*h}",f"wt{j}") for e in range(2) for h in range(2)]
    def uwrite():
        L=[lambda: k.ds(f"ds_write_b128 v{UZ}, {ar(AZ,4)}","uw")]
        L+=[lambda q=q: (k.w(v="u"),k.ds(f"ds_write_b128 v{UW}, {ar(UR+4*q,4)} offset:{2048*q}","uw")) for q in range(2)]
        return L
    sl=[lambda e=e: k.vm(f"buffer_load_dword a{EB+2*e}, v{ST}, {srd(SW)}, 0 offen offset:{256*e} sc1","st") for e in range(2)]
    cl=[lambda j=j: k.vm(f"buffer_load_dword a{EA+2*j}, v{CSA}, {srd(SW)}, 0 offen offset:{128*j} sc1","cs") for j in range(3)]
    def cscheck():
        k.w(v="cs")
        ok=k.lab("OK"); rt=k.lab("RT"); lp=k.lab("RL")
        chk=f"v_accvgpr_read_b32 v9, a{EA}\nv_accvgpr_read_b32 v10, a{EA+2}\nv_accvgpr_read_b32 v11, a{EA+4}\nv_max3_u32 v9, v9, v10, v11\nv_cmp_eq_u32 vcc, -1, v9"
        k(f"{chk}\ns_cbranch_vccnz {rt}\n{ok}:")
        k.tail.append(f"""{rt}:
        s_movk_i32 s{sRING}, 4000
        {lp}:
        buffer_load_dword a{EA}, v{CSA}, {srd(SW)}, 0 offen sc1
        buffer_load_dword a{EA+2}, v{CSA}, {srd(SW)}, 0 offen offset:128 sc1
        buffer_load_dword a{EA+4}, v{CSA}, {srd(SW)}, 0 offen offset:256 sc1
        s_waitcnt vmcnt(0)
        {chk}
        s_cbranch_vccz {ok}
        s_sub_u32 s{sRING}, s{sRING}, 1
        s_cmp_lg_u32 s{sRING}, 0
        s_cbranch_scc1 {lp}
        s_branch {ok}""")
    if probe&1: k.w(v="d0"); k.stamp('d0')
    k.w(v="d0",d=0); k("s_barrier")
    if XP&64:
        for i in range(9,-1,-1): k.w(v=i); k.stamp(f'w{i}')
    run(reads(0,0,0)); run(lntr())
    k.stamp('s0')
    KW=[]
    WT=[int(c) for c in str(WDT) if c.isdigit()] if WDT!=-1 else []
    NT=-(-92//max(len(WT),1))
    def touch(s):
        L=[]
        if s==WT[0]: L.append(f"""s_lshl_b32 s{sC1}, s{sI}, 2
            s_add_u32 s{sC1}, s{sC1}, s{sWV}
            s_mul_i32 s{sC1}, s{sC1}, {NT*len(WT)*128}
            v_min_u32 v10, {NT-1}, v1
            v_lshl_add_u32 v10, v10, 7, s{sC1}""")
        else: L.append(f"v_add_u32 v10, {NT*128}, v10")
        L.append(lambda: k.vm(f"buffer_load_dword v11, v10, {srd(SD)}, 0 offen","tch"))
        return L
    cur=[0]
    tch6=lambda: k.vm(f"buffer_load_dword v{JNK}, v10, {srd(SD)}, 0 offen","tch")
    for s in range(7):
        slot=s%3; cur[0]=s
        D=dma_list(((s+2)%3)*SS,f"d{s+2}") if s<6 else []
        X=[[],[],[]]; per=[3,3,3]
        if s<6: X=[D[0:5],D[5:9],D[9:13]+(nextk if s<5 else [])]
        if s==1 and DE:
            print("d2 left for stage 1:",sum(callable(x) for x in DE)); Z=DE+X[0]+X[1]+X[2]; n3_=len(Z)//3
            X=[Z[:n3_],Z[n3_:2*n3_],Z[2*n3_:]]
        if s==1:
            LB=late_blocks(); LB[:NE]=[[]]*NE
            EXP=exrd(0)+exrd(1)[:3]+mix(exva(0),exrd(1)[3:])+exva(1)
            if PTS:
                P=[x for x in ptail_items()]; Q=LB[0]+LB[1]+LB[2]+LB[3]
                side+=Q[:PTG]; Q=Q[PTG:]
                while P:
                    x=P.pop(0)
                    if x!="s_nop 0" or PTS==1: side.append(x)
                    if Q: side.append(Q.pop(0))
                np_=len(side); side+=Q; n1=n3=len(side); bpos=len(side)
                side+=[lambda: (_ for _ in ()).throw(AssertionError("expansion too early")) if cur[0]<2 else 0]+EXP; n2=len(side)
            else:
                side+=LB[0]+LB[1]; n1=len(side)
                side+=EXP; n2=len(side)
                side+=LB[2]+LB[3]; n3=len(side)
            if LBD<2: side+=LB[4]+LB[5]
            nside=len(side)
        def flush(n):
            c=0
            while len(side)>nside-n: run([side.pop(0)]); c+=1
            if c: print("flushed",c,"at stage",s)
        if s==LPS: flush(n1)
        if s==3 and KCB==0: flush(n2)
        if s==6: flush(n3)
        if s>=3 and KW:
            for j in range(3):
                if KW: X[j]=X[j]+[KW.pop(0)]
        if s==LPS: X[0]=[lnpoll]+X[0]
        if s==LPS+1 and D5L and s<6: X=[[],X[0],X[1]+X[2]]
        if s==CLS and CLS!=LPS and not CLP: X[0]=cl+X[0]
        if s in WT: X[2]=X[2]+touch(s)
        if s and s==LSP: X[2]=X[2]+lnst(YPS==-1)
        if s and s==YPS: X[2]=X[2]+poison()
        if s==6:
            W=sum((wd_dma(j) for j in range(NPRE)),[])
            if WT6: W=W+[tch6] if WTP==0 else [tch6]+W
            X=[[X[0]+W[:3],W[3:9],W[9:]],[X[0],W[:6],W[6:]],[X[0],W[:3],W[3:]],[X[0],[],W],[X[0]+W[:3],W[3:6],W[6:]],[X[0],W[:3],W[3:6]],[X[0],[],W[:5]]][W6S]
            W6R=[[],[],[],[],[],W[6:],W[5:]][W6S]
            if KCB==3:
                KR=kcw(); X=[X[0]+KR[:K60],KR[K60:K60+K61]+X[1],X[2]]; KR=KR[K60+K61:]
            if CLS==6 and CLP==1: X[1]=cl+X[1]
            if CLS==6 and CLP==2: X[1]=X[1]+cl
            if CLS==6 and CLP==3: X[2]=cl+X[2]
        if s==0:
            F=[reads(0,1,1),reads(0,2,0),reads(0,3,1)]; g=0; LS=lnst(YPS==-1) if LSP==0 else []; lw=-9
            DE=[]
            if D2P:
                DE=D+nextk; D=[]
                if not LSG: D=LS; LS=[]
            d2t=[D2G]
            if D2L: D2Q=[int(x) for x in D2L.split('_')]; d2t=[D2Q.pop(0)]
            def d2w(g):
                while DE and g>=d2t[0]:
                    while DE and not callable(DE[0]): run([DE.pop(0)])
                    if DE: run([DE.pop(0)])
                    while DE and not any(callable(x) for x in DE): run([DE.pop(0)])
                    if D2L: d2t[0]=D2Q.pop(0) if D2Q else d2t[0]
                    else: d2t[0]+=D2P/10
            for st in range(3):
                k.w(d="fr")
                for i,m in enumerate(mf(st&1,st==0)):
                    k(m); n=0
                    while F[st] and n<2: run([F[st].pop(0)]); n+=1
                    if IOL and IOL[0][0]=='w':
                        if g-lw>=W0E: run([IOL.pop(0)[1]]); lw=g
                    else:
                        while IOL and IOL[0][0]=='r' and n<4: run([IOL.pop(0)[1]]); n+=1
                    if LSG:
                        if g>=LSG-1 and LS: run([LS.pop(0)])
                    elif st>=1 and LS and n<3: run([LS.pop(0)])
                    d2w(g)
                    g+=1
                run(F[st])
            run([x[1] for x in IOL]); run(LS)
            if probe&1: k.stamp('io')
            if PTS==0:
                if LSG:
                    F=[]
                    for i in range(12): F.append(lambda i=i: d2w(18+i*PTW/120))
                    ptail(F); g0_=18+PTW/10
                else: ptail(DE+D if D2P else D+nextk); DE=[]
                D=[]
            elif not LSG: run(DE); DE=[]
            else: g0_=18
            if KCB==0: KW=kcw()
            if probe&1: k.stamp('d2')
        else:
            k.w(d="fr"); wv(mf(0),mix(reads(slot,1,1),X[0]),per[0])
            if probe&4 and s>=5: k.stamp('a')
            k.w(d="fr"); wv(mf(1),mix(reads(slot,2,0),X[1]),per[1])
            if probe&4 and s>=5: k.stamp('b')
            k.w(d="fr"); wv(mf(0),mix(reads(slot,3,1),X[2]),per[2])
        if probe&4 and s>=5: k.stamp('c')
        ns=(s+1)%3; A=[]
        if ns==2: A=adv(SS); base[0]=SS
        if ns==0: A=adv(-SS); base[0]=0
        wt=f"d{s+1}"
        ex=[]
        if s==LPS: ex=[lambda: poll("lnp",PL,LNP,SB,LNX)]+sl+(cl if CLS==LPS else [])+uloads()
        bar=[lambda wt=wt:(k.w(v=wt),k("s_barrier"))]
        if s==LAS:
            bar.append(lnatomic); bar[0]=lambda wt=wt:(k.w(v=min(k.nv(wt),k.nv('lnst'))),k('s_barrier'))
            assert LAS>=max(LSP,YPS)
        if s==1 and PTS: flush(np_)
        if s==min(PTS,1): k.w(d=0)
        else: k.w(d="fr")
        if s==0 and PTS: ex=D
        if s==6:
            ex=ex+W6R
            if LBD: LBL=list(side); del side[:]; print("deferred",len(LBL))
            else: flush(nside)
        if s==LAS+3: k.smem=0
        M3=mf(1)
        if s==0 and DE: M3=[(lambda i=i,m=m: (k(m),d2w(g0_+i))) for i,m in enumerate(M3)]
        wv(M3,bar+A[:2]+reads(ns,0,0)+A[2:]+ex,[len(bar),5,5,3,2,5])
        k.stamp(f's{s+1}')
    R=[]
    for wh in (('b',0),('a',0),('b',1),('a',1),('a',2)):
        for st in (1,2,3): R+=rd(1,st,st,wh,f"f{wh[0]}{wh[1]}")
    mx=[f"v_mfma_f32_32x32x8_bf16 {vr(ACC+16*b,16)}, {ar(EA+2*(b>>1),2)}, {ar(EB+2*(b&1),2)}, {vr(ACC+16*b,16)}" for b in range(6)]
    def hepi(b):
        a=ACC+16*b; u,e=b>>1,b&1
        L=[f"v_mul_f32 v{a+r}, v{a+r}, v{a+8+r}" for r in range(8)]
        L+=[f"v_cvt_pk_bf16_f32 v{a+8+j}, v{a+2*j}, v{a+2*j+1}" for j in range(4)]
        L.append(lambda: k.vm(f"buffer_store_dwordx4 {vr(a+8,4)}, v{HS+u}, {srd(SW)}, s{sH0+e} offen sc1","h"))
        return L
    WA=sum((wd_dma(j) for j in range(NPRE,NPRE+NA7)),[]); nwd=NPRE+NA7
    s4=lambda n: (k.stamp(n) if probe&4 else 0)
    k.w(d="fr"); wv(mf(0),mix(R[:18],WA[:G7])+[lambda: s4('c<'),cscheck,lambda: s4('c>')],[4,4,4,4,4,9])
    LQ=mix(R[18:],WA[G7:])+uwrite(); nR=len(LQ)-3
    if KCB==3: LQ+=KR
    need={0:"fa0",1:"fb1",2:"fa1",4:"fa2"}
    HQ=[]; fin={}; g=6
    def gap(nh,nl):
        nonlocal nR
        n=0
        while HQ and n<nh and icount()-fin[HQ[0][0]]>=12: run([HQ.pop(0)[1]]); n+=1
        n=0
        while LQ and n<nl and (nR>0 or g>=TWS): run([LQ.pop(0)]); n+=1; nR-=1
    for m in mx: k(m); gap(0,4 if nR>0 else 1); g+=1
    for b in range(6):
        s4(f't{b}')
        if b in need: k.w(d=need[b])
        for st in (1,2,3):
            k(mf1(st,b))
            if st==3: fin[b]=icount(); HQ+=[(b,f) for f in hepi(b)]
            gap(NH,4 if nR>0 else (g&1)); g+=1
    k.stamp('g1')
    while HQ or LQ:
        if not HQ: g=999
        n0=icount(); gap(NH,NL)
        if icount()==n0: k("s_nop 0")
    if KCB==2:
        k.stamp('hepi'); KL=kcw()
        if LBD:
            if LBD==2: LBL+=LB[4]+LB[5]
            n=-(-len(LBL)//9)
            for i,f in enumerate(KL): run([f]+LBL[n*i:n*i+n])
        else: run(KL)
    k(f"{MRG}:"); nst_mrg=k.nst
    k.w(d=0); k("s_barrier")
    k.stamp('exp')
    CS0A,CS0B=('a',176),('a',208); CS1A,CS1B=('v',16),('v',48); CACC=112
    def rg(t,o,n): return (ar if t[0]=='a' else vr)(t[1]+o,n)
    def conv_reads(rho):
        RA,RB=((CS0A,CS0B),(CS1A,CS1B))[rho&1]
        L=[]
        for i in range(8):
            L.append(lambda i=i: k.ds(f"ds_read_b128 {rg(RB,4*i,4)}, v{CB} offset:{192-64*rho+512*i}",f"cv{rho}"))
            for h in range(2): L.append(lambda i=i,h=h: k.ds(f"ds_read_b64 {rg(RA,4*i+2*h,2)}, v{CA} offset:{3776-512*i-64*rho+8*h}",f"cv{rho}" if (rho or h==0) else f"cv0_{i}"))
        return L
    def conv_mf(rho):
        RA,RB=((CS0A,CS0B),(CS1A,CS1B))[rho&1]
        L=[]
        for s in range(8):
            for i in range(s+1):
                I=s
                c="0" if (rho==0 and i==0) else vr(CACC+4*I,4)
                L.append(f"v_mfma_f32_16x16x32_bf16 {vr(CACC+4*I,4)}, {rg(RA,4*i,4)}, {rg(RB,4*(I-i),4)}, {c}")
        return L
    st_=lambda n: [lambda: k.stamp(n)] if probe&2 else []
    def trs(js):
        L=[]
        for j in js:
            T=wd_tr(j); L+=[lambda j=j,f=T[0]: (k.w(v=f"wd{j}"),f())]+T[1:]
        return L
    def dm(j):
        D=wd_dma(j)
        if j>=14: return [lambda: (k(D[0]),k.w(d=f"wt{j-14}") if f"wt{j-14}" in k.dq else 0)]+D[1:]
        return D
    def dms(a,b): return sum((dm(j) for j in range(max(a,nwd),b)),[])
    HSL=[('v',144+8*i) for i in range(6)]+[('a',240),('a',248)]+[('a',176+8*i) for i in range(8)]
    HSL=HSL[:DEPTH+1]
    def hload(j):
        r=HSL[j%(DEPTH+1)]
        return [lambda: (k(f"s_lshr_b32 s{sT0}, s{4+j}, 4"),k.vm(f"buffer_load_dwordx4 {rg(r,0,4)}, v{HL}, {srd(SW)}, s{sT0} offen{'' if NSC&2 else ' sc1'}",f"h{j}")),
                lambda: k.vm(f"buffer_load_dwordx4 {rg(r,4,4)}, v{HL+1}, {srd(SW)}, s{sT0} offen{'' if NSC&2 else ' sc1'}",f"h{j}")]
    hflag=st_('hw')+[lambda: (k.w(v="h"),sat(sFH))]+st_('hack')
    hpl=[lambda: k.vm(f"buffer_load_dword v100, v{FHP}, {srd(SW)}, 0 offen sc1","hp")]
    XRW=200 if XG>=0 else 104
    if XG>=0: XIT=-1
    xl=[lambda: k.vm(f"buffer_load_dwordx4 {vr(XRW,4)}, v{XO}, {srd(SX)}, 0 offen","x"),
        lambda: k.vm(f"buffer_load_dwordx4 {vr(XRW+4,4)}, v{XO}, {srd(SX)}, 0 offen offset:32","x"),
        lambda: k.vm(f"buffer_load_dword v103, v{RS}, {srd(SW)}, 0 offen sc1","x")]
    hchk=st_('prep')+[lambda: poll("hp",100,FHP,SW,FLX)]+st_('hpok')+sum((hload(j) for j in range(DEPTH)),[])
    CR=conv_reads(0); run(CR[:15])
    M=[]
    for rho in range(4):
        m=conv_mf(rho)
        if rho==0:
            i0=0
            for s in range(8): m[i0]=(lambda s=s,t=m[i0]: (k.w(d=f"cv0_{s}"),k(t))); i0+=s+1
        else: m[0]=(lambda rho=rho,t=m[0]: (run(st_(f'r{rho-1}')),k.w(d=f"cv{rho}"),k(t),k("s_barrier" if rho==3 else "")))
        M+=m
    SC=eval(SCH.replace('_',',')) if isinstance(SCH,str) else None
    g0,g1,g2,g3,g4,g5,g6=SC or (0,20,44,60,64,80,20)
    n0=nwd+3
    if not VP: PL_=[(0,CR[15:]+conv_reads(1)),(36,conv_reads(2)),(72,conv_reads(3)),
         (g0,dms(0,n0)),(g1,trs(range(0,NPRE))),(HFG,hflag),(g2,dms(n0,14)+xl),(g3,dms(14,18)),(g4,trs(range(NPRE,TRG))+dms(18,22)),(HPG-g6,hpl),(HPG,hchk)]
    else:
        PL_=[(0,CR[15:]+conv_reads(1)),(36,conv_reads(2)),(72,conv_reads(3)),(g0,dms(0,n0)),(g1,trs(range(0,nwd))),(HFG,hflag)]
        if XG>=0: PL_+=[(XG+2*i,[f]) for i,f in enumerate(xl)]
        tg={j:g1+2*j for j in range(nwd)}
        for j in range(nwd,n0): tg[j]=HFG+T1+2*(j-nwd); PL_.append((tg[j],trs([j])))
        for j in range(n0,n0+NE6):
            PL_.append((GE6+3*(j-n0),dm(j)))
            if j<TRG: tg[j]=HFG+T1+2*(j-nwd); PL_.append((tg[j],trs([j])))
        n0+=NE6
        t=HFG+1.0
        for j in range(n0,NWC):
            if j>=14: t=max(t,tg[j-14]+3)
            D=dm(j); PL_.append((int(t),D[:2])); st=1 if j<n0+NB else VP/10
            PL_.append((int(t+st),D[2:]))
            if j<TRG: tg[j]=int(t+st)+TL; PL_.append((tg[j],trs([j])))
            t+=2*st
        print("wd sched end",t,tg)
        PL_+=[(HPG-HPD,hpl),(HPG,hchk[:-2*DEPTH])]
        t=HPG+1.0
        for f in hchk[-2*DEPTH:]+(xl if XIT<0 and XG<0 else []): PL_.append((int(t),[f])); t+=HP/10
    PL_=[(a+(0.5 if a%36==0 and i>2 else 0),b) for i,(a,b) in enumerate(PL_)]
    PL_=sorted([(a,list(b)) for a,b in PL_],key=lambda x:x[0])
    for g,m in enumerate(M):
        run([m]); n=3 if g<4 else 2
        if g%36==35: n=99
        for a,L in PL_:
            while a<=g and L and n>0 and not (g%36==35 and a%36): run([L.pop(0)]); n-=1
    LEFT=sum((L for a,L in PL_),[])
    run(LEFT[:NX0]); LEFT=LEFT[NX0:]; LX1=LEFT[:NX1]; LEFT=LEFT[NX1:]; print("left",len(LX1),len(LEFT))
    k.stamp('conv'); k.smem=0
    H1=k.lab("H1"); HE=k.lab("HE")
    k(f"""s_lshl_b32 s{sT1}, s{sWV}, 12
    s_add_u32 s{sT1}, s{sT1}, {KC+8192}
    v_add_u32 v96, s{sT1}, v{EXW}
    s_xor_b32 s{sT2}, s{sWV}, 1
    s_lshl_b32 s{sT2}, s{sT2}, 12
    s_add_u32 s{sT2}, s{sT2}, {KC+8192}
    v_add_u32 v97, s{sT2}, v{EXW}
    s_bitcmp1_b32 s{sWV}, 0
    s_cbranch_scc1 {H1}""")
    for hh in range(2):
        snd=CACC+16*(1-hh); own=CACC+16*hh
        if hh==0: k("s_nop 1")
        for j in range(4): k(f"ds_write_b128 v96, {vr(snd+4*j,4)} offset:{1024*j}")
        nq=len(k.vq); run(LX1)
        if hh==0: del k.vq[nq:]
        k("s_waitcnt lgkmcnt(0)\ns_barrier")
        for j in range(4): k(f"ds_read_b128 {vr(80+4*j,4)}, v97 offset:{1024*j}")
        for j in range(4):
            k(f"s_waitcnt lgkmcnt({3-j})")
            k(f"v_pk_add_f32 {vr(80+4*j,2)}, {vr(80+4*j,2)}, {vr(own+4*j,2)}\nv_pk_add_f32 {vr(82+4*j,2)}, {vr(82+4*j,2)}, {vr(own+4*j+2,2)}")
        if hh==0: k(f"s_branch {HE}\n{H1}:")
    k(f"{HE}:"); k.dq=[]
    for j in range(4): k(f"v_cvt_pk_bf16_f32 v{112+2*j}, v{80+4*j}, v{81+4*j}\nv_cvt_pk_bf16_f32 v{113+2*j}, v{82+4*j}, v{83+4*j}")
    k("s_nop 0")
    for j in range(2):
        k(f"v_permlane16_swap_b32 v{112+4*j}, v{114+4*j}\nv_permlane16_swap_b32 v{113+4*j}, v{115+4*j}")
    run(LEFT[:NX2]); LEFT=LEFT[NX2:]
    yst=[lambda j=j: k.vm(f"buffer_store_dwordx4 {vr(112+4*j,4)}, v{YS}, {srd(SW)}, 0 offen offset:{1024*j} sc1","y") for j in range(2)]
    if YSI<0: run(yst)
    run(st_('yst')); run(LEFT)
    k.stamp('xchg')
    A2=16
    def g2m(j,d,t):
        r=HSL[j%(DEPTH+1)]
        return f"v_mfma_f32_32x32x16_bf16 {vr(A2+16*(2*d+t),16)}, {ar(8*j+4*d,4)}, {rg(r,4*t,4)}, {'0' if j==0 else vr(A2+16*(2*d+t),16)}"
    def g2mf(j): return [g2m(j,d,t) for d,t in((1,1),(1,0),(0,1),(0,0))]
    yl=[lambda q=q: k.vm(f"buffer_load_dwordx4 {vr(112+4*q,4)}, v{YL}, {srd(SW)}, {'s%d'%sYQ if q else 0} offen sc1","yl") for q in range(2)]
    def ycheck():
        k.w(v="yl")
        if not YP: return
        ok=k.lab("OK"); rt=k.lab("RT"); lp=k.lab("RL")
        chk=f"v_max3_u32 v101, v112, v113, v114\nv_max3_u32 v102, v115, v116, v117\nv_max3_u32 v101, v101, v118, v119\nv_max_u32 v101, v101, v102\nv_cmp_eq_u32 vcc, -1, v101"
        k(f"{chk}\ns_cbranch_vccnz {rt}\n{ok}:")
        k.tail.append(f"""{rt}:
        s_movk_i32 s{sRING}, 4000
        {lp}:
        buffer_load_dwordx4 v[112:115], v{YL}, {srd(SW)}, 0 offen sc1
        buffer_load_dwordx4 v[116:119], v{YL}, {srd(SW)}, s{sYQ} offen sc1
        s_waitcnt vmcnt(0)
        {chk}
        s_cbranch_vccz {ok}
        s_sub_u32 s{sRING}, s{sRING}, 1
        s_cmp_lg_u32 s{sRING}, 0
        s_cbranch_scc1 {lp}
        s_branch {ok}""")
    yw=[lambda q=q: k.ds(f"ds_write_b128 v{YW}, {vr(112+4*q,4)} offset:{1024*q}") for q in range(2)]
    yt=[lambda a=a: k.ds(f"ds_read_b64_tr_b16 {vr(120+2*a,2)}, v{YR} offset:{512*a}","yt") for a in range(4)]
    RAD=[f"v_add_u32 v96, s{sAW}, v{EXW}",f"v_add_u32 v97, s{sCWB}, v{EXW}"]
    for x in (1,2,3):
        RAD.append(f"s_xor_b32 s{sT1}, s{sWV}, {x}")
        if x<3: RAD+=[f"s_mul_i32 s{sT1}, s{sT1}, {AWS}",f"s_add_u32 s{sT1}, s{sT1}, {4096*(x-1)}"]
        else: RAD+=[f"s_mul_i32 s{sT1}, s{sT1}, {CWS}",f"s_add_u32 s{sT1}, s{sT1}, {CW}"]
        RAD.append(f"v_add_u32 v{97+x}, s{sT1}, v{EXW}")
    XU=[]
    for j in range(8): XU+=[f"v_lshlrev_b32 v{80+2*j}, 16, v{XRW+j}",f"v_and_b32 v{81+2*j}, s{sMSK}, v{XRW+j}"]
    XU[0]=(lambda t=XU[0]: (k.w(v="x"),k(t)))
    HS_=[int(x) for x in str(HSC).split('_')] if HSC else []
    assert not HSC or (len(HS_)==22-DEPTH and all(t>=i for i,t in enumerate(HS_)))
    SK=k.lab("SK"); OPT=21-QM
    waited=False
    for j in range(22-QM):
        fl=[]
        if WSC: fl+=sum((dm(NWC+i) for i,t in enumerate(str(WSC).split('_')) if int(t)==j),[])
        elif VP and j>=WG0 and (j-WG0)%WGS==0 and NWC+(j-WG0)//WGS<22: fl+=dm(NWC+(j-WG0)//WGS)
        if HSC: fl+=sum((hload(DEPTH+i) for i,t in enumerate(HS_) if t==j),[])
        elif j+DEPTH<22: fl+=hload(j+DEPTH)
        if not YP:
            if j==3: fl+=[lambda: (k.w(v="y"),sat(sFY))]
            if j==YLU-4: fl+=[lambda: k.vm(f"buffer_load_dword v134, v{FYP}, {srd(SW)}, 0 offen sc1","yp")]
            if j==YLU: fl+=[lambda: poll("yp",134,FYP,SW,FLX)]+yl
        elif j==YLU: fl+=yl
        if j==YSI: fl+=yst[:1]
        if j==YSI+1 and YSI>=0: fl+=yst[1:]
        if j==6: fl+=RAD
        if XUJ>=0 and j in(XUJ,XUJ+1): fl+=XU[8*(j-XUJ):8*(j-XUJ+1)]
        if YE>=0 and j==YE: fl+=[ycheck]+yw
        if YE>=0 and j==YE+1: fl+=yt
        if XIT<0 and j in(8,9): fl+=XU[8*(j-8):8*(j-7)]
        if XIT>=0 and j==XIT: fl+=xl[:2]
        if XIT>=0 and j==XIT+1: fl+=xl[2:]
        TD=max(3,QM+1)
        if TRG<=j+TD<22: fl=trs([j+TD])+fl
        if j==0: fl=trs(range(TRG,TD))+fl
        if j==OPT:
            run(fl); fl=[]
            k(f"s_cmp_ge_u32 s{sWV}, 2\ns_cbranch_scc1 {SK}")
        if j>=TRG: k.w(v=f"h{j}",d=f"wt{j}")
        else: k.w(v=f"h{j}")
        weave(k,g2mf(j),fl,3)
        if j==OPT: k(f"{SK}:")
        if j in(0,4,10,16,17): run(st_(f'u{j}'))
    def rwr(x): return [lambda a=a: k.ds(f"ds_write_b128 v{97 if x==3 else 96}, {vr(A2+16*x+4*a,4)} offset:{1024*a+(4096 if x==2 else 0)}") for a in range(4)]
    if QM:
        js=list(range(22-QM,22))
        FQ=[]
        if YLU>=22-QM: FQ+=yl
        for x in (3,2,1,0):
            for i,j in enumerate(js):
                if x==3: k.w(v=f"h{j}",d=f"wt{j}")
                k(g2m(j,x>>1,x&1))
                if QS:
                    if i==1 and x<3: FQ+=rwr(x+1)
                    if FQ and (i&1 or x==3): run([FQ.pop(0)])
                    continue
                if i==2 and x<3: FQ+=rwr(x+1)
                if FQ and (i>=2 or x==3): run([FQ.pop(0)])
        k.stamp('g2'); k.smem=0
        run(FQ); ycheck(); run(yw+yt)
    else:
        k.stamp('g2'); k.smem=0
        if YE>=0:
            assert XIT>=0 and (YE<=20 or YE==22)
            if YE==22: ycheck(); run(yw+yt)
            else: k("s_nop 8")
            V=list(XU)+[lambda: k.w(d="yt")]
            for a in (0,4):
                for r in range(2): V.append(f"v_permlane32_swap_b32 v{120+a+r}, v{122+a+r}")
            for j in range(8): V+=[f"v_lshlrev_b32 v{112+2*(j&3)}, 16, v{120+j}",f"v_and_b32 v{113+2*(j&3)}, s{sMSK}, v{120+j}",f"v_pk_add_f32 {vr(80+2*j,2)}, {vr(80+2*j,2)}, {vr(112+2*(j&3),2)}"]
            for f in rwr(3)+rwr(2)+rwr(1):
                f(); run(V[:YV]); V=V[YV:]
            run(V)
        else:
          k("s_nop 8")
          for x in (3,2,1): run(rwr(x))
        if probe&8: k.stamp('e1'); k.smem=0
        if YE<0 and YO in(0,3): ycheck()
        if probe&8: k.stamp('e2'); k.smem=0
        if YE<0 and YO==0: run(yw+yt)
        if YO==3: run(yw)
    if XIT>=0 and YE<0 and XUJ<0 and YO==0: run(XU)
    if probe&8: k.stamp('e3'); k.smem=0
    k.w(d=0)
    if probe&8: k.stamp('e4'); k.smem=0
    k("s_barrier")
    if probe&8: k.stamp('e5'); k.smem=0
    if YO:
        rdx=lambda x: [k.ds(f"ds_read_b128 {vr(144+16*(x-1)+4*a,4)}, v{97+x} offset:{1024*a}",f"rd{x}") for a in range(4)]
        def addx(x):
            k.w(d=f"rd{x}")
            for j in range(8): k(f"v_pk_add_f32 {vr(A2+2*j,2)}, {vr(A2+2*j,2)}, {vr(144+16*(x-1)+2*j,2)}")
        def ymix():
            k.w(d="yt")
            for a in (0,4):
                for r in range(2): k(f"v_permlane32_swap_b32 v{120+a+r}, v{122+a+r}")
            for j in range(8): k(f"v_lshlrev_b32 v{32+2*j}, 16, v{120+j}\nv_and_b32 v{33+2*j}, s{sMSK}, v{120+j}\nv_pk_add_f32 {vr(80+2*j,2)}, {vr(80+2*j,2)}, {vr(32+2*j,2)}")
        if YO==1: rdx(1); ycheck(); run(yw+yt); rdx(2); rdx(3)
        elif YO==2: ycheck(); run(yw+yt); rdx(1); rdx(2); rdx(3)
        else: run(yt); rdx(1); rdx(2); rdx(3)
        if XUJ<0 and XIT>=0: run(XU)
        if YO==1: addx(1); ymix()
        else: ymix(); addx(1)
        addx(2); addx(3)
    else:
        for x in (1,2,3):
            for a in range(4): k.ds(f"ds_read_b128 {vr(144+16*(x-1)+4*a,4)}, v{97+x} offset:{1024*a}",f"rd{x}")
        for j in range(8*(YE<0)): k(f"v_lshlrev_b32 v{32+2*j}, 16, v{120+j}\nv_and_b32 v{33+2*j}, s{sMSK}, v{120+j}")
        for x in (1,2,3):
            k.w(d=f"rd{x}")
            for j in range(8): k(f"v_pk_add_f32 {vr(A2+2*j,2)}, {vr(A2+2*j,2)}, {vr(144+16*(x-1)+2*j,2)}")
    if probe&8: k.stamp('e6'); k.smem=0
    for j in range(8*(YE<0 and not YO)): k(f"v_pk_fma_f32 {vr(A2+2*j,2)}, {vr(A2+2*j,2)}, v[102:103], {vr(32+2*j,2)} op_sel:[0,1,0] op_sel_hi:[1,1,1]")
    for a in(0,2):
        for r in range(4): k(f"v_permlane32_swap_b32 v{A2+4*a+r}, v{A2+4*a+4+r}")
    for j in range(8):
        if YE>=0 or YO: k(f"v_pk_fma_f32 {vr(A2+2*j,2)}, {vr(A2+2*j,2)}, v[102:103], {vr(80+2*j,2)} op_sel:[0,1,0] op_sel_hi:[1,1,1]\nv_cvt_pk_bf16_f32 v{104+j}, v{A2+2*j}, v{A2+2*j+1}")
        else: k(f"v_pk_add_f32 {vr(A2+2*j,2)}, {vr(A2+2*j,2)}, {vr(80+2*j,2)}\nv_cvt_pk_bf16_f32 v{104+j}, v{A2+2*j}, v{A2+2*j+1}")
        if j%4==3: k.vm(f"buffer_store_dwordx4 {vr(104+j-3,4)}, v{XO}, {srd(SO)}, 0 offen offset:{32*(j//4)} {OSF.replace('_',' ')}","o")
    if prof:
        k.stamp('epi'); k("s_waitcnt vmcnt(0) lgkmcnt(0)"); k.stamp('drain'); k("s_waitcnt lgkmcnt(0)"); k.stamp(); k.stamp()
        k("; STAMPS "+" ".join(k.names[:-2]))
        k("s_memrealtime s[94:95]\ns_waitcnt lgkmcnt(0)\nv_writelane_b32 v199, s94, 62\nv_writelane_b32 v199, s96, 63")
        k(f"s_lshl_b32 s{sT0}, s2, 2\ns_add_u32 s{sT0}, s{sT0}, s{sWV}\ns_lshl_b32 s{sT0}, s{sT0}, 8\ns_add_u32 s{sT0}, s{sT0}, {PROF}\nv_lshl_add_u32 v2, v1, 2, s{sT0}")
        k(f"buffer_store_dword v199, v2, {srd(SW)}, 0 offen")
        if pace:
            L=k.lab(); LP=k.lab()
            k(f"""s_cmp_lg_u32 s{sWV}, 0
            s_cbranch_scc1 {L}
            s_cmp_lg_u32 s2, {pwg}
            s_cbranch_scc1 {L}""")
            if pace==1: k(f"s_mov_b32 s{sT0}, 6000")
            if pace==2: k(f"s_sub_u32 s{sT0}, s94, s96\ns_lshl_b32 s{sT0}, s{sT0}, 2")
            if pace==3: k(f"v_readlane_b32 s{sT0}, v199, {k.names.index(pidx)}\ns_sub_u32 s{sT0}, s{sT0}, s34\ns_lshr_b32 s{sT0}, s{sT0}, {psh}\ns_add_u32 s{sT0}, s{sT0}, 4000")
            if pace==4: k(f"v_readlane_b32 s{sT0}, v199, {k.names.index(pidx)}\nv_readlane_b32 s{sT1}, v199, {k.names.index(pidx2)}\ns_sub_u32 s{sT0}, s{sT0}, s{sT1}\ns_lshr_b32 s{sT0}, s{sT0}, {psh}\ns_add_u32 s{sT0}, s{sT0}, 4000")
            k(f"""s_min_u32 s{sT0}, s{sT0}, 30000
            s_mov_b32 s{sT2}, 100000
            {LP}:
            s_memrealtime s[94:95]
            s_waitcnt lgkmcnt(0)
            s_sub_u32 s{sT1}, s94, s96
            s_cmp_ge_u32 s{sT1}, s{sT0}
            s_cbranch_scc1 {L}
            s_sub_u32 s{sT2}, s{sT2}, 1
            s_cmp_lg_u32 s{sT2}, 0
            s_cbranch_scc1 {LP}
            {L}:""")
        if dbg:
            L=k.lab()
            k(f"""s_cmp_lg_u32 s{sWV}, 0
            s_cbranch_scc1 {L}
            s_and_b32 s{sT0}, s2, 0x18
            s_cmp_lg_u32 s{sT0}, 0
            s_cbranch_scc1 {L}
            s_sub_u32 s{sT0}, s94, s96
            v_writelane_b32 v199, s{sT0}, 2
            s_or_b32 s{sT0}, s94, 0x80000000
            s_not_b32 s{sT1}, s96
            s_or_b32 s{sT1}, s{sT1}, 0x80000000
            s_or_b32 s{sT2}, s96, 0x80000000
            v_mov_b32 v4, s{sT0}
            v_writelane_b32 v4, s{sT1}, 1
            v_writelane_b32 v4, s{sT2}, 2
            v_cmp_gt_u32 vcc, 3, v1
            v_lshlrev_b32 v6, 2, v1
            v_add_u32 v6, 52, v6
            v_mov_b32 v7, {hex(OOB)}
            v_cndmask_b32 v6, v7, v6, vcc
            buffer_atomic_umax v4, v6, {srd(SB)}, 0 offen sc1
            s_cmp_lg_u32 s2, {dbg-1}
            s_cbranch_scc1 {L}
            v_readlane_b32 s{sT0}, v199, 2
            v_readlane_b32 s{sT1}, v199, 14
            v_subrev_u32 v4, s34, v199
            s_sub_u32 s{sT1}, s{sT1}, s34
            v_writelane_b32 v4, s{sT0}, 2
            v_writelane_b32 v4, s{sT1}, 13
            v_cmp_gt_u32 vcc, 14, v1
            v_lshlrev_b32 v6, 2, v1
            v_add_u32 v6, -4, v6
            v_cndmask_b32 v6, v7, v6, vcc
            buffer_store_dword v4, v6, {srd(SB)}, 0 offen sc1
            {L}:""")
    k("s_endpgm")
    k(f"{CSL}:")
    k.vq=vq_cs; k.dq=dq_cs; k.smem=0; k.nst=nst_cs; k.ptags=()
    def cst(n):
        if k.nst<nst_mrg: k.stamp(n)
    if not CSN:
        run([x[1] for x in IOL_cs]); ptail()
        k("s_waitcnt lgkmcnt(0)\ns_barrier"); cst('pt')
        run(lntr())
        k(f"""s_mul_i32 s{sT2}, s{sFT}, 768
        s_add_u32 s{sT2}, s{sT2}, {CS}
        s_cmp_eq_u32 s{sWV}, 3
        s_cselect_b32 s{sT2}, {hex(OOB)}, s{sT2}
        v_lshl_add_u32 v{CSA}, v0, 2, s{sT2}
        v_mov_b32 v19, -1
        s_mov_b32 s{sC1}, {SS}
        s_mov_b32 s{sC2}, {-2*SS}""")
        k.vm(f"buffer_store_dword v19, v{CSA}, {srd(SW)}, 0 offen sc1","lnst")
        run(lnst(YPS!=-2))
        k(f"""s_mul_i32 s{sT0}, s{sWV}, 3072
        s_lshr_b32 s{sT1}, s{sWV}, 1
        s_mul_i32 s{sT1}, s{sT1}, 96
        s_sub_u32 s{sT0}, s{sT0}, s{sT1}
        v_add_u32 v{WR}, s{sT0}, v{WR}
        v_mov_b32 v112, 0x3f803f80
        v_mov_b32 v113, v112
        v_mov_b32 v114, v112
        v_mov_b32 v115, v112
        s_mov_b32 s{sRING}, {2*SS}
        s_mov_b32 s{sCNT}, 0""")
        for r in range(16,112): k(f"v_mov_b32 v{r}, 0")
        def csdma():
            D=dma_list(f"s{sRING}","c")[5:]
            for f in D: f() if callable(f) else (k(f),k("s_nop 0"))
            for f in nextk: k(f)
        csdma()
        cst('pre'); CL=k.lab("CL"); CN=k.lab("CN"); CA_=k.lab("CN")
        k.w(v="d0"); k(f"s_branch {CA_}")
        k(f"{CL}:\ns_waitcnt vmcnt(12)\ns_cmp_lt_u32 s{sCNT}, 6\ns_cbranch_scc1 {CN}\ns_waitcnt vmcnt(0)\n{CN}:")
        k(f"s_cmp_lg_u32 s{sCNT}, 1\ns_cbranch_scc1 {CA_}\ns_barrier"); lnatomic(); k(f"{CA_}:")
        for u in range(6):
            for h in range(2): k(f"ds_read_b64_tr_b16 {vr(116+4*u+2*h,2)}, v{WR} offset:{768*h+32*u}")
        k(f"ds_read_u8 v{JNK}, v1")
        CN2=k.lab("CN")
        k(f"""s_add_u32 s{sRING}, s{sRING}, s{sC1}
        s_cmp_eq_u32 s{sRING}, {3*SS}
        s_cselect_b32 s{sRING}, 0, s{sRING}
        s_cmp_eq_u32 s{sRING}, {2*SS}
        s_cselect_b32 s{sDL}, s{sC2}, s{sC1}
        v_add_u32 v{WR}, s{sDL}, v{WR}
        s_waitcnt lgkmcnt(1)
        s_cmp_ge_u32 s{sCNT}, 5
        s_cbranch_scc1 {CN2}""")
        csdma()
        k(f"{CN2}:")
        for u in range(6): k(f"v_mfma_f32_32x32x16_bf16 {vr(16+16*u,16)}, v[112:115], {vr(116+4*u,4)}, {vr(16+16*u,16)}")
        k(f"s_add_u32 s{sCNT}, s{sCNT}, 1\ns_cmp_lt_u32 s{sCNT}, 8\ns_cbranch_scc1 {CL}")
        cst('loop')
        k(f"""s_mul_i32 s{sT0}, s{sWV}, 768
        s_add_u32 s{sT0}, s{sT0}, {PT}
        v_lshl_add_u32 v140, v5, 2, s{sT0}
        v_min_u32 v141, 191, v0
        v_lshlrev_b32 v141, 2, v141
        v_add_u32 v141, {PT}, v141
        s_nop 7""")
        for u in range(6): k(f"ds_write_b32 v140, v{16+16*u} offset:{128*u}")
        k("s_waitcnt lgkmcnt(0)\ns_barrier")
        for j in range(4): k(f"ds_read_b32 v{144+j}, v141 offset:{768*j}")
        k(f"""s_waitcnt lgkmcnt(0)
        v_add_f32 v144, v144, v145
        v_add_f32 v146, v146, v147
        v_add_f32 v144, v144, v146
        v_cvt_pk_bf16_f32 v145, v144, v144
        v_and_b32 v145, s{sMSK}, v145
        v_sub_f32 v146, v144, v145
        v_cvt_pk_bf16_f32 v145, v145, v146
        buffer_store_dword v145, v{CSA}, {srd(SW)}, 0 offen sc1
        s_and_b32 s{sT0}, s{sWV}, 1
        s_lshr_b32 s{sT1}, s{sWV}, 1""")
        k.vq=[]; k.dq=[]; k.smem=0; cst('cs')
        if CST:
            k(f"""s_lshl_b32 s{sT2}, s{sFT}, 2
            s_add_u32 s{sT2}, s{sT2}, s{sWV}
            s_mul_i32 s{sT2}, s{sT2}, {22016}
            v_lshl_add_u32 v140, v1, {CST}, s{sT2}""")
            for j in range(-(-22016//(64<<CST))):
                if j: k(f"v_add_u32 v140, {64<<CST}, v140")
                k.vm(f"buffer_load_dword v{16+j}, v140, {srd(SD)}, 0 offen","tch")
        run(exrd(0)+exrd(1)+exva(0)+exva(1))
        k("s_waitcnt lgkmcnt(0)\ns_barrier")
        cst('ex'); run(kcw()); cst('kc')
        run(late()); cst('late')
        k("s_nop 4")
        lnpoll(); poll("lnp",PL,LNP,SB,LNX)
        cst('poll'); run(uloads())
        for j in range(nwd): run(wd_dma(j))
        run(uwrite())
        cst('uw')
        k(f"s_waitcnt vmcnt(0) lgkmcnt(0)")
        while prof and k.nst<nst_mrg: cst('x')
        k(f"s_branch {MRG}")
    else:
        k.autod=1; ON=96; CF=176
        if CE: k(f"s_sub_u32 s{sMG}, s{sMG}, {SS}")
        def csdma(i):
            if CE: return
            run(dma_list((i%3)*SS,f"d{i}")[5:])
            if i<7: run(nextk)
        if CSL_>=0: csdma(2)
        k(f"""s_mul_i32 s{sT2}, s{sFT}, 768
        s_add_u32 s{sT2}, s{sT2}, {CS}
        s_cmp_eq_u32 s{sWV}, 3
        s_cselect_b32 s{sT2}, {hex(OOB)}, s{sT2}
        v_lshl_add_u32 v{CSA}, v0, 2, s{sT2}
        s_mul_i32 s{sT2}, s{sWV}, 3072
        s_mul_i32 s{sT3}, s{sT1}, 96
        s_sub_u32 s{sT2}, s{sT2}, s{sT3}
        v_add_u32 v{WR}, s{sT2}, v{WR}
        v_mov_b32 v9, 0x3f803f80
        v_add_u32 v{XR}, {SS}, v{WR}
        v_add_u32 v{XR+1}, {2*SS}, v{WR}""")
        for r in range(4): k(f"v_accvgpr_write_b32 a{ON+r}, v9")
        k(f"v_mov_b32 v11, -1")
        k.w(d=0); k("s_barrier")
        run(lntr())
        if CSL_<0:
            if CSL_==-2: csdma(2)
            k.vm(f"buffer_store_dword v11, v{CSA}, {srd(SW)}, 0 offen sc1","lnst"); run(lnst(YPS!=-2))
            if CSL_==-1: csdma(2)
        bar=lambda:(k.w(d=0),k("s_barrier"))
        P=ptail_items() if PTS==2 else [ptail]
        FQ=[x[1] for x in IOL_cs]+[t for t in P if t!="s_nop 0"]+[bar]+exrd(0)+exrd(1)[:3]+mix(exva(0),exrd(1)[3:])+exva(1)+[bar]+kcw()+late()
        def ct2():
            L=[f"""s_and_b32 s{sC1}, s{sI}, 1
            s_lshl_b32 s{sC1}, s{sC1}, 2
            v_add_u32 v12, s{sC1}, v2
            v_mul_u32_u24 v13, 3, v12
            v_lshlrev_b32 v12, 7, v12
            v_lshl_add_u32 v12, v7, 10, v12
            s_mul_i32 s{sC1}, s{sWV}, 22
            s_cmp_eq_u32 s{sWV}, 3
            s_cselect_b32 s{sC1}, 65, s{sC1}
            s_lshl_b32 s{sC1}, s{sC1}, 14
            v_add_u32 v12, s{sC1}, v12
            s_lshr_b32 s{sC1}, s{sWV}, 1
            s_sub_u32 s{sC1}, 22, s{sC1}"""]
            for u in str(CT2).split('_'):
                L.append(f"v_add_u32 v14, {u}, v13\nv_subrev_u32 v15, s{sC1}, v14\nv_min_u32 v14, v14, v15\nv_subrev_u32 v15, s{sC1}, v14\nv_min_u32 v14, v14, v15\nv_lshl_add_u32 v14, v14, 14, v12")
                L.append(lambda: k.vm(f"buffer_load_dword v{JNK}, v14, {srd(SD)}, 0 offen","tch"))
            return L
        def it(i,W=[]):
            k.w(v=f"d{i}")
            for u in range(6):
                for h in range(2): k.ds(f"ds_read_b64_tr_b16 {ar(CF+4*u+2*h,2)}, v{(WR,XR,XR+1)[i%3]} offset:{768*h+32*u}","cf")
            k.w(d="cf")
            D=(dma_list((i%3)*SS,f"d{i+3}")[5:]+(nextk if i<4 else [])) if i<5 else []
            weave(k,[f"v_mfma_f32_32x32x16_bf16 {vr(16+16*u,16)}, {ar(ON,4)}, {ar(CF+4*u,4)}, {vr(16+16*u,16) if i else '0'}" for u in range(6)],D,2)
            run(W); l0=len(k.L)
            while FQ and i<7 and sum(cost(l) for l in k.L[l0:])<(CSB if i else CSB0): run([FQ.pop(0)])
            cst(f'i{i}')
        for i in range(8):
            W=[]
            if i==CSL_: W=[lambda: k.vm(f"buffer_store_dword v11, v{CSA}, {srd(SW)}, 0 offen sc1","lnst")]+lnst(YPS!=-2)
            if i==CSA_: W=[lambda:(k.w(v="lnst"),k("s_barrier")),lnatomic]
            it(i,W)
        k.smem=0
        k(f"""s_mul_i32 s{sC1}, s{sWV}, 768
        s_add_u32 s{sC1}, s{sC1}, {PT}
        s_nop 4
        v_lshl_add_u32 v17, v5, 2, s{sC1}
        v_min_u32 v18, 191, v0
        v_lshlrev_b32 v18, 2, v18
        v_add_u32 v18, {PT}, v18
        s_nop 1""")
        for u in range(6): k(f"ds_write_b32 v17, v{16+16*u} offset:{128*u}")
        k("s_waitcnt lgkmcnt(0)\ns_barrier")
        for j in range(4): k(f"ds_read_b32 v{20+j}, v18 offset:{768*j}")
        k(f"""s_waitcnt lgkmcnt(0)
        v_add_f32 v20, v20, v21
        v_add_f32 v22, v22, v23
        v_add_f32 v20, v20, v22
        v_cvt_pk_bf16_f32 v21, v20, v20
        v_and_b32 v21, s{sMSK}, v21
        v_sub_f32 v22, v20, v21
        v_cvt_pk_bf16_f32 v21, v21, v22
        buffer_store_dword v21, v{CSA}, {srd(SW)}, 0 offen sc1""")
        k.vq=[]; cst('cs'); print("cs filler left",len(FQ))
        if CST:
            k(f"""s_lshl_b32 s{sC1}, s{sFT}, 2
            s_add_u32 s{sC1}, s{sC1}, s{sWV}
            s_mul_i32 s{sC1}, s{sC1}, {22016}
            v_lshl_add_u32 v24, v1, {CST}, s{sC1}""")
            for j in range(min(CSJ,-(-22016//(64<<CST)))):
                if j: k(f"v_add_u32 v24, {64<<CST}, v24")
                k.vm(f"buffer_load_dword v{25+j}, v24, {srd(SD)}, 0 offen","tch")
        if CT2: run(ct2()); cst('ct2')
        run(FQ); cst('fq')
        lnpoll(); poll("lnp",PL,LNP,SB,LNX)
        cst('poll'); k("s_barrier"); run(uloads())
        if WT6 and WTP: tch6()
        for j in range(nwd): run(wd_dma(j))
        if WT6 and not WTP: tch6()
        run(uwrite())
        k(f"v_mov_b32 v9, {hex(OOB)}")
        for j in range(6): k.vm(f"buffer_load_dword v10, v9, {srd(SW)}, 0 offen","h")
        cst('uw')
        while prof and k.nst<nst_mrg: cst('x')
        k(f"s_branch {MRG}")
    for t in k.tail: k(t)
    k(f"{END}:")
    return k
import struct
def f2b(x): return struct.unpack('<I',struct.pack('<f',x))[0]
if __name__=='__main__':
    out=sys.argv[1]; opts=dict(a.split('=') for a in sys.argv[2:])
    opts={a:(int(b) if b.lstrip('-').isdigit() else b) for a,b in opts.items()}
    k=gen(**opts)
    hdr="".join(l for l in open('cdna_kernels/'+NAME[:-7]+'.s.ref') if l.startswith(';') and '@launch' not in l)
    txt=module([k],[(None,256,256,163840)],hdr)
    open(out,'w').write(txt)
    print("hazards:",haz.check(txt.split('\n')))
```
